```python
import torch

def _softmax(x, axis=-1):
    return torch.softmax(x, dim=axis)
def _gelu(x):
    return torch.nn.functional.gelu(x, approximate="tanh")
def _silu(x):
    return torch.nn.functional.silu(x)
def _sigmoid(x):
    return torch.sigmoid(x)
def _layernorm(x, axis=-1, eps=1e-5):
    m = x.mean(dim=axis, keepdim=True)
    v = x.var(dim=axis, keepdim=True, unbiased=False)
    return (x - m) / torch.sqrt(v + eps)
def _scatter_add(tgt, idx, src, axis=0):
    return tgt.clone().index_add_(axis, idx, src)
def _segment_sum(src, seg, n):
    out = torch.zeros((n,) + src.shape[1:], dtype=src.dtype)
    return out.index_add_(0, seg, src)
def _pad(x, pw):
    flat = tuple(v for pair in reversed(pw) for v in pair)
    return torch.nn.functional.pad(x, flat)

kernel_name = 'parallel_sum__linear_attn_block__dense_activation_squared_relu__prompt'

def setup_inputs():

    _w = (lambda a: (lambda t: t.to(torch.bfloat16) if t.is_floating_point() else t)(torch.as_tensor(a)))
    def _A_setup():
        B, S, D = 1, 2048, 448
        return {
            "x": _w((lambda *s: torch.randn(*s, dtype=torch.bfloat16) * 0.05)(B, S, D)),
            "wqkv": _w((lambda *s: torch.randn(*s, dtype=torch.bfloat16) * 0.4)(D, 3 * D)),
            "wo": _w((lambda *s: torch.randn(*s, dtype=torch.bfloat16) * 0.4)(D, D)),
        }
    _A_in = _A_setup()

    def _B_setup():
        B, S, D, F = 1, 2048, 448, 1792
        return {
            "x": _w((lambda *s: torch.randn(*s, dtype=torch.bfloat16) * 0.05)(B, S, D)),
            "w1": _w((lambda *s: torch.randn(*s, dtype=torch.bfloat16) * 0.05)(D, F)),
            "b1": _w((lambda *s: torch.randn(*s, dtype=torch.bfloat16) * 0.4)(F)),
            "w2": _w((lambda *s: torch.randn(*s, dtype=torch.bfloat16) * 0.05)(F, D)),
            "b2": _w((lambda *s: torch.randn(*s, dtype=torch.bfloat16) * 1.6)(D)),
        }
    _B_in = _B_setup()

    return {
        "A_x": _A_in["x"],
        "A_wqkv": _A_in["wqkv"],
        "A_wo": _A_in["wo"],
        "B_x": _B_in["x"],
        "B_w1": _B_in["w1"],
        "B_b1": _B_in["b1"],
        "B_w2": _B_in["w2"],
        "B_b2": _B_in["b2"],
    }

def reference(A_x, A_wqkv, A_wo, B_x, B_w1, B_b1, B_w2, B_b2):
    def _A_ref(x, wqkv, wo):
        B, S, D = x.shape
        H = 16; Dh = D // H
        qkv = (lambda x, *d: x.permute(*d))((x @ wqkv).reshape(B, S, 3, H, Dh), 2, 0, 3, 1, 4)
        q, k, v = qkv[0], qkv[1], qkv[2]
        phi = lambda t: torch.where(t > 0, t + 1, torch.exp(t)) + 1e-6
        pq, pk = phi(q), phi(k)
        kv = torch.einsum("bhsd,bhse->bhde", pk, v)
        z = torch.einsum("bhsd->bhd", pk)
        num = torch.einsum("bhqd,bhde->bhqe", pq, kv)
        den = torch.einsum("bhqd,bhd->bhq", pq, z)[..., None] + 1e-6
        o = num / den
        return (lambda x, *d: x.permute(*d))(o, 0, 2, 1, 3).reshape(B, S, D) @ wo

    def _B_ref(x, w1, b1, w2, b2):
        h = torch.einsum("bsd,df->bsf", x, w1) + b1
        zero = torch.zeros_like(h)
        r = torch.where(h > zero, h, zero)
        h = r * r
        out = torch.einsum("bsf,fd->bsd", h, w2) + b2
        return out

    x = A_x
    xn = _layernorm(x, axis=-1)
    return x + _A_ref(xn, A_wqkv, A_wo) + _B_ref(xn, B_w1, B_b1, B_w2, B_b2)
```

```python
import re

def regs_of(tok):
    tok = tok.strip()
    neg = tok.lstrip('-').strip('|')
    m = re.fullmatch(r'([vas])(\d+)', neg)
    if m: return [(m.group(1), int(m.group(2)))]
    m = re.fullmatch(r'([vas])\[(\d+):(\d+)\]', neg)
    if m: return [(m.group(1), i) for i in range(int(m.group(2)), int(m.group(3)) + 1)]
    if neg == 'vcc': return [('s', 'vcc')]
    if neg == 'exec': return [('s', 'exec')]
    if neg == 'm0': return [('s', 'm0')]
    return []

TRANS = ('v_exp_f32', 'v_log_f32', 'v_rcp_f32', 'v_rsq_f32', 'v_sqrt_f32')

class Ins:
    def __init__(self, text):
        self.text = text
        t = text.split(';')[0].strip()
        self.label = t.endswith(':')
        self.op = t.split()[0] if t else ''
        rest = t[len(self.op):].strip()
        ops = [o.strip() for o in rest.split(',')] if rest else []
        if ops:
            last = ops[-1].split()
            ops[-1] = last[0] if last else ''
            self.mods = last[1:]
        else: self.mods = []
        self.ops = ops
        op = self.op
        self.kind = 'other'; self.w = []; self.r = []; self.c = []; self.ab = []
        R = lambda i: regs_of(ops[i]) if i < len(ops) else []
        if self.label or op.startswith('.') or not op: self.kind = 'meta'
        elif op.startswith('v_mfma'):
            self.kind = 'mfma'; self.w = R(0); self.ab = R(1) + R(2); self.c = R(3); self.r = self.ab + self.c
            self.passes = 8 if '32x32' in op else 4
        elif op.startswith('v_'):
            self.kind = 'valu'
            if op.startswith('v_cmp'):
                self.w = R(0); self.r = R(1) + R(2)
            elif op.startswith('v_permlane'):
                self.w = R(0) + R(1); self.r = R(0) + R(1)
            else:
                self.w = R(0); self.r = sum((R(i) for i in range(1, len(ops))), [])
                if op.startswith(('v_fmac', 'v_dot2c', 'v_writelane')) or '_dpp' in op: self.r += R(0)
                if op.startswith(('v_add_co', 'v_addc_co', 'v_sub_co')): self.w += R(1)
            self.trans = op.replace('_e64', '').replace('_e32', '') in TRANS
        elif op.startswith('ds_'):
            self.kind = 'ds'
            if op.startswith('ds_read'): self.w = R(0); self.r = R(1)
            else: self.r = sum((R(i) for i in range(len(ops))), [])
        elif op.startswith(('buffer_', 'global_')):
            self.kind = 'vmem'
            self.lds = 'lds' in self.mods or '_lds_' in op
            allr = sum((R(i) for i in range(len(ops))), [])
            if 'load' in op and not self.lds:
                self.w = R(0); self.r = sum((R(i) for i in range(1, len(ops))), [])
            else: self.r = allr
            if self.lds: self.r = self.r + [('s', 'm0')]
            self.wide = []
            if 'store_dwordx4' in op or 'store_dwordx3' in op:
                self.wide = R(0) if op.startswith('buffer') else R(1)
        elif op.startswith('s_'):
            self.kind = 'salu'
            if op.startswith(('s_waitcnt', 's_nop', 's_barrier', 's_branch', 's_cbranch', 's_endpgm', 's_sleep', 's_setprio')): pass
            elif op.startswith('s_cmp'): self.r = R(0) + R(1)
            else:
                self.w = R(0); self.r = sum((R(i) for i in range(1, len(ops))), [])
    def states(self):
        if self.kind == 'meta': return 0
        if self.op == 's_nop': return int(self.ops[0]) + 1
        return 1

def need(p, c):
    n = 0
    pw = set(p.w)
    if p.kind == 'valu':
        vw = {x for x in pw if x[0] in 'va'}; sw = {x for x in pw if x[0] == 's'}
        if c.kind == 'mfma' and vw & set(c.r): n = max(n, 2)
        if c.kind == 'valu':
            if p.trans and not c.trans and vw & set(c.r): n = max(n, 1)
            if p.trans and c.trans and vw & set(c.r): n = max(n, 1)
            if c.op.startswith(('v_readfirstlane', 'v_readlane')) and vw & set(c.r): n = max(n, 1)
            if (c.op.startswith('v_permlane') or '_dpp' in c.op) and vw & set(c.r): n = max(n, 2)
            if sw & set(c.r): n = max(n, 4 if c.op.startswith(('v_readlane', 'v_writelane')) else 2)
        if c.kind == 'vmem' and sw & set(c.r): n = max(n, 5)
        if c.kind == 'salu' and sw & set(c.r): n = max(n, 1)
    if p.kind == 'mfma':
        big = {8: 12, 4: 8}[p.passes]
        if c.kind == 'mfma':
            if pw & set(c.ab): n = max(n, big)
            if pw & set(c.c) and not (c.c == p.w and c.passes == p.passes): n = max(n, big - 2)
            if pw & set(c.w) and not (c.c == p.w): n = max(n, big)
        elif c.kind in ('valu', 'ds', 'vmem'):
            if pw & (set(c.r) | set(c.w)): n = max(n, big)
        if c.kind == 'valu' and set(p.c) & set(c.w): n = max(n, {8: 7, 4: 3}[p.passes])
    if p.kind == 'salu' and ('s', 'm0') in pw and c.kind == 'vmem' and c.lds: n = max(n, 1)
    if p.kind == 'vmem' and p.wide and set(p.wide) & set(c.w): n = max(n, 2)
    return n

class Asm:
    def __init__(self):
        self.L = []
        self.vm_issued = 0; self.vm_done = 0
        self.lg_issued = 0; self.lg_done = 0
        self.nops = 0
    def raw(self, text):
        for line in text.split('\n'):
            line = line.strip()
            if line: self._one(line)
    def _one(self, line):
        c = Ins(line)
        if c.kind != 'meta':
            d = 0; pad = 0
            for p in reversed(self.L):
                if d >= 20: break
                if p.kind != 'meta':
                    pad = max(pad, need(p, c) - d)
                d += p.states()
            while pad > 0:
                k = min(pad, 16); self.L.append(Ins(f's_nop {k-1}')); pad -= k; self.nops += 1
        self.L.append(c)
        if c.kind == 'vmem': self.vm_issued += 1; assert self.vm_issued - self.vm_done <= 63, "vmcnt overflow"
        if c.kind == 'ds': self.lg_issued += 1
        return c
    def __call__(self, text): self.raw(text)
    def vm(self, line):
        self._one(line); return self.vm_issued
    def ds(self, line):
        if self.lg_issued - self.lg_done >= 15: self.wait(lg=self.lg_issued - 12)
        self._one(line); return self.lg_issued
    def wait(self, vm=None, lg=None):
        parts = []
        if vm is not None and vm > self.vm_done:
            parts.append(f'vmcnt({self.vm_issued - vm})'); self.vm_done = vm
        if lg is not None and lg > self.lg_done:
            n = self.lg_issued - lg
            if n > 15: n = 15
            parts.append(f'lgkmcnt({n})'); self.lg_done = self.lg_issued - n
        if parts: self._one('s_waitcnt ' + ' '.join(parts)); return True
        return False
    def wait_all(self, vm=False, lg=False):
        parts = []
        if vm: parts.append('vmcnt(0)'); self.vm_done = self.vm_issued
        if lg: parts.append('lgkmcnt(0)'); self.lg_done = self.lg_issued
        self._one('s_waitcnt ' + ' '.join(parts))
    def state(self): return (self.vm_issued, self.vm_done, self.lg_issued, self.lg_done)
    def set_state(self, st): self.vm_issued, self.vm_done, self.lg_issued, self.lg_done = st
    def text(self):
        out = []
        for i in self.L:
            out.append(i.text if i.kind == 'meta' else '    ' + i.text)
        return '\n'.join(out) + '\n'
```

```python
import sys
from collections import deque
from asmlib import Asm

NAME = "parallel_sum__linear_attn_block__dense_activation_squared_relu__prompt"
WS_H = 0; WS_O = 0x700000; WS_KV = 0x900000; WS_FH = 0x980000; WS_FO = WS_FH + 0x4000; WS_FK = WS_FH + 0x8000
WS_ST = 0xA00000; WS_SIZE = 0xB00000
REG = 40960
INIT_WG = 248
SPIN = 40000

sX, sWQ, sWO, sW1, sB1, sW2, sB2, sOUT, sDBG, sWS = 4, 6, 8, 12, 14, 16, 18, 20, 22, 24
rX, rW, rWS, rW2, rWO, rOUT, rB1, rB2 = 28, 32, 36, 40, 44, 48, 52, 56
sWV, sRB, sSO, sRS, sRS128, sCOL = 3, 26, 27, 60, 61, 62
sI, sJ, sROLE, sCS, sRB2, sT0, sT1, sT2 = 65, 66, 67, 68, 69, 70, 71, 72
sHST, sSGL, sW2B, sWOB, sCNT = 73, 74, 75, 76, 77
sMA, sMB, sHI = 78, 80, 82
sP = 84
sFA = 10
sSTAMP = None

vL = 0
vXD = 1
vST = 6
vXR = 14
vWD = 18
vWR = 22
vL16 = 30
vT = 31
vRS, vNB = 1, 2
vSD = 3
U = 32
VA, VB, VT = 144, 176, 208
aACC, aRING, aSEL, aBIAS = 0, 32, 64, 68
D = 6; RING = 8

def v(a, n=1): return f"v{a}" if n == 1 else f"v[{a}:{a+n-1}]"
def ag(a, n=1): return f"a{a}" if n == 1 else f"a[{a}:{a+n-1}]"
def s(a, n=1): return f"s{a}" if n == 1 else f"s[{a}:{a+n-1}]"

class Gen:
    def __init__(self, stamps=False):
        self.a = Asm(); self.stamps = stamps; self.nlab = 0; self.pending = None
    def lab(self, p):
        self.nlab += 1; return f"L_{p}_{self.nlab}"
    def stamp(self, k):
        if not self.stamps: return
        a = self.a
        if self.pending is not None: a(f"v_writelane_b32 v5, s100, {self.pending}")
        a(f"s_memtime s[100:101]")
        self.pending = k
    def flush_stamp(self):
        if self.stamps and self.pending is not None:
            self.a.wait_all(lg=True); self.a(f"v_writelane_b32 v5, s100, {self.pending}"); self.pending = None
    def srd(self, r, p, size):
        self.a(f"s_mov_b32 {s(r)}, {s(p)}\ns_mov_b32 {s(r+1)}, {s(p+1)}\ns_mov_b32 {s(r+2)}, {size}\ns_mov_b32 {s(r+3)}, 0x20000")
    def poll(self, n, off=0, base=None):
        a = self.a; L = self.lab("poll"); E = self.lab("pend")
        base = sFA if base is None else base
        a(f"s_mov_b32 {s(sCNT)}, 0")
        a(f"{L}:")
        a(f"s_load_dwordx{n} {s(sP, n)}, {s(base, 2)}, {off} glc")
        a.wait_all(lg=True)
        m = n
        while m > 2:
            m //= 2
            for i in range(0, m, 2): a(f"s_and_b64 {s(sP+i,2)}, {s(sP+i,2)}, {s(sP+m+i,2)}")
        a(f"s_and_b32 {s(sP)}, {s(sP)}, {s(sP+1)}")
        a(f"s_cbranch_scc1 {E}")
        a(f"s_add_u32 {s(sCNT)}, {s(sCNT)}, 1\ns_cmp_lt_u32 {s(sCNT)}, {SPIN}\ns_cbranch_scc1 {L}")
        a(f"{E}:")

    def dma_setup(self):
        self.dq = deque()
        self.tick = {}
        self.free = set(range(14, 20))
    def pair_entries(self, p):
        a = self.a
        for e in range(7):
            q = 7 * p + e; slot = (14 + q) % 20
            ops = []
            for b in range(2):
                u = 2 * (e & 1) + b
                def op(e=e, b=b, u=u, slot=slot, p=p, q=q):
                    n = 1
                    if u == 0:
                        a(f"s_add_u32 m0, {s(sRB)}, {slot*2048}")
                        a(f"s_mov_b32 {s(sSO)}, {s(sCOL+p)}" if e == 0 else f"s_add_u32 {s(sSO)}, {s(sSO)}, {s(sRS128)}")
                        n = 3
                    self.tick[q] = a.vm(f"buffer_load_dwordx4 {v(vWD+u)}, {s(rW,4)}, {s(sSO)} offen offset:{u*1024} lds")
                    return n
                ops.append(op)
            self.dq.append(dict(q=q, slot=slot, ops=deque(ops)))
    def single_entries(self):
        a = self.a
        for h in range(4):
            q = 21 + h; slot = (14 + q) % 20
            ops = []
            for e in (2 * h, 2 * h + 1):
                if e > 6: continue
                def op(e=e, slot=slot, q=q):
                    a(f"s_add_u32 m0, {s(sRB)}, {slot*2048 + (e&1)*1024}")
                    a(f"s_add_u32 {s(sSO)}, {s(sSGL)}, {e*64*3584}")
                    self.tick[q] = a.vm(f"buffer_load_dwordx4 {v(vSD)}, {s(rW,4)}, {s(sSO)} offen lds")
                    return 3
                ops.append(op)
            self.dq.append(dict(q=q, slot=slot, ops=deque(ops)))
    def w2_slot(self, t): return (19 + t) % 20
    def w2_entries(self):
        a = self.a
        st = dict(prev=None)
        for t in range(35):
            q = 25 + t; slot = self.w2_slot(t)
            ops = []
            for b in range(2):
                if t < 28: srd, base, row = rW2, sW2B, 16 * t + 8 * b
                elif t < 31: srd, base, row = rWO, sWOB, 16 * (t - 28) + 8 * b
                elif t < 34: srd, base, row = rWO, sWOB, 56 + 16 * (t - 31) + 8 * b
                else: srd, base, row = rWO, sWOB, 48 + 56 * b
                lds = slot * 2048 + b * 1024
                def op(srd=srd, base=base, row=row, lds=lds, q=q):
                    pv = st['prev']; n = 1
                    if pv and pv[0] == srd and pv[3] < 3 and row == pv[1] + 8 and lds == pv[2] + 1024: u = pv[3] + 1
                    else:
                        u = 0; n = 3
                        a(f"s_add_u32 m0, {s(sRB)}, {lds}")
                        a(f"s_add_u32 {s(sSO)}, {s(base)}, {row*896}")
                    st['prev'] = (srd, row, lds, u)
                    self.tick[q] = a.vm(f"buffer_load_dwordx4 {v(vXR+u)}, {s(srd,4)}, {s(sSO)} offen offset:{u*1024} lds")
                    return n
                ops.append(op)
            self.dq.append(dict(q=q, slot=slot, ops=deque(ops)))
    def dma_ready(self):
        if not self.dq: return False
        it = self.dq[0]
        if self.a.vm_issued - self.a.vm_done >= 58: return False
        return it.get('started') or it['slot'] in self.free
    def dma_one(self):
        it = self.dq[0]
        if not it.get('started'): self.free.remove(it['slot']); it['started'] = True
        n = it['ops'].popleft()()
        if not it['ops']: self.dq.popleft()
        return n

    def frag_list(self, role):
        fr = []
        for p in range(3):
            for st in range(28):
                for T in range(2):
                    q = 7 * p + st // 4; slot = (14 + q) % 20
                    fr.append(dict(q=q, addr=vWR + 4 * T + (st & 3), off=slot * 2048, rd=512, stage=p, s=st, T=T))
        if role == 'f':
            for st in range(28):
                e = st // 4; q = 21 + e // 2; slot = (14 + q) % 20
                fr.append(dict(q=q, addr=VT + 40 + (st & 3), off=slot * 2048 + (e & 1) * 1024, rd=256, stage=3, s=st, T=0))
        return fr
    def publish(self, q):
        a = self.a
        tgt = min(t for t in self.pubs if t >= q)
        while tgt not in self.tick or any(it['q'] == tgt for it in self.dq):
            assert self.dma_ready(), ("cannot publish", q, tgt)
            self.dma_one()
        a.wait(vm=self.tick[tgt])
        a("s_barrier")
        self.pub = tgt
        self.release()
    def release(self):
        for q, t in list(self.lastread.items()):
            if q in self.allread and t <= self.a.lg_done:
                del self.lastread[q]
                if q not in self.hold: self.free.add((14 + q) % 20)
    def read_frag(self, n):
        a = self.a
        if n >= len(self.fr): return
        f = self.fr[n]
        if f['q'] > self.pub: self.publish(f['q'])
        r = aRING + 4 * (n % RING)
        a.ds(f"ds_read_b64_tr_b16 {ag(r,2)}, {v(f['addr'])} offset:{f['off']}")
        f['t'] = a.ds(f"ds_read_b64_tr_b16 {ag(r+2,2)}, {v(f['addr'])} offset:{f['off']+f['rd']}")
        self.lastread[f['q']] = f['t']
        if n + 1 >= len(self.fr) or self.fr[n + 1]['q'] != f['q']: self.allread.add(f['q'])
    def fill(self, fillers, budget, dma=True):
        if dma and self.dma_ready(): budget -= self.dma_one()
        while fillers and budget > 0:
            budget -= fillers.popleft()() or 1
    def run_stage(self, stage, acc, swap, fillers, budget=4, pre=None, forced=None, dma_from=0):
        a = self.a
        idx = [n for n, f in enumerate(self.fr) if f['stage'] == stage]
        for line in (pre or []):
            a(line); self.fill(fillers, budget + 2)
        for k, n in enumerate(idx):
            f = self.fr[n]
            a.wait(lg=f['t'])
            w = ag(aRING + 4 * (n % RING), 4); x = v(U + 4 * f['s'], 4)
            c = acc(f['T']) if (pre or f['s'] > 0) else "0"
            a(f"v_mfma_f32_32x32x16_bf16 {acc(f['T'])}, {x if swap else w}, {w if swap else x}, {c}")
            self.read_frag(n + D)
            last = (n % 2 == 1)
            if forced:
                fl = forced(f['s'], f['T'])
                if k >= dma_from and self.dma_ready(): self.dma_one()
                for g in fl: g()
            else:
                self.fill(fillers, budget - (1 if last else 0), dma=(k >= dma_from))
            if last and n + 2 < len(self.fr): a.wait(lg=self.fr[n + 2]['t'])
    def norm_ops(self, st):
        a = self.a; ops = []
        b = U + 8 * st
        for d in range(4):
            ops.append(lambda d=d: a(f"v_fma_f32 {v(b+2*d)}, {v(b+2*d)}, {v(vRS)}, {v(vNB)}"))
            ops.append(lambda d=d: a(f"v_fma_f32 {v(b+2*d+1)}, {v(b+2*d+1)}, {v(vRS)}, {v(vNB)}"))
            ops.append(lambda d=d: a(f"v_cvt_pk_bf16_f32 {v(U+4*st+d)}, {v(b+2*d)}, {v(b+2*d+1)}"))
        return ops
    def norm_forced(self, st, T):
        if st + 1 >= 28: return []
        ops = self.norm_ops(st + 1)
        return ops[:6] if T == 0 else ops[6:]

    def build(self):
        a = self.a
        a(f"{NAME}_kernel:")
        a("s_cmp_ge_u32 s2, 256\ns_cbranch_scc1 L_end")
        if self.stamps: a("s_memrealtime s[96:97]\ns_memtime s[94:95]")
        a("s_load_dwordx16 s[4:19], s[0:1], 0\ns_load_dwordx4 s[20:23], s[0:1], 64\ns_load_dwordx2 s[24:25], s[0:1], 80")
        a("s_getpc_b64 s[98:99]\nL_pc:")
        a("v_lshlrev_b32 v1, 7, v0")
        a("v_add_u32 v2, 0x8000, v1")
        a("v_min_u32 v1, L_end - L_pc, v1")
        a("v_min_u32 v2, L_end - L_pc, v2")
        a.vm("global_load_dword v5, v1, s[98:99]")
        a.vm("global_load_dword v5, v2, s[98:99]")
        a(f"v_lshrrev_b32 v1, 6, v0\nv_and_b32 {v(vL)}, 63, v0")
        a(f"v_readfirstlane_b32 {s(sWV)}, v1")
        a(f"s_and_b32 {s(sT0)}, s2, 7\ns_lshr_b32 {s(sT1)}, s2, 3")
        a(f"s_and_b32 {s(sI)}, {s(sT0)}, 1\ns_lshl_b32 {s(sI)}, {s(sI)}, 3\ns_and_b32 {s(sT2)}, {s(sT1)}, 7\ns_add_u32 {s(sI)}, {s(sI)}, {s(sT2)}")
        a(f"s_and_b32 {s(sJ)}, {s(sT0)}, 6\ns_bfe_u32 {s(sT2)}, {s(sT1)}, 0x10003\ns_add_u32 {s(sJ)}, {s(sJ)}, {s(sT2)}")
        a(f"s_lshr_b32 {s(sROLE)}, {s(sT1)}, 4")
        a(f"s_lshr_b32 {s(sCS)}, {s(sT1)}, 2")
        a(f"s_and_b32 {s(sRB2)}, {s(sT1)}, 3\ns_lshl_b32 {s(sT0)}, {s(sT0)}, 2\ns_add_u32 {s(sRB2)}, {s(sRB2)}, {s(sT0)}")
        a(f"s_mul_i32 {s(sRB)}, {s(sWV)}, {REG}")
        a(f"s_lshl_b32 {s(sHST)}, {s(sI)}, 2\ns_add_u32 {s(sHST)}, {s(sHST)}, {s(sWV)}")
        a(f"s_mul_i32 {s(sSO)}, {s(sHST)}, {32*896}")
        a(f"v_lshrrev_b32 v6, 3, {v(vL)}\nv_and_b32 v7, 7, {v(vL)}")
        a(f"v_lshrrev_b32 v8, 1, v6\nv_xor_b32 v8, v7, v8\nv_lshlrev_b32 v8, 4, v8\nv_xor_b32 v9, 64, v8")
        a(f"v_mul_u32_u24 v10, 896, v6")
        a(f"v_add_u32 {v(vXD)}, v10, v8\nv_add_u32 v9, v10, v9")
        a(f"v_add_u32 {v(vXD+1)}, 6144, v9\nv_add_u32 {v(vXD+2)}, {2*6144}, {v(vXD)}\nv_add_u32 {v(vXD+3)}, {3*6144}, v9")
        a(f"v_lshlrev_b32 {v(vL16)}, 4, {v(vL)}")
        a("s_mov_b32 s30, 1835008\ns_mov_b32 s31, 0x20000")
        a.wait_all(lg=True)
        a("s_mov_b32 s28, s4\ns_mov_b32 s29, s5")
        self.srd(rWS, sWS, WS_SIZE)
        self.stamp(1)
        st0 = a.state()
        a(f"s_cmp_lg_u32 s2, {INIT_WG}\ns_cbranch_scc1 L_noinit")
        a("v_mov_b32 v32, 0\nv_mov_b32 v33, 0\nv_mov_b32 v34, 0\nv_mov_b32 v35, 0")
        a(f"v_lshlrev_b32 v36, 7, {v(vL)}")
        a(f"s_lshl_b32 {s(sT0)}, {s(sWV)}, 13\ns_add_u32 {s(sT0)}, {s(sT0)}, {WS_FH}")
        a(f"s_lshl_b32 {s(sT1)}, {s(sWV)}, 10\ns_add_u32 {s(sT1)}, {s(sT1)}, {WS_FK}")
        a(f"buffer_store_dwordx4 v[32:35], v36, {s(rWS,4)}, {s(sT0)} offen sc1")
        a(f"buffer_store_dwordx4 v[32:35], {v(vL16)}, {s(rWS,4)}, {s(sT1)} offen sc1")
        a("L_noinit:")
        a.set_state(st0)
        xt = []
        for n in range(7):
            a(f"s_add_u32 m0, {s(sRB)}, {n*4096}")
            if n: a(f"s_add_u32 {s(sSO)}, {s(sSO)}, 128")
            for g in range(4):
                t = a.vm(f"buffer_load_dwordx4 {v(vXD+g)}, {s(rX,4)}, {s(sSO)} offen offset:{g*1024} lds")
            xt.append(t)
        a(f"s_cmp_eq_u32 {s(sROLE)}, 0")
        a(f"s_cselect_b32 {s(rW)}, {s(sW1)}, {s(sWQ)}\ns_cselect_b32 {s(rW+1)}, {s(sW1+1)}, {s(sWQ+1)}")
        a(f"s_mov_b32 {s(sT0)}, {448*1344*2}\ns_cselect_b32 {s(rW+2)}, {448*1792*2}, {s(sT0)}\ns_mov_b32 {s(rW+3)}, 0x20000")
        a(f"s_movk_i32 {s(sT0)}, 2688\ns_cselect_b32 {s(sRS)}, 3584, {s(sT0)}")
        a(f"s_cselect_b32 {s(sT2)}, 7, 6")
        a(f"s_cselect_b32 {s(sCNT)}, 64, 48")
        a(f"s_cbranch_scc0 L_cola")
        a(f"s_mul_i32 {s(sSGL)}, {s(sJ)}, 448\ns_and_b32 {s(sT0)}, {s(sJ)}, 1\ns_lshl_b32 {s(sT1)}, {s(sT0)}, 6")
        a(f"s_add_u32 {s(sCOL)}, {s(sSGL)}, {s(sT1)}\ns_add_u32 {s(sCOL+1)}, {s(sCOL)}, 128\ns_add_u32 {s(sCOL+2)}, {s(sCOL)}, 256")
        a(f"s_cmp_eq_u32 {s(sT0)}, 0\ns_cselect_b32 {s(sT0)}, 384, 0\ns_add_u32 {s(sSGL)}, {s(sSGL)}, {s(sT0)}")
        a("s_branch L_colb\nL_cola:")
        a(f"s_mul_i32 {s(sCOL+2)}, {s(sJ)}, 112\ns_add_u32 {s(sCOL)}, {s(sCOL+2)}, 896\ns_add_u32 {s(sCOL+1)}, {s(sCOL+2)}, 1792")
        a(f"s_mov_b32 {s(sSGL)}, 0")
        a("L_colb:")
        a(f"s_mov_b32 {s(sW2B)}, {s(sCOL)}\ns_mov_b32 {s(sWOB)}, {s(sSGL)}")
        a(f"s_mul_i32 {s(sT0)}, {s(sRS)}, {s(sWV)}\ns_lshl_b32 {s(sT0)}, {s(sT0)}, 4")
        for k in range(3): a(f"s_add_u32 {s(sCOL+k)}, {s(sCOL+k)}, {s(sT0)}")
        a(f"s_add_u32 {s(sSGL)}, {s(sSGL)}, {s(sT0)}")
        a(f"s_lshl_b32 {s(sRS128)}, {s(sRS)}, 7")
        a(f"v_and_b32 v8, 2, v6\nv_lshlrev_b32 v8, 1, v8\nv_xor_b32 v8, v7, v8")
        a(f"v_lshlrev_b32 {v(vT)}, 4, v8\nv_add_u32 {v(vT)}, v10, {v(vT)}")
        a(f"v_min_u32 v8, {s(sT2)}, v8\nv_lshlrev_b32 v8, 4, v8")
        a(f"v_mad_u32_u24 {v(vWD)}, v6, {s(sRS)}, v8")
        a(f"s_lshl_b32 {s(sT0)}, {s(sRS)}, 3\ns_sub_u32 {s(sT0)}, {s(sT0)}, 1024")
        a(f"s_lshl_b32 {s(sT1)}, {s(sRS)}, 6\ns_sub_u32 {s(sT1)}, {s(sT1)}, 2048")
        a(f"v_add_u32 {v(vWD+1)}, {s(sT0)}, {v(vWD)}\nv_add_u32 {v(vWD+2)}, {s(sT1)}, {v(vWD)}\nv_add_u32 {v(vWD+3)}, {s(sT1)}, {v(vWD+1)}")
        self.dma_setup()
        for p in range(3): self.pair_entries(p)
        while self.dma_ready(): self.dma_one()
        self.srd(rB1, sB1, 3584)
        a(f"v_and_b32 v8, 31, {v(vL)}\nv_lshlrev_b32 v9, 1, v8")
        for k in range(16): a(f"v_accvgpr_write_b32 {ag(aBIAS+k)}, 0")
        for k in range(6): a.vm(f"buffer_load_ushort {ag(aBIAS+2*k)}, v9, {s(rB1,4)}, {s(sW2B)} offen offset:{64*k}")
        self.tb = a.vm(f"buffer_load_ushort {ag(aBIAS+12)}, v9, {s(rB1,4)}, {s(sWOB)} offen")
        a(f"v_lshrrev_b32 v10, 5, {v(vL)}")
        a(f"v_bfe_u32 v11, {v(vL)}, 1, 3\nv_xor_b32 v11, v10, v11\nv_lshlrev_b32 v11, 4, v11")
        a(f"v_lshl_add_u32 v11, v8, 7, v11\nv_add_u32 {v(vXR)}, {s(sRB)}, v11")
        for j in range(1, 4): a(f"v_xor_b32 {v(vXR+j)}, {32*j}, {v(vXR)}")
        a(f"v_cmp_eq_u32 {s(sHI,2)}, 1, v10")
        a(f"v_mov_b32 v11, 0x3f80")
        a(f"v_cndmask_b32 v11, v11, 0, {s(sHI,2)}")
        a(f"v_accvgpr_write_b32 {ag(aSEL)}, v11")
        for k in range(1, 4): a(f"v_accvgpr_write_b32 {ag(aSEL+k)}, 0")
        a(f"v_cmp_le_u32 {s(sMA,2)}, 28, v8\nv_cmp_gt_u32 {s(sMB,2)}, 4, v8")
        a(f"v_bfe_u32 v11, {v(vL)}, 2, 2")
        a(f"v_and_b32 v12, 3, {v(vL)}\nv_lshlrev_b32 v12, 3, v12\nv_bfe_u32 v13, {v(vL)}, 4, 1\nv_lshl_add_u32 v12, v13, 5, v12")
        a(f"v_and_b32 v13, 2, v11\nv_lshlrev_b32 v13, 5, v13")
        a(f"v_lshl_add_u32 v9, v10, 3, v11\nv_lshlrev_b32 v9, 7, v9")
        a(f"v_xor_b32 v8, v12, v13\nv_add_u32 {v(vWR)}, v9, v8")
        a(f"v_add_u32 v8, {s(sCNT)}, v12\nv_xor_b32 v8, v8, v13\nv_add_u32 {v(vWR+4)}, v9, v8")
        for T in range(2):
            for r in range(1, 4): a(f"v_add_u32 {v(vWR+4*T+r)}, {REG*r}, {v(vWR+4*T)}")
        a(f"s_cmp_lt_u32 {s(sCS)}, 7")
        a(f"s_mov_b32 {s(rW2)}, {s(sW2)}\ns_mov_b32 {s(rW2+1)}, {s(sW2+1)}\ns_cselect_b32 {s(rW2+2)}, {1792*896}, 0\ns_mov_b32 {s(rW2+3)}, 0x20000")
        a(f"s_mov_b32 {s(rWO)}, {s(sWO)}\ns_mov_b32 {s(rWO+1)}, {s(sWO+1)}\ns_cselect_b32 {s(rWO+2)}, {448*896}, 0\ns_mov_b32 {s(rWO+3)}, 0x20000")
        self.srd(rOUT, sOUT, 1835008); self.srd(rB2, sB2, 896)
        a(f"s_lshl_b32 {s(sT0)}, {s(sCS)}, 7")
        a(f"s_mul_i32 {s(sW2B)}, {s(sWV)}, {448*896}\ns_add_u32 {s(sW2B)}, {s(sW2B)}, {s(sT0)}")
        a(f"s_mul_i32 {s(sWOB)}, {s(sWV)}, {112*896}\ns_add_u32 {s(sWOB)}, {s(sWOB)}, {s(sT0)}")
        for k in range(8): a(f"v_mov_b32 {v(vST+k)}, 0")
        self.pub = -1; self.lastread = {}; self.allread = set(); self.hold = set()
        self.pubs = [1, 3, 6, 9, 13, 16, 20, 22, 24]
        self.fr = self.frag_list('f')
        def xreads(n):
            return [a.ds(f"ds_read_b128 {v(U+8*(4*n+j)+4,4)}, {v(vXR+j)} offset:{n*4096}") for j in range(4)]
        def process(st):
            b = U + 8 * st
            for d in range(4):
                a(f"v_lshlrev_b32 {v(b+2*d)}, 16, {v(b+4+d)}")
                a(f"v_and_b32 {v(b+2*d+1)}, 0xffff0000, {v(b+4+d)}")
            for d in range(4):
                k = vST + 2 * (d & 1)
                a(f"v_pk_add_f32 {v(k,2)}, {v(b+2*d,2)}, {v(k,2)}")
                a(f"v_pk_fma_f32 {v(k+4,2)}, {v(b+2*d,2)}, {v(b+2*d,2)}, {v(k+4,2)}")
        a.wait(vm=xt[0])
        if self.stamps: a("v_writelane_b32 v5, s96, 18\nv_writelane_b32 v5, s94, 0")
        self.stamp(2)
        st0 = a.state()
        a(f"s_cmp_lg_u32 s2, {INIT_WG}\ns_cbranch_scc1 L_nogo")
        a(f"v_mov_b32 v32, 1\ns_lshl_b32 {s(sT0)}, {s(sWV)}, 2\nv_mov_b32 v33, {s(sT0)}")
        a(f"global_store_dword v33, v32, {s(sDBG,2)} sc1")
        a("L_nogo:")
        a.set_state(st0)
        rt = xreads(0)
        for n in range(7):
            a.wait(lg=rt[3])
            self.free |= {2 * n, 2 * n + 1}
            while self.dma_ready(): self.dma_one()
            process(4 * n); process(4 * n + 1)
            if n < 6:
                a.wait(vm=xt[n + 1]); rt = xreads(n + 1)
            else:
                self.stamp(3)
                for k in range(D): self.read_frag(k)
            process(4 * n + 2); process(4 * n + 3)
        a(f"v_pk_add_f32 {v(vST,2)}, {v(vST,2)}, {v(vST+2,2)}\nv_pk_add_f32 {v(vST+4,2)}, {v(vST+4,2)}, {v(vST+6,2)}")
        a(f"v_add_f32 {v(vST)}, {v(vST)}, {v(vST+1)}\nv_add_f32 {v(vST+4)}, {v(vST+4)}, {v(vST+5)}")
        a(f"v_mov_b32 {v(vST+1)}, {v(vST)}\nv_mov_b32 {v(vST+5)}, {v(vST+4)}")
        a(f"v_permlane32_swap_b32 {v(vST)}, {v(vST+1)}\nv_permlane32_swap_b32 {v(vST+4)}, {v(vST+5)}")
        a(f"v_add_f32 {v(vST)}, {v(vST)}, {v(vST+1)}\nv_add_f32 {v(vST+4)}, {v(vST+4)}, {v(vST+5)}")
        inv = 0x3b124925
        a(f"v_mul_f32 {v(vST)}, {inv:#x}, {v(vST)}\nv_mul_f32 {v(vST+4)}, {inv:#x}, {v(vST+4)}")
        a(f"v_fma_f32 {v(vST+4)}, -{v(vST)}, {v(vST)}, {v(vST+4)}")
        a(f"v_max_f32 {v(vST+4)}, 0, {v(vST+4)}\nv_add_f32 {v(vST+4)}, 0x3727c5ac, {v(vST+4)}")
        a(f"v_rsq_f32 {v(vRS)}, {v(vST+4)}")
        a(f"v_mov_b32 {v(vXR)}, {v(vT)}")
        a(f"v_mul_f32_e64 {v(vNB)}, -{v(vST)}, {v(vRS)}")
        for g in self.norm_ops(0): g()
        self.stamp(4)
        a(f"s_cmp_lg_u32 {s(sROLE)}, 0\ns_cbranch_scc1 L_attn")
        import copy
        snap = (a.state(), copy.copy(self.free), dict(self.tick), self.pub, dict(self.lastread), set(self.allread),
                [(it['q'], len(it['ops']), it.get('started')) for it in self.dq], [f.get('t') for f in self.fr[:D]])
        pend = self.pending
        self.ffn_role()
        self.pending = pend
        a("s_branch L_p2")
        st_f = a.state()
        a("L_attn:")
        a.set_state(snap[0]); self.dma_setup()
        for p in range(3): self.pair_entries(p)
        assert [x[0] for x in snap[6]] == [20] and not snap[6][0][2]
        while self.dq[0]['q'] < 20: self.dq.popleft()
        self.free = snap[1]; self.tick = snap[2]; self.pub = snap[3]; self.lastread = snap[4]; self.allread = snap[5]
        self.fr = self.frag_list('a')
        for k in range(D): self.fr[k]['t'] = snap[7][k]
        self.attn_role()
        a("L_p2:")
        self.phase2()
        a("L_end:\ns_endpgm")

    def w2_addr_ops(self):
        a = self.a
        return [lambda u=u: a(f"v_add_u32 {v(vXR+u)}, {u*6144}, {v(vXR)}") for u in range(1, 4)]
    def check_go(self):
        self.poll(4, 0, base=sDBG)
    def wreg(self, t, T):
        return ag(8 * t + 4 * T, 4) if t < 32 else v(224 + 8 * (t - 32) + 4 * T, 4)
    def w2_read(self, t):
        a = self.a
        a.wait(vm=self.tick[25 + t])
        for T in range(2):
            for rd in range(2):
                r = (ag(8 * t + 4 * T + 2 * rd, 2) if t < 32 else v(224 + 8 * (t - 32) + 4 * T + 2 * rd, 2))
                if a.lg_issued - a.lg_done >= 15: a.wait(lg=a.lg_issued - 7)
                tk = a.ds(f"ds_read_b64_tr_b16 {r}, {v(vWR+T)} offset:{self.w2_slot(t)*2048 + rd*1024}")
        self.wt[t] = tk
    def p2_addr(self):
        a = self.a
        a(f"v_lshrrev_b32 v10, 5, {v(vL)}\nv_bfe_u32 v11, {v(vL)}, 2, 2")
        a(f"v_and_b32 v12, 3, {v(vL)}\nv_lshlrev_b32 v12, 3, v12\nv_bfe_u32 v13, {v(vL)}, 4, 1\nv_lshl_add_u32 v12, v13, 5, v12")
        a(f"v_and_b32 v13, 2, v11\nv_lshlrev_b32 v13, 5, v13\nv_xor_b32 v12, v12, v13")
        a(f"v_lshl_add_u32 v9, v10, 2, v11\nv_lshl_add_u32 v9, v9, 7, v12")
        a(f"s_and_b32 {s(sT0)}, {s(sWV)}, 1\ns_lshl_b32 {s(sT0)}, {s(sT0)}, 6")
        a(f"v_xor_b32 v9, {s(sT0)}, v9\nv_add_u32 {v(vWR)}, {s(sRB)}, v9\nv_xor_b32 {v(vWR+1)}, 64, {v(vWR)}")
    def w2_drain(self, upto):
        a = self.a
        while self.dma_ready(): self.dma_one()
        while self.w2n < upto:
            t = self.w2n
            self.w2_read(t); self.w2n += 1
            if t >= 2:
                a.wait(lg=self.wt[t - 2]); self.free.add(self.w2_slot(t - 2))
                while self.dma_ready(): self.dma_one()

    def ffn_role(self):
        a = self.a
        self.single_entries(); self.w2_entries()
        self.wt = {}; self.w2n = 0
        a(f"s_mul_i32 {s(sT1)}, {s(sHST)}, 112\ns_mul_i32 {s(sT0)}, {s(sJ)}, 14\ns_add_u32 {s(sT1)}, {s(sT1)}, {s(sT0)}")
        a(f"s_and_b32 {s(sT0)}, {s(sJ)}, 1\ns_cselect_b32 {s(sT0)}, 2, 0\ns_cselect_b32 {s(sT2)}, 0, 12")
        a(f"s_add_u32 {s(sT2)}, {s(sT2)}, {s(sT1)}\ns_add_u32 {s(sT1)}, {s(sT1)}, {s(sT0)}")
        a(f"s_lshl_b32 {s(sT1)}, {s(sT1)}, 10\ns_lshl_b32 {s(sT2)}, {s(sT2)}, 10")
        a(f"v_lshrrev_b32 v8, 2, {v(vL)}\nv_and_b32 v9, 3, {v(vL)}\nv_lshlrev_b32 v9, 4, v9\nv_mul_u32_u24 v8, 3584, v8\nv_add_u32 {v(vSD)}, v8, v9")
        for g in self.w2_addr_ops(): g()
        a.wait(vm=self.tb)
        def bias(acc, tiles): return [f"v_mfma_f32_32x32x16_bf16 {acc(T)}, {ag(aBIAS+2*k,4)}, {ag(aSEL,4)}, 0" for T, k in enumerate(tiles)]
        def epi(src, agpr, T, soff, off):
            ops = []; h = VT + 8 * T; tmp = VT + 16
            for d in range(8):
                if agpr:
                    t0 = tmp + 2 * (d & 3)
                    ops.append(lambda d=d, t0=t0: a(f"v_accvgpr_read_b32 {v(t0)}, {ag(src+2*d)}"))
                    ops.append(lambda d=d, t0=t0: a(f"v_accvgpr_read_b32 {v(t0+1)}, {ag(src+2*d+1)}"))
                else: t0 = src + 2 * d
                ops.append(lambda t0=t0: a(f"v_mul_f32_e64 {v(t0)}, {v(t0)}, |{v(t0)}|"))
                ops.append(lambda t0=t0: a(f"v_mul_f32_e64 {v(t0+1)}, {v(t0+1)}, |{v(t0+1)}|"))
                ops.append(lambda d=d, t0=t0: a(f"v_cvt_pk_bf16_f32 {v(h+d)}, {v(t0)}, {v(t0+1)}"))
                ops.append(lambda d=d: a(f"v_pk_max_i16 {v(h+d)}, {v(h+d)}, 0"))
                if d % 4 == 3:
                    def st(d=d):
                        self.last_store = a.vm(f"buffer_store_dwordx4 {v(h+d-3,4)}, {v(vL16)}, {s(rWS,4)}, {s(soff)} offen offset:{off+(d//4)*1024} sc1")
                    ops.append(st)
            return ops
        accs = [lambda T: ag(aACC + 16 * T, 16), lambda T: v(VA + 16 * T, 16), lambda T: v(VB + 16 * T, 16), lambda T: v(VA, 16)]
        self.run_stage(0, accs[0], False, deque(), pre=bias(accs[0], [0, 1]), forced=self.norm_forced)
        self.stamp(5)
        fl = deque()
        fl.append(lambda: a(f"v_lshrrev_b32 v10, 5, {v(vL)}"))
        fl.append(lambda: a(f"v_bfe_u32 v11, {v(vL)}, 2, 2"))
        fl.append(lambda: a(f"v_lshl_add_u32 v11, v10, 3, v11"))
        fl.append(lambda: a(f"v_and_b32 v12, 3, {v(vL)}"))
        fl.append(lambda: a(f"v_lshlrev_b32 v12, 3, v12"))
        fl.append(lambda: a(f"v_bfe_u32 v13, {v(vL)}, 4, 1"))
        fl.append(lambda: a(f"v_lshl_add_u32 v12, v13, 5, v12"))
        fl.append(lambda: a(f"v_lshl_add_u32 {v(VT+40)}, v11, 6, v12"))
        for r in range(1, 4): fl.append(lambda r=r: a(f"v_add_u32 {v(VT+40+r)}, {REG*r}, {v(VT+40)}"))
        fl.extend(epi(aACC, True, 0, sT1, 0)); fl.extend(epi(aACC + 16, True, 1, sT1, 2048))
        self.run_stage(1, accs[1], False, fl, pre=bias(accs[1], [2, 3]))
        while fl: fl.popleft()()
        self.stamp(6)
        nop = lambda: 4
        fl = deque([lambda: a(f"s_add_u32 {s(sT1)}, {s(sT1)}, 4096"), nop, nop, nop, nop])
        fl.extend(epi(VA, False, 0, sT1, 0)); fl.extend(epi(VA + 16, False, 1, sT1, 2048))
        self.run_stage(2, accs[2], False, fl, pre=bias(accs[2], [4, 5]), budget=3)
        while fl: fl.popleft()()
        self.stamp(7)
        fl = deque([lambda: a(f"s_add_u32 {s(sT1)}, {s(sT1)}, 4096"), nop, nop, nop])
        fl.extend(epi(VB, False, 0, sT1, 0)); fl.extend(epi(VB + 16, False, 1, sT1, 2048))
        self.run_stage(3, accs[3], False, fl, pre=bias(accs[3], [6]))
        while fl: fl.popleft()()
        self.stamp(8)
        a("s_barrier"); self.release()
        self.p2_addr()
        for g in epi(VA, False, 0, sT2, 0): g()
        ls = self.last_store
        self.flag_off(WS_FH)
        self.check_go()
        self.w2_drain(8)
        a.wait(vm=ls)
        a.vm(f"buffer_store_dword v8, v9, {s(rWS,4)}, 0 offen sc1")
        self.stamp(9)
        self.w2_drain(17)
        assert not self.dq
        self.junction()
    def flag_off(self, base):
        a = self.a
        a(f"s_lshr_b32 {s(sT0)}, {s(sHST)}, 1\ns_lshl_b32 {s(sT0)}, {s(sT0)}, 2\ns_lshr_b32 {s(sT1)}, {s(sJ)}, 1\ns_add_u32 {s(sT0)}, {s(sT0)}, {s(sT1)}")
        a(f"s_lshl_b32 {s(sT0)}, {s(sT0)}, 5\ns_and_b32 {s(sT1)}, {s(sHST)}, 1\ns_lshl_b32 {s(sT1)}, {s(sT1)}, 1\ns_add_u32 {s(sT0)}, {s(sT0)}, {s(sT1)}")
        a(f"s_and_b32 {s(sT1)}, {s(sJ)}, 1\ns_add_u32 {s(sT0)}, {s(sT0)}, {s(sT1)}\ns_lshl_b32 {s(sT0)}, {s(sT0)}, 2\ns_add_u32 {s(sT0)}, {s(sT0)}, {base}")
        a(f"v_mov_b32 v8, 1\nv_mov_b32 v9, {s(sT0)}")
    def junction(self):
        a = self.a
        a.wait_all(lg=True)
        self.flush_stamp()
        rel = {t: a.vm_issued - self.tick[25 + t] for t in range(17, 35)}
        out = a.vm_issued - a.vm_done
        if not hasattr(self, 'jrel'): self.jrel = rel; self.jout = out
        else:
            self.jrel = {t: min(rel[t], self.jrel[t]) for t in rel}; self.jout = max(out, self.jout)

    def phi_ops(self, src, agpr, dst, tmp):
        a = self.a; ops = []
        for d in range(8):
            t0 = tmp + 4 * (d & 1)
            for k in range(2):
                if agpr:
                    x = t0 + 2 + k
                    ops.append(lambda x=x, r=src+2*d+k: a(f"v_accvgpr_read_b32 {v(x)}, {ag(r)}"))
                else: x = src + 2 * d + k
                ops.append(lambda x=x, e=t0+k: a(f"v_mul_f32 {v(e)}, 0x3fb8aa3b, {v(x)}"))
                def ex(e=t0+k):
                    a(f"v_exp_f32_e64 {v(e)}, {v(e)} clamp"); return 2
                ops.append(ex)
                ops.append(lambda x=x: a(f"v_max_f32 {v(x)}, 0x358637bd, {v(x)}"))
                ops.append(lambda x=x, e=t0+k: a(f"v_add_f32 {v(e)}, {v(e)}, {v(x)}"))
            ops.append(lambda d=d, t0=t0: a(f"v_cvt_pk_bf16_f32 {v(dst+d)}, {v(t0)}, {v(t0+1)}"))
        return ops

    def attn_role(self):
        a = self.a
        self.pubs = [1, 3, 6, 9, 13, 16, 20]
        self.hold = {1, 2, 3, 4}
        self.w2_entries(); self.wt = {}; self.w2n = 0
        for g in self.w2_addr_ops(): g()
        PK, PV, TMP = VT, VT + 16, VT + 32
        accs = [lambda T: ag(aACC + 16 * T, 16), lambda T: v(VA + 16 * T, 16), lambda T: v(VB + 16 * T, 16)]
        self.run_stage(0, accs[0], True, deque(), forced=self.norm_forced)
        self.stamp(5)
        nop = lambda: 4
        fl = deque([nop, nop, nop])
        fl.extend(self.phi_ops(aACC, True, PK, TMP)); fl.extend(self.phi_ops(aACC + 16, True, PK + 8, TMP))
        self.run_stage(1, accs[1], True, fl, budget=5)
        while fl: fl.popleft()()
        self.stamp(6)
        XB = 15 * 2048
        fl = deque()
        fl.append(lambda: a(f"v_mov_b32 {v(TMP)}, 0x3f803f80"))
        fl.append(lambda: a(f"s_lshl_b32 {s(sT0)}, {s(sWV)}, 11"))
        fl.append(lambda: a(f"v_add_u32 v8, {s(sT0)}, {v(vL16)}"))
        fl.append(lambda: a(f"v_add_u32 v9, {2*REG}, v8"))
        fl.append(lambda: a(f"v_add_u32 v8, {XB}, v8"))
        fl.append(lambda: a(f"v_add_u32 v9, {XB}, v9"))
        fl.append(lambda: a(f"v_add_u32 v10, {s(sRB)}, {v(vL16)}"))
        fl.append(lambda: a(f"s_lshl_b32 {s(sT1)}, {s(sJ)}, 2"))
        fl.append(lambda: a(f"s_add_u32 {s(sT1)}, {s(sT1)}, {s(sWV)}"))
        fl.append(lambda: a(f"s_lshl_b32 {s(sT2)}, {s(sT1)}, 4"))
        fl.append(lambda: a(f"s_add_u32 {s(sT2)}, {s(sT2)}, {s(sI)}"))
        fl.append(lambda: a(f"s_lshl_b32 {s(sT2)}, {s(sT2)}, 10"))
        fl.append(lambda: a(f"s_add_u32 {s(sT2)}, {s(sT2)}, {WS_KV}"))
        for T in range(2):
            for d in range(8):
                fl.append(lambda T=T, d=d: a(f"v_cvt_pk_bf16_f32 {v(PV+8*T+d)}, {v(VA+16*T+2*d)}, {v(VA+16*T+2*d+1)}"))
                fl.append(lambda T=T, d=d: a(f"v_cndmask_b32 {v(PV+8*T+d)}, {v(PV+8*T+d)}, {v(TMP)}, {s(sMA if T == 0 else sMB,2)}"))
        def kvm(T, k):
            def f():
                c = "0" if k == 0 else v(VA + 16 * T, 16)
                a(f"v_mfma_f32_32x32x16_bf16 {v(VA+16*T,16)}, {v(PK+8*T+4*k,4)}, {v(PV+8*T+4*k,4)}, {c}"); return 8
            return f
        fl.append(nop)
        for k in range(2):
            for T in range(2): fl.append(kvm(T, k))
        fl.extend([nop, nop, nop])
        st = {}
        for f in range(4):
            for h in range(2):
                def w(f=f, h=h):
                    if a.lg_issued - a.lg_done >= 15: a.wait(lg=a.lg_issued - 10)
                    st['w'] = a.ds(f"ds_write_b128 {'v8' if f < 2 else 'v9'}, {v(VA+8*f+4*h,4)} offset:{(f&1)*REG + h*1024}"); return 4
                fl.append(w)
        fl.append(nop)
        def bar():
            a.wait(lg=st['w']); a("s_barrier"); self.release(); return 2
        fl.append(bar)
        for sw in range(4):
            for h in range(2):
                def r(sw=sw, h=h):
                    if a.lg_issued - a.lg_done >= 15: a.wait(lg=a.lg_issued - 10)
                    st[sw, h] = a.ds(f"ds_read_b128 {v(VA+8*sw+4*h,4)}, v10 offset:{XB + sw*2048 + h*1024}"); return 2
                fl.append(r)
        fl.extend([nop, nop])
        fl.append(lambda: a.wait(lg=st[3, 1]) and 1)
        for k in range(8):
            fl.append(lambda k=k: a(f"v_add_f32 {v(VA+k)}, {v(VA+k)}, {v(VA+8+k)}"))
            fl.append(lambda k=k: a(f"v_add_f32 {v(VA+16+k)}, {v(VA+16+k)}, {v(VA+24+k)}"))
        for d in range(4):
            fl.append(lambda d=d: a(f"v_add_f32 {v(VA+2*d)}, {v(VA+2*d)}, {v(VA+16+2*d)}"))
            fl.append(lambda d=d: a(f"v_add_f32 {v(VA+2*d+1)}, {v(VA+2*d+1)}, {v(VA+16+2*d+1)}"))
            fl.append(lambda d=d: a(f"v_cvt_pk_bf16_f32 {v(TMP+4+d)}, {v(VA+2*d)}, {v(VA+2*d+1)}"))
        def stp():
            st['s'] = a.vm(f"buffer_store_dwordx4 {v(TMP+4,4)}, {v(vL16)}, {s(rWS,4)}, {s(sT2)} offen sc1")
        fl.append(stp)
        self.run_stage(2, accs[2], False, fl, budget=5)
        while fl: fl.popleft()()
        self.stamp(7)
        a(f"s_lshl_b32 {s(sT0)}, {s(sT1)}, 7\ns_add_u32 {s(sT0)}, {s(sT0)}, {WS_FK}")
        a(f"s_add_u32 {s(sFA)}, {s(sWS)}, {s(sT0)}\ns_addc_u32 {s(sFA+1)}, {s(sWS+1)}, 0")
        a(f"s_lshl_b32 {s(sT2)}, {s(sI)}, 2\ns_add_u32 {s(sT0)}, {s(sT0)}, {s(sT2)}")
        a(f"v_mov_b32 v11, 1\nv_mov_b32 v12, {s(sT0)}")
        self.check_go()
        a.wait(vm=st['s'])
        a.vm(f"buffer_store_dword v11, v12, {s(rWS,4)}, 0 offen sc1")
        a("s_barrier"); self.release()
        while self.dma_ready(): self.dma_one()
        PQ = PK
        for g in self.phi_ops(VB, False, PQ, TMP) + self.phi_ops(VB + 16, False, PQ + 8, TMP): g()
        for d in (6, 7): a(f"v_cndmask_b32 {v(PQ+d)}, {v(PQ+d)}, 0, {s(sHI,2)}")
        for d in (8, 9): a(f"v_cndmask_b32 {v(PQ+d)}, 0, {v(PQ+d)}, {s(sHI,2)}")
        a(f"v_mov_b32 {v(TMP+10)}, v10")
        self.p2_addr()
        self.stamp(8)
        self.poll(16)
        self.stamp(9)
        G = U
        a(f"s_lshl_b32 {s(sT1)}, {s(sT1)}, 14\ns_add_u32 {s(sT1)}, {s(sT1)}, {WS_KV}")
        gt = []
        for i in range(16):
            if i and i % 4 == 0: a(f"s_add_u32 {s(sT1)}, {s(sT1)}, 4096")
            gt.append(a.vm(f"buffer_load_dwordx4 {v(G+4*i,4)}, {v(vL16)}, {s(rWS,4)}, {s(sT1)} offen offset:{(i%4)*1024} sc1"))
        self.w2_drain(8)
        S = VA
        for i in range(16):
            a.wait(vm=gt[i])
            for d in range(4):
                if i == 0:
                    a(f"v_lshlrev_b32 {v(S+2*d)}, 16, {v(G+d)}\nv_and_b32 {v(S+2*d+1)}, 0xffff0000, {v(G+d)}")
                else:
                    t0 = TMP + 2 * d
                    a(f"v_lshlrev_b32 {v(t0)}, 16, {v(G+4*i+d)}\nv_and_b32 {v(t0+1)}, 0xffff0000, {v(G+4*i+d)}")
            if i:
                for d in range(4): a(f"v_pk_add_f32 {v(S+2*d,2)}, {v(S+2*d,2)}, {v(TMP+2*d,2)}")
        for d in range(4): a(f"v_cvt_pk_bf16_f32 {v(TMP+d)}, {v(S+2*d)}, {v(S+2*d+1)}")
        t = a.ds(f"ds_write_b128 {v(TMP+10)}, {v(TMP,4)} offset:{XB}")
        a(f"v_add_u32 v8, {XB}, {v(vL16)}\nv_add_u32 v9, {XB+2*REG}, {v(vL16)}")
        a.wait(lg=t); a("s_barrier")
        KVA = PV
        for f in range(4): t = a.ds(f"ds_read_b128 {v(KVA+4*f,4)}, {'v8' if f < 2 else 'v9'} offset:{(f&1)*REG}")
        a.wait(lg=t)
        for k in range(2):
            for T in range(2):
                c = "0" if k == 0 else v(VA + 16 * T, 16)
                a(f"v_mfma_f32_32x32x16_bf16 {v(VA+16*T,16)}, {v(KVA+8*T+4*k,4)}, {v(PQ+8*T+4*k,4)}, {c}")
        a("s_barrier")
        self.free |= {15, 16, 17, 18}
        while self.dma_ready(): self.dma_one()
        a(f"s_lshl_b32 {s(sT2)}, {s(sHST)}, 3\ns_add_u32 {s(sT2)}, {s(sT2)}, {s(sJ)}\ns_lshl_b32 {s(sT2)}, {s(sT2)}, 12\ns_add_u32 {s(sT2)}, {s(sT2)}, {WS_O}")
        self.flag_off(WS_FO)
        a(f"v_lshlrev_b32 v10, 3, {v(vL)}")
        NA, NB = VA, VA + 16
        a(f"v_mov_b32 {v(TMP)}, {v(NA+12)}\nv_mov_b32 {v(TMP+1)}, {v(NB)}")
        a(f"v_permlane32_swap_b32 {v(TMP)}, {v(TMP+1)}")
        a(f"v_cndmask_b32 {v(TMP+2)}, {v(TMP+1)}, {v(NA+12)}, {s(sHI,2)}")
        a(f"v_cndmask_b32 {v(TMP+3)}, {v(NB)}, {v(TMP)}, {s(sHI,2)}")
        a(f"v_add_f32 {v(TMP+2)}, 0x358637bd, {v(TMP+2)}\nv_add_f32 {v(TMP+3)}, 0x358637bd, {v(TMP+3)}")
        a(f"v_rcp_f32 {v(TMP+2)}, {v(TMP+2)}\nv_rcp_f32 {v(TMP+3)}, {v(TMP+3)}")
        O = VB
        for T in range(2):
            for d in range(8):
                r = VA + 16 * T + 2 * d
                a(f"v_mul_f32 {v(r)}, {v(r)}, {v(TMP+2+T)}\nv_mul_f32 {v(r+1)}, {v(r+1)}, {v(TMP+2+T)}")
                dst = O + d if T == 0 else (TMP + 4 + d if d < 2 else O + 6 + d)
                a(f"v_cvt_pk_bf16_f32 {v(dst)}, {v(r)}, {v(r+1)}")
                if T == 0 and d == 3: a.vm(f"buffer_store_dwordx4 {v(O,4)}, {v(vL16)}, {s(rWS,4)}, {s(sT2)} offen sc1")
                if T == 1 and d == 1:
                    a(f"v_cndmask_b32 {v(O+6)}, {v(O+6)}, {v(TMP+4)}, {s(sHI,2)}\nv_cndmask_b32 {v(O+7)}, {v(O+7)}, {v(TMP+5)}, {s(sHI,2)}")
                    a.vm(f"buffer_store_dwordx4 {v(O+4,4)}, {v(vL16)}, {s(rWS,4)}, {s(sT2)} offen offset:1024 sc1")
                if T == 1 and d == 5: a.vm(f"buffer_store_dwordx4 {v(O+8,4)}, {v(vL16)}, {s(rWS,4)}, {s(sT2)} offen offset:2048 sc1")
        ls = a.vm(f"buffer_store_dwordx2 {v(O+12,2)}, v10, {s(rWS,4)}, {s(sT2)} offen offset:3072 sc1")
        self.w2_drain(15)
        a.wait(vm=ls)
        a.vm(f"buffer_store_dword v8, v9, {s(rWS,4)}, 0 offen sc1")
        self.stamp(10)
        self.w2_drain(17)
        assert not self.dq
        self.junction()

    def phase2(self):
        a = self.a
        a.vm_issued = 1000; a.vm_done = 1000 - self.jout
        for t in range(17, 35): self.tick[25 + t] = 1000 - self.jrel[t]
        self.w2n = 17
        for t in range(17): self.wt[t] = 0
        a(f"s_cmp_ge_u32 {s(sCS)}, 7\ns_cbranch_scc1 L_fin")
        ACC, HR, NH = 32, 96, 32
        a(f"s_lshr_b32 {s(sT0)}, {s(sWV)}, 1\ns_lshl_b32 {s(sT1)}, {s(sRB2)}, 1\ns_add_u32 {s(sT1)}, {s(sT1)}, {s(sT0)}")
        a(f"s_and_b32 {s(sT0)}, {s(sWV)}, 1\ns_lshl_b32 {s(sT0)}, {s(sT0)}, 6\ns_lshl_b32 {s(sT2)}, {s(sCS)}, 7\ns_add_u32 {s(sT0)}, {s(sT0)}, {s(sT2)}")
        a(f"s_mul_i32 {s(sHST)}, {s(sT1)}, {32*896}\ns_add_u32 {s(sHST)}, {s(sHST)}, {s(sT0)}")
        a(f"v_and_b32 v8, 31, {v(vL)}\nv_lshrrev_b32 v10, 5, {v(vL)}\nv_mul_u32_u24 v9, 896, v8\nv_lshl_add_u32 v4, v10, 4, v9")
        a(f"v_lshlrev_b32 v9, 1, v8")
        XR, ID, BB, SEL = 96, 104, 112, 116
        a.vm(f"buffer_load_dwordx4 {v(XR,4)}, v4, {s(rX,4)}, {s(sHST)} offen")
        a.vm(f"buffer_load_dwordx4 {v(XR+4,4)}, v4, {s(rX,4)}, {s(sHST)} offen offset:32")
        tx = a.vm(f"buffer_load_ushort {v(BB)}, v9, {s(rB2,4)}, {s(sT0)} offen")
        a(f"v_lshlrev_b32 v10, 3, v10\nv_sub_u32 v8, v8, v10")
        a(f"v_mov_b32 v11, 0x3f80\nv_mov_b32 v12, 0x3f800000")
        for m in range(2):
            for d in range(4):
                a(f"v_cmp_eq_u32 vcc, {16*m+2*d}, v8\nv_cmp_eq_u32 {s(sMA,2)}, {16*m+2*d+1}, v8")
                a(f"v_cndmask_b32 {v(ID+4*m+d)}, 0, v11, vcc\nv_cndmask_b32 {v(ID+4*m+d)}, {v(ID+4*m+d)}, v12, {s(sMA,2)}")
        a(f"v_cndmask_b32 {v(SEL)}, v11, 0, {s(sHI,2)}")
        for k in range(1, 4): a(f"v_mov_b32 {v(SEL+k)}, 0\nv_mov_b32 {v(BB+k)}, 0")
        a(f"s_xor_b32 {s(sT2)}, {s(sT1)}, 1")
        a(f"s_mul_i32 {s(sT0)}, {s(sT1)}, {112*1024}\nv_add_u32 v6, {s(sT0)}, {v(vL16)}")
        a(f"s_mul_i32 {s(sT0)}, {s(sT2)}, {112*1024}\nv_add_u32 v7, {s(sT0)}, {v(vL16)}")
        a(f"s_lshl_b32 {s(sT0)}, {s(sT1)}, 15\nv_add_u32 v12, {s(sT0)}, {v(vL16)}\nv_lshl_add_u32 v2, {v(vL)}, 3, {s(sT0)}")
        a(f"s_lshl_b32 {s(sT0)}, {s(sT2)}, 15\nv_add_u32 v13, {s(sT0)}, {v(vL16)}\nv_lshl_add_u32 v3, {v(vL)}, 3, {s(sT0)}")
        a(f"s_mul_i32 {s(sSO)}, {s(sWV)}, {28*1024}")
        a(f"s_lshl_b32 {s(sT1)}, {s(sWV)}, 13\ns_add_u32 {s(sT1)}, {s(sT1)}, {WS_O}\ns_add_u32 {s(sT2)}, {s(sT1)}, 4096")
        a(f"s_lshl_b32 {s(sT0)}, {s(sRB2)}, 2\ns_add_u32 {s(sT0)}, {s(sT0)}, {s(sWV)}\ns_lshl_b32 {s(sT0)}, {s(sT0)}, 7\ns_add_u32 {s(sT0)}, {s(sT0)}, {WS_FH}")
        a(f"s_add_u32 {s(sFA)}, {s(sWS)}, {s(sT0)}\ns_addc_u32 {s(sFA+1)}, {s(sWS+1)}, 0")
        a.wait(vm=tx)
        a(f"v_mfma_f32_32x32x16_bf16 {v(ACC,16)}, {v(BB,4)}, {v(SEL,4)}, 0")
        for m in range(2): a(f"v_mfma_f32_32x32x16_bf16 {v(ACC,16)}, {v(ID+4*m,4)}, {v(XR+4*m,4)}, {v(ACC,16)}")
        while self.w2n < 35: self.w2_read(self.w2n); self.w2n += 1
        self.stamp(11)
        self.poll(4)
        self.stamp(12)
        ht = {}
        def hload(t):
            if t >= 35: return
            if t == 28: self.poll(4, WS_FO - WS_FH); self.stamp(13)
            for b in range(2):
                r = HR + 4 * ((2 * t + b) % NH)
                if t < 28:
                    if b == 0 and t and t % 4 == 0: a(f"s_add_u32 {s(sSO)}, {s(sSO)}, 4096")
                    ht[t] = a.vm(f"buffer_load_dwordx4 {v(r,4)}, v{6+b}, {s(rWS,4)}, {s(sSO)} offen offset:{(t%4)*1024} sc1")
                elif t < 34:
                    so = sT1 if t < 31 else sT2
                    ht[t] = a.vm(f"buffer_load_dwordx4 {v(r,4)}, v{12+b}, {s(rWS,4)}, {s(so)} offen offset:{((t-28)%3)*1024} sc1")
                else:
                    a.vm(f"buffer_load_dwordx2 {v(r,2)}, v{2+b}, {s(rWS,4)}, {s(sT1)} offen offset:3072 sc1")
                    ht[t] = a.vm(f"buffer_load_dwordx2 {v(r+2,2)}, v{2+b}, {s(rWS,4)}, {s(sT2)} offen offset:3072 sc1")
        PD = NH // 2 - 1
        for t in range(PD): hload(t)
        OLATE = 20
        nxt = PD
        for t in range(35):
            a.wait(vm=ht[t])
            for q in (3, 2, 1, 0):
                ct, tt = q & 1, q >> 1
                c = v(ACC + 16 * q, 16) if (t or q == 0) else "0"
                a(f"v_mfma_f32_32x32x16_bf16 {v(ACC+16*q,16)}, {self.wreg(t,ct)}, {v(HR+4*((2*t+tt)%NH),4)}, {c}")
                if q == 3:
                    while nxt < 35 and nxt <= t + PD and (nxt < 28 or t >= OLATE): hload(nxt); nxt += 1
        self.stamp(14)
        a("s_barrier")
        for q in (3, 2, 1):
            a(f"s_xor_b32 {s(sT0)}, {s(sWV)}, {q}\ns_mul_i32 {s(sT0)}, {s(sT0)}, {REG}\nv_add_u32 v{8+q}, {s(sT0)}, {v(vL16)}")
        a(f"v_add_u32 v8, {s(sRB)}, {v(vL16)}")
        for q in (3, 2, 1):
            for h in range(4): t = a.ds(f"ds_write_b128 v{8+q}, {v(ACC+16*q+4*h,4)} offset:{(q-1)*4096 + h*1024}")
        a.wait(lg=t); a("s_barrier")
        rt = {}
        for h in range(4):
            for q in (1, 2, 3): rt[h] = a.ds(f"ds_read_b128 {v(ACC+16*q+4*h,4)}, v8 offset:{(q-1)*4096 + h*1024}")
        P = 96
        for h in range(4):
            a.wait(lg=rt[h])
            for k in (0, 2):
                r = ACC + 4 * h + k
                a(f"v_pk_add_f32 {v(r,2)}, {v(r,2)}, {v(r+16,2)}\nv_pk_add_f32 {v(r+32,2)}, {v(r+32,2)}, {v(r+48,2)}")
            for k in (0, 2):
                r = ACC + 4 * h + k
                a(f"v_pk_add_f32 {v(r,2)}, {v(r,2)}, {v(r+32,2)}")
            for k in (0, 2):
                r = ACC + 4 * h + k
                a(f"v_cvt_pk_bf16_f32 {v(P+2*h+k//2)}, {v(r)}, {v(r+1)}")
            if h & 1:
                m = h // 2
                a(f"v_permlane32_swap_b32 {v(P+4*m)}, {v(P+4*m+2)}\nv_permlane32_swap_b32 {v(P+4*m+1)}, {v(P+4*m+3)}")
                a.vm(f"buffer_store_dwordx4 {v(P+4*m,4)}, v4, {s(rOUT,4)}, {s(sHST)} offen offset:{32*m}")
        self.flush_stamp()
        a("L_fin:")
        if self.stamps:
            a.wait_all(vm=True)
            self.stamp(15); self.flush_stamp()
            a("s_memrealtime s[100:101]"); a.wait_all(lg=True); a("v_writelane_b32 v5, s100, 16")
            a(f"s_getreg_b32 s100, hwreg(HW_REG_XCC_ID)\nv_writelane_b32 v5, s100, 17")
            a(f"s_lshl_b32 {s(sT0)}, s2, 2\ns_add_u32 {s(sT0)}, {s(sT0)}, {s(sWV)}\ns_lshl_b32 {s(sT0)}, {s(sT0)}, 8\ns_add_u32 {s(sT0)}, {s(sT0)}, {WS_ST}")
            a(f"v_lshlrev_b32 v6, 2, {v(vL)}")
            a.vm(f"buffer_store_dword v5, v6, {s(rWS,4)}, {s(sT0)} offen")

    def text(self):
        hdr = open(f"cdna_kernels/{NAME}.s.ref").read().split("\n")
        top = [l for l in hdr if l.startswith(";") and "@launch" not in l and "Override" not in l and "grid=ceil" not in l]
        out = "\n".join(top) + "\n; @launch grid=(256,1,1) block=(256,1,1) lds=163840\n"
        out += f'.amdgcn_target "amdgcn-amd-amdhsa--gfx950"\n.text\n.globl {NAME}_kernel\n.p2align 8\n.type {NAME}_kernel,@function\n'
        out += self.a.text()
        out += f'''.section .rodata,"a"
.p2align 6
.amdhsa_kernel {NAME}_kernel
  .amdhsa_next_free_vgpr 512
  .amdhsa_next_free_sgpr 102
  .amdhsa_accum_offset 256
  .amdhsa_group_segment_fixed_size 0
  .amdhsa_kernarg_size 88
  .amdhsa_user_sgpr_count 2
  .amdhsa_user_sgpr_kernarg_segment_ptr 1
  .amdhsa_system_sgpr_workgroup_id_x 1
  .amdhsa_float_denorm_mode_32 3
.end_amdhsa_kernel
'''
        return out

if __name__ == "__main__":
    out = sys.argv[1]; stamps = len(sys.argv) > 2 and sys.argv[2] == "stamps"
    g = Gen(stamps); g.build(); open(out, "w").write(g.text())
    print("instructions", sum(1 for i in g.a.L if i.kind != 'meta'), "nops", g.a.nops)
```

```python
import sys
from collections import deque
from asmlib import Asm

NAME = "parallel_sum__linear_attn_block__dense_activation_squared_relu__prompt"
WS_H = 0; WS_O = 0x700000; WS_KV = 0x900000; WS_FH = 0x980000; WS_FO = WS_FH + 0x4000; WS_FK = WS_FH + 0x8000
WS_ST = 0xA00000; WS_SIZE = 0xB00000
REG = 40960
INIT_WG = 248
SPIN = 40000

sX, sWQ, sWO, sW1, sB1, sW2, sB2, sOUT, sDBG, sWS = 4, 6, 8, 12, 14, 16, 18, 20, 22, 24
rX, rW, rWS, rW2, rWO, rOUT, rB1, rB2 = 28, 32, 36, 40, 44, 48, 52, 56
sWV, sRB, sSO, sRS, sRS128, sCOL = 3, 26, 27, 60, 61, 62
sI, sJ, sROLE, sCS, sRB2, sT0, sT1, sT2 = 65, 66, 67, 68, 69, 70, 71, 72
sHST, sSGL, sW2B, sWOB, sCNT = 73, 74, 75, 76, 77
sMA, sMB, sHI = 78, 80, 82
sP = 84
sFA = 10
sSTAMP = None

vL = 0
vXD = 1
vST = 6
vXR = 14
vWD = 18
vWR = 22
vL16 = 30
vT = 31
vRS, vNB = 1, 2
vSD = 3
U = 32
VA, VB, VT = 144, 176, 208
aACC, aRING, aSEL, aBIAS = 0, 32, 64, 68
D = 6; RING = 8

def v(a, n=1): return f"v{a}" if n == 1 else f"v[{a}:{a+n-1}]"
def ag(a, n=1): return f"a{a}" if n == 1 else f"a[{a}:{a+n-1}]"
def s(a, n=1): return f"s{a}" if n == 1 else f"s[{a}:{a+n-1}]"

class Gen:
    def __init__(self, stamps=False):
        self.a = Asm(); self.stamps = stamps; self.nlab = 0; self.pending = None
    def lab(self, p):
        self.nlab += 1; return f"L_{p}_{self.nlab}"
    def stamp(self, k):
        if not self.stamps: return
        a = self.a
        if self.pending is not None: a(f"v_writelane_b32 v5, s100, {self.pending}")
        a(f"s_memtime s[100:101]")
        self.pending = k
    def flush_stamp(self):
        if self.stamps and self.pending is not None:
            self.a.wait_all(lg=True); self.a(f"v_writelane_b32 v5, s100, {self.pending}"); self.pending = None
    def srd(self, r, p, size):
        self.a(f"s_mov_b32 {s(r)}, {s(p)}\ns_mov_b32 {s(r+1)}, {s(p+1)}\ns_mov_b32 {s(r+2)}, {size}\ns_mov_b32 {s(r+3)}, 0x20000")
    def poll(self, n, off=0, base=None):
        a = self.a; L = self.lab("poll"); E = self.lab("pend")
        base = sFA if base is None else base
        a(f"s_mov_b32 {s(sCNT)}, 0")
        a(f"{L}:")
        a(f"s_load_dwordx{n} {s(sP, n)}, {s(base, 2)}, {off} glc")
        a.wait_all(lg=True)
        m = n
        while m > 2:
            m //= 2
            for i in range(0, m, 2): a(f"s_and_b64 {s(sP+i,2)}, {s(sP+i,2)}, {s(sP+m+i,2)}")
        a(f"s_and_b32 {s(sP)}, {s(sP)}, {s(sP+1)}")
        a(f"s_cbranch_scc1 {E}")
        a(f"s_add_u32 {s(sCNT)}, {s(sCNT)}, 1\ns_cmp_lt_u32 {s(sCNT)}, {SPIN}\ns_cbranch_scc1 {L}")
        a(f"{E}:")

    def dma_setup(self):
        self.dq = deque()
        self.tick = {}
        self.free = set(range(14, 20))
    def pair_entries(self, p):
        a = self.a
        for e in range(7):
            q = 7 * p + e; slot = (14 + q) % 20
            ops = []
            for b in range(2):
                u = 2 * (e & 1) + b
                def op(e=e, b=b, u=u, slot=slot, p=p, q=q):
                    n = 1
                    if u == 0:
                        a(f"s_add_u32 m0, {s(sRB)}, {slot*2048}")
                        a(f"s_mov_b32 {s(sSO)}, {s(sCOL+p)}" if e == 0 else f"s_add_u32 {s(sSO)}, {s(sSO)}, {s(sRS128)}")
                        n = 3
                    self.tick[q] = a.vm(f"buffer_load_dwordx4 {v(vWD+u)}, {s(rW,4)}, {s(sSO)} offen offset:{u*1024} lds")
                    return n
                ops.append(op)
            self.dq.append(dict(q=q, slot=slot, ops=deque(ops)))
    def single_entries(self):
        a = self.a
        for h in range(4):
            q = 21 + h; slot = (14 + q) % 20
            ops = []
            for e in (2 * h, 2 * h + 1):
                if e > 6: continue
                def op(e=e, slot=slot, q=q):
                    a(f"s_add_u32 m0, {s(sRB)}, {slot*2048 + (e&1)*1024}")
                    a(f"s_add_u32 {s(sSO)}, {s(sSGL)}, {e*64*3584}")
                    self.tick[q] = a.vm(f"buffer_load_dwordx4 {v(vSD)}, {s(rW,4)}, {s(sSO)} offen lds")
                    return 3
                ops.append(op)
            self.dq.append(dict(q=q, slot=slot, ops=deque(ops)))
    def w2_slot(self, t): return (19 + t) % 20
    def w2_entries(self):
        a = self.a
        st = dict(prev=None)
        for t in range(35):
            q = 25 + t; slot = self.w2_slot(t)
            ops = []
            for b in range(2):
                if t < 28: srd, base, row = rW2, sW2B, 16 * t + 8 * b
                elif t < 31: srd, base, row = rWO, sWOB, 16 * (t - 28) + 8 * b
                elif t < 34: srd, base, row = rWO, sWOB, 56 + 16 * (t - 31) + 8 * b
                else: srd, base, row = rWO, sWOB, 48 + 56 * b
                lds = slot * 2048 + b * 1024
                def op(srd=srd, base=base, row=row, lds=lds, q=q):
                    pv = st['prev']; n = 1
                    if pv and pv[0] == srd and pv[3] < 3 and row == pv[1] + 8 and lds == pv[2] + 1024: u = pv[3] + 1
                    else:
                        u = 0; n = 3
                        a(f"s_add_u32 m0, {s(sRB)}, {lds}")
                        a(f"s_add_u32 {s(sSO)}, {s(base)}, {row*896}")
                    st['prev'] = (srd, row, lds, u)
                    self.tick[q] = a.vm(f"buffer_load_dwordx4 {v(vXR+u)}, {s(srd,4)}, {s(sSO)} offen offset:{u*1024} lds")
                    return n
                ops.append(op)
            self.dq.append(dict(q=q, slot=slot, ops=deque(ops)))
    def dma_ready(self):
        if not self.dq: return False
        it = self.dq[0]
        if self.a.vm_issued - self.a.vm_done >= 58: return False
        return it.get('started') or it['slot'] in self.free
    def dma_one(self):
        it = self.dq[0]
        if not it.get('started'): self.free.remove(it['slot']); it['started'] = True
        n = it['ops'].popleft()()
        if not it['ops']: self.dq.popleft()
        return n

    def frag_list(self, role):
        fr = []
        for p in range(3):
            for st in range(28):
                for T in range(2):
                    q = 7 * p + st // 4; slot = (14 + q) % 20
                    fr.append(dict(q=q, addr=vWR + 4 * T + (st & 3), off=slot * 2048, rd=512, stage=p, s=st, T=T))
        if role == 'f':
            for st in range(28):
                e = st // 4; q = 21 + e // 2; slot = (14 + q) % 20
                fr.append(dict(q=q, addr=VT + 40 + (st & 3), off=slot * 2048 + (e & 1) * 1024, rd=256, stage=3, s=st, T=0))
        return fr
    def publish(self, q):
        a = self.a
        tgt = min(t for t in self.pubs if t >= q)
        while tgt not in self.tick or any(it['q'] == tgt for it in self.dq):
            assert self.dma_ready(), ("cannot publish", q, tgt)
            self.dma_one()
        a.wait(vm=self.tick[tgt])
        a("s_barrier")
        self.pub = tgt
        self.release()
    def release(self):
        for q, t in list(self.lastread.items()):
            if q in self.allread and t <= self.a.lg_done:
                del self.lastread[q]
                if q not in self.hold: self.free.add((14 + q) % 20)
    def read_frag(self, n):
        a = self.a
        if n >= len(self.fr): return
        f = self.fr[n]
        if f['q'] > self.pub: self.publish(f['q'])
        r = aRING + 4 * (n % RING)
        a.ds(f"ds_read_b64_tr_b16 {ag(r,2)}, {v(f['addr'])} offset:{f['off']}")
        f['t'] = a.ds(f"ds_read_b64_tr_b16 {ag(r+2,2)}, {v(f['addr'])} offset:{f['off']+f['rd']}")
        self.lastread[f['q']] = f['t']
        if n + 1 >= len(self.fr) or self.fr[n + 1]['q'] != f['q']: self.allread.add(f['q'])
    def fill(self, fillers, budget, dma=True):
        if dma and self.dma_ready(): budget -= self.dma_one()
        while fillers and budget > 0:
            budget -= fillers.popleft()() or 1
    def run_stage(self, stage, acc, swap, fillers, budget=4, pre=None, forced=None, dma_from=0):
        a = self.a
        idx = [n for n, f in enumerate(self.fr) if f['stage'] == stage]
        for line in (pre or []):
            a(line); self.fill(fillers, budget + 2)
        for k, n in enumerate(idx):
            f = self.fr[n]
            a.wait(lg=f['t'])
            w = ag(aRING + 4 * (n % RING), 4); x = v(U + 4 * f['s'], 4)
            c = acc(f['T']) if (pre or f['s'] > 0) else "0"
            a(f"v_mfma_f32_32x32x16_bf16 {acc(f['T'])}, {x if swap else w}, {w if swap else x}, {c}")
            self.read_frag(n + D)
            last = (n % 2 == 1)
            if forced:
                fl = forced(f['s'], f['T'])
                if k >= dma_from and self.dma_ready(): self.dma_one()
                for g in fl: g()
            else:
                self.fill(fillers, budget - (1 if last else 0), dma=(k >= dma_from))
            if last and n + 2 < len(self.fr): a.wait(lg=self.fr[n + 2]['t'])
    def norm_ops(self, st):
        a = self.a; ops = []
        b = U + 8 * st
        for d in range(4):
            ops.append(lambda d=d: a(f"v_fma_f32 {v(b+2*d)}, {v(b+2*d)}, {v(vRS)}, {v(vNB)}"))
            ops.append(lambda d=d: a(f"v_fma_f32 {v(b+2*d+1)}, {v(b+2*d+1)}, {v(vRS)}, {v(vNB)}"))
            ops.append(lambda d=d: a(f"v_cvt_pk_bf16_f32 {v(U+4*st+d)}, {v(b+2*d)}, {v(b+2*d+1)}"))
        return ops
    def norm_forced(self, st, T):
        if st + 1 >= 28: return []
        ops = self.norm_ops(st + 1)
        return ops[:6] if T == 0 else ops[6:]

    def build(self):
        a = self.a
        a(f"{NAME}_kernel:")
        a("s_cmp_ge_u32 s2, 256\ns_cbranch_scc1 L_end")
        if self.stamps: a("s_memrealtime s[96:97]\ns_memtime s[94:95]")
        a("s_load_dwordx16 s[4:19], s[0:1], 0\ns_load_dwordx4 s[20:23], s[0:1], 64\ns_load_dwordx2 s[24:25], s[0:1], 80")
        a("s_getpc_b64 s[98:99]\nL_pc:")
        a("s_lshr_b32 s3, s2, 3\ns_lshl_b32 s3, s3, 7")
        a("v_lshrrev_b32 v1, 4, v0\nv_lshl_add_u32 v1, v1, 12, s3")
        a("v_min_u32 v1, L_end - L_pc, v1")
        a.vm("global_load_dword v5, v1, s[98:99]")
        a(f"v_lshrrev_b32 v1, 6, v0\nv_and_b32 {v(vL)}, 63, v0")
        a(f"v_readfirstlane_b32 {s(sWV)}, v1")
        a(f"s_and_b32 {s(sT0)}, s2, 7\ns_lshr_b32 {s(sT1)}, s2, 3")
        a(f"s_and_b32 {s(sI)}, {s(sT0)}, 1\ns_lshl_b32 {s(sI)}, {s(sI)}, 3\ns_and_b32 {s(sT2)}, {s(sT1)}, 7\ns_add_u32 {s(sI)}, {s(sI)}, {s(sT2)}")
        a(f"s_and_b32 {s(sJ)}, {s(sT0)}, 6\ns_bfe_u32 {s(sT2)}, {s(sT1)}, 0x10003\ns_add_u32 {s(sJ)}, {s(sJ)}, {s(sT2)}")
        a(f"s_lshr_b32 {s(sROLE)}, {s(sT1)}, 4")
        a(f"s_lshr_b32 {s(sCS)}, {s(sT1)}, 2")
        a(f"s_and_b32 {s(sRB2)}, {s(sT1)}, 3\ns_lshl_b32 {s(sT0)}, {s(sT0)}, 2\ns_add_u32 {s(sRB2)}, {s(sRB2)}, {s(sT0)}")
        a(f"s_mul_i32 {s(sRB)}, {s(sWV)}, {REG}")
        a(f"s_lshl_b32 {s(sHST)}, {s(sI)}, 2\ns_add_u32 {s(sHST)}, {s(sHST)}, {s(sWV)}")
        a(f"s_mul_i32 {s(sSO)}, {s(sHST)}, {32*896}")
        a(f"v_lshrrev_b32 v6, 3, {v(vL)}\nv_and_b32 v7, 7, {v(vL)}")
        a(f"v_lshrrev_b32 v8, 1, v6\nv_xor_b32 v8, v7, v8\nv_lshlrev_b32 v8, 4, v8\nv_xor_b32 v9, 64, v8")
        a(f"v_mul_u32_u24 v10, 896, v6")
        a(f"v_add_u32 {v(vXD)}, v10, v8\nv_add_u32 v9, v10, v9")
        a(f"v_add_u32 {v(vXD+1)}, 6144, v9\nv_add_u32 {v(vXD+2)}, {2*6144}, {v(vXD)}\nv_add_u32 {v(vXD+3)}, {3*6144}, v9")
        a(f"v_lshlrev_b32 {v(vL16)}, 4, {v(vL)}")
        a("s_mov_b32 s30, 1835008\ns_mov_b32 s31, 0x20000")
        a.wait_all(lg=True)
        a("s_mov_b32 s28, s4\ns_mov_b32 s29, s5")
        self.srd(rWS, sWS, WS_SIZE)
        self.stamp(1)
        st0 = a.state()
        a(f"s_cmp_lg_u32 s2, {INIT_WG}\ns_cbranch_scc1 L_noinit")
        a("v_mov_b32 v32, 0\nv_mov_b32 v33, 0\nv_mov_b32 v34, 0\nv_mov_b32 v35, 0")
        a(f"v_lshlrev_b32 v36, 7, {v(vL)}")
        a(f"s_lshl_b32 {s(sT0)}, {s(sWV)}, 13\ns_add_u32 {s(sT0)}, {s(sT0)}, {WS_FH}")
        a(f"s_lshl_b32 {s(sT1)}, {s(sWV)}, 10\ns_add_u32 {s(sT1)}, {s(sT1)}, {WS_FK}")
        a(f"buffer_store_dwordx4 v[32:35], v36, {s(rWS,4)}, {s(sT0)} offen sc1")
        a(f"buffer_store_dwordx4 v[32:35], {v(vL16)}, {s(rWS,4)}, {s(sT1)} offen sc1")
        a("L_noinit:")
        a.set_state(st0)
        xt = []
        for n in range(7):
            a(f"s_add_u32 m0, {s(sRB)}, {n*4096}")
            if n: a(f"s_add_u32 {s(sSO)}, {s(sSO)}, 128")
            for g in range(4):
                t = a.vm(f"buffer_load_dwordx4 {v(vXD+g)}, {s(rX,4)}, {s(sSO)} offen offset:{g*1024} lds")
            xt.append(t)
        a(f"s_cmp_eq_u32 {s(sROLE)}, 0")
        a(f"s_cselect_b32 {s(rW)}, {s(sW1)}, {s(sWQ)}\ns_cselect_b32 {s(rW+1)}, {s(sW1+1)}, {s(sWQ+1)}")
        a(f"s_mov_b32 {s(sT0)}, {448*1344*2}\ns_cselect_b32 {s(rW+2)}, {448*1792*2}, {s(sT0)}\ns_mov_b32 {s(rW+3)}, 0x20000")
        a(f"s_movk_i32 {s(sT0)}, 2688\ns_cselect_b32 {s(sRS)}, 3584, {s(sT0)}")
        a(f"s_cselect_b32 {s(sT2)}, 7, 6")
        a(f"s_cselect_b32 {s(sCNT)}, 64, 48")
        a(f"s_cbranch_scc0 L_cola")
        a(f"s_mul_i32 {s(sSGL)}, {s(sJ)}, 448\ns_and_b32 {s(sT0)}, {s(sJ)}, 1\ns_lshl_b32 {s(sT1)}, {s(sT0)}, 6")
        a(f"s_add_u32 {s(sCOL)}, {s(sSGL)}, {s(sT1)}\ns_add_u32 {s(sCOL+1)}, {s(sCOL)}, 128\ns_add_u32 {s(sCOL+2)}, {s(sCOL)}, 256")
        a(f"s_cmp_eq_u32 {s(sT0)}, 0\ns_cselect_b32 {s(sT0)}, 384, 0\ns_add_u32 {s(sSGL)}, {s(sSGL)}, {s(sT0)}")
        a("s_branch L_colb\nL_cola:")
        a(f"s_mul_i32 {s(sCOL+2)}, {s(sJ)}, 112\ns_add_u32 {s(sCOL)}, {s(sCOL+2)}, 896\ns_add_u32 {s(sCOL+1)}, {s(sCOL+2)}, 1792")
        a(f"s_mov_b32 {s(sSGL)}, 0")
        a("L_colb:")
        a(f"s_mov_b32 {s(sW2B)}, {s(sCOL)}\ns_mov_b32 {s(sWOB)}, {s(sSGL)}")
        a(f"s_mul_i32 {s(sT0)}, {s(sRS)}, {s(sWV)}\ns_lshl_b32 {s(sT0)}, {s(sT0)}, 4")
        for k in range(3): a(f"s_add_u32 {s(sCOL+k)}, {s(sCOL+k)}, {s(sT0)}")
        a(f"s_add_u32 {s(sSGL)}, {s(sSGL)}, {s(sT0)}")
        a(f"s_lshl_b32 {s(sRS128)}, {s(sRS)}, 7")
        a(f"v_and_b32 v8, 2, v6\nv_lshlrev_b32 v8, 1, v8\nv_xor_b32 v8, v7, v8")
        a(f"v_lshlrev_b32 {v(vT)}, 4, v8\nv_add_u32 {v(vT)}, v10, {v(vT)}")
        a(f"v_min_u32 v8, {s(sT2)}, v8\nv_lshlrev_b32 v8, 4, v8")
        a(f"v_mad_u32_u24 {v(vWD)}, v6, {s(sRS)}, v8")
        a(f"s_lshl_b32 {s(sT0)}, {s(sRS)}, 3\ns_sub_u32 {s(sT0)}, {s(sT0)}, 1024")
        a(f"s_lshl_b32 {s(sT1)}, {s(sRS)}, 6\ns_sub_u32 {s(sT1)}, {s(sT1)}, 2048")
        a(f"v_add_u32 {v(vWD+1)}, {s(sT0)}, {v(vWD)}\nv_add_u32 {v(vWD+2)}, {s(sT1)}, {v(vWD)}\nv_add_u32 {v(vWD+3)}, {s(sT1)}, {v(vWD+1)}")
        self.dma_setup()
        for p in range(3): self.pair_entries(p)
        while self.dma_ready(): self.dma_one()
        self.srd(rB1, sB1, 3584)
        a(f"v_and_b32 v8, 31, {v(vL)}\nv_lshlrev_b32 v9, 1, v8")
        for k in range(16): a(f"v_accvgpr_write_b32 {ag(aBIAS+k)}, 0")
        for k in range(6): a.vm(f"buffer_load_ushort {ag(aBIAS+2*k)}, v9, {s(rB1,4)}, {s(sW2B)} offen offset:{64*k}")
        self.tb = a.vm(f"buffer_load_ushort {ag(aBIAS+12)}, v9, {s(rB1,4)}, {s(sWOB)} offen")
        a(f"v_lshrrev_b32 v10, 5, {v(vL)}")
        a(f"v_bfe_u32 v11, {v(vL)}, 1, 3\nv_xor_b32 v11, v10, v11\nv_lshlrev_b32 v11, 4, v11")
        a(f"v_lshl_add_u32 v11, v8, 7, v11\nv_add_u32 {v(vXR)}, {s(sRB)}, v11")
        for j in range(1, 4): a(f"v_xor_b32 {v(vXR+j)}, {32*j}, {v(vXR)}")
        a(f"v_cmp_eq_u32 {s(sHI,2)}, 1, v10")
        a(f"v_mov_b32 v11, 0x3f80")
        a(f"v_cndmask_b32 v11, v11, 0, {s(sHI,2)}")
        a(f"v_accvgpr_write_b32 {ag(aSEL)}, v11")
        for k in range(1, 4): a(f"v_accvgpr_write_b32 {ag(aSEL+k)}, 0")
        a(f"v_cmp_le_u32 {s(sMA,2)}, 28, v8\nv_cmp_gt_u32 {s(sMB,2)}, 4, v8")
        a(f"v_bfe_u32 v11, {v(vL)}, 2, 2")
        a(f"v_and_b32 v12, 3, {v(vL)}\nv_lshlrev_b32 v12, 3, v12\nv_bfe_u32 v13, {v(vL)}, 4, 1\nv_lshl_add_u32 v12, v13, 5, v12")
        a(f"v_and_b32 v13, 2, v11\nv_lshlrev_b32 v13, 5, v13")
        a(f"v_lshl_add_u32 v9, v10, 3, v11\nv_lshlrev_b32 v9, 7, v9")
        a(f"v_xor_b32 v8, v12, v13\nv_add_u32 {v(vWR)}, v9, v8")
        a(f"v_add_u32 v8, {s(sCNT)}, v12\nv_xor_b32 v8, v8, v13\nv_add_u32 {v(vWR+4)}, v9, v8")
        for T in range(2):
            for r in range(1, 4): a(f"v_add_u32 {v(vWR+4*T+r)}, {REG*r}, {v(vWR+4*T)}")
        a(f"s_cmp_lt_u32 {s(sCS)}, 7")
        a(f"s_mov_b32 {s(rW2)}, {s(sW2)}\ns_mov_b32 {s(rW2+1)}, {s(sW2+1)}\ns_cselect_b32 {s(rW2+2)}, {1792*896}, 0\ns_mov_b32 {s(rW2+3)}, 0x20000")
        a(f"s_mov_b32 {s(rWO)}, {s(sWO)}\ns_mov_b32 {s(rWO+1)}, {s(sWO+1)}\ns_cselect_b32 {s(rWO+2)}, {448*896}, 0\ns_mov_b32 {s(rWO+3)}, 0x20000")
        self.srd(rOUT, sOUT, 1835008); self.srd(rB2, sB2, 896)
        a(f"s_lshl_b32 {s(sT0)}, {s(sCS)}, 7")
        a(f"s_mul_i32 {s(sW2B)}, {s(sWV)}, {448*896}\ns_add_u32 {s(sW2B)}, {s(sW2B)}, {s(sT0)}")
        a(f"s_mul_i32 {s(sWOB)}, {s(sWV)}, {112*896}\ns_add_u32 {s(sWOB)}, {s(sWOB)}, {s(sT0)}")
        for k in range(8): a(f"v_mov_b32 {v(vST+k)}, 0")
        self.pub = -1; self.lastread = {}; self.allread = set(); self.hold = set()
        self.pubs = [1, 3, 6, 9, 13, 16, 20, 22, 24]
        self.fr = self.frag_list('f')
        def xreads(n):
            return [a.ds(f"ds_read_b128 {v(U+8*(4*n+j)+4,4)}, {v(vXR+j)} offset:{n*4096}") for j in range(4)]
        def process(st):
            b = U + 8 * st
            for d in range(4):
                a(f"v_lshlrev_b32 {v(b+2*d)}, 16, {v(b+4+d)}")
                a(f"v_and_b32 {v(b+2*d+1)}, 0xffff0000, {v(b+4+d)}")
            for d in range(4):
                k = vST + 2 * (d & 1)
                a(f"v_pk_add_f32 {v(k,2)}, {v(b+2*d,2)}, {v(k,2)}")
                a(f"v_pk_fma_f32 {v(k+4,2)}, {v(b+2*d,2)}, {v(b+2*d,2)}, {v(k+4,2)}")
        a.wait(vm=xt[0])
        if self.stamps: a("v_writelane_b32 v5, s96, 18\nv_writelane_b32 v5, s94, 0")
        self.stamp(2)
        st0 = a.state()
        a(f"s_cmp_lg_u32 s2, {INIT_WG}\ns_cbranch_scc1 L_nogo")
        a(f"v_mov_b32 v32, 1\ns_lshl_b32 {s(sT0)}, {s(sWV)}, 2\nv_mov_b32 v33, {s(sT0)}")
        a(f"global_store_dword v33, v32, {s(sDBG,2)} sc1")
        a("L_nogo:")
        a.set_state(st0)
        rt = xreads(0)
        for n in range(7):
            a.wait(lg=rt[3])
            self.free |= {2 * n, 2 * n + 1}
            while self.dma_ready(): self.dma_one()
            process(4 * n); process(4 * n + 1)
            if n < 6:
                a.wait(vm=xt[n + 1]); rt = xreads(n + 1)
            else:
                self.stamp(3)
                for k in range(D): self.read_frag(k)
            process(4 * n + 2); process(4 * n + 3)
        a(f"v_pk_add_f32 {v(vST,2)}, {v(vST,2)}, {v(vST+2,2)}\nv_pk_add_f32 {v(vST+4,2)}, {v(vST+4,2)}, {v(vST+6,2)}")
        a(f"v_add_f32 {v(vST)}, {v(vST)}, {v(vST+1)}\nv_add_f32 {v(vST+4)}, {v(vST+4)}, {v(vST+5)}")
        a(f"v_mov_b32 {v(vST+1)}, {v(vST)}\nv_mov_b32 {v(vST+5)}, {v(vST+4)}")
        a(f"v_permlane32_swap_b32 {v(vST)}, {v(vST+1)}\nv_permlane32_swap_b32 {v(vST+4)}, {v(vST+5)}")
        a(f"v_add_f32 {v(vST)}, {v(vST)}, {v(vST+1)}\nv_add_f32 {v(vST+4)}, {v(vST+4)}, {v(vST+5)}")
        inv = 0x3b124925
        a(f"v_mul_f32 {v(vST)}, {inv:#x}, {v(vST)}\nv_mul_f32 {v(vST+4)}, {inv:#x}, {v(vST+4)}")
        a(f"v_fma_f32 {v(vST+4)}, -{v(vST)}, {v(vST)}, {v(vST+4)}")
        a(f"v_max_f32 {v(vST+4)}, 0, {v(vST+4)}\nv_add_f32 {v(vST+4)}, 0x3727c5ac, {v(vST+4)}")
        a(f"v_rsq_f32 {v(vRS)}, {v(vST+4)}")
        a(f"v_mov_b32 {v(vXR)}, {v(vT)}")
        a(f"v_mul_f32_e64 {v(vNB)}, -{v(vST)}, {v(vRS)}")
        for g in self.norm_ops(0): g()
        self.stamp(4)
        a(f"s_cmp_lg_u32 {s(sROLE)}, 0\ns_cbranch_scc1 L_attn")
        import copy
        snap = (a.state(), copy.copy(self.free), dict(self.tick), self.pub, dict(self.lastread), set(self.allread),
                [(it['q'], len(it['ops']), it.get('started')) for it in self.dq], [f.get('t') for f in self.fr[:D]])
        pend = self.pending
        self.ffn_role()
        self.pending = pend
        a("s_branch L_p2")
        st_f = a.state()
        a("L_attn:")
        a.set_state(snap[0]); self.dma_setup()
        for p in range(3): self.pair_entries(p)
        assert [x[0] for x in snap[6]] == [20] and not snap[6][0][2]
        while self.dq[0]['q'] < 20: self.dq.popleft()
        self.free = snap[1]; self.tick = snap[2]; self.pub = snap[3]; self.lastread = snap[4]; self.allread = snap[5]
        self.fr = self.frag_list('a')
        for k in range(D): self.fr[k]['t'] = snap[7][k]
        self.attn_role()
        a("L_p2:")
        self.phase2()
        a("L_end:\ns_endpgm")

    def w2_addr_ops(self):
        a = self.a
        return [lambda u=u: a(f"v_add_u32 {v(vXR+u)}, {u*6144}, {v(vXR)}") for u in range(1, 4)]
    def check_go(self):
        a = self.a; E = self.lab("go")
        a(f"s_load_dwordx4 {s(sP,4)}, {s(sDBG,2)}, 0")
        a.wait_all(lg=True)
        a(f"s_and_b64 {s(sP,2)}, {s(sP,2)}, {s(sP+2,2)}\ns_and_b32 {s(sP)}, {s(sP)}, {s(sP+1)}\ns_cbranch_scc1 {E}")
        self.poll(4, 0, base=sDBG)
        a(f"{E}:")
    def wreg(self, t, T):
        return ag(8 * t + 4 * T, 4) if t < 32 else v(224 + 8 * (t - 32) + 4 * T, 4)
    def w2_read(self, t):
        a = self.a
        a.wait(vm=self.tick[25 + t])
        for T in range(2):
            for rd in range(2):
                r = (ag(8 * t + 4 * T + 2 * rd, 2) if t < 32 else v(224 + 8 * (t - 32) + 4 * T + 2 * rd, 2))
                if a.lg_issued - a.lg_done >= 15: a.wait(lg=a.lg_issued - 7)
                tk = a.ds(f"ds_read_b64_tr_b16 {r}, {v(vWR+T)} offset:{self.w2_slot(t)*2048 + rd*1024}")
        self.wt[t] = tk
    def p2_addr(self):
        a = self.a
        a(f"v_lshrrev_b32 v10, 5, {v(vL)}\nv_bfe_u32 v11, {v(vL)}, 2, 2")
        a(f"v_and_b32 v12, 3, {v(vL)}\nv_lshlrev_b32 v12, 3, v12\nv_bfe_u32 v13, {v(vL)}, 4, 1\nv_lshl_add_u32 v12, v13, 5, v12")
        a(f"v_and_b32 v13, 2, v11\nv_lshlrev_b32 v13, 5, v13\nv_xor_b32 v12, v12, v13")
        a(f"v_lshl_add_u32 v9, v10, 2, v11\nv_lshl_add_u32 v9, v9, 7, v12")
        a(f"s_and_b32 {s(sT0)}, {s(sWV)}, 1\ns_lshl_b32 {s(sT0)}, {s(sT0)}, 6")
        a(f"v_xor_b32 v9, {s(sT0)}, v9\nv_add_u32 {v(vWR)}, {s(sRB)}, v9\nv_xor_b32 {v(vWR+1)}, 64, {v(vWR)}")
    def w2_drain(self, upto):
        a = self.a
        while self.dma_ready(): self.dma_one()
        while self.w2n < upto:
            t = self.w2n
            self.w2_read(t); self.w2n += 1
            if t >= 2:
                a.wait(lg=self.wt[t - 2]); self.free.add(self.w2_slot(t - 2))
                while self.dma_ready(): self.dma_one()

    def ffn_role(self):
        a = self.a
        self.single_entries(); self.w2_entries()
        self.wt = {}; self.w2n = 0
        a(f"s_mul_i32 {s(sT1)}, {s(sHST)}, 112\ns_mul_i32 {s(sT0)}, {s(sJ)}, 14\ns_add_u32 {s(sT1)}, {s(sT1)}, {s(sT0)}")
        a(f"s_and_b32 {s(sT0)}, {s(sJ)}, 1\ns_cselect_b32 {s(sT0)}, 2, 0\ns_cselect_b32 {s(sT2)}, 0, 12")
        a(f"s_add_u32 {s(sT2)}, {s(sT2)}, {s(sT1)}\ns_add_u32 {s(sT1)}, {s(sT1)}, {s(sT0)}")
        a(f"s_lshl_b32 {s(sT1)}, {s(sT1)}, 10\ns_lshl_b32 {s(sT2)}, {s(sT2)}, 10")
        a(f"v_lshrrev_b32 v8, 2, {v(vL)}\nv_and_b32 v9, 3, {v(vL)}\nv_lshlrev_b32 v9, 4, v9\nv_mul_u32_u24 v8, 3584, v8\nv_add_u32 {v(vSD)}, v8, v9")
        for g in self.w2_addr_ops(): g()
        a.wait(vm=self.tb)
        def bias(acc, tiles): return [f"v_mfma_f32_32x32x16_bf16 {acc(T)}, {ag(aBIAS+2*k,4)}, {ag(aSEL,4)}, 0" for T, k in enumerate(tiles)]
        def epi(src, agpr, T, soff, off):
            ops = []; h = VT + 8 * T; tmp = VT + 16
            for d in range(8):
                if agpr:
                    t0 = tmp + 2 * (d & 3)
                    ops.append(lambda d=d, t0=t0: a(f"v_accvgpr_read_b32 {v(t0)}, {ag(src+2*d)}"))
                    ops.append(lambda d=d, t0=t0: a(f"v_accvgpr_read_b32 {v(t0+1)}, {ag(src+2*d+1)}"))
                else: t0 = src + 2 * d
                ops.append(lambda t0=t0: a(f"v_mul_f32_e64 {v(t0)}, {v(t0)}, |{v(t0)}|"))
                ops.append(lambda t0=t0: a(f"v_mul_f32_e64 {v(t0+1)}, {v(t0+1)}, |{v(t0+1)}|"))
                ops.append(lambda d=d, t0=t0: a(f"v_cvt_pk_bf16_f32 {v(h+d)}, {v(t0)}, {v(t0+1)}"))
                ops.append(lambda d=d: a(f"v_pk_max_i16 {v(h+d)}, {v(h+d)}, 0"))
                if d % 4 == 3:
                    def st(d=d):
                        self.last_store = a.vm(f"buffer_store_dwordx4 {v(h+d-3,4)}, {v(vL16)}, {s(rWS,4)}, {s(soff)} offen offset:{off+(d//4)*1024} sc1")
                    ops.append(st)
            return ops
        accs = [lambda T: ag(aACC + 16 * T, 16), lambda T: v(VA + 16 * T, 16), lambda T: v(VB + 16 * T, 16), lambda T: v(VA, 16)]
        self.run_stage(0, accs[0], False, deque(), pre=bias(accs[0], [0, 1]), forced=self.norm_forced)
        self.stamp(5)
        fl = deque()
        fl.append(lambda: a(f"v_lshrrev_b32 v10, 5, {v(vL)}"))
        fl.append(lambda: a(f"v_bfe_u32 v11, {v(vL)}, 2, 2"))
        fl.append(lambda: a(f"v_lshl_add_u32 v11, v10, 3, v11"))
        fl.append(lambda: a(f"v_and_b32 v12, 3, {v(vL)}"))
        fl.append(lambda: a(f"v_lshlrev_b32 v12, 3, v12"))
        fl.append(lambda: a(f"v_bfe_u32 v13, {v(vL)}, 4, 1"))
        fl.append(lambda: a(f"v_lshl_add_u32 v12, v13, 5, v12"))
        fl.append(lambda: a(f"v_lshl_add_u32 {v(VT+40)}, v11, 6, v12"))
        for r in range(1, 4): fl.append(lambda r=r: a(f"v_add_u32 {v(VT+40+r)}, {REG*r}, {v(VT+40)}"))
        fl.extend(epi(aACC, True, 0, sT1, 0)); fl.extend(epi(aACC + 16, True, 1, sT1, 2048))
        self.run_stage(1, accs[1], False, fl, pre=bias(accs[1], [2, 3]))
        while fl: fl.popleft()()
        self.stamp(6)
        nop = lambda: 4
        fl = deque([lambda: a(f"s_add_u32 {s(sT1)}, {s(sT1)}, 4096"), nop, nop, nop, nop])
        fl.extend(epi(VA, False, 0, sT1, 0)); fl.extend(epi(VA + 16, False, 1, sT1, 2048))
        self.run_stage(2, accs[2], False, fl, pre=bias(accs[2], [4, 5]), budget=3)
        while fl: fl.popleft()()
        self.stamp(7)
        fl = deque([lambda: a(f"s_add_u32 {s(sT1)}, {s(sT1)}, 4096"), nop, nop, nop])
        fl.extend(epi(VB, False, 0, sT1, 0)); fl.extend(epi(VB + 16, False, 1, sT1, 2048))
        self.run_stage(3, accs[3], False, fl, pre=bias(accs[3], [6]))
        while fl: fl.popleft()()
        self.stamp(8)
        a("s_barrier"); self.release()
        self.p2_addr()
        for g in epi(VA, False, 0, sT2, 0): g()
        ls = self.last_store
        self.flag_off(WS_FH)
        self.check_go()
        self.w2_drain(8)
        a.wait(vm=ls)
        a.vm(f"buffer_store_dword v8, v9, {s(rWS,4)}, 0 offen sc1")
        self.stamp(9)
        self.w2_drain(17)
        assert not self.dq
        self.junction()
    def flag_off(self, base):
        a = self.a
        a(f"s_lshr_b32 {s(sT0)}, {s(sHST)}, 1\ns_lshl_b32 {s(sT0)}, {s(sT0)}, 2\ns_lshr_b32 {s(sT1)}, {s(sJ)}, 1\ns_add_u32 {s(sT0)}, {s(sT0)}, {s(sT1)}")
        a(f"s_lshl_b32 {s(sT0)}, {s(sT0)}, 5\ns_and_b32 {s(sT1)}, {s(sHST)}, 1\ns_lshl_b32 {s(sT1)}, {s(sT1)}, 1\ns_add_u32 {s(sT0)}, {s(sT0)}, {s(sT1)}")
        a(f"s_and_b32 {s(sT1)}, {s(sJ)}, 1\ns_add_u32 {s(sT0)}, {s(sT0)}, {s(sT1)}\ns_lshl_b32 {s(sT0)}, {s(sT0)}, 2\ns_add_u32 {s(sT0)}, {s(sT0)}, {base}")
        a(f"v_mov_b32 v8, 1\nv_mov_b32 v9, {s(sT0)}")
    def junction(self):
        a = self.a
        a.wait_all(lg=True)
        self.flush_stamp()
        rel = {t: a.vm_issued - self.tick[25 + t] for t in range(17, 35)}
        out = a.vm_issued - a.vm_done
        if not hasattr(self, 'jrel'): self.jrel = rel; self.jout = out
        else:
            self.jrel = {t: min(rel[t], self.jrel[t]) for t in rel}; self.jout = max(out, self.jout)

    def phi_ops(self, src, agpr, dst, tmp):
        a = self.a; ops = []
        for d in range(8):
            t0 = tmp + 4 * (d & 1)
            for k in range(2):
                if agpr:
                    x = t0 + 2 + k
                    ops.append(lambda x=x, r=src+2*d+k: a(f"v_accvgpr_read_b32 {v(x)}, {ag(r)}"))
                else: x = src + 2 * d + k
                ops.append(lambda x=x, e=t0+k: a(f"v_mul_f32 {v(e)}, 0x3fb8aa3b, {v(x)}"))
                def ex(e=t0+k):
                    a(f"v_exp_f32_e64 {v(e)}, {v(e)} clamp"); return 2
                ops.append(ex)
                ops.append(lambda x=x: a(f"v_max_f32 {v(x)}, 0x358637bd, {v(x)}"))
                ops.append(lambda x=x, e=t0+k: a(f"v_add_f32 {v(e)}, {v(e)}, {v(x)}"))
            ops.append(lambda d=d, t0=t0: a(f"v_cvt_pk_bf16_f32 {v(dst+d)}, {v(t0)}, {v(t0+1)}"))
        return ops

    def attn_role(self):
        a = self.a
        self.pubs = [1, 3, 6, 9, 13, 16, 20]
        self.hold = {1, 2, 3, 4}
        self.w2_entries(); self.wt = {}; self.w2n = 0
        for g in self.w2_addr_ops(): g()
        PK, PV, TMP = VT, VT + 16, VT + 32
        accs = [lambda T: ag(aACC + 16 * T, 16), lambda T: v(VA + 16 * T, 16), lambda T: v(VB + 16 * T, 16)]
        self.run_stage(0, accs[0], True, deque(), forced=self.norm_forced)
        self.stamp(5)
        nop = lambda: 4
        fl = deque([nop, nop, nop])
        fl.extend(self.phi_ops(aACC, True, PK, TMP)); fl.extend(self.phi_ops(aACC + 16, True, PK + 8, TMP))
        self.run_stage(1, accs[1], True, fl, budget=5)
        while fl: fl.popleft()()
        self.stamp(6)
        XB = 15 * 2048
        fl = deque()
        fl.append(lambda: a(f"v_mov_b32 {v(TMP)}, 0x3f803f80"))
        fl.append(lambda: a(f"s_lshl_b32 {s(sT0)}, {s(sWV)}, 11"))
        fl.append(lambda: a(f"v_add_u32 v8, {s(sT0)}, {v(vL16)}"))
        fl.append(lambda: a(f"v_add_u32 v9, {2*REG}, v8"))
        fl.append(lambda: a(f"v_add_u32 v8, {XB}, v8"))
        fl.append(lambda: a(f"v_add_u32 v9, {XB}, v9"))
        fl.append(lambda: a(f"v_add_u32 v10, {s(sRB)}, {v(vL16)}"))
        fl.append(lambda: a(f"s_lshl_b32 {s(sT1)}, {s(sJ)}, 2"))
        fl.append(lambda: a(f"s_add_u32 {s(sT1)}, {s(sT1)}, {s(sWV)}"))
        fl.append(lambda: a(f"s_lshl_b32 {s(sT2)}, {s(sT1)}, 4"))
        fl.append(lambda: a(f"s_add_u32 {s(sT2)}, {s(sT2)}, {s(sI)}"))
        fl.append(lambda: a(f"s_lshl_b32 {s(sT2)}, {s(sT2)}, 10"))
        fl.append(lambda: a(f"s_add_u32 {s(sT2)}, {s(sT2)}, {WS_KV}"))
        for T in range(2):
            for d in range(8):
                fl.append(lambda T=T, d=d: a(f"v_cvt_pk_bf16_f32 {v(PV+8*T+d)}, {v(VA+16*T+2*d)}, {v(VA+16*T+2*d+1)}"))
                fl.append(lambda T=T, d=d: a(f"v_cndmask_b32 {v(PV+8*T+d)}, {v(PV+8*T+d)}, {v(TMP)}, {s(sMA if T == 0 else sMB,2)}"))
        def kvm(T, k):
            def f():
                c = "0" if k == 0 else v(VA + 16 * T, 16)
                a(f"v_mfma_f32_32x32x16_bf16 {v(VA+16*T,16)}, {v(PK+8*T+4*k,4)}, {v(PV+8*T+4*k,4)}, {c}"); return 8
            return f
        fl.append(nop)
        for k in range(2):
            for T in range(2): fl.append(kvm(T, k))
        fl.extend([nop, nop, nop])
        st = {}
        for f in range(4):
            for h in range(2):
                def w(f=f, h=h):
                    if a.lg_issued - a.lg_done >= 15: a.wait(lg=a.lg_issued - 10)
                    st['w'] = a.ds(f"ds_write_b128 {'v8' if f < 2 else 'v9'}, {v(VA+8*f+4*h,4)} offset:{(f&1)*REG + h*1024}"); return 4
                fl.append(w)
        fl.append(nop)
        def bar():
            a.wait(lg=st['w']); a("s_barrier"); self.release(); return 2
        fl.append(bar)
        for sw in range(4):
            for h in range(2):
                def r(sw=sw, h=h):
                    if a.lg_issued - a.lg_done >= 15: a.wait(lg=a.lg_issued - 10)
                    st[sw, h] = a.ds(f"ds_read_b128 {v(VA+8*sw+4*h,4)}, v10 offset:{XB + sw*2048 + h*1024}"); return 2
                fl.append(r)
        fl.extend([nop, nop])
        fl.append(lambda: a.wait(lg=st[3, 1]) and 1)
        for k in range(8):
            fl.append(lambda k=k: a(f"v_add_f32 {v(VA+k)}, {v(VA+k)}, {v(VA+8+k)}"))
            fl.append(lambda k=k: a(f"v_add_f32 {v(VA+16+k)}, {v(VA+16+k)}, {v(VA+24+k)}"))
        for d in range(4):
            fl.append(lambda d=d: a(f"v_add_f32 {v(VA+2*d)}, {v(VA+2*d)}, {v(VA+16+2*d)}"))
            fl.append(lambda d=d: a(f"v_add_f32 {v(VA+2*d+1)}, {v(VA+2*d+1)}, {v(VA+16+2*d+1)}"))
            fl.append(lambda d=d: a(f"v_cvt_pk_bf16_f32 {v(TMP+4+d)}, {v(VA+2*d)}, {v(VA+2*d+1)}"))
        def stp():
            st['s'] = a.vm(f"buffer_store_dwordx4 {v(TMP+4,4)}, {v(vL16)}, {s(rWS,4)}, {s(sT2)} offen sc1")
        fl.append(stp)
        self.run_stage(2, accs[2], False, fl, budget=5)
        while fl: fl.popleft()()
        self.stamp(7)
        a(f"s_lshl_b32 {s(sT0)}, {s(sT1)}, 7\ns_add_u32 {s(sT0)}, {s(sT0)}, {WS_FK}")
        a(f"s_add_u32 {s(sFA)}, {s(sWS)}, {s(sT0)}\ns_addc_u32 {s(sFA+1)}, {s(sWS+1)}, 0")
        a(f"s_lshl_b32 {s(sT2)}, {s(sI)}, 2\ns_add_u32 {s(sT0)}, {s(sT0)}, {s(sT2)}")
        a(f"v_mov_b32 v11, 1\nv_mov_b32 v12, {s(sT0)}")
        self.check_go()
        a.wait(vm=st['s'])
        a.vm(f"buffer_store_dword v11, v12, {s(rWS,4)}, 0 offen sc1")
        a("s_barrier"); self.release()
        while self.dma_ready(): self.dma_one()
        PQ = PK
        for g in self.phi_ops(VB, False, PQ, TMP) + self.phi_ops(VB + 16, False, PQ + 8, TMP): g()
        for d in (6, 7): a(f"v_cndmask_b32 {v(PQ+d)}, {v(PQ+d)}, 0, {s(sHI,2)}")
        for d in (8, 9): a(f"v_cndmask_b32 {v(PQ+d)}, 0, {v(PQ+d)}, {s(sHI,2)}")
        a(f"v_mov_b32 {v(TMP+10)}, v10")
        self.p2_addr()
        self.stamp(8)
        self.poll(16)
        self.stamp(9)
        G = U
        a(f"s_lshl_b32 {s(sT1)}, {s(sT1)}, 14\ns_add_u32 {s(sT1)}, {s(sT1)}, {WS_KV}")
        gt = []
        for i in range(16):
            if i and i % 4 == 0: a(f"s_add_u32 {s(sT1)}, {s(sT1)}, 4096")
            gt.append(a.vm(f"buffer_load_dwordx4 {v(G+4*i,4)}, {v(vL16)}, {s(rWS,4)}, {s(sT1)} offen offset:{(i%4)*1024} sc1"))
        self.w2_drain(8)
        S = VA
        for i in range(16):
            a.wait(vm=gt[i])
            for d in range(4):
                if i == 0:
                    a(f"v_lshlrev_b32 {v(S+2*d)}, 16, {v(G+d)}\nv_and_b32 {v(S+2*d+1)}, 0xffff0000, {v(G+d)}")
                else:
                    t0 = TMP + 2 * d
                    a(f"v_lshlrev_b32 {v(t0)}, 16, {v(G+4*i+d)}\nv_and_b32 {v(t0+1)}, 0xffff0000, {v(G+4*i+d)}")
            if i:
                for d in range(4): a(f"v_pk_add_f32 {v(S+2*d,2)}, {v(S+2*d,2)}, {v(TMP+2*d,2)}")
        for d in range(4): a(f"v_cvt_pk_bf16_f32 {v(TMP+d)}, {v(S+2*d)}, {v(S+2*d+1)}")
        t = a.ds(f"ds_write_b128 {v(TMP+10)}, {v(TMP,4)} offset:{XB}")
        a(f"v_add_u32 v8, {XB}, {v(vL16)}\nv_add_u32 v9, {XB+2*REG}, {v(vL16)}")
        a.wait(lg=t); a("s_barrier")
        KVA = PV
        for f in range(4): t = a.ds(f"ds_read_b128 {v(KVA+4*f,4)}, {'v8' if f < 2 else 'v9'} offset:{(f&1)*REG}")
        a.wait(lg=t)
        for k in range(2):
            for T in range(2):
                c = "0" if k == 0 else v(VA + 16 * T, 16)
                a(f"v_mfma_f32_32x32x16_bf16 {v(VA+16*T,16)}, {v(KVA+8*T+4*k,4)}, {v(PQ+8*T+4*k,4)}, {c}")
        a("s_barrier")
        self.free |= {15, 16, 17, 18}
        while self.dma_ready(): self.dma_one()
        a(f"s_lshl_b32 {s(sT2)}, {s(sHST)}, 3\ns_add_u32 {s(sT2)}, {s(sT2)}, {s(sJ)}\ns_lshl_b32 {s(sT2)}, {s(sT2)}, 12\ns_add_u32 {s(sT2)}, {s(sT2)}, {WS_O}")
        self.flag_off(WS_FO)
        a(f"v_lshlrev_b32 v10, 3, {v(vL)}")
        NA, NB = VA, VA + 16
        a(f"v_mov_b32 {v(TMP)}, {v(NA+12)}\nv_mov_b32 {v(TMP+1)}, {v(NB)}")
        a(f"v_permlane32_swap_b32 {v(TMP)}, {v(TMP+1)}")
        a(f"v_cndmask_b32 {v(TMP+2)}, {v(TMP+1)}, {v(NA+12)}, {s(sHI,2)}")
        a(f"v_cndmask_b32 {v(TMP+3)}, {v(NB)}, {v(TMP)}, {s(sHI,2)}")
        a(f"v_add_f32 {v(TMP+2)}, 0x358637bd, {v(TMP+2)}\nv_add_f32 {v(TMP+3)}, 0x358637bd, {v(TMP+3)}")
        a(f"v_rcp_f32 {v(TMP+2)}, {v(TMP+2)}\nv_rcp_f32 {v(TMP+3)}, {v(TMP+3)}")
        O = VB
        for T in range(2):
            for d in range(8):
                r = VA + 16 * T + 2 * d
                a(f"v_mul_f32 {v(r)}, {v(r)}, {v(TMP+2+T)}\nv_mul_f32 {v(r+1)}, {v(r+1)}, {v(TMP+2+T)}")
                dst = O + d if T == 0 else (TMP + 4 + d if d < 2 else O + 6 + d)
                a(f"v_cvt_pk_bf16_f32 {v(dst)}, {v(r)}, {v(r+1)}")
                if T == 0 and d == 3: a.vm(f"buffer_store_dwordx4 {v(O,4)}, {v(vL16)}, {s(rWS,4)}, {s(sT2)} offen sc1")
                if T == 1 and d == 1:
                    a(f"v_cndmask_b32 {v(O+6)}, {v(O+6)}, {v(TMP+4)}, {s(sHI,2)}\nv_cndmask_b32 {v(O+7)}, {v(O+7)}, {v(TMP+5)}, {s(sHI,2)}")
                    a.vm(f"buffer_store_dwordx4 {v(O+4,4)}, {v(vL16)}, {s(rWS,4)}, {s(sT2)} offen offset:1024 sc1")
                if T == 1 and d == 5: a.vm(f"buffer_store_dwordx4 {v(O+8,4)}, {v(vL16)}, {s(rWS,4)}, {s(sT2)} offen offset:2048 sc1")
        ls = a.vm(f"buffer_store_dwordx2 {v(O+12,2)}, v10, {s(rWS,4)}, {s(sT2)} offen offset:3072 sc1")
        self.w2_drain(15)
        a.wait(vm=ls)
        a.vm(f"buffer_store_dword v8, v9, {s(rWS,4)}, 0 offen sc1")
        self.stamp(10)
        self.w2_drain(17)
        assert not self.dq
        self.junction()

    def phase2(self):
        a = self.a
        a.vm_issued = 1000; a.vm_done = 1000 - self.jout
        for t in range(17, 35): self.tick[25 + t] = 1000 - self.jrel[t]
        self.w2n = 17
        for t in range(17): self.wt[t] = 0
        a(f"s_cmp_ge_u32 {s(sCS)}, 7\ns_cbranch_scc1 L_fin")
        ACC, HR, NH = 32, 96, 32
        a(f"s_lshr_b32 {s(sT0)}, {s(sWV)}, 1\ns_lshl_b32 {s(sT1)}, {s(sRB2)}, 1\ns_add_u32 {s(sT1)}, {s(sT1)}, {s(sT0)}")
        a(f"s_and_b32 {s(sT0)}, {s(sWV)}, 1\ns_lshl_b32 {s(sT0)}, {s(sT0)}, 6\ns_lshl_b32 {s(sT2)}, {s(sCS)}, 7\ns_add_u32 {s(sT0)}, {s(sT0)}, {s(sT2)}")
        a(f"s_mul_i32 {s(sHST)}, {s(sT1)}, {32*896}\ns_add_u32 {s(sHST)}, {s(sHST)}, {s(sT0)}")
        a(f"v_and_b32 v8, 31, {v(vL)}\nv_lshrrev_b32 v10, 5, {v(vL)}\nv_mul_u32_u24 v9, 896, v8\nv_lshl_add_u32 v4, v10, 4, v9")
        a(f"v_lshlrev_b32 v9, 1, v8")
        XR, ID, BB, SEL = 96, 104, 112, 116
        a.vm(f"buffer_load_dwordx4 {v(XR,4)}, v4, {s(rX,4)}, {s(sHST)} offen")
        a.vm(f"buffer_load_dwordx4 {v(XR+4,4)}, v4, {s(rX,4)}, {s(sHST)} offen offset:32")
        tx = a.vm(f"buffer_load_ushort {v(BB)}, v9, {s(rB2,4)}, {s(sT0)} offen")
        a(f"v_lshlrev_b32 v10, 3, v10\nv_sub_u32 v8, v8, v10")
        a(f"v_mov_b32 v11, 0x3f80\nv_mov_b32 v12, 0x3f800000")
        for m in range(2):
            for d in range(4):
                a(f"v_cmp_eq_u32 vcc, {16*m+2*d}, v8\nv_cmp_eq_u32 {s(sMA,2)}, {16*m+2*d+1}, v8")
                a(f"v_cndmask_b32 {v(ID+4*m+d)}, 0, v11, vcc\nv_cndmask_b32 {v(ID+4*m+d)}, {v(ID+4*m+d)}, v12, {s(sMA,2)}")
        a(f"v_cndmask_b32 {v(SEL)}, v11, 0, {s(sHI,2)}")
        for k in range(1, 4): a(f"v_mov_b32 {v(SEL+k)}, 0\nv_mov_b32 {v(BB+k)}, 0")
        a(f"s_xor_b32 {s(sT2)}, {s(sT1)}, 1")
        a(f"s_mul_i32 {s(sT0)}, {s(sT1)}, {112*1024}\nv_add_u32 v6, {s(sT0)}, {v(vL16)}")
        a(f"s_mul_i32 {s(sT0)}, {s(sT2)}, {112*1024}\nv_add_u32 v7, {s(sT0)}, {v(vL16)}")
        a(f"s_lshl_b32 {s(sT0)}, {s(sT1)}, 15\nv_add_u32 v12, {s(sT0)}, {v(vL16)}\nv_lshl_add_u32 v2, {v(vL)}, 3, {s(sT0)}")
        a(f"s_lshl_b32 {s(sT0)}, {s(sT2)}, 15\nv_add_u32 v13, {s(sT0)}, {v(vL16)}\nv_lshl_add_u32 v3, {v(vL)}, 3, {s(sT0)}")
        a(f"s_mul_i32 {s(sSO)}, {s(sWV)}, {28*1024}")
        a(f"s_lshl_b32 {s(sT1)}, {s(sWV)}, 13\ns_add_u32 {s(sT1)}, {s(sT1)}, {WS_O}\ns_add_u32 {s(sT2)}, {s(sT1)}, 4096")
        a(f"s_lshl_b32 {s(sT0)}, {s(sRB2)}, 2\ns_add_u32 {s(sT0)}, {s(sT0)}, {s(sWV)}\ns_lshl_b32 {s(sT0)}, {s(sT0)}, 7\ns_add_u32 {s(sT0)}, {s(sT0)}, {WS_FH}")
        a(f"s_add_u32 {s(sFA)}, {s(sWS)}, {s(sT0)}\ns_addc_u32 {s(sFA+1)}, {s(sWS+1)}, 0")
        a.wait(vm=tx)
        a(f"v_mfma_f32_32x32x16_bf16 {v(ACC,16)}, {v(BB,4)}, {v(SEL,4)}, 0")
        for m in range(2): a(f"v_mfma_f32_32x32x16_bf16 {v(ACC,16)}, {v(ID+4*m,4)}, {v(XR+4*m,4)}, {v(ACC,16)}")
        while self.w2n < 35: self.w2_read(self.w2n); self.w2n += 1
        self.stamp(11)
        self.poll(4)
        self.stamp(12)
        ht = {}
        def hload(t):
            if t >= 35: return
            if t == 28: self.poll(4, WS_FO - WS_FH); self.stamp(13)
            for b in range(2):
                r = HR + 4 * ((2 * t + b) % NH)
                if t < 28:
                    if b == 0 and t and t % 4 == 0: a(f"s_add_u32 {s(sSO)}, {s(sSO)}, 4096")
                    ht[t] = a.vm(f"buffer_load_dwordx4 {v(r,4)}, v{6+b}, {s(rWS,4)}, {s(sSO)} offen offset:{(t%4)*1024} sc1")
                elif t < 34:
                    so = sT1 if t < 31 else sT2
                    ht[t] = a.vm(f"buffer_load_dwordx4 {v(r,4)}, v{12+b}, {s(rWS,4)}, {s(so)} offen offset:{((t-28)%3)*1024} sc1")
                else:
                    a.vm(f"buffer_load_dwordx2 {v(r,2)}, v{2+b}, {s(rWS,4)}, {s(sT1)} offen offset:3072 sc1")
                    ht[t] = a.vm(f"buffer_load_dwordx2 {v(r+2,2)}, v{2+b}, {s(rWS,4)}, {s(sT2)} offen offset:3072 sc1")
        PD = NH // 2 - 1
        for t in range(PD): hload(t)
        OLATE = 20
        nxt = PD
        for t in range(35):
            a.wait(vm=ht[t])
            for q in (3, 2, 1, 0):
                ct, tt = q & 1, q >> 1
                c = v(ACC + 16 * q, 16) if (t or q == 0) else "0"
                a(f"v_mfma_f32_32x32x16_bf16 {v(ACC+16*q,16)}, {self.wreg(t,ct)}, {v(HR+4*((2*t+tt)%NH),4)}, {c}")
                if q == 3:
                    while nxt < 35 and nxt <= t + PD and (nxt < 28 or t >= OLATE): hload(nxt); nxt += 1
        self.stamp(14)
        a("s_barrier")
        for q in (3, 2, 1):
            a(f"s_xor_b32 {s(sT0)}, {s(sWV)}, {q}\ns_mul_i32 {s(sT0)}, {s(sT0)}, {REG}\nv_add_u32 v{8+q}, {s(sT0)}, {v(vL16)}")
        a(f"v_add_u32 v8, {s(sRB)}, {v(vL16)}")
        for q in (3, 2, 1):
            for h in range(4): t = a.ds(f"ds_write_b128 v{8+q}, {v(ACC+16*q+4*h,4)} offset:{(q-1)*4096 + h*1024}")
        a.wait(lg=t); a("s_barrier")
        rt = {}
        for h in range(4):
            for q in (1, 2, 3): rt[h] = a.ds(f"ds_read_b128 {v(ACC+16*q+4*h,4)}, v8 offset:{(q-1)*4096 + h*1024}")
        P = 96
        for h in range(4):
            a.wait(lg=rt[h])
            for k in (0, 2):
                r = ACC + 4 * h + k
                a(f"v_pk_add_f32 {v(r,2)}, {v(r,2)}, {v(r+16,2)}\nv_pk_add_f32 {v(r+32,2)}, {v(r+32,2)}, {v(r+48,2)}")
            for k in (0, 2):
                r = ACC + 4 * h + k
                a(f"v_pk_add_f32 {v(r,2)}, {v(r,2)}, {v(r+32,2)}")
            for k in (0, 2):
                r = ACC + 4 * h + k
                a(f"v_cvt_pk_bf16_f32 {v(P+2*h+k//2)}, {v(r)}, {v(r+1)}")
            if h & 1:
                m = h // 2
                a(f"v_permlane32_swap_b32 {v(P+4*m)}, {v(P+4*m+2)}\nv_permlane32_swap_b32 {v(P+4*m+1)}, {v(P+4*m+3)}")
                a.vm(f"buffer_store_dwordx4 {v(P+4*m,4)}, v4, {s(rOUT,4)}, {s(sHST)} offen offset:{32*m}")
        self.flush_stamp()
        a("L_fin:")
        if self.stamps:
            a.wait_all(vm=True)
            self.stamp(15); self.flush_stamp()
            a("s_memrealtime s[100:101]"); a.wait_all(lg=True); a("v_writelane_b32 v5, s100, 16")
            a(f"s_getreg_b32 s100, hwreg(HW_REG_XCC_ID)\nv_writelane_b32 v5, s100, 17")
            a(f"s_lshl_b32 {s(sT0)}, s2, 2\ns_add_u32 {s(sT0)}, {s(sT0)}, {s(sWV)}\ns_lshl_b32 {s(sT0)}, {s(sT0)}, 8\ns_add_u32 {s(sT0)}, {s(sT0)}, {WS_ST}")
            a(f"v_lshlrev_b32 v6, 2, {v(vL)}")
            a.vm(f"buffer_store_dword v5, v6, {s(rWS,4)}, {s(sT0)} offen")

    def text(self):
        hdr = open(f"cdna_kernels/{NAME}.s.ref").read().split("\n")
        top = [l for l in hdr if l.startswith(";") and "@launch" not in l and "Override" not in l and "grid=ceil" not in l]
        out = "\n".join(top) + "\n; @launch grid=(256,1,1) block=(256,1,1) lds=163840\n"
        out += f'.amdgcn_target "amdgcn-amd-amdhsa--gfx950"\n.text\n.globl {NAME}_kernel\n.p2align 8\n.type {NAME}_kernel,@function\n'
        out += self.a.text()
        out += f'''.section .rodata,"a"
.p2align 6
.amdhsa_kernel {NAME}_kernel
  .amdhsa_next_free_vgpr 512
  .amdhsa_next_free_sgpr 102
  .amdhsa_accum_offset 256
  .amdhsa_group_segment_fixed_size 0
  .amdhsa_kernarg_size 88
  .amdhsa_user_sgpr_count 2
  .amdhsa_user_sgpr_kernarg_segment_ptr 1
  .amdhsa_system_sgpr_workgroup_id_x 1
  .amdhsa_float_denorm_mode_32 3
.end_amdhsa_kernel
'''
        return out

if __name__ == "__main__":
    out = sys.argv[1]; stamps = len(sys.argv) > 2 and sys.argv[2] == "stamps"
    g = Gen(stamps); g.build(); open(out, "w").write(g.text())
    print("instructions", sum(1 for i in g.a.L if i.kind != 'meta'), "nops", g.a.nops)
```

```python
import sys
from collections import deque
from asmlib import Asm

NAME = "parallel_sum__linear_attn_block__dense_activation_squared_relu__prompt"
WS_H = 0; WS_O = 0x700000; WS_KV = 0x900000; WS_FH = 0x980000; WS_FO = WS_FH + 0x4000; WS_FK = WS_FH + 0x8000
WS_ST = 0xA00000; WS_SIZE = 0xB00000
REG = 40960
INIT_WG = 248
SPIN = 40000

sX, sWQ, sWO, sW1, sB1, sW2, sB2, sOUT, sDBG, sWS = 4, 6, 8, 12, 14, 16, 18, 20, 22, 24
rX, rW, rWS, rW2, rWO, rOUT, rB1, rB2 = 28, 32, 36, 40, 44, 48, 52, 56
sWV, sRB, sSO, sRS, sRS128, sCOL = 3, 26, 27, 60, 61, 62
sI, sJ, sROLE, sCS, sRB2, sT0, sT1, sT2 = 65, 66, 67, 68, 69, 70, 71, 72
sHST, sSGL, sW2B, sWOB, sCNT = 73, 74, 75, 76, 77
sMA, sMB, sHI = 78, 80, 82
sP = 84
sFA = 10
sSTAMP = None

vL = 0
vXD = 1
vST = 6
vXR = 14
vWD = 18
vWR = 22
vL16 = 30
vT = 31
vRS, vNB = 1, 2
vSD = 3
U = 32
VA, VB, VT = 144, 176, 208
aACC, aRING, aSEL, aBIAS = 0, 32, 64, 68
D = 6; RING = 8

def v(a, n=1): return f"v{a}" if n == 1 else f"v[{a}:{a+n-1}]"
def ag(a, n=1): return f"a{a}" if n == 1 else f"a[{a}:{a+n-1}]"
def s(a, n=1): return f"s{a}" if n == 1 else f"s[{a}:{a+n-1}]"

class Gen:
    def __init__(self, stamps=False, probe=None):
        self.probe = probe
        self.a = Asm(); self.stamps = stamps; self.nlab = 0; self.pending = None
    def lab(self, p):
        self.nlab += 1; return f"L_{p}_{self.nlab}"
    def stamp(self, k):
        if self.probe == k: self.a("s_memrealtime s[100:101]")
        if not self.stamps: return
        a = self.a
        if self.pending is not None: a(f"v_writelane_b32 v5, s100, {self.pending}")
        a(f"s_memtime s[100:101]")
        self.pending = k
    def flush_stamp(self):
        if self.stamps and self.pending is not None:
            self.a.wait_all(lg=True); self.a(f"v_writelane_b32 v5, s100, {self.pending}"); self.pending = None
    def srd(self, r, p, size):
        self.a(f"s_mov_b32 {s(r)}, {s(p)}\ns_mov_b32 {s(r+1)}, {s(p+1)}\ns_mov_b32 {s(r+2)}, {size}\ns_mov_b32 {s(r+3)}, 0x20000")
    def poll(self, n, off=0, base=None):
        a = self.a; L = self.lab("poll"); E = self.lab("pend")
        base = sFA if base is None else base
        a(f"s_mov_b32 {s(sCNT)}, 0")
        a(f"{L}:")
        a(f"s_load_dwordx{n} {s(sP, n)}, {s(base, 2)}, {off} glc")
        a.wait_all(lg=True)
        m = n
        while m > 2:
            m //= 2
            for i in range(0, m, 2): a(f"s_and_b64 {s(sP+i,2)}, {s(sP+i,2)}, {s(sP+m+i,2)}")
        a(f"s_and_b32 {s(sP)}, {s(sP)}, {s(sP+1)}")
        a(f"s_cbranch_scc1 {E}")
        a(f"s_add_u32 {s(sCNT)}, {s(sCNT)}, 1\ns_cmp_lt_u32 {s(sCNT)}, {SPIN}\ns_cbranch_scc1 {L}")
        a(f"{E}:")

    def dma_setup(self):
        self.dq = deque()
        self.tick = {}
        self.free = set(range(14, 20))
    def pair_entries(self, p):
        a = self.a
        for e in range(7):
            q = 7 * p + e; slot = (14 + q) % 20
            ops = []
            for b in range(2):
                u = 2 * (e & 1) + b
                def op(e=e, b=b, u=u, slot=slot, p=p, q=q):
                    n = 1
                    if u == 0:
                        a(f"s_add_u32 m0, {s(sRB)}, {slot*2048}")
                        a(f"s_mov_b32 {s(sSO)}, {s(sCOL+p)}" if e == 0 else f"s_add_u32 {s(sSO)}, {s(sSO)}, {s(sRS128)}")
                        n = 3
                    self.tick[q] = a.vm(f"buffer_load_dwordx4 {v(vWD+u)}, {s(rW,4)}, {s(sSO)} offen offset:{u*1024} lds")
                    return n
                ops.append(op)
            self.dq.append(dict(q=q, slot=slot, ops=deque(ops)))
    def single_entries(self):
        a = self.a
        for h in range(4):
            q = 21 + h; slot = (14 + q) % 20
            ops = []
            for e in (2 * h, 2 * h + 1):
                if e > 6: continue
                def op(e=e, slot=slot, q=q):
                    a(f"s_add_u32 m0, {s(sRB)}, {slot*2048 + (e&1)*1024}")
                    a(f"s_add_u32 {s(sSO)}, {s(sSGL)}, {e*64*3584}")
                    self.tick[q] = a.vm(f"buffer_load_dwordx4 {v(vSD)}, {s(rW,4)}, {s(sSO)} offen lds")
                    return 3
                ops.append(op)
            self.dq.append(dict(q=q, slot=slot, ops=deque(ops)))
    def w2_slot(self, t): return (19 + t) % 20
    def w2_entries(self):
        a = self.a
        st = dict(prev=None)
        for t in range(35):
            q = 25 + t; slot = self.w2_slot(t)
            ops = []
            for b in range(2):
                if t < 28: srd, base, row = rW2, sW2B, 16 * t + 8 * b
                elif t < 31: srd, base, row = rWO, sWOB, 16 * (t - 28) + 8 * b
                elif t < 34: srd, base, row = rWO, sWOB, 56 + 16 * (t - 31) + 8 * b
                else: srd, base, row = rWO, sWOB, 48 + 56 * b
                lds = slot * 2048 + b * 1024
                def op(srd=srd, base=base, row=row, lds=lds, q=q):
                    pv = st['prev']; n = 1
                    if pv and pv[0] == srd and pv[3] < 3 and row == pv[1] + 8 and lds == pv[2] + 1024: u = pv[3] + 1
                    else:
                        u = 0; n = 3
                        a(f"s_add_u32 m0, {s(sRB)}, {lds}")
                        a(f"s_add_u32 {s(sSO)}, {s(base)}, {row*896}")
                    st['prev'] = (srd, row, lds, u)
                    self.tick[q] = a.vm(f"buffer_load_dwordx4 {v(vXR+u)}, {s(srd,4)}, {s(sSO)} offen offset:{u*1024} lds")
                    return n
                ops.append(op)
            self.dq.append(dict(q=q, slot=slot, ops=deque(ops)))
    def dma_ready(self):
        if not self.dq: return False
        it = self.dq[0]
        if self.a.vm_issued - self.a.vm_done >= 58: return False
        return it.get('started') or it['slot'] in self.free
    def dma_one(self):
        it = self.dq[0]
        if not it.get('started'): self.free.remove(it['slot']); it['started'] = True
        n = it['ops'].popleft()()
        if not it['ops']: self.dq.popleft()
        return n

    def frag_list(self, role):
        fr = []
        for p in range(3):
            for st in range(28):
                for T in range(2):
                    q = 7 * p + st // 4; slot = (14 + q) % 20
                    fr.append(dict(q=q, addr=vWR + 4 * T + (st & 3), off=slot * 2048, rd=512, stage=p, s=st, T=T))
        if role == 'f':
            for st in range(28):
                e = st // 4; q = 21 + e // 2; slot = (14 + q) % 20
                fr.append(dict(q=q, addr=VT + 40 + (st & 3), off=slot * 2048 + (e & 1) * 1024, rd=256, stage=3, s=st, T=0))
        return fr
    def publish(self, q):
        a = self.a
        tgt = min(t for t in self.pubs if t >= q)
        while tgt not in self.tick or any(it['q'] == tgt for it in self.dq):
            assert self.dma_ready(), ("cannot publish", q, tgt)
            self.dma_one()
        a.wait(vm=self.tick[tgt])
        a("s_barrier")
        self.pub = tgt
        self.release()
    def release(self):
        for q, t in list(self.lastread.items()):
            if q in self.allread and t <= self.a.lg_done:
                del self.lastread[q]
                if q not in self.hold: self.free.add((14 + q) % 20)
    def read_frag(self, n):
        a = self.a
        if n >= len(self.fr): return
        f = self.fr[n]
        if f['q'] > self.pub: self.publish(f['q'])
        r = aRING + 4 * (n % RING)
        a.ds(f"ds_read_b64_tr_b16 {ag(r,2)}, {v(f['addr'])} offset:{f['off']}")
        f['t'] = a.ds(f"ds_read_b64_tr_b16 {ag(r+2,2)}, {v(f['addr'])} offset:{f['off']+f['rd']}")
        self.lastread[f['q']] = f['t']
        if n + 1 >= len(self.fr) or self.fr[n + 1]['q'] != f['q']: self.allread.add(f['q'])
    def fill(self, fillers, budget, dma=True):
        if dma and self.dma_ready(): budget -= self.dma_one()
        while fillers and budget > 0:
            budget -= fillers.popleft()() or 1
    def run_stage(self, stage, acc, swap, fillers, budget=4, pre=None, forced=None, dma_from=0):
        a = self.a
        idx = [n for n, f in enumerate(self.fr) if f['stage'] == stage]
        for line in (pre or []):
            a(line); self.fill(fillers, budget + 2)
        for k, n in enumerate(idx):
            f = self.fr[n]
            a.wait(lg=f['t'])
            w = ag(aRING + 4 * (n % RING), 4); x = v(U + 4 * f['s'], 4)
            c = acc(f['T']) if (pre or f['s'] > 0) else "0"
            a(f"v_mfma_f32_32x32x16_bf16 {acc(f['T'])}, {x if swap else w}, {w if swap else x}, {c}")
            self.read_frag(n + D)
            last = (n % 2 == 1)
            if forced:
                fl = forced(f['s'], f['T'])
                if k >= dma_from and self.dma_ready(): self.dma_one()
                for g in fl: g()
            else:
                self.fill(fillers, budget - (1 if last else 0), dma=(k >= dma_from))
            if last and n + 2 < len(self.fr): a.wait(lg=self.fr[n + 2]['t'])
    def norm_ops(self, st):
        a = self.a; ops = []
        b = U + 8 * st
        for d in range(4):
            ops.append(lambda d=d: a(f"v_fma_f32 {v(b+2*d)}, {v(b+2*d)}, {v(vRS)}, {v(vNB)}"))
            ops.append(lambda d=d: a(f"v_fma_f32 {v(b+2*d+1)}, {v(b+2*d+1)}, {v(vRS)}, {v(vNB)}"))
            ops.append(lambda d=d: a(f"v_cvt_pk_bf16_f32 {v(U+4*st+d)}, {v(b+2*d)}, {v(b+2*d+1)}"))
        return ops
    def norm_forced(self, st, T):
        if st + 1 >= 28: return []
        ops = self.norm_ops(st + 1)
        return ops[:6] if T == 0 else ops[6:]

    def build(self):
        a = self.a
        a(f"{NAME}_kernel:")
        a("s_cmp_ge_u32 s2, 256\ns_cbranch_scc1 L_end")
        if self.stamps: a("s_memrealtime s[96:97]\ns_memtime s[94:95]")
        if self.probe is not None: a("s_memrealtime s[100:101]")
        a("s_load_dwordx16 s[4:19], s[0:1], 0\ns_load_dwordx4 s[20:23], s[0:1], 64\ns_load_dwordx2 s[24:25], s[0:1], 80")
        a("s_getpc_b64 s[98:99]\nL_pc:")
        a("s_lshr_b32 s3, s2, 3\ns_lshl_b32 s3, s3, 7")
        a("v_lshrrev_b32 v1, 4, v0\nv_lshl_add_u32 v1, v1, 12, s3")
        a("v_min_u32 v1, L_end - L_pc, v1")
        a.vm("global_load_dword v5, v1, s[98:99]")
        a(f"v_lshrrev_b32 v1, 6, v0\nv_and_b32 {v(vL)}, 63, v0")
        a(f"v_readfirstlane_b32 {s(sWV)}, v1")
        a(f"s_and_b32 {s(sT0)}, s2, 7\ns_lshr_b32 {s(sT1)}, s2, 3")
        a(f"s_and_b32 {s(sI)}, {s(sT0)}, 1\ns_lshl_b32 {s(sI)}, {s(sI)}, 3\ns_and_b32 {s(sT2)}, {s(sT1)}, 7\ns_add_u32 {s(sI)}, {s(sI)}, {s(sT2)}")
        a(f"s_and_b32 {s(sJ)}, {s(sT0)}, 6\ns_bfe_u32 {s(sT2)}, {s(sT1)}, 0x10003\ns_add_u32 {s(sJ)}, {s(sJ)}, {s(sT2)}")
        a(f"s_lshr_b32 {s(sROLE)}, {s(sT1)}, 4")
        a(f"s_lshr_b32 {s(sCS)}, {s(sT1)}, 2")
        a(f"s_and_b32 {s(sRB2)}, {s(sT1)}, 3\ns_lshl_b32 {s(sT0)}, {s(sT0)}, 2\ns_add_u32 {s(sRB2)}, {s(sRB2)}, {s(sT0)}")
        a(f"s_mul_i32 {s(sRB)}, {s(sWV)}, {REG}")
        a(f"s_lshl_b32 {s(sHST)}, {s(sI)}, 2\ns_add_u32 {s(sHST)}, {s(sHST)}, {s(sWV)}")
        a(f"s_mul_i32 {s(sSO)}, {s(sHST)}, {32*896}")
        a(f"v_lshrrev_b32 v6, 3, {v(vL)}\nv_and_b32 v7, 7, {v(vL)}")
        a(f"v_lshrrev_b32 v8, 1, v6\nv_xor_b32 v8, v7, v8\nv_lshlrev_b32 v8, 4, v8\nv_xor_b32 v9, 64, v8")
        a(f"v_mul_u32_u24 v10, 896, v6")
        a(f"v_add_u32 {v(vXD)}, v10, v8\nv_add_u32 v9, v10, v9")
        a(f"v_add_u32 {v(vXD+1)}, 6144, v9\nv_add_u32 {v(vXD+2)}, {2*6144}, {v(vXD)}\nv_add_u32 {v(vXD+3)}, {3*6144}, v9")
        a(f"v_lshlrev_b32 {v(vL16)}, 4, {v(vL)}")
        a("s_mov_b32 s30, 1835008\ns_mov_b32 s31, 0x20000")
        a.wait_all(lg=True)
        a("s_mov_b32 s28, s4\ns_mov_b32 s29, s5")
        if self.probe is not None: a("s_mov_b32 s0, s100")
        self.srd(rWS, sWS, WS_SIZE)
        self.stamp(1)
        st0 = a.state()
        a(f"s_cmp_lg_u32 s2, {INIT_WG}\ns_cbranch_scc1 L_noinit")
        a("v_mov_b32 v32, 0\nv_mov_b32 v33, 0\nv_mov_b32 v34, 0\nv_mov_b32 v35, 0")
        a(f"v_lshlrev_b32 v36, 7, {v(vL)}")
        a(f"s_lshl_b32 {s(sT0)}, {s(sWV)}, 13\ns_add_u32 {s(sT0)}, {s(sT0)}, {WS_FH}")
        a(f"s_lshl_b32 {s(sT1)}, {s(sWV)}, 10\ns_add_u32 {s(sT1)}, {s(sT1)}, {WS_FK}")
        a(f"buffer_store_dwordx4 v[32:35], v36, {s(rWS,4)}, {s(sT0)} offen sc1")
        a(f"buffer_store_dwordx4 v[32:35], {v(vL16)}, {s(rWS,4)}, {s(sT1)} offen sc1")
        a("L_noinit:")
        a.set_state(st0)
        xt = []
        for n in range(7):
            a(f"s_add_u32 m0, {s(sRB)}, {n*4096}")
            if n: a(f"s_add_u32 {s(sSO)}, {s(sSO)}, 128")
            for g in range(4):
                t = a.vm(f"buffer_load_dwordx4 {v(vXD+g)}, {s(rX,4)}, {s(sSO)} offen offset:{g*1024} lds")
            xt.append(t)
        a(f"s_cmp_eq_u32 {s(sROLE)}, 0")
        a(f"s_cselect_b32 {s(rW)}, {s(sW1)}, {s(sWQ)}\ns_cselect_b32 {s(rW+1)}, {s(sW1+1)}, {s(sWQ+1)}")
        a(f"s_mov_b32 {s(sT0)}, {448*1344*2}\ns_cselect_b32 {s(rW+2)}, {448*1792*2}, {s(sT0)}\ns_mov_b32 {s(rW+3)}, 0x20000")
        a(f"s_movk_i32 {s(sT0)}, 2688\ns_cselect_b32 {s(sRS)}, 3584, {s(sT0)}")
        a(f"s_cselect_b32 {s(sT2)}, 7, 6")
        a(f"s_cselect_b32 {s(sCNT)}, 64, 48")
        a(f"s_cbranch_scc0 L_cola")
        a(f"s_mul_i32 {s(sSGL)}, {s(sJ)}, 448\ns_and_b32 {s(sT0)}, {s(sJ)}, 1\ns_lshl_b32 {s(sT1)}, {s(sT0)}, 6")
        a(f"s_add_u32 {s(sCOL)}, {s(sSGL)}, {s(sT1)}\ns_add_u32 {s(sCOL+1)}, {s(sCOL)}, 128\ns_add_u32 {s(sCOL+2)}, {s(sCOL)}, 256")
        a(f"s_cmp_eq_u32 {s(sT0)}, 0\ns_cselect_b32 {s(sT0)}, 384, 0\ns_add_u32 {s(sSGL)}, {s(sSGL)}, {s(sT0)}")
        a("s_branch L_colb\nL_cola:")
        a(f"s_mul_i32 {s(sCOL+2)}, {s(sJ)}, 112\ns_add_u32 {s(sCOL)}, {s(sCOL+2)}, 896\ns_add_u32 {s(sCOL+1)}, {s(sCOL+2)}, 1792")
        a(f"s_mov_b32 {s(sSGL)}, 0")
        a("L_colb:")
        a(f"s_mov_b32 {s(sW2B)}, {s(sCOL)}\ns_mov_b32 {s(sWOB)}, {s(sSGL)}")
        a(f"s_mul_i32 {s(sT0)}, {s(sRS)}, {s(sWV)}\ns_lshl_b32 {s(sT0)}, {s(sT0)}, 4")
        for k in range(3): a(f"s_add_u32 {s(sCOL+k)}, {s(sCOL+k)}, {s(sT0)}")
        a(f"s_add_u32 {s(sSGL)}, {s(sSGL)}, {s(sT0)}")
        a(f"s_lshl_b32 {s(sRS128)}, {s(sRS)}, 7")
        a(f"v_and_b32 v8, 2, v6\nv_lshlrev_b32 v8, 1, v8\nv_xor_b32 v8, v7, v8")
        a(f"v_lshlrev_b32 {v(vT)}, 4, v8\nv_add_u32 {v(vT)}, v10, {v(vT)}")
        a(f"v_min_u32 v8, {s(sT2)}, v8\nv_lshlrev_b32 v8, 4, v8")
        a(f"v_mad_u32_u24 {v(vWD)}, v6, {s(sRS)}, v8")
        a(f"s_lshl_b32 {s(sT0)}, {s(sRS)}, 3\ns_sub_u32 {s(sT0)}, {s(sT0)}, 1024")
        a(f"s_lshl_b32 {s(sT1)}, {s(sRS)}, 6\ns_sub_u32 {s(sT1)}, {s(sT1)}, 2048")
        a(f"v_add_u32 {v(vWD+1)}, {s(sT0)}, {v(vWD)}\nv_add_u32 {v(vWD+2)}, {s(sT1)}, {v(vWD)}\nv_add_u32 {v(vWD+3)}, {s(sT1)}, {v(vWD+1)}")
        self.dma_setup()
        for p in range(3): self.pair_entries(p)
        while self.dma_ready(): self.dma_one()
        self.srd(rB1, sB1, 3584)
        a(f"v_and_b32 v8, 31, {v(vL)}\nv_lshlrev_b32 v9, 1, v8")
        for k in range(16): a(f"v_accvgpr_write_b32 {ag(aBIAS+k)}, 0")
        for k in range(6): a.vm(f"buffer_load_ushort {ag(aBIAS+2*k)}, v9, {s(rB1,4)}, {s(sW2B)} offen offset:{64*k}")
        self.tb = a.vm(f"buffer_load_ushort {ag(aBIAS+12)}, v9, {s(rB1,4)}, {s(sWOB)} offen")
        a(f"v_lshrrev_b32 v10, 5, {v(vL)}")
        a(f"v_bfe_u32 v11, {v(vL)}, 1, 3\nv_xor_b32 v11, v10, v11\nv_lshlrev_b32 v11, 4, v11")
        a(f"v_lshl_add_u32 v11, v8, 7, v11\nv_add_u32 {v(vXR)}, {s(sRB)}, v11")
        for j in range(1, 4): a(f"v_xor_b32 {v(vXR+j)}, {32*j}, {v(vXR)}")
        a(f"v_cmp_eq_u32 {s(sHI,2)}, 1, v10")
        a(f"v_mov_b32 v11, 0x3f80")
        a(f"v_cndmask_b32 v11, v11, 0, {s(sHI,2)}")
        a(f"v_accvgpr_write_b32 {ag(aSEL)}, v11")
        for k in range(1, 4): a(f"v_accvgpr_write_b32 {ag(aSEL+k)}, 0")
        a(f"v_cmp_le_u32 {s(sMA,2)}, 28, v8\nv_cmp_gt_u32 {s(sMB,2)}, 4, v8")
        a(f"v_bfe_u32 v11, {v(vL)}, 2, 2")
        a(f"v_and_b32 v12, 3, {v(vL)}\nv_lshlrev_b32 v12, 3, v12\nv_bfe_u32 v13, {v(vL)}, 4, 1\nv_lshl_add_u32 v12, v13, 5, v12")
        a(f"v_and_b32 v13, 2, v11\nv_lshlrev_b32 v13, 5, v13")
        a(f"v_lshl_add_u32 v9, v10, 3, v11\nv_lshlrev_b32 v9, 7, v9")
        a(f"v_xor_b32 v8, v12, v13\nv_add_u32 {v(vWR)}, v9, v8")
        a(f"v_add_u32 v8, {s(sCNT)}, v12\nv_xor_b32 v8, v8, v13\nv_add_u32 {v(vWR+4)}, v9, v8")
        for T in range(2):
            for r in range(1, 4): a(f"v_add_u32 {v(vWR+4*T+r)}, {REG*r}, {v(vWR+4*T)}")
        a(f"s_cmp_lt_u32 {s(sCS)}, 7")
        a(f"s_mov_b32 {s(rW2)}, {s(sW2)}\ns_mov_b32 {s(rW2+1)}, {s(sW2+1)}\ns_cselect_b32 {s(rW2+2)}, {1792*896}, 0\ns_mov_b32 {s(rW2+3)}, 0x20000")
        a(f"s_mov_b32 {s(rWO)}, {s(sWO)}\ns_mov_b32 {s(rWO+1)}, {s(sWO+1)}\ns_cselect_b32 {s(rWO+2)}, {448*896}, 0\ns_mov_b32 {s(rWO+3)}, 0x20000")
        self.srd(rOUT, sOUT, 1835008); self.srd(rB2, sB2, 896)
        a(f"s_lshl_b32 {s(sT0)}, {s(sCS)}, 7")
        a(f"s_mul_i32 {s(sW2B)}, {s(sWV)}, {448*896}\ns_add_u32 {s(sW2B)}, {s(sW2B)}, {s(sT0)}")
        a(f"s_mul_i32 {s(sWOB)}, {s(sWV)}, {112*896}\ns_add_u32 {s(sWOB)}, {s(sWOB)}, {s(sT0)}")
        for k in range(8): a(f"v_mov_b32 {v(vST+k)}, 0")
        self.pub = -1; self.lastread = {}; self.allread = set(); self.hold = set()
        self.pubs = [1, 3, 6, 9, 13, 16, 20, 22, 24]
        self.fr = self.frag_list('f')
        def xreads(n):
            return [a.ds(f"ds_read_b128 {v(U+8*(4*n+j)+4,4)}, {v(vXR+j)} offset:{n*4096}") for j in range(4)]
        def process(st):
            b = U + 8 * st
            for d in range(4):
                a(f"v_lshlrev_b32 {v(b+2*d)}, 16, {v(b+4+d)}")
                a(f"v_and_b32 {v(b+2*d+1)}, 0xffff0000, {v(b+4+d)}")
            for d in range(4):
                k = vST + 2 * (d & 1)
                a(f"v_pk_add_f32 {v(k,2)}, {v(b+2*d,2)}, {v(k,2)}")
                a(f"v_pk_fma_f32 {v(k+4,2)}, {v(b+2*d,2)}, {v(b+2*d,2)}, {v(k+4,2)}")
        a.wait(vm=xt[0])
        if self.stamps: a("v_writelane_b32 v5, s96, 18\nv_writelane_b32 v5, s94, 0")
        self.stamp(2)
        st0 = a.state()
        a(f"s_cmp_lg_u32 s2, {INIT_WG}\ns_cbranch_scc1 L_nogo")
        a(f"v_mov_b32 v32, 1\ns_lshl_b32 {s(sT0)}, {s(sWV)}, 2\nv_mov_b32 v33, {s(sT0)}")
        a(f"global_store_dword v33, v32, {s(sDBG,2)} sc1")
        a("L_nogo:")
        a.set_state(st0)
        rt = xreads(0)
        for n in range(7):
            a.wait(lg=rt[3])
            self.free |= {2 * n, 2 * n + 1}
            while self.dma_ready(): self.dma_one()
            process(4 * n); process(4 * n + 1)
            if n < 6:
                a.wait(vm=xt[n + 1]); rt = xreads(n + 1)
            else:
                self.stamp(3)
                for k in range(D): self.read_frag(k)
            process(4 * n + 2); process(4 * n + 3)
        a(f"v_pk_add_f32 {v(vST,2)}, {v(vST,2)}, {v(vST+2,2)}\nv_pk_add_f32 {v(vST+4,2)}, {v(vST+4,2)}, {v(vST+6,2)}")
        a(f"v_add_f32 {v(vST)}, {v(vST)}, {v(vST+1)}\nv_add_f32 {v(vST+4)}, {v(vST+4)}, {v(vST+5)}")
        a(f"v_mov_b32 {v(vST+1)}, {v(vST)}\nv_mov_b32 {v(vST+5)}, {v(vST+4)}")
        a(f"v_permlane32_swap_b32 {v(vST)}, {v(vST+1)}\nv_permlane32_swap_b32 {v(vST+4)}, {v(vST+5)}")
        a(f"v_add_f32 {v(vST)}, {v(vST)}, {v(vST+1)}\nv_add_f32 {v(vST+4)}, {v(vST+4)}, {v(vST+5)}")
        inv = 0x3b124925
        a(f"v_mul_f32 {v(vST)}, {inv:#x}, {v(vST)}\nv_mul_f32 {v(vST+4)}, {inv:#x}, {v(vST+4)}")
        a(f"v_fma_f32 {v(vST+4)}, -{v(vST)}, {v(vST)}, {v(vST+4)}")
        a(f"v_max_f32 {v(vST+4)}, 0, {v(vST+4)}\nv_add_f32 {v(vST+4)}, 0x3727c5ac, {v(vST+4)}")
        a(f"v_rsq_f32 {v(vRS)}, {v(vST+4)}")
        a(f"v_mov_b32 {v(vXR)}, {v(vT)}")
        a(f"v_mul_f32_e64 {v(vNB)}, -{v(vST)}, {v(vRS)}")
        for g in self.norm_ops(0): g()
        self.stamp(4)
        a(f"s_cmp_lg_u32 {s(sROLE)}, 0\ns_cbranch_scc1 L_attn")
        import copy
        snap = (a.state(), copy.copy(self.free), dict(self.tick), self.pub, dict(self.lastread), set(self.allread),
                [(it['q'], len(it['ops']), it.get('started')) for it in self.dq], [f.get('t') for f in self.fr[:D]])
        pend = self.pending
        self.ffn_role()
        self.pending = pend
        a("s_branch L_p2")
        st_f = a.state()
        a("L_attn:")
        a.set_state(snap[0]); self.dma_setup()
        for p in range(3): self.pair_entries(p)
        assert [x[0] for x in snap[6]] == [20] and not snap[6][0][2]
        while self.dq[0]['q'] < 20: self.dq.popleft()
        self.free = snap[1]; self.tick = snap[2]; self.pub = snap[3]; self.lastread = snap[4]; self.allread = snap[5]
        self.fr = self.frag_list('a')
        for k in range(D): self.fr[k]['t'] = snap[7][k]
        self.attn_role()
        a("L_p2:")
        self.phase2()
        a("L_end:\ns_endpgm")

    def w2_addr_ops(self):
        a = self.a
        return [lambda u=u: a(f"v_add_u32 {v(vXR+u)}, {u*6144}, {v(vXR)}") for u in range(1, 4)]
    def check_go(self):
        a = self.a; E = self.lab("go")
        a(f"s_load_dwordx4 {s(sP,4)}, {s(sDBG,2)}, 0")
        a.wait_all(lg=True)
        a(f"s_and_b64 {s(sP,2)}, {s(sP,2)}, {s(sP+2,2)}\ns_and_b32 {s(sP)}, {s(sP)}, {s(sP+1)}\ns_cbranch_scc1 {E}")
        self.poll(4, 0, base=sDBG)
        a(f"{E}:")
    def wreg(self, t, T):
        return ag(8 * t + 4 * T, 4) if t < 32 else v(224 + 8 * (t - 32) + 4 * T, 4)
    def w2_read(self, t):
        a = self.a
        a.wait(vm=self.tick[25 + t])
        for T in range(2):
            for rd in range(2):
                r = (ag(8 * t + 4 * T + 2 * rd, 2) if t < 32 else v(224 + 8 * (t - 32) + 4 * T + 2 * rd, 2))
                if a.lg_issued - a.lg_done >= 15: a.wait(lg=a.lg_issued - 7)
                tk = a.ds(f"ds_read_b64_tr_b16 {r}, {v(vWR+T)} offset:{self.w2_slot(t)*2048 + rd*1024}")
        self.wt[t] = tk
    def p2_addr(self):
        a = self.a
        a(f"v_lshrrev_b32 v10, 5, {v(vL)}\nv_bfe_u32 v11, {v(vL)}, 2, 2")
        a(f"v_and_b32 v12, 3, {v(vL)}\nv_lshlrev_b32 v12, 3, v12\nv_bfe_u32 v13, {v(vL)}, 4, 1\nv_lshl_add_u32 v12, v13, 5, v12")
        a(f"v_and_b32 v13, 2, v11\nv_lshlrev_b32 v13, 5, v13\nv_xor_b32 v12, v12, v13")
        a(f"v_lshl_add_u32 v9, v10, 2, v11\nv_lshl_add_u32 v9, v9, 7, v12")
        a(f"s_and_b32 {s(sT0)}, {s(sWV)}, 1\ns_lshl_b32 {s(sT0)}, {s(sT0)}, 6")
        a(f"v_xor_b32 v9, {s(sT0)}, v9\nv_add_u32 {v(vWR)}, {s(sRB)}, v9\nv_xor_b32 {v(vWR+1)}, 64, {v(vWR)}")
    def w2_drain(self, upto):
        a = self.a
        while self.dma_ready(): self.dma_one()
        while self.w2n < upto:
            t = self.w2n
            self.w2_read(t); self.w2n += 1
            if t >= 2:
                a.wait(lg=self.wt[t - 2]); self.free.add(self.w2_slot(t - 2))
                while self.dma_ready(): self.dma_one()

    def ffn_role(self):
        a = self.a
        self.single_entries(); self.w2_entries()
        self.wt = {}; self.w2n = 0
        a(f"s_mul_i32 {s(sT1)}, {s(sHST)}, 112\ns_mul_i32 {s(sT0)}, {s(sJ)}, 14\ns_add_u32 {s(sT1)}, {s(sT1)}, {s(sT0)}")
        a(f"s_and_b32 {s(sT0)}, {s(sJ)}, 1\ns_cselect_b32 {s(sT0)}, 2, 0\ns_cselect_b32 {s(sT2)}, 0, 12")
        a(f"s_add_u32 {s(sT2)}, {s(sT2)}, {s(sT1)}\ns_add_u32 {s(sT1)}, {s(sT1)}, {s(sT0)}")
        a(f"s_lshl_b32 {s(sT1)}, {s(sT1)}, 10\ns_lshl_b32 {s(sT2)}, {s(sT2)}, 10")
        a(f"v_lshrrev_b32 v8, 2, {v(vL)}\nv_and_b32 v9, 3, {v(vL)}\nv_lshlrev_b32 v9, 4, v9\nv_mul_u32_u24 v8, 3584, v8\nv_add_u32 {v(vSD)}, v8, v9")
        for g in self.w2_addr_ops(): g()
        a.wait(vm=self.tb)
        def bias(acc, tiles): return [f"v_mfma_f32_32x32x16_bf16 {acc(T)}, {ag(aBIAS+2*k,4)}, {ag(aSEL,4)}, 0" for T, k in enumerate(tiles)]
        def epi(src, agpr, T, soff, off):
            ops = []; h = VT + 8 * T; tmp = VT + 16
            for d in range(8):
                if agpr:
                    t0 = tmp + 2 * (d & 3)
                    ops.append(lambda d=d, t0=t0: a(f"v_accvgpr_read_b32 {v(t0)}, {ag(src+2*d)}"))
                    ops.append(lambda d=d, t0=t0: a(f"v_accvgpr_read_b32 {v(t0+1)}, {ag(src+2*d+1)}"))
                else: t0 = src + 2 * d
                ops.append(lambda t0=t0: a(f"v_mul_f32_e64 {v(t0)}, {v(t0)}, |{v(t0)}|"))
                ops.append(lambda t0=t0: a(f"v_mul_f32_e64 {v(t0+1)}, {v(t0+1)}, |{v(t0+1)}|"))
                ops.append(lambda d=d, t0=t0: a(f"v_cvt_pk_bf16_f32 {v(h+d)}, {v(t0)}, {v(t0+1)}"))
                ops.append(lambda d=d: a(f"v_pk_max_i16 {v(h+d)}, {v(h+d)}, 0"))
                if d % 4 == 3:
                    def st(d=d):
                        self.last_store = a.vm(f"buffer_store_dwordx4 {v(h+d-3,4)}, {v(vL16)}, {s(rWS,4)}, {s(soff)} offen offset:{off+(d//4)*1024} sc1")
                    ops.append(st)
            return ops
        accs = [lambda T: ag(aACC + 16 * T, 16), lambda T: v(VA + 16 * T, 16), lambda T: v(VB + 16 * T, 16), lambda T: v(VA, 16)]
        self.run_stage(0, accs[0], False, deque(), pre=bias(accs[0], [0, 1]), forced=self.norm_forced)
        self.stamp(5)
        fl = deque()
        fl.append(lambda: a(f"v_lshrrev_b32 v10, 5, {v(vL)}"))
        fl.append(lambda: a(f"v_bfe_u32 v11, {v(vL)}, 2, 2"))
        fl.append(lambda: a(f"v_lshl_add_u32 v11, v10, 3, v11"))
        fl.append(lambda: a(f"v_and_b32 v12, 3, {v(vL)}"))
        fl.append(lambda: a(f"v_lshlrev_b32 v12, 3, v12"))
        fl.append(lambda: a(f"v_bfe_u32 v13, {v(vL)}, 4, 1"))
        fl.append(lambda: a(f"v_lshl_add_u32 v12, v13, 5, v12"))
        fl.append(lambda: a(f"v_lshl_add_u32 {v(VT+40)}, v11, 6, v12"))
        for r in range(1, 4): fl.append(lambda r=r: a(f"v_add_u32 {v(VT+40+r)}, {REG*r}, {v(VT+40)}"))
        fl.extend(epi(aACC, True, 0, sT1, 0)); fl.extend(epi(aACC + 16, True, 1, sT1, 2048))
        self.run_stage(1, accs[1], False, fl, pre=bias(accs[1], [2, 3]))
        while fl: fl.popleft()()
        self.stamp(6)
        nop = lambda: 4
        fl = deque([lambda: a(f"s_add_u32 {s(sT1)}, {s(sT1)}, 4096"), nop, nop, nop, nop])
        fl.extend(epi(VA, False, 0, sT1, 0)); fl.extend(epi(VA + 16, False, 1, sT1, 2048))
        self.run_stage(2, accs[2], False, fl, pre=bias(accs[2], [4, 5]), budget=3)
        while fl: fl.popleft()()
        self.stamp(7)
        fl = deque([lambda: a(f"s_add_u32 {s(sT1)}, {s(sT1)}, 4096"), nop, nop, nop])
        fl.extend(epi(VB, False, 0, sT1, 0)); fl.extend(epi(VB + 16, False, 1, sT1, 2048))
        self.run_stage(3, accs[3], False, fl, pre=bias(accs[3], [6]))
        while fl: fl.popleft()()
        self.stamp(8)
        a("s_barrier"); self.release()
        self.p2_addr()
        for g in epi(VA, False, 0, sT2, 0): g()
        ls = self.last_store
        self.flag_off(WS_FH)
        self.check_go()
        self.w2_drain(8)
        a.wait(vm=ls)
        a.vm(f"buffer_store_dword v8, v9, {s(rWS,4)}, 0 offen sc1")
        self.stamp(9)
        self.w2_drain(17)
        assert not self.dq
        self.junction()
    def flag_off(self, base):
        a = self.a
        a(f"s_lshr_b32 {s(sT0)}, {s(sHST)}, 1\ns_lshl_b32 {s(sT0)}, {s(sT0)}, 2\ns_lshr_b32 {s(sT1)}, {s(sJ)}, 1\ns_add_u32 {s(sT0)}, {s(sT0)}, {s(sT1)}")
        a(f"s_lshl_b32 {s(sT0)}, {s(sT0)}, 5\ns_and_b32 {s(sT1)}, {s(sHST)}, 1\ns_lshl_b32 {s(sT1)}, {s(sT1)}, 1\ns_add_u32 {s(sT0)}, {s(sT0)}, {s(sT1)}")
        a(f"s_and_b32 {s(sT1)}, {s(sJ)}, 1\ns_add_u32 {s(sT0)}, {s(sT0)}, {s(sT1)}\ns_lshl_b32 {s(sT0)}, {s(sT0)}, 2\ns_add_u32 {s(sT0)}, {s(sT0)}, {base}")
        a(f"v_mov_b32 v8, 1\nv_mov_b32 v9, {s(sT0)}")
    def junction(self):
        a = self.a
        a.wait_all(lg=True)
        self.flush_stamp()
        rel = {t: a.vm_issued - self.tick[25 + t] for t in range(17, 35)}
        out = a.vm_issued - a.vm_done
        if not hasattr(self, 'jrel'): self.jrel = rel; self.jout = out
        else:
            self.jrel = {t: min(rel[t], self.jrel[t]) for t in rel}; self.jout = max(out, self.jout)

    def phi_ops(self, src, agpr, dst, tmp):
        a = self.a; ops = []
        for d in range(8):
            t0 = tmp + 4 * (d & 1)
            for k in range(2):
                if agpr:
                    x = t0 + 2 + k
                    ops.append(lambda x=x, r=src+2*d+k: a(f"v_accvgpr_read_b32 {v(x)}, {ag(r)}"))
                else: x = src + 2 * d + k
                ops.append(lambda x=x, e=t0+k: a(f"v_mul_f32 {v(e)}, 0x3fb8aa3b, {v(x)}"))
                def ex(e=t0+k):
                    a(f"v_exp_f32_e64 {v(e)}, {v(e)} clamp"); return 2
                ops.append(ex)
                ops.append(lambda x=x: a(f"v_max_f32 {v(x)}, 0x358637bd, {v(x)}"))
                ops.append(lambda x=x, e=t0+k: a(f"v_add_f32 {v(e)}, {v(e)}, {v(x)}"))
            ops.append(lambda d=d, t0=t0: a(f"v_cvt_pk_bf16_f32 {v(dst+d)}, {v(t0)}, {v(t0+1)}"))
        return ops

    def attn_role(self):
        a = self.a
        self.pubs = [1, 3, 6, 9, 13, 16, 20]
        self.hold = {1, 2, 3, 4}
        self.w2_entries(); self.wt = {}; self.w2n = 0
        for g in self.w2_addr_ops(): g()
        PK, PV, TMP = VT, VT + 16, VT + 32
        accs = [lambda T: ag(aACC + 16 * T, 16), lambda T: v(VA + 16 * T, 16), lambda T: v(VB + 16 * T, 16)]
        self.run_stage(0, accs[0], True, deque(), forced=self.norm_forced)
        self.stamp(5)
        nop = lambda: 4
        fl = deque([nop, nop, nop])
        fl.extend(self.phi_ops(aACC, True, PK, TMP)); fl.extend(self.phi_ops(aACC + 16, True, PK + 8, TMP))
        self.run_stage(1, accs[1], True, fl, budget=5)
        while fl: fl.popleft()()
        self.stamp(6)
        XB = 15 * 2048
        fl = deque()
        fl.append(lambda: a(f"v_mov_b32 {v(TMP)}, 0x3f803f80"))
        fl.append(lambda: a(f"s_lshl_b32 {s(sT0)}, {s(sWV)}, 11"))
        fl.append(lambda: a(f"v_add_u32 v8, {s(sT0)}, {v(vL16)}"))
        fl.append(lambda: a(f"v_add_u32 v9, {2*REG}, v8"))
        fl.append(lambda: a(f"v_add_u32 v8, {XB}, v8"))
        fl.append(lambda: a(f"v_add_u32 v9, {XB}, v9"))
        fl.append(lambda: a(f"v_add_u32 v10, {s(sRB)}, {v(vL16)}"))
        fl.append(lambda: a(f"s_lshl_b32 {s(sT1)}, {s(sJ)}, 2"))
        fl.append(lambda: a(f"s_add_u32 {s(sT1)}, {s(sT1)}, {s(sWV)}"))
        fl.append(lambda: a(f"s_lshl_b32 {s(sT2)}, {s(sT1)}, 4"))
        fl.append(lambda: a(f"s_add_u32 {s(sT2)}, {s(sT2)}, {s(sI)}"))
        fl.append(lambda: a(f"s_lshl_b32 {s(sT2)}, {s(sT2)}, 10"))
        fl.append(lambda: a(f"s_add_u32 {s(sT2)}, {s(sT2)}, {WS_KV}"))
        for T in range(2):
            for d in range(8):
                fl.append(lambda T=T, d=d: a(f"v_cvt_pk_bf16_f32 {v(PV+8*T+d)}, {v(VA+16*T+2*d)}, {v(VA+16*T+2*d+1)}"))
                fl.append(lambda T=T, d=d: a(f"v_cndmask_b32 {v(PV+8*T+d)}, {v(PV+8*T+d)}, {v(TMP)}, {s(sMA if T == 0 else sMB,2)}"))
        def kvm(T, k):
            def f():
                c = "0" if k == 0 else v(VA + 16 * T, 16)
                a(f"v_mfma_f32_32x32x16_bf16 {v(VA+16*T,16)}, {v(PK+8*T+4*k,4)}, {v(PV+8*T+4*k,4)}, {c}"); return 8
            return f
        fl.append(nop)
        for k in range(2):
            for T in range(2): fl.append(kvm(T, k))
        fl.extend([nop, nop, nop])
        st = {}
        for f in range(4):
            for h in range(2):
                def w(f=f, h=h):
                    if a.lg_issued - a.lg_done >= 15: a.wait(lg=a.lg_issued - 10)
                    st['w'] = a.ds(f"ds_write_b128 {'v8' if f < 2 else 'v9'}, {v(VA+8*f+4*h,4)} offset:{(f&1)*REG + h*1024}"); return 4
                fl.append(w)
        fl.append(nop)
        def bar():
            a.wait(lg=st['w']); a("s_barrier"); self.release(); return 2
        fl.append(bar)
        for sw in range(4):
            for h in range(2):
                def r(sw=sw, h=h):
                    if a.lg_issued - a.lg_done >= 15: a.wait(lg=a.lg_issued - 10)
                    st[sw, h] = a.ds(f"ds_read_b128 {v(VA+8*sw+4*h,4)}, v10 offset:{XB + sw*2048 + h*1024}"); return 2
                fl.append(r)
        fl.extend([nop, nop])
        fl.append(lambda: a.wait(lg=st[3, 1]) and 1)
        for k in range(8):
            fl.append(lambda k=k: a(f"v_add_f32 {v(VA+k)}, {v(VA+k)}, {v(VA+8+k)}"))
            fl.append(lambda k=k: a(f"v_add_f32 {v(VA+16+k)}, {v(VA+16+k)}, {v(VA+24+k)}"))
        for d in range(4):
            fl.append(lambda d=d: a(f"v_add_f32 {v(VA+2*d)}, {v(VA+2*d)}, {v(VA+16+2*d)}"))
            fl.append(lambda d=d: a(f"v_add_f32 {v(VA+2*d+1)}, {v(VA+2*d+1)}, {v(VA+16+2*d+1)}"))
            fl.append(lambda d=d: a(f"v_cvt_pk_bf16_f32 {v(TMP+4+d)}, {v(VA+2*d)}, {v(VA+2*d+1)}"))
        def stp():
            st['s'] = a.vm(f"buffer_store_dwordx4 {v(TMP+4,4)}, {v(vL16)}, {s(rWS,4)}, {s(sT2)} offen sc1")
        fl.append(stp)
        self.run_stage(2, accs[2], False, fl, budget=5)
        while fl: fl.popleft()()
        self.stamp(7)
        a(f"s_lshl_b32 {s(sT0)}, {s(sT1)}, 7\ns_add_u32 {s(sT0)}, {s(sT0)}, {WS_FK}")
        a(f"s_add_u32 {s(sFA)}, {s(sWS)}, {s(sT0)}\ns_addc_u32 {s(sFA+1)}, {s(sWS+1)}, 0")
        a(f"s_lshl_b32 {s(sT2)}, {s(sI)}, 2\ns_add_u32 {s(sT0)}, {s(sT0)}, {s(sT2)}")
        a(f"v_mov_b32 v11, 1\nv_mov_b32 v12, {s(sT0)}")
        self.check_go()
        a.wait(vm=st['s'])
        a.vm(f"buffer_store_dword v11, v12, {s(rWS,4)}, 0 offen sc1")
        a("s_barrier"); self.release()
        while self.dma_ready(): self.dma_one()
        PQ = PK
        for g in self.phi_ops(VB, False, PQ, TMP) + self.phi_ops(VB + 16, False, PQ + 8, TMP): g()
        for d in (6, 7): a(f"v_cndmask_b32 {v(PQ+d)}, {v(PQ+d)}, 0, {s(sHI,2)}")
        for d in (8, 9): a(f"v_cndmask_b32 {v(PQ+d)}, 0, {v(PQ+d)}, {s(sHI,2)}")
        a(f"v_mov_b32 {v(TMP+10)}, v10")
        self.p2_addr()
        self.stamp(8)
        self.poll(16)
        self.stamp(9)
        G = U
        a(f"s_lshl_b32 {s(sT1)}, {s(sT1)}, 14\ns_add_u32 {s(sT1)}, {s(sT1)}, {WS_KV}")
        gt = []
        for i in range(16):
            if i and i % 4 == 0: a(f"s_add_u32 {s(sT1)}, {s(sT1)}, 4096")
            gt.append(a.vm(f"buffer_load_dwordx4 {v(G+4*i,4)}, {v(vL16)}, {s(rWS,4)}, {s(sT1)} offen offset:{(i%4)*1024} sc1"))
        self.w2_drain(8)
        S = VA
        for i in range(16):
            a.wait(vm=gt[i])
            for d in range(4):
                if i == 0:
                    a(f"v_lshlrev_b32 {v(S+2*d)}, 16, {v(G+d)}\nv_and_b32 {v(S+2*d+1)}, 0xffff0000, {v(G+d)}")
                else:
                    t0 = TMP + 2 * d
                    a(f"v_lshlrev_b32 {v(t0)}, 16, {v(G+4*i+d)}\nv_and_b32 {v(t0+1)}, 0xffff0000, {v(G+4*i+d)}")
            if i:
                for d in range(4): a(f"v_pk_add_f32 {v(S+2*d,2)}, {v(S+2*d,2)}, {v(TMP+2*d,2)}")
        for d in range(4): a(f"v_cvt_pk_bf16_f32 {v(TMP+d)}, {v(S+2*d)}, {v(S+2*d+1)}")
        t = a.ds(f"ds_write_b128 {v(TMP+10)}, {v(TMP,4)} offset:{XB}")
        a(f"v_add_u32 v8, {XB}, {v(vL16)}\nv_add_u32 v9, {XB+2*REG}, {v(vL16)}")
        a.wait(lg=t); a("s_barrier")
        KVA = PV
        for f in range(4): t = a.ds(f"ds_read_b128 {v(KVA+4*f,4)}, {'v8' if f < 2 else 'v9'} offset:{(f&1)*REG}")
        a.wait(lg=t)
        for k in range(2):
            for T in range(2):
                c = "0" if k == 0 else v(VA + 16 * T, 16)
                a(f"v_mfma_f32_32x32x16_bf16 {v(VA+16*T,16)}, {v(KVA+8*T+4*k,4)}, {v(PQ+8*T+4*k,4)}, {c}")
        a("s_barrier")
        self.free |= {15, 16, 17, 18}
        while self.dma_ready(): self.dma_one()
        a(f"s_lshl_b32 {s(sT2)}, {s(sHST)}, 3\ns_add_u32 {s(sT2)}, {s(sT2)}, {s(sJ)}\ns_lshl_b32 {s(sT2)}, {s(sT2)}, 12\ns_add_u32 {s(sT2)}, {s(sT2)}, {WS_O}")
        self.flag_off(WS_FO)
        a(f"v_lshlrev_b32 v10, 3, {v(vL)}")
        NA, NB = VA, VA + 16
        a(f"v_mov_b32 {v(TMP)}, {v(NA+12)}\nv_mov_b32 {v(TMP+1)}, {v(NB)}")
        a(f"v_permlane32_swap_b32 {v(TMP)}, {v(TMP+1)}")
        a(f"v_cndmask_b32 {v(TMP+2)}, {v(TMP+1)}, {v(NA+12)}, {s(sHI,2)}")
        a(f"v_cndmask_b32 {v(TMP+3)}, {v(NB)}, {v(TMP)}, {s(sHI,2)}")
        a(f"v_add_f32 {v(TMP+2)}, 0x358637bd, {v(TMP+2)}\nv_add_f32 {v(TMP+3)}, 0x358637bd, {v(TMP+3)}")
        a(f"v_rcp_f32 {v(TMP+2)}, {v(TMP+2)}\nv_rcp_f32 {v(TMP+3)}, {v(TMP+3)}")
        O = VB
        for T in range(2):
            for d in range(8):
                r = VA + 16 * T + 2 * d
                a(f"v_mul_f32 {v(r)}, {v(r)}, {v(TMP+2+T)}\nv_mul_f32 {v(r+1)}, {v(r+1)}, {v(TMP+2+T)}")
                dst = O + d if T == 0 else (TMP + 4 + d if d < 2 else O + 6 + d)
                a(f"v_cvt_pk_bf16_f32 {v(dst)}, {v(r)}, {v(r+1)}")
                if T == 0 and d == 3: a.vm(f"buffer_store_dwordx4 {v(O,4)}, {v(vL16)}, {s(rWS,4)}, {s(sT2)} offen sc1")
                if T == 1 and d == 1:
                    a(f"v_cndmask_b32 {v(O+6)}, {v(O+6)}, {v(TMP+4)}, {s(sHI,2)}\nv_cndmask_b32 {v(O+7)}, {v(O+7)}, {v(TMP+5)}, {s(sHI,2)}")
                    a.vm(f"buffer_store_dwordx4 {v(O+4,4)}, {v(vL16)}, {s(rWS,4)}, {s(sT2)} offen offset:1024 sc1")
                if T == 1 and d == 5: a.vm(f"buffer_store_dwordx4 {v(O+8,4)}, {v(vL16)}, {s(rWS,4)}, {s(sT2)} offen offset:2048 sc1")
        ls = a.vm(f"buffer_store_dwordx2 {v(O+12,2)}, v10, {s(rWS,4)}, {s(sT2)} offen offset:3072 sc1")
        self.w2_drain(15)
        a.wait(vm=ls)
        a.vm(f"buffer_store_dword v8, v9, {s(rWS,4)}, 0 offen sc1")
        self.stamp(10)
        self.w2_drain(17)
        assert not self.dq
        self.junction()

    def phase2(self):
        a = self.a
        a.vm_issued = 1000; a.vm_done = 1000 - self.jout
        for t in range(17, 35): self.tick[25 + t] = 1000 - self.jrel[t]
        self.w2n = 17
        for t in range(17): self.wt[t] = 0
        a(f"s_cmp_ge_u32 {s(sCS)}, 7\ns_cbranch_scc1 L_fin")
        ACC, HR, NH = 32, 96, 32
        a(f"s_lshr_b32 {s(sT0)}, {s(sWV)}, 1\ns_lshl_b32 {s(sT1)}, {s(sRB2)}, 1\ns_add_u32 {s(sT1)}, {s(sT1)}, {s(sT0)}")
        a(f"s_and_b32 {s(sT0)}, {s(sWV)}, 1\ns_lshl_b32 {s(sT0)}, {s(sT0)}, 6\ns_lshl_b32 {s(sT2)}, {s(sCS)}, 7\ns_add_u32 {s(sT0)}, {s(sT0)}, {s(sT2)}")
        a(f"s_mul_i32 {s(sHST)}, {s(sT1)}, {32*896}\ns_add_u32 {s(sHST)}, {s(sHST)}, {s(sT0)}")
        a(f"v_and_b32 v8, 31, {v(vL)}\nv_lshrrev_b32 v10, 5, {v(vL)}\nv_mul_u32_u24 v9, 896, v8\nv_lshl_add_u32 v4, v10, 4, v9")
        a(f"v_lshlrev_b32 v9, 1, v8")
        XR, ID, BB, SEL = 96, 104, 112, 116
        a.vm(f"buffer_load_dwordx4 {v(XR,4)}, v4, {s(rX,4)}, {s(sHST)} offen")
        a.vm(f"buffer_load_dwordx4 {v(XR+4,4)}, v4, {s(rX,4)}, {s(sHST)} offen offset:32")
        tx = a.vm(f"buffer_load_ushort {v(BB)}, v9, {s(rB2,4)}, {s(sT0)} offen")
        a(f"v_lshlrev_b32 v10, 3, v10\nv_sub_u32 v8, v8, v10")
        a(f"v_mov_b32 v11, 0x3f80\nv_mov_b32 v12, 0x3f800000")
        for m in range(2):
            for d in range(4):
                a(f"v_cmp_eq_u32 vcc, {16*m+2*d}, v8\nv_cmp_eq_u32 {s(sMA,2)}, {16*m+2*d+1}, v8")
                a(f"v_cndmask_b32 {v(ID+4*m+d)}, 0, v11, vcc\nv_cndmask_b32 {v(ID+4*m+d)}, {v(ID+4*m+d)}, v12, {s(sMA,2)}")
        a(f"v_cndmask_b32 {v(SEL)}, v11, 0, {s(sHI,2)}")
        for k in range(1, 4): a(f"v_mov_b32 {v(SEL+k)}, 0\nv_mov_b32 {v(BB+k)}, 0")
        a(f"s_xor_b32 {s(sT2)}, {s(sT1)}, 1")
        a(f"s_mul_i32 {s(sT0)}, {s(sT1)}, {112*1024}\nv_add_u32 v6, {s(sT0)}, {v(vL16)}")
        a(f"s_mul_i32 {s(sT0)}, {s(sT2)}, {112*1024}\nv_add_u32 v7, {s(sT0)}, {v(vL16)}")
        a(f"s_lshl_b32 {s(sT0)}, {s(sT1)}, 15\nv_add_u32 v12, {s(sT0)}, {v(vL16)}\nv_lshl_add_u32 v2, {v(vL)}, 3, {s(sT0)}")
        a(f"s_lshl_b32 {s(sT0)}, {s(sT2)}, 15\nv_add_u32 v13, {s(sT0)}, {v(vL16)}\nv_lshl_add_u32 v3, {v(vL)}, 3, {s(sT0)}")
        a(f"s_mul_i32 {s(sSO)}, {s(sWV)}, {28*1024}")
        a(f"s_lshl_b32 {s(sT1)}, {s(sWV)}, 13\ns_add_u32 {s(sT1)}, {s(sT1)}, {WS_O}\ns_add_u32 {s(sT2)}, {s(sT1)}, 4096")
        a(f"s_lshl_b32 {s(sT0)}, {s(sRB2)}, 2\ns_add_u32 {s(sT0)}, {s(sT0)}, {s(sWV)}\ns_lshl_b32 {s(sT0)}, {s(sT0)}, 7\ns_add_u32 {s(sT0)}, {s(sT0)}, {WS_FH}")
        a(f"s_add_u32 {s(sFA)}, {s(sWS)}, {s(sT0)}\ns_addc_u32 {s(sFA+1)}, {s(sWS+1)}, 0")
        a.wait(vm=tx)
        a(f"v_mfma_f32_32x32x16_bf16 {v(ACC,16)}, {v(BB,4)}, {v(SEL,4)}, 0")
        for m in range(2): a(f"v_mfma_f32_32x32x16_bf16 {v(ACC,16)}, {v(ID+4*m,4)}, {v(XR+4*m,4)}, {v(ACC,16)}")
        while self.w2n < 35: self.w2_read(self.w2n); self.w2n += 1
        self.stamp(11)
        self.poll(4)
        self.stamp(12)
        ht = {}
        def hload(t):
            if t >= 35: return
            if t == 28: self.poll(4, WS_FO - WS_FH); self.stamp(13)
            for b in range(2):
                r = HR + 4 * ((2 * t + b) % NH)
                if t < 28:
                    if b == 0 and t and t % 4 == 0: a(f"s_add_u32 {s(sSO)}, {s(sSO)}, 4096")
                    ht[t] = a.vm(f"buffer_load_dwordx4 {v(r,4)}, v{6+b}, {s(rWS,4)}, {s(sSO)} offen offset:{(t%4)*1024} sc1")
                elif t < 34:
                    so = sT1 if t < 31 else sT2
                    ht[t] = a.vm(f"buffer_load_dwordx4 {v(r,4)}, v{12+b}, {s(rWS,4)}, {s(so)} offen offset:{((t-28)%3)*1024} sc1")
                else:
                    a.vm(f"buffer_load_dwordx2 {v(r,2)}, v{2+b}, {s(rWS,4)}, {s(sT1)} offen offset:3072 sc1")
                    ht[t] = a.vm(f"buffer_load_dwordx2 {v(r+2,2)}, v{2+b}, {s(rWS,4)}, {s(sT2)} offen offset:3072 sc1")
        PD = NH // 2 - 1
        for t in range(PD): hload(t)
        OLATE = 20
        nxt = PD
        for t in range(35):
            a.wait(vm=ht[t])
            for q in (3, 2, 1, 0):
                ct, tt = q & 1, q >> 1
                c = v(ACC + 16 * q, 16) if (t or q == 0) else "0"
                a(f"v_mfma_f32_32x32x16_bf16 {v(ACC+16*q,16)}, {self.wreg(t,ct)}, {v(HR+4*((2*t+tt)%NH),4)}, {c}")
                if q == 3:
                    while nxt < 35 and nxt <= t + PD and (nxt < 28 or t >= OLATE): hload(nxt); nxt += 1
        self.stamp(14)
        a("s_barrier")
        for q in (3, 2, 1):
            a(f"s_xor_b32 {s(sT0)}, {s(sWV)}, {q}\ns_mul_i32 {s(sT0)}, {s(sT0)}, {REG}\nv_add_u32 v{8+q}, {s(sT0)}, {v(vL16)}")
        a(f"v_add_u32 v8, {s(sRB)}, {v(vL16)}")
        for q in (3, 2, 1):
            for h in range(4): t = a.ds(f"ds_write_b128 v{8+q}, {v(ACC+16*q+4*h,4)} offset:{(q-1)*4096 + h*1024}")
        a.wait(lg=t); a("s_barrier")
        rt = {}
        for h in range(4):
            for q in (1, 2, 3): rt[h] = a.ds(f"ds_read_b128 {v(ACC+16*q+4*h,4)}, v8 offset:{(q-1)*4096 + h*1024}")
        P = 96
        for h in range(4):
            a.wait(lg=rt[h])
            for k in (0, 2):
                r = ACC + 4 * h + k
                a(f"v_pk_add_f32 {v(r,2)}, {v(r,2)}, {v(r+16,2)}\nv_pk_add_f32 {v(r+32,2)}, {v(r+32,2)}, {v(r+48,2)}")
            for k in (0, 2):
                r = ACC + 4 * h + k
                a(f"v_pk_add_f32 {v(r,2)}, {v(r,2)}, {v(r+32,2)}")
            for k in (0, 2):
                r = ACC + 4 * h + k
                a(f"v_cvt_pk_bf16_f32 {v(P+2*h+k//2)}, {v(r)}, {v(r+1)}")
            if h & 1:
                m = h // 2
                a(f"v_permlane32_swap_b32 {v(P+4*m)}, {v(P+4*m+2)}\nv_permlane32_swap_b32 {v(P+4*m+1)}, {v(P+4*m+3)}")
                a.vm(f"buffer_store_dwordx4 {v(P+4*m,4)}, v4, {s(rOUT,4)}, {s(sHST)} offen offset:{32*m}")
        self.flush_stamp()
        a("L_fin:")
        if self.probe is not None:
            a.wait_all(vm=True); self.stamp(15); a.wait_all(lg=True)
            a("s_sub_u32 s1, s100, s0\ns_lshl_b32 s1, s1, 2\ns_add_u32 s1, s1, 4000")
            a("L_spin:\ns_memrealtime s[100:101]"); a.wait_all(lg=True)
            a("s_sub_u32 s100, s100, s0\ns_cmp_lt_u32 s100, s1\ns_cbranch_scc1 L_spin")
        if self.stamps:
            a.wait_all(vm=True)
            self.stamp(15); self.flush_stamp()
            a("s_memrealtime s[100:101]"); a.wait_all(lg=True); a("v_writelane_b32 v5, s100, 16")
            a(f"s_getreg_b32 s100, hwreg(HW_REG_XCC_ID)\nv_writelane_b32 v5, s100, 17")
            a(f"s_lshl_b32 {s(sT0)}, s2, 2\ns_add_u32 {s(sT0)}, {s(sT0)}, {s(sWV)}\ns_lshl_b32 {s(sT0)}, {s(sT0)}, 8\ns_add_u32 {s(sT0)}, {s(sT0)}, {WS_ST}")
            a(f"v_lshlrev_b32 v6, 2, {v(vL)}")
            a.vm(f"buffer_store_dword v5, v6, {s(rWS,4)}, {s(sT0)} offen")

    def text(self):
        hdr = open(f"cdna_kernels/{NAME}.s.ref").read().split("\n")
        top = [l for l in hdr if l.startswith(";") and "@launch" not in l and "Override" not in l and "grid=ceil" not in l]
        out = "\n".join(top) + "\n; @launch grid=(256,1,1) block=(256,1,1) lds=163840\n"
        out += f'.amdgcn_target "amdgcn-amd-amdhsa--gfx950"\n.text\n.globl {NAME}_kernel\n.p2align 8\n.type {NAME}_kernel,@function\n'
        out += self.a.text()
        out += f'''.section .rodata,"a"
.p2align 6
.amdhsa_kernel {NAME}_kernel
  .amdhsa_next_free_vgpr 512
  .amdhsa_next_free_sgpr 102
  .amdhsa_accum_offset 256
  .amdhsa_group_segment_fixed_size 0
  .amdhsa_kernarg_size 88
  .amdhsa_user_sgpr_count 2
  .amdhsa_user_sgpr_kernarg_segment_ptr 1
  .amdhsa_system_sgpr_workgroup_id_x 1
  .amdhsa_float_denorm_mode_32 3
.end_amdhsa_kernel
'''
        return out

if __name__ == "__main__":
    out = sys.argv[1]; stamps = len(sys.argv) > 2 and sys.argv[2] == "stamps"
    probe = int(sys.argv[3]) if len(sys.argv) > 3 and sys.argv[2] == "probe" else None
    g = Gen(stamps, probe); g.build(); open(out, "w").write(g.text())
    print("instructions", sum(1 for i in g.a.L if i.kind != 'meta'), "nops", g.a.nops)
```

```python
import sys, copy
from collections import deque
from asmlib import Asm

NAME = "parallel_sum__linear_attn_block__dense_activation_squared_relu__prompt"
WS_H = 0; WS_O = 0x700000; WS_KV = 0x900000; WS_FH = 0x980000; WS_FO = WS_FH + 0x4000; WS_FK = WS_FH + 0x8000
WS_ST = 0xA00000; WS_SIZE = 0xB00000
REG = 40960
INIT_WG = 248
SPIN = 40000

sX, sWQ, sWO, sW1, sB1, sW2, sB2, sOUT, sDBG, sWS = 4, 6, 8, 12, 14, 16, 18, 20, 22, 24
rX, rW, rWS, rW2, rWO, rOUT, rB1, rB2 = 28, 32, 36, 40, 44, 48, 52, 56
sWV, sRB, sSO, sRS, sXB, sCOL = 3, 26, 27, 60, 61, 62
sI, sJ, sROLE, sCS, sRB2, sT0, sT1, sT2 = 65, 66, 67, 68, 69, 70, 71, 72
sHST, sSGL, sROT2, sWOB, sCNT = 73, 74, 75, 76, 77
sMA, sMB, sHI = 78, 80, 82
sG1 = 84
sK1 = 91
sP = 84
sK2W = 12
sK2H = [4, 5, 6, 7, 8, 9, 19]
sFA = 10

vL = 0; vXD = 1; vST = 6; vXR = 14; vWD = 18; vW2D = 20; vWR = 22; vL16 = 30; vGO = 31
vRN = 2
vSD = 1; vOA = 4
vP2R = 14
U = 32
VA, VB, VT = 144, 176, 208
aACC, aRING, aSEL, aBIAS = 0, 32, 64, 68
D = 6; RING = 8

def v(a, n=1): return f"v{a}" if n == 1 else f"v[{a}:{a+n-1}]"
def ag(a, n=1): return f"a{a}" if n == 1 else f"a[{a}:{a+n-1}]"
def s(a, n=1): return f"s{a}" if n == 1 else f"s[{a}:{a+n-1}]"

W2_ORDER = [7*b + u for b in range(4) for u in (0, 1)] + [7*b + u for b in range(4) for u in range(2, 7)] + list(range(28, 35))
def w2_base(t):
    k = W2_ORDER.index(t)
    if k < 21: return ('a', 88 + 8 * k)
    if k < 32: return ('a', 8 * (k - 21))
    return ('v', 224 + 8 * (k - 32))
def w2_reg(t, off, n):
    c, b = w2_base(t)
    return (ag if c == 'a' else v)(b + off, n)

class Gen:
    def __init__(self, stamps=False, probe=None, opt=None):
        self.probe = probe; self.o = dict(PD=5, LAG=9, OLATE=22, PFW=1, PFW2=1, ROT=1, ROT2=1, HLEAD=1); self.o.update(opt or {})
        self.a = Asm(); self.stamps = stamps; self.nlab = 0; self.pending = None
    def lab(self, p):
        self.nlab += 1; return f"L_{p}_{self.nlab}"
    def stamp(self, k):
        if self.probe == k: self.a("s_memrealtime s[100:101]")
        if not self.stamps: return
        a = self.a
        if self.pending is not None: a(f"v_writelane_b32 v5, s100, {self.pending}")
        a(f"s_memtime s[100:101]")
        self.pending = k
    def flush_stamp(self):
        if self.stamps and self.pending is not None:
            self.a.wait_all(lg=True); self.a(f"v_writelane_b32 v5, s100, {self.pending}"); self.pending = None
    def srd(self, r, p, size):
        self.a(f"s_mov_b32 {s(r)}, {s(p)}\ns_mov_b32 {s(r+1)}, {s(p+1)}\ns_mov_b32 {s(r+2)}, {size}\ns_mov_b32 {s(r+3)}, 0x20000")
    def poll(self, n, off=0, base=None):
        a = self.a; L = self.lab("poll"); E = self.lab("pend")
        base = sFA if base is None else base
        a(f"s_mov_b32 {s(sCNT)}, 0")
        a(f"{L}:")
        a(f"s_load_dwordx{n} {s(sP, n)}, {s(base, 2)}, {off} glc")
        a.wait_all(lg=True)
        m = n
        while m > 2:
            m //= 2
            for i in range(0, m, 2): a(f"s_and_b64 {s(sP+i,2)}, {s(sP+i,2)}, {s(sP+m+i,2)}")
        a(f"s_and_b32 {s(sP)}, {s(sP)}, {s(sP+1)}")
        a(f"s_cbranch_scc1 {E}")
        a(f"s_add_u32 {s(sCNT)}, {s(sCNT)}, 1\ns_cmp_lt_u32 {s(sCNT)}, {SPIN}\ns_cbranch_scc1 {L}")
        a(f"{E}:")
    def go_load(self):
        a = self.a
        a(f"v_and_b32 {v(vGO)}, 3, {v(vL)}\nv_lshlrev_b32 {v(vGO)}, 2, {v(vGO)}")
        self.tgo = a.vm(f"global_load_dword {v(vGO)}, {v(vGO)}, {s(sDBG,2)} sc1")
        return 3
    def go_check(self):
        a = self.a; E = self.lab("go")
        a.wait(vm=self.tgo)
        a(f"v_cmp_eq_u32 vcc, 0, {v(vGO)}")
        a(f"s_cmp_eq_u64 vcc, 0\ns_cbranch_scc1 {E}")
        st = a.state()
        self.poll(4, 0, base=sDBG)
        a.set_state(st)
        a(f"{E}:")
        return 4

    def q_reset(self):
        self.dq = deque(); self.tick = {}; self.slot = {}; self.free = list(range(14, 20))
    def item(self, key, ops, nslot=1): self.dq.append(dict(key=key, ops=deque(ops), nslot=nslot))
    def q_x(self, n):
        a = self.a
        def op(g):
            def f():
                c = 1
                if g == 0:
                    a(f"s_add_u32 m0, {s(sRB)}, {n*4096}\ns_add_u32 {s(sSO)}, {s(sXB)}, {s(sG1+n)}"); c = 3
                self.tick['x', n] = a.vm(f"buffer_load_dwordx4 {v(vXD+g)}, {s(rX,4)}, {s(sSO)} offen offset:{g*1024} lds")
                return c
            return f
        self.item(('x', n), [op(g) for g in range(4)], 0)
    def q_p(self, p, e):
        a = self.a; key = ('p', p, e)
        def op(b):
            def f():
                c = 1
                if b == 0:
                    a(f"s_add_u32 m0, {s(sRB)}, {self.slot[key]*2048}\ns_add_u32 {s(sSO)}, {s(sCOL+p)}, {s(sK1+e)}"); c = 3
                self.tick[key] = a.vm(f"buffer_load_dwordx4 {v(vWD+b)}, {s(rW,4)}, {s(sSO)} offen offset:{b*1024} lds")
                return c
            return f
        self.item(key, [op(0), op(1)])
    def q_s(self, h):
        a = self.a; key = ('s', h)
        def op(e):
            def f():
                a(f"s_add_u32 m0, {s(sRB)}, {self.slot[key]*2048 + (e&1)*1024}\ns_add_u32 {s(sSO)}, {s(sSGL)}, {s(sK1+e)}")
                self.tick[key] = a.vm(f"buffer_load_dwordx4 {v(vSD)}, {s(rW,4)}, {s(sSO)} offen lds")
                return 3
            return f
        self.item(key, [op(e) for e in (2*h, 2*h+1) if e < 7])
    def q_w(self, t):
        a = self.a; key = ('w', t)
        def op(b):
            def f():
                c = 1
                if b == 0:
                    a(f"s_add_u32 m0, {s(sRB)}, {self.slot[key]*2048}")
                    if t < 28: a(f"s_add_u32 {s(sSO)}, {s(sK2W + t % 7)}, {(t//7)*7*14336}")
                    else:
                        row = 16*(t-28) if t < 31 else (56 + 16*(t-31) if t < 34 else 48)
                        a(f"s_add_u32 {s(sSO)}, {s(sWOB)}, {row*896}")
                    c = 3
                elif t == 34:
                    a(f"s_add_u32 {s(sSO)}, {s(sWOB)}, {96*896}"); c = 2
                self.tick[key] = a.vm(f"buffer_load_dwordx4 {v(vW2D+b)}, {s(rW2 if t < 28 else rWO,4)}, {s(sSO)} offen offset:{b*1024} lds")
                if b == 1: self.w2_issued.append(t)
                return c
            return f
        self.item(key, [op(0), op(1)])
    def q_op(self, key, f): self.item(key, [f], 0)
    def dma_ready(self):
        if not self.dq: return False
        it = self.dq[0]
        if self.a.vm_issued - self.a.vm_done >= 56: return False
        return it.get('started') or it['nslot'] == 0 or len(self.free) > 0
    def dma_one(self):
        it = self.dq[0]
        if not it.get('started'):
            it['started'] = True
            if it['nslot']: self.slot[it['key']] = self.free.pop(0)
        n = it['ops'].popleft()()
        if not it['ops']: self.dq.popleft()
        self.last_vm_slot = self.slotno
        return n
    def issued(self, key): return key in self.tick and not any(it['key'] == key for it in self.dq)

    def mv_reset(self):
        self.w2_issued = []; self.mv_next = 0; self.mv_half = 0; self.mv_t = {}; self.mv_freed = set(); self.mv_limit = 21
    def mv_ready(self, lag):
        if self.mv_half: return True
        if self.mv_next >= len(self.w2_issued) or self.mv_next >= self.mv_limit: return False
        t = self.w2_issued[self.mv_next]
        return self.a.vm_issued - self.tick['w', t] >= lag or self.tick['w', t] <= self.a.vm_done
    def mv_one(self):
        a = self.a; t = self.w2_issued[self.mv_next]; T = self.mv_half; c = 2
        if T == 0 and a.wait(vm=self.tick['w', t]): c = 3
        for rd in range(2):
            self.mv_t[t] = a.ds(f"ds_read_b64_tr_b16 {w2_reg(t, 4*T+2*rd, 2)}, {v(vP2R+T)} offset:{self.slot['w', t]*2048 + rd*1024}")
        if T == 0: self.mv_half = 1
        else: self.mv_half = 0; self.mv_next += 1
        return c
    def mv_release(self):
        for k in range(self.mv_next):
            t = self.w2_issued[k]
            if t not in self.mv_freed and self.mv_t[t] <= self.a.lg_done:
                self.mv_freed.add(t); self.free.append(self.slot['w', t])
    def w2_finish(self, upto=35, lag=0):
        a = self.a
        while self.mv_next < upto:
            self.mv_release()
            if self.dma_ready(): self.dma_one(); self.dma_ready() and self.dma_one()
            if self.mv_ready(lag if self.dma_ready() else 0):
                self.mv_one(); self.mv_one() if self.mv_half else None
            elif not self.dma_ready():
                a.wait(lg=a.lg_issued); self.mv_release()
                assert self.dma_ready() or self.mv_ready(0), "w2 stuck"

    def frag_list(self, role):
        fr = []
        for p in range(3):
            for st in range(28):
                for T in range(2):
                    fr.append(dict(key=('p', p, st // 4), addr=vWR + 4 * T + (st & 3), sub=0, rd=512, stage=p, s=st, T=T))
        if role == 'f':
            for st in range(28):
                e = st // 4
                fr.append(dict(key=('s', e // 2), addr=VT + 40 + (st & 3), sub=(e & 1) * 1024, rd=256, stage=3, s=st, T=0))
        self.cons = []
        for f in fr:
            if f['key'] not in self.cons: self.cons.append(f['key'])
        for f in fr: f['c'] = self.cons.index(f['key'])
        return fr
    def publish(self, c):
        a = self.a
        tgt = min(t for t in self.pubs if t >= c)
        for k in self.cons[:tgt + 1]:
            while not self.issued(k):
                assert self.dma_ready(), ("cannot publish", c, tgt)
                self.dma_one()
        a.wait(vm=max(self.tick[k] for k in self.cons[:tgt + 1]))
        a("s_barrier")
        self.pub = tgt
        self.release()
    def release(self):
        for k, t in list(self.lastread.items()):
            if k in self.allread and t <= self.a.lg_done:
                del self.lastread[k]
                if self.slot[k] not in self.hold: self.free.append(self.slot[k])
                else: self.held.add(self.slot[k])
    def read_frag(self, n):
        a = self.a
        if n >= len(self.fr): return
        f = self.fr[n]
        if f['c'] > self.pub: self.publish(f['c'])
        r = aRING + 4 * (n % RING); off = self.slot[f['key']] * 2048 + f['sub']
        a.ds(f"ds_read_b64_tr_b16 {ag(r,2)}, {v(f['addr'])} offset:{off}")
        f['t'] = a.ds(f"ds_read_b64_tr_b16 {ag(r+2,2)}, {v(f['addr'])} offset:{off+f['rd']}")
        self.lastread[f['key']] = f['t']
        if n + 1 >= len(self.fr) or self.fr[n + 1]['key'] != f['key']: self.allread.add(f['key'])
    def fill(self, fillers, budget, moves):
        a = self.a
        self.slotno += 1
        self.mv_release()
        if moves and self.mv_ready(self.o['LAG']): budget -= self.mv_one()
        if self.slotno - self.last_vm_slot >= 2 and self.dma_ready(): budget -= self.dma_one()
        while fillers and budget > 0:
            n0 = a.vm_issued
            budget -= fillers.popleft()() or 1
            if a.vm_issued > n0: self.last_vm_slot = self.slotno
    def run_stage(self, stage, acc, swap, fillers, budget=4, pre=None, forced=None, moves=True, minfill=0):
        a = self.a
        idx = [n for n, f in enumerate(self.fr) if f['stage'] == stage]
        for line in (pre or []):
            a(line); self.fill(fillers, budget + 2, moves)
        for k, n in enumerate(idx):
            f = self.fr[n]
            a.wait(lg=f['t'])
            w = ag(aRING + 4 * (n % RING), 4); x = v(U + 4 * f['s'], 4)
            c = acc(f['T']) if (pre or f['s'] > 0) else "0"
            a(f"v_mfma_f32_32x32x16_bf16 {acc(f['T'])}, {x if swap else w}, {w if swap else x}, {c}")
            self.read_frag(n + D)
            last = (n % 2 == 1)
            fl = forced(f['s'], f['T']) if forced else []
            self.fill(fillers, budget - len(fl) - (1 if last else 0), moves)
            for g in fl: g()
            left = len(idx) - k - 1
            while fillers and len(fillers) > left * minfill and minfill: fillers.popleft()()
            if last and n + 2 < len(self.fr): a.wait(lg=self.fr[n + 2]['t'])
    def cvt_ops(self, st):
        a = self.a; b = U + 8 * st
        return [lambda d=d: a(f"v_cvt_pk_bf16_f32 {v(U+4*st+d)}, {v(b+2*d)}, {v(b+2*d+1)}") for d in range(4)]
    def cvt_forced(self, st, T):
        if st + 2 >= 28: return []
        ops = self.cvt_ops(st + 2)
        return ops[:2] if T == 0 else ops[2:]

    def rot_table(self, rot, tmp, outs):
        a = self.a
        for n in range(7):
            if n:
                a(f"s_add_u32 {s(rot)}, {s(rot)}, 1\ns_cmp_eq_u32 {s(rot)}, 7\ns_cselect_b32 {s(rot)}, 0, {s(rot)}")
            for reg, mul, add in outs:
                a(f"s_mul_i32 {s(reg(n))}, {s(rot)}, {mul}")
                if add: a(f"s_add_u32 {s(reg(n))}, {s(reg(n))}, {add}")
    def build(self):
        a = self.a; o = self.o
        a(f"{NAME}_kernel:")
        a("s_cmp_ge_u32 s2, 256\ns_cbranch_scc1 L_end")
        if self.stamps: a("s_memrealtime s[78:79]\ns_memtime s[80:81]")
        if self.probe is not None: a("s_memrealtime s[100:101]")
        a("s_load_dwordx2 s[4:5], s[0:1], 0\ns_load_dwordx2 s[24:25], s[0:1], 80")
        a("s_load_dwordx2 s[6:7], s[0:1], 8\ns_load_dwordx4 s[8:11], s[0:1], 16\ns_load_dwordx8 s[12:19], s[0:1], 32\ns_load_dwordx4 s[20:23], s[0:1], 64")
        a("s_getpc_b64 s[98:99]\nL_pc:")
        a("s_lshr_b32 s3, s2, 3\ns_lshl_b32 s3, s3, 7")
        a("v_lshrrev_b32 v1, 4, v0\nv_lshl_add_u32 v1, v1, 12, s3")
        a("v_min_u32 v1, L_end - L_pc, v1")
        a.vm(f"global_load_dword {v(vGO)}, v1, s[98:99]")
        a(f"v_lshrrev_b32 v1, 6, v0\nv_and_b32 {v(vL)}, 63, v0")
        a(f"v_readfirstlane_b32 {s(sWV)}, v1")
        a(f"s_and_b32 {s(sT0)}, s2, 7\ns_lshr_b32 {s(sT1)}, s2, 3\ns_and_b32 {s(sT2)}, {s(sT1)}, 3")
        a(f"s_and_b32 {s(sI)}, {s(sT0)}, 3\ns_lshl_b32 {s(sI)}, {s(sI)}, 2\ns_add_u32 {s(sI)}, {s(sI)}, {s(sT2)}")
        a(f"s_lshr_b32 {s(sCS)}, {s(sT1)}, 2")
        a(f"s_and_b32 {s(sJ)}, {s(sT0)}, 4\ns_and_b32 {s(sROLE)}, {s(sCS)}, 3\ns_add_u32 {s(sJ)}, {s(sJ)}, {s(sROLE)}")
        a(f"s_lshr_b32 {s(sROLE)}, {s(sT1)}, 4")
        a(f"s_lshl_b32 {s(sRB2)}, {s(sT0)}, 2\ns_add_u32 {s(sRB2)}, {s(sRB2)}, {s(sT2)}")
        a(f"s_lshl_b32 {s(sT2)}, {s(sT2)}, 1\ns_add_u32 {s(sROT2)}, {s(sT2)}, {s(sCS)}")
        a(f"s_cmp_ge_u32 {s(sROT2)}, 7\ns_cselect_b32 {s(sT2)}, 7, 0\ns_sub_u32 {s(sROT2)}, {s(sROT2)}, {s(sT2)}")
        a(f"s_mul_i32 {s(sRB)}, {s(sWV)}, {REG}")
        a(f"s_lshl_b32 {s(sHST)}, {s(sI)}, 2\ns_add_u32 {s(sHST)}, {s(sHST)}, {s(sWV)}")
        a(f"s_mul_i32 {s(sXB)}, {s(sHST)}, {32*896}")
        a(f"s_cmp_eq_u32 {s(sROLE)}, 0\ns_movk_i32 {s(sT0)}, 2688\ns_cselect_b32 {s(sRS)}, 3584, {s(sT0)}")
        a(f"s_lshl_b32 {s(sT1)}, {s(sRS)}, 6")
        a(f"s_mov_b32 {s(sT0)}, {s(sROT2) if o['ROT'] else 0}")
        self.rot_table(sT0, None, [(lambda n: sG1 + n, 128, None), (lambda n: sK1 + n, s(sT1), None)])
        a(f"v_lshrrev_b32 v6, 3, {v(vL)}\nv_and_b32 v7, 7, {v(vL)}")
        a(f"v_lshrrev_b32 v8, 1, v6\nv_xor_b32 v8, v7, v8\nv_lshlrev_b32 v8, 4, v8\nv_xor_b32 v9, 64, v8")
        a(f"v_mul_u32_u24 v10, 896, v6")
        a(f"v_add_u32 {v(vXD)}, v10, v8\nv_add_u32 v9, v10, v9")
        a(f"v_add_u32 {v(vXD+1)}, 6144, v9\nv_add_u32 {v(vXD+2)}, {2*6144}, {v(vXD)}\nv_add_u32 {v(vXD+3)}, {3*6144}, v9")
        a(f"v_lshlrev_b32 {v(vL16)}, 4, {v(vL)}")
        a(f"s_and_b32 {s(sT2)}, s2, 127\ns_lshl_b32 {s(sT2)}, {s(sT2)}, 2\ns_add_u32 {s(sT2)}, {s(sT2)}, {s(sWV)}")
        a(f"s_cmp_eq_u32 {s(sROLE)}, 0\ns_cselect_b32 {s(sT0)}, 25, 19\ns_cselect_b32 {s(sT1)}, 25, 7")
        a(f"s_mul_i32 {s(sCNT)}, {s(sT2)}, {s(sT0)}\ns_sub_u32 {s(sT0)}, {s(sT0)}, 1")
        a(f"v_min_u32 v11, {s(sT0)}, {v(vL)}\nv_add_lshl_u32 v11, v11, {s(sCNT)}, 7")
        a(f"s_mul_i32 {s(sCNT)}, {s(sT2)}, {s(sT1)}\ns_sub_u32 {s(sT1)}, {s(sT1)}, 1")
        a(f"v_min_u32 {v(U)}, {s(sT1)}, {v(vL)}\nv_add_lshl_u32 {v(U)}, {v(U)}, {s(sCNT)}, 7\nv_accvgpr_write_b32 a0, {v(U)}")
        a("s_mov_b32 s30, 1835008\ns_mov_b32 s31, 0x20000")
        a.wait_all(lg=True)
        a("s_mov_b32 s28, s4\ns_mov_b32 s29, s5")
        if self.probe is not None: a("s_mov_b32 s0, s100")
        if self.stamps: a("v_writelane_b32 v5, s78, 18\nv_writelane_b32 v5, s80, 0")
        self.stamp(1)
        self.q_reset(); self.mv_reset(); self.slotno = 0; self.last_vm_slot = -9
        for n in range(7): self.q_x(n)
        for k in range(4): self.dma_one()
        a(f"s_cmp_eq_u32 {s(sROLE)}, 0")
        a(f"s_cselect_b32 {s(rW)}, {s(sW1)}, {s(sWQ)}\ns_cselect_b32 {s(rW+1)}, {s(sW1+1)}, {s(sWQ+1)}")
        a(f"s_mov_b32 {s(sT0)}, {448*1344*2}\ns_cselect_b32 {s(rW+2)}, {448*1792*2}, {s(sT0)}\ns_mov_b32 {s(rW+3)}, 0x20000")
        if o['PFW']: a.vm(f"buffer_load_dword {v(vGO)}, v11, {s(rW,4)}, 0 offen")
        for k in range(4): self.dma_one()
        self.srd(rWS, sWS, WS_SIZE)
        st0 = a.state()
        a(f"s_cmp_lg_u32 s2, {INIT_WG}\ns_cbranch_scc1 L_noinit")
        a("v_mov_b32 v32, 0\nv_mov_b32 v33, 0\nv_mov_b32 v34, 0\nv_mov_b32 v35, 0")
        a(f"v_lshlrev_b32 v36, 7, {v(vL)}")
        a(f"s_lshl_b32 {s(sT0)}, {s(sWV)}, 13\ns_add_u32 {s(sT0)}, {s(sT0)}, {WS_FH}")
        a(f"s_lshl_b32 {s(sT1)}, {s(sWV)}, 10\ns_add_u32 {s(sT1)}, {s(sT1)}, {WS_FK}")
        a(f"buffer_store_dwordx4 v[32:35], v36, {s(rWS,4)}, {s(sT0)} offen sc1")
        a(f"buffer_store_dwordx4 v[32:35], {v(vL16)}, {s(rWS,4)}, {s(sT1)} offen sc1")
        a("L_noinit:")
        a.set_state(st0)
        a(f"s_cmp_eq_u32 {s(sROLE)}, 0")
        a(f"s_cselect_b32 {s(rOUT)}, {s(sW2)}, {s(sWO)}\ns_cselect_b32 {s(rOUT+1)}, {s(sW2+1)}, {s(sWO+1)}")
        a(f"s_mov_b32 {s(sT0)}, {448*896}\ns_cselect_b32 {s(rOUT+2)}, {1792*896}, {s(sT0)}\ns_mov_b32 {s(rOUT+3)}, 0x20000")
        a(f"s_cselect_b32 {s(sT2)}, 7, 6")
        a(f"s_cselect_b32 {s(sCNT)}, 64, 48")
        a(f"s_cbranch_scc0 L_cola")
        a(f"s_mul_i32 {s(sSGL)}, {s(sJ)}, 448\ns_and_b32 {s(sT0)}, {s(sJ)}, 1\ns_lshl_b32 {s(sT1)}, {s(sT0)}, 6")
        a(f"s_add_u32 {s(sCOL)}, {s(sSGL)}, {s(sT1)}\ns_add_u32 {s(sCOL+1)}, {s(sCOL)}, 128\ns_add_u32 {s(sCOL+2)}, {s(sCOL)}, 256")
        a(f"s_cmp_eq_u32 {s(sT0)}, 0\ns_cselect_b32 {s(sT0)}, 384, 0\ns_add_u32 {s(sSGL)}, {s(sSGL)}, {s(sT0)}")
        a("s_branch L_colb\nL_cola:")
        a(f"s_mul_i32 {s(sCOL+2)}, {s(sJ)}, 112\ns_add_u32 {s(sCOL)}, {s(sCOL+2)}, 896\ns_add_u32 {s(sCOL+1)}, {s(sCOL+2)}, 1792")
        a(f"s_mov_b32 {s(sSGL)}, 0")
        a("L_colb:")
        a(f"s_mov_b32 s98, {s(sCOL)}\ns_mov_b32 s99, {s(sSGL)}")
        a(f"s_mul_i32 {s(sT0)}, {s(sRS)}, {s(sWV)}\ns_lshl_b32 {s(sT0)}, {s(sT0)}, 4")
        for k in range(3): a(f"s_add_u32 {s(sCOL+k)}, {s(sCOL+k)}, {s(sT0)}")
        a(f"s_add_u32 {s(sSGL)}, {s(sSGL)}, {s(sT0)}")
        a(f"v_and_b32 v8, 2, v6\nv_lshlrev_b32 v8, 1, v8\nv_xor_b32 v8, v7, v8")
        a(f"v_lshl_add_u32 {v(vW2D)}, v8, 4, v10\nv_add_u32 {v(vW2D+1)}, 6144, {v(vW2D)}")
        a(f"v_min_u32 v8, {s(sT2)}, v8\nv_lshlrev_b32 v8, 4, v8")
        a(f"v_mad_u32_u24 {v(vWD)}, v6, {s(sRS)}, v8")
        a(f"s_lshl_b32 {s(sT0)}, {s(sRS)}, 3\ns_sub_u32 {s(sT0)}, {s(sT0)}, 1024")
        a(f"v_add_u32 {v(vWD+1)}, {s(sT0)}, {v(vWD)}")
        self.srd(rB1, sB1, 3584)
        a(f"v_and_b32 v8, 31, {v(vL)}")
        for k in range(16): a(f"v_accvgpr_write_b32 {ag(aBIAS+k)}, 0")
        a(f"v_lshrrev_b32 v10, 5, {v(vL)}")
        a(f"v_bfe_u32 v11, {v(vL)}, 1, 3\nv_xor_b32 v11, v10, v11\nv_lshlrev_b32 v11, 4, v11")
        a(f"v_lshl_add_u32 v11, v8, 7, v11\nv_add_u32 {v(vXR)}, {s(sRB)}, v11")
        for j in range(1, 4): a(f"v_xor_b32 {v(vXR+j)}, {32*j}, {v(vXR)}")
        a(f"v_cmp_eq_u32 {s(sHI,2)}, 1, v10")
        a(f"v_mov_b32 v11, 0x3f80")
        a(f"v_cmp_le_u32 {s(sMA,2)}, 28, v8\nv_cmp_gt_u32 {s(sMB,2)}, 4, v8")
        a(f"v_cndmask_b32 v11, v11, 0, {s(sHI,2)}")
        a(f"v_accvgpr_write_b32 {ag(aSEL)}, v11")
        for k in range(1, 4): a(f"v_accvgpr_write_b32 {ag(aSEL+k)}, 0")
        a(f"v_bfe_u32 v11, {v(vL)}, 2, 2")
        a(f"v_and_b32 v12, 3, {v(vL)}\nv_lshlrev_b32 v12, 3, v12\nv_bfe_u32 v13, {v(vL)}, 4, 1\nv_lshl_add_u32 v12, v13, 5, v12")
        a(f"v_and_b32 v13, 2, v11\nv_lshlrev_b32 v13, 5, v13")
        a(f"v_lshl_add_u32 v9, v10, 3, v11")
        a(f"v_lshl_add_u32 v6, v9, 6, v12\nv_accvgpr_write_b32 a2, v6")
        a(f"v_lshlrev_b32 v9, 7, v9")
        a(f"v_xor_b32 v8, v12, v13\nv_add_u32 {v(vWR)}, v9, v8")
        a(f"v_lshl_add_u32 v6, v10, 2, v11\nv_lshl_add_u32 v6, v6, 7, v8")
        a(f"s_and_b32 {s(sT0)}, {s(sWV)}, 1\ns_lshl_b32 {s(sT0)}, {s(sT0)}, 6")
        a(f"v_xor_b32 v6, {s(sT0)}, v6\nv_add_u32 v6, {s(sRB)}, v6\nv_accvgpr_write_b32 a1, v6")
        a(f"v_add_u32 v8, {s(sCNT)}, v12\nv_xor_b32 v8, v8, v13\nv_add_u32 {v(vWR+4)}, v9, v8")
        for T in range(2):
            for r in range(1, 4): a(f"v_add_u32 {v(vWR+4*T+r)}, {REG*r}, {v(vWR+4*T)}")
        for k in range(4): self.dma_one()
        a(f"s_cmp_lt_u32 {s(sCS)}, 7")
        a(f"s_mov_b32 {s(rW2)}, {s(sW2)}\ns_mov_b32 {s(rW2+1)}, {s(sW2+1)}\ns_cselect_b32 {s(rW2+2)}, {1792*896}, 0\ns_mov_b32 {s(rW2+3)}, 0x20000")
        a(f"s_mov_b32 {s(rWO)}, {s(sWO)}\ns_mov_b32 {s(rWO+1)}, {s(sWO+1)}\ns_cselect_b32 {s(rWO+2)}, {448*896}, 0\ns_mov_b32 {s(rWO+3)}, 0x20000")
        self.srd(rB2, sB2, 896)
        a(f"s_lshl_b32 {s(sT0)}, {s(sCS)}, 7")
        a(f"s_mul_i32 {s(sT1)}, {s(sWV)}, {448*896}\ns_add_u32 {s(sT1)}, {s(sT1)}, {s(sT0)}")
        a(f"s_mul_i32 {s(sWOB)}, {s(sWV)}, {112*896}\ns_add_u32 {s(sWOB)}, {s(sWOB)}, {s(sT0)}")
        if not o['ROT2']: a(f"s_mov_b32 {s(sROT2)}, 0")
        self.rot_table(sROT2, None, [(lambda n: sK2W + n, 14336, s(sT1)), (lambda n: sK2H[n], 1024, None)])
        for k in range(8): a(f"v_mov_b32 {v(vST+k)}, 0")
        def bias_loads():
            a(f"v_and_b32 {v(vGO)}, 31, {v(vL)}\nv_lshlrev_b32 {v(vGO)}, 1, {v(vGO)}")
            for k in range(6): a.vm(f"buffer_load_ushort {ag(aBIAS+2*k)}, {v(vGO)}, {s(rB1,4)}, s98 offen offset:{64*k}")
            self.tb = a.vm(f"buffer_load_ushort {ag(aBIAS+12)}, {v(vGO)}, {s(rB1,4)}, s99 offen")
            return 9
        def pfw2():
            a(f"v_accvgpr_read_b32 {v(vGO)}, a0")
            a.vm(f"buffer_load_dword {v(vGO)}, {v(vGO)}, {s(rOUT,4)}, 0 offen")
            return 2
        self.order1 = [(0,0),(0,1),'bias',(1,0),(1,1),'pfw2',(0,2),(0,3),(0,4),(0,5),(0,6),(2,0),(2,1)] + [(1,e) for e in range(2,7)] + [(2,e) for e in range(2,7)]
        def enqueue1():
            for it in self.order1:
                if it == 'bias': self.q_op('bias', bias_loads)
                elif it == 'pfw2':
                    if o['PFW2']: self.q_op('pfw2', pfw2)
                else: self.q_p(*it)
        enqueue1()
        self.pub = -1; self.lastread = {}; self.allread = set(); self.hold = set(); self.held = set()
        self.pubs = [1, 3, 6, 9, 13, 16, 20, 22, 24]
        self.fr = self.frag_list('f')
        def xreads(n):
            return [a.ds(f"ds_read_b128 {v(U+8*(4*n+j)+4,4)}, {v(vXR+j)} offset:{n*4096}") for j in range(4)]
        def process(st):
            b = U + 8 * st
            if self.dma_ready(): self.dma_one()
            for d in range(4):
                a(f"v_lshlrev_b32 {v(b+2*d)}, 16, {v(b+4+d)}")
                a(f"v_and_b32 {v(b+2*d+1)}, 0xffff0000, {v(b+4+d)}")
            for d in range(4):
                k = vST + 2 * (d & 1)
                a(f"v_pk_add_f32 {v(k,2)}, {v(b+2*d,2)}, {v(k,2)}")
                a(f"v_pk_fma_f32 {v(k+4,2)}, {v(b+2*d,2)}, {v(b+2*d,2)}, {v(k+4,2)}")
        a.wait(vm=self.tick['x', 0])
        self.stamp(2)
        rt = xreads(0)
        for n in range(7):
            a.wait(lg=rt[3])
            self.free += [2 * n, 2 * n + 1]
            process(4 * n); process(4 * n + 1)
            if n < 6:
                assert self.issued(('x', n + 1))
                a.wait(vm=self.tick['x', n + 1]); rt = xreads(n + 1)
            if n == 2:
                st0 = a.state()
                a(f"s_cmp_lg_u32 s2, {INIT_WG}\ns_cbranch_scc1 L_nogo")
                a(f"v_mov_b32 v254, 1\ns_lshl_b32 {s(sT0)}, {s(sWV)}, 2\nv_mov_b32 v255, {s(sT0)}")
                a(f"global_store_dword v255, v254, {s(sDBG,2)} sc1")
                a("L_nogo:")
                a.set_state(st0)
            process(4 * n + 2); process(4 * n + 3)
        self.stamp(3)
        a(f"v_pk_add_f32 {v(vST,2)}, {v(vST,2)}, {v(vST+2,2)}\nv_pk_add_f32 {v(vST+4,2)}, {v(vST+4,2)}, {v(vST+6,2)}")
        a(f"v_add_f32 {v(vST)}, {v(vST)}, {v(vST+1)}\nv_add_f32 {v(vST+4)}, {v(vST+4)}, {v(vST+5)}")
        a(f"v_mov_b32 {v(vST+1)}, {v(vST)}\nv_mov_b32 {v(vST+5)}, {v(vST+4)}")
        a(f"v_accvgpr_read_b32 {v(vP2R)}, a1")
        a(f"v_permlane32_swap_b32 {v(vST)}, {v(vST+1)}\nv_permlane32_swap_b32 {v(vST+4)}, {v(vST+5)}")
        a(f"v_add_f32 {v(vST)}, {v(vST)}, {v(vST+1)}\nv_add_f32 {v(vST+4)}, {v(vST+4)}, {v(vST+5)}")
        inv = 0x3b124925
        a(f"v_mul_f32 {v(vST)}, {inv:#x}, {v(vST)}\nv_mul_f32 {v(vST+4)}, {inv:#x}, {v(vST+4)}")
        a(f"v_fma_f32 {v(vST+4)}, -{v(vST)}, {v(vST)}, {v(vST+4)}")
        a(f"v_max_f32 {v(vST+4)}, 0, {v(vST+4)}\nv_add_f32 {v(vST+4)}, 0x3727c5ac, {v(vST+4)}")
        a(f"v_rsq_f32 {v(vRN)}, {v(vST+4)}")
        a(f"v_xor_b32 {v(vP2R+1)}, 64, {v(vP2R)}")
        a(f"v_mul_f32_e64 {v(vRN+1)}, -{v(vST)}, {v(vRN)}")
        a(f"v_accvgpr_read_b32 {v(vP2R+2)}, a2")
        for st in range(28):
            if st % 4 == 0 and self.dma_ready(): self.dma_one()
            if st == 20:
                for k in range(D): self.read_frag(k)
            for d in range(4):
                r = U + 8 * st + 2 * d
                a(f"v_pk_fma_f32 {v(r,2)}, {v(r,2)}, {v(vRN,2)}, {v(vRN,2)} op_sel:[0,0,1] op_sel_hi:[1,0,1]")
        for g in self.cvt_ops(0) + self.cvt_ops(1): g()
        self.srd(rOUT, sOUT, 1835008)
        self.stamp(4)
        a(f"s_cmp_lg_u32 {s(sROLE)}, 0\ns_cbranch_scc1 L_attn")
        assert not any(it['key'] in ('bias', 'pfw2') for it in self.dq)
        snap = (a.state(), list(self.free), dict(self.tick), dict(self.slot), self.pub, dict(self.lastread), set(self.allread),
                [(it['key'], len(it['ops']), it.get('started')) for it in self.dq], [f.get('t') for f in self.fr[:D]], self.pending)
        self.ffn_role()
        a("s_branch L_p2")
        a("L_attn:")
        a.set_state(snap[0]); self.q_reset(); self.mv_reset()
        for key, n, started in snap[7]:
            self.q_p(*key[1:])
            it = self.dq[-1]
            while len(it['ops']) > n: it['ops'].popleft()
            it['started'] = started
        self.free, self.tick, self.slot, self.pub, self.lastread, self.allread = snap[1:7]
        self.pending = snap[9]
        self.fr = self.frag_list('a')
        for k in range(D): self.fr[k]['t'] = snap[8][k]
        self.attn_role()
        a("L_p2:")
        self.phase2()
        a("L_end:\ns_endpgm")

    def p2_setup_ops(self):
        a = self.a; ops = []
        A = lambda t: ops.extend([(lambda l=l: a(l)) for l in t.split("\n")])
        A(f"s_lshr_b32 s60, {s(sWV)}, 1\ns_lshl_b32 s75, {s(sRB2)}, 1\ns_add_u32 s60, s60, s75")
        A(f"s_and_b32 s75, {s(sWV)}, 1\ns_lshl_b32 s75, s75, 6\ns_lshl_b32 {s(sXB)}, {s(sCS)}, 7\ns_add_u32 s75, s75, {s(sXB)}")
        A(f"s_mul_i32 {s(sXB)}, s60, {32*896}\ns_add_u32 {s(sXB)}, {s(sXB)}, s75")
        A(f"v_and_b32 v6, 31, {v(vL)}\nv_lshrrev_b32 v7, 5, {v(vL)}\nv_mul_u32_u24 {v(vOA)}, 896, v6\nv_lshl_add_u32 {v(vOA)}, v7, 4, {v(vOA)}")
        A(f"v_lshlrev_b32 v6, 1, v6")
        return ops
    def res_loads(self, XR, BB):
        a = self.a
        a.vm(f"buffer_load_dwordx4 {v(XR,4)}, {v(vOA)}, {s(rX,4)}, {s(sXB)} offen")
        a.vm(f"buffer_load_dwordx4 {v(XR+4,4)}, {v(vOA)}, {s(rX,4)}, {s(sXB)} offen offset:32")
        self.tres = a.vm(f"buffer_load_ushort {v(BB)}, v6, {s(rB2,4)}, s75 offen")
    def res_init(self):
        a = self.a
        ACC, XR, ID, BB, SEL = 32, 96, 104, 112, 116
        a(f"v_and_b32 v8, 31, {v(vL)}\nv_lshlrev_b32 v10, 3, v7\nv_sub_u32 v8, v8, v10")
        a(f"v_mov_b32 v11, 0x3f80\nv_mov_b32 v12, 0x3f800000")
        for m in range(2):
            for d in range(0, 4, 2):
                a(f"v_cmp_eq_u32 vcc, {16*m+2*d}, v8\nv_cmp_eq_u32 {s(sMA,2)}, {16*m+2*d+1}, v8")
                a(f"v_cmp_eq_u32 {s(sMB,2)}, {16*m+2*d+2}, v8\nv_cmp_eq_u32 s[96:97], {16*m+2*d+3}, v8")
                a(f"v_cndmask_b32 {v(ID+4*m+d)}, 0, v11, vcc\nv_cndmask_b32 {v(ID+4*m+d)}, {v(ID+4*m+d)}, v12, {s(sMA,2)}")
                a(f"v_cndmask_b32 {v(ID+4*m+d+1)}, 0, v11, {s(sMB,2)}\nv_cndmask_b32 {v(ID+4*m+d+1)}, {v(ID+4*m+d+1)}, v12, s[96:97]")
        a(f"v_cndmask_b32 {v(SEL)}, v11, 0, {s(sHI,2)}")
        for k in range(1, 4): a(f"v_mov_b32 {v(SEL+k)}, 0\nv_mov_b32 {v(BB+k)}, 0")
        a(f"s_xor_b32 {s(sT2)}, s60, 1\ns_mul_i32 {s(sT1)}, {s(sWV)}, {28*1024}")
        a(f"s_mul_i32 {s(sT0)}, s60, {112*1024}\ns_add_u32 {s(sT0)}, {s(sT0)}, {s(sT1)}\nv_add_u32 v22, {s(sT0)}, {v(vL16)}")
        a(f"s_mul_i32 {s(sT0)}, {s(sT2)}, {112*1024}\ns_add_u32 {s(sT0)}, {s(sT0)}, {s(sT1)}\nv_add_u32 v23, {s(sT0)}, {v(vL16)}")
        for b in range(1, 4): a(f"v_add_u32 v{22+2*b}, {7168*b}, v22\nv_add_u32 v{23+2*b}, {7168*b}, v23")
        a(f"s_lshl_b32 {s(sT0)}, s60, 15\nv_add_u32 v12, {s(sT0)}, {v(vL16)}\nv_lshl_add_u32 v2, {v(vL)}, 3, {s(sT0)}")
        a(f"s_lshl_b32 {s(sT0)}, {s(sT2)}, 15\nv_add_u32 v13, {s(sT0)}, {v(vL16)}\nv_lshl_add_u32 v3, {v(vL)}, 3, {s(sT0)}")
        a.wait(vm=self.tres)
        a(f"v_mfma_f32_32x32x16_bf16 {v(ACC,16)}, {v(BB,4)}, {v(SEL,4)}, 0")
        for m in range(2): a(f"v_mfma_f32_32x32x16_bf16 {v(ACC,16)}, {v(ID+4*m,4)}, {v(XR+4*m,4)}, {v(ACC,16)}")
    def flag_ops(self, base, vd, va):
        a = self.a; ops = []
        A = lambda t: ops.extend([(lambda l=l: a(l)) for l in t.split("\n")])
        A(f"s_lshr_b32 {s(sT0)}, {s(sHST)}, 1\ns_lshl_b32 {s(sT0)}, {s(sT0)}, 2\ns_lshr_b32 {s(sCNT)}, {s(sJ)}, 1\ns_add_u32 {s(sT0)}, {s(sT0)}, {s(sCNT)}")
        A(f"s_lshl_b32 {s(sT0)}, {s(sT0)}, 5\ns_and_b32 {s(sCNT)}, {s(sHST)}, 1\ns_lshl_b32 {s(sCNT)}, {s(sCNT)}, 1\ns_add_u32 {s(sT0)}, {s(sT0)}, {s(sCNT)}")
        A(f"s_and_b32 {s(sCNT)}, {s(sJ)}, 1\ns_add_u32 {s(sT0)}, {s(sT0)}, {s(sCNT)}\ns_lshl_b32 {s(sT0)}, {s(sT0)}, 2\ns_add_u32 {s(sT0)}, {s(sT0)}, {base}")
        A(f"v_mov_b32 {v(vd)}, 1\nv_mov_b32 {v(va)}, {s(sT0)}")
        return ops
    def junction(self):
        a = self.a
        a.wait_all(lg=True)
        self.flush_stamp()
        assert not self.dq and self.mv_next == 35
        self.jout = max(getattr(self, 'jout', 0), a.vm_issued - a.vm_done)

    def ffn_role(self):
        a = self.a
        for h in range(4): self.q_s(h)
        for t in W2_ORDER: self.q_w(t)
        fl = deque()
        A = lambda t: fl.extend([(lambda l=l: a(l)) for l in t.split("\n")])
        a(f"v_lshrrev_b32 v8, 2, {v(vL)}\nv_and_b32 v9, 3, {v(vL)}\nv_lshlrev_b32 v9, 4, v9\nv_mul_u32_u24 v8, 3584, v8\nv_add_u32 {v(vSD)}, v8, v9")
        A(f"s_mul_i32 {s(sT1)}, {s(sHST)}, 112\ns_mul_i32 {s(sT0)}, {s(sJ)}, 14\ns_add_u32 {s(sT1)}, {s(sT1)}, {s(sT0)}")
        fl.append(lambda: a(f"s_and_b32 {s(sT0)}, {s(sJ)}, 1\ns_cselect_b32 {s(sT0)}, 2, 0\ns_cselect_b32 {s(sT2)}, 0, 12") or 3)
        A(f"s_add_u32 {s(sT2)}, {s(sT2)}, {s(sT1)}\ns_add_u32 {s(sT1)}, {s(sT1)}, {s(sT0)}")
        A(f"s_lshl_b32 {s(sT1)}, {s(sT1)}, 10\ns_lshl_b32 {s(sT2)}, {s(sT2)}, 10")
        fl.extend(self.flag_ops(WS_FH, 8, 9))
        fl.extend(self.p2_setup_ops())
        a.wait(vm=self.tb)
        def bias(acc, tiles): return [f"v_mfma_f32_32x32x16_bf16 {acc(T)}, {ag(aBIAS+2*k,4)}, {ag(aSEL,4)}, 0" for T, k in enumerate(tiles)]
        def epi(src, agpr, T, soff, off):
            ops = []; h = VT + 8 * T; tmp = VT + 16
            for d in range(8):
                if agpr:
                    t0 = tmp + 2 * (d & 3)
                    ops.append(lambda d=d, t0=t0: a(f"v_accvgpr_read_b32 {v(t0)}, {ag(src+2*d)}"))
                    ops.append(lambda d=d, t0=t0: a(f"v_accvgpr_read_b32 {v(t0+1)}, {ag(src+2*d+1)}"))
                else: t0 = src + 2 * d
                ops.append(lambda t0=t0: a(f"v_mul_f32_e64 {v(t0)}, {v(t0)}, |{v(t0)}|"))
                ops.append(lambda t0=t0: a(f"v_mul_f32_e64 {v(t0+1)}, {v(t0+1)}, |{v(t0+1)}|"))
                ops.append(lambda d=d, t0=t0: a(f"v_cvt_pk_bf16_f32 {v(h+d)}, {v(t0)}, {v(t0+1)}"))
                ops.append(lambda d=d: a(f"v_pk_max_i16 {v(h+d)}, {v(h+d)}, 0"))
                if d % 4 == 3:
                    def st(d=d):
                        self.last_store = a.vm(f"buffer_store_dwordx4 {v(h+d-3,4)}, {v(vL16)}, {s(rWS,4)}, {s(soff)} offen offset:{off+(d//4)*1024} sc1")
                    ops.append(st)
            return ops
        accs = [lambda T: ag(aACC + 16 * T, 16), lambda T: v(VA + 16 * T, 16), lambda T: v(VB + 16 * T, 16), lambda T: v(VA, 16)]
        self.run_stage(0, accs[0], False, fl, pre=bias(accs[0], [0, 1]), forced=self.cvt_forced, moves=False, minfill=1)
        assert not fl
        self.stamp(5)
        nop = lambda: 4
        fl.append(self.go_load)
        A(f"v_mov_b32 {v(VT+40)}, {v(vP2R+2)}")
        for r in range(1, 4): A(f"v_add_u32 {v(VT+40+r)}, {REG*r}, {v(vP2R+2)}")
        fl.extend([nop, nop])
        fl.extend(epi(aACC, True, 0, sT1, 0)); fl.extend(epi(aACC + 16, True, 1, sT1, 2048))
        self.run_stage(1, accs[1], False, fl, pre=bias(accs[1], [2, 3]), minfill=2)
        assert not fl
        self.mv_limit = 25
        self.stamp(6)
        fl.extend([lambda: a(f"s_add_u32 {s(sT1)}, {s(sT1)}, 4096"), self.go_check, nop, nop, nop])
        fl.extend(epi(VA, False, 0, sT1, 0)); fl.extend(epi(VA + 16, False, 1, sT1, 2048))
        self.run_stage(2, accs[2], False, fl, pre=bias(accs[2], [4, 5]), minfill=2)
        assert not fl
        self.stamp(7)
        fl.extend([lambda: a(f"s_add_u32 {s(sT1)}, {s(sT1)}, 4096"), nop, nop, nop])
        fl.extend(epi(VB, False, 0, sT1, 0)); fl.extend(epi(VB + 16, False, 1, sT1, 2048))
        self.run_stage(3, accs[3], False, fl, pre=bias(accs[3], [6]), moves=False, minfill=3)
        assert not fl
        self.stamp(8)
        a("s_barrier"); self.release()
        self.mv_limit = 35
        for k in range(3):
            if self.mv_ready(self.o['LAG']): self.mv_one()
        for g in epi(VA, False, 0, sT2, 0): g()
        ls = self.last_store
        print("ffn: at end of phase 1: w2 issued", len(self.w2_issued), "moved", self.mv_next)
        self.res_loads(96, 112)
        n0 = len(self.w2_issued)
        self.mv_release()
        for k in range(self.o.get('PREFLAG', 4)):
            if self.dma_ready(): self.dma_one()
        while self.mv_next < n0: self.mv_one()
        a.wait(vm=ls)
        a.vm(f"buffer_store_dword v8, v9, {s(rWS,4)}, 0 offen sc1")
        self.stamp(9)
        self.res_init()
        self.w2_finish()
        self.junction()

    def phi_ops(self, src, agpr, dst, tmp):
        a = self.a; ops = []
        for d in range(8):
            t0 = tmp + 4 * (d & 1)
            for k in range(2):
                if agpr:
                    x = t0 + 2 + k
                    ops.append(lambda x=x, r=src+2*d+k: a(f"v_accvgpr_read_b32 {v(x)}, {ag(r)}"))
                else: x = src + 2 * d + k
                ops.append(lambda x=x, e=t0+k: a(f"v_mul_f32 {v(e)}, 0x3fb8aa3b, {v(x)}"))
                def ex(e=t0+k):
                    a(f"v_exp_f32_e64 {v(e)}, {v(e)} clamp"); return 2
                ops.append(ex)
                ops.append(lambda x=x: a(f"v_max_f32 {v(x)}, 0x358637bd, {v(x)}"))
                ops.append(lambda x=x, e=t0+k: a(f"v_add_f32 {v(e)}, {v(e)}, {v(x)}"))
            ops.append(lambda d=d, t0=t0: a(f"v_cvt_pk_bf16_f32 {v(dst+d)}, {v(t0)}, {v(t0+1)}"))
        return ops

    def attn_role(self):
        a = self.a
        self.pubs = [1, 3, 6, 9, 13, 16, 20]
        assert [self.slot['p', p, e] for p in (0, 1) for e in (0, 1)] == [14, 15, 16, 17]
        self.hold = {14, 15, 16, 17}; self.held = set()
        XB = 14 * 2048
        for t in W2_ORDER: self.q_w(t)
        PK, PV, TMP = VT, VT + 16, VT + 32
        accs = [lambda T: ag(aACC + 16 * T, 16), lambda T: v(VA + 16 * T, 16), lambda T: v(VB + 16 * T, 16)]
        fl = deque()
        A = lambda t: fl.extend([(lambda l=l: a(l)) for l in t.split("\n")])
        A(f"s_lshl_b32 {s(sT0)}, {s(sWV)}, 11\ns_add_u32 {s(sT0)}, {s(sT0)}, {XB}\nv_add_u32 v8, {s(sT0)}, {v(vL16)}\nv_add_u32 v9, {2*REG}, v8")
        A(f"v_add_u32 v10, {s(sRB)}, {v(vL16)}")
        A(f"s_lshl_b32 {s(sT1)}, {s(sJ)}, 2\ns_add_u32 {s(sT1)}, {s(sT1)}, {s(sWV)}")
        A(f"s_lshl_b32 {s(sT2)}, {s(sT1)}, 4\ns_add_u32 {s(sT2)}, {s(sT2)}, {s(sI)}\ns_lshl_b32 {s(sT2)}, {s(sT2)}, 10\ns_add_u32 {s(sT2)}, {s(sT2)}, {WS_KV}")
        A(f"s_lshl_b32 {s(sT0)}, {s(sT1)}, 7\ns_add_u32 {s(sT0)}, {s(sT0)}, {WS_FK}")
        fl.append(lambda: a(f"s_add_u32 {s(sFA)}, {s(sWS)}, {s(sT0)}\ns_addc_u32 {s(sFA+1)}, {s(sWS+1)}, 0") or 2)
        A(f"s_lshl_b32 {s(sCNT)}, {s(sI)}, 2\ns_add_u32 {s(sT0)}, {s(sT0)}, {s(sCNT)}\nv_mov_b32 v11, 1\nv_mov_b32 v12, {s(sT0)}")
        fl.extend(self.p2_setup_ops())
        self.run_stage(0, accs[0], True, fl, forced=self.cvt_forced, moves=False, minfill=1)
        assert not fl
        self.stamp(5)
        nop = lambda: 4
        fl.extend([self.go_load, nop, nop])
        fl.extend(self.phi_ops(aACC, True, PK, TMP)); fl.extend(self.phi_ops(aACC + 16, True, PK + 8, TMP))
        self.run_stage(1, accs[1], True, fl, budget=5, moves=False, minfill=4)
        assert not fl
        self.mv_limit = 25
        self.stamp(6)
        assert self.held == self.hold
        big = lambda: 99
        fl.append(self.go_check)
        A(f"v_mov_b32 {v(TMP)}, 0x3f803f80")
        fl.extend([big, big])
        for T in range(2):
            for d in range(8):
                A(f"v_cvt_pk_bf16_f32 {v(PV+8*T+d)}, {v(VA+16*T+2*d)}, {v(VA+16*T+2*d+1)}")
                A(f"v_cndmask_b32 {v(PV+8*T+d)}, {v(PV+8*T+d)}, {v(TMP)}, {s(sMA if T == 0 else sMB,2)}")
        def kvm(T, k):
            def f():
                c = "0" if k == 0 else v(VA + 16 * T, 16)
                a(f"v_mfma_f32_32x32x16_bf16 {v(VA+16*T,16)}, {v(PK+8*T+4*k,4)}, {v(PV+8*T+4*k,4)}, {c}"); return 2
            return f
        fl.append(big)
        for T in range(2):
            for k in range(2): fl.append(kvm(T, k))
        fl.extend([big, big, big])
        st = {}
        for f in range(4):
            for h in range(2):
                def w(f=f, h=h):
                    st['w'] = a.ds(f"ds_write_b128 {'v8' if f < 2 else 'v9'}, {v(VA+8*f+4*h,4)} offset:{(f&1)*REG + h*1024}"); return 4
                fl.append(w)
        fl.append(big)
        def bar():
            a.wait(lg=st['w']); a("s_barrier"); self.release(); return 2
        fl.append(bar)
        for sw in range(4):
            for h in range(2):
                def r(sw=sw, h=h):
                    st[sw, h] = a.ds(f"ds_read_b128 {v(VA+8*sw+4*h,4)}, v10 offset:{XB + sw*2048 + h*1024}"); return 2
                fl.append(r)
        fl.extend([big, big])
        fl.append(lambda: a.wait(lg=st[3, 1]) and 1)
        for k in range(8):
            A(f"v_add_f32 {v(VA+k)}, {v(VA+k)}, {v(VA+8+k)}\nv_add_f32 {v(VA+16+k)}, {v(VA+16+k)}, {v(VA+24+k)}")
        for d in range(4):
            A(f"v_add_f32 {v(VA+2*d)}, {v(VA+2*d)}, {v(VA+16+2*d)}\nv_add_f32 {v(VA+2*d+1)}, {v(VA+2*d+1)}, {v(VA+16+2*d+1)}")
            A(f"v_cvt_pk_bf16_f32 {v(TMP+4+d)}, {v(VA+2*d)}, {v(VA+2*d+1)}")
        def stp():
            st['s'] = a.vm(f"buffer_store_dwordx4 {v(TMP+4,4)}, {v(vL16)}, {s(rWS,4)}, {s(sT2)} offen sc1")
            self.free += [15, 16, 17]
            self.stamp(13)
        fl.append(stp)
        fl.extend([big] * self.o.get('KVLAG', 18))
        def flg():
            a.wait(vm=st['s'])
            a.vm(f"buffer_store_dword v11, v12, {s(rWS,4)}, 0 offen sc1"); return 2
        fl.append(flg)
        self.run_stage(2, accs[2], False, fl, budget=8)
        print("attn: fillers left after stage 2:", len(fl))
        while fl: fl.popleft()()
        self.stamp(7)
        a("s_barrier"); self.release()
        self.mv_limit = 32
        print("attn: at end of phase 1: w2 issued", len(self.w2_issued), "moved", self.mv_next)
        PQ = PK
        self.res_loads(96, 112)
        ops = self.phi_ops(VB, False, PQ, TMP) + self.phi_ops(VB + 16, False, PQ + 8, TMP)
        for k, g in enumerate(ops):
            if k % 14 == 0:
                self.mv_release()
                if self.mv_ready(self.o['LAG']): self.mv_one(); self.mv_one() if self.mv_half else None
                if self.dma_ready(): self.dma_one()
            g()
        for d in (6, 7): a(f"v_cndmask_b32 {v(PQ+d)}, {v(PQ+d)}, 0, {s(sHI,2)}")
        for d in (8, 9): a(f"v_cndmask_b32 {v(PQ+d)}, 0, {v(PQ+d)}, {s(sHI,2)}")
        if self.dq and self.dq[0].get('started'): self.dma_one()
        a(f"s_lshl_b32 {s(sT1)}, {s(sT1)}, 14\ns_add_u32 {s(sT1)}, {s(sT1)}, {WS_KV}")
        a(f"s_and_b32 {s(sT0)}, {s(sI)}, 3\ns_lshl_b32 {s(sT0)}, {s(sT0)}, 12")
        self.stamp(8)
        self.poll(16)
        self.stamp(9)
        G = 120
        gt = []
        for i in range(16):
            if i % 4 == 0:
                if i: a(f"s_add_u32 {s(sT0)}, {s(sT0)}, 4096\ns_and_b32 {s(sT0)}, {s(sT0)}, 0x3fff")
                a(f"s_add_u32 {s(sT2)}, {s(sT1)}, {s(sT0)}")
            r = (G + 4 * i) if i < 6 else (32 + 4 * (i - 6))
            gt.append((r, a.vm(f"buffer_load_dwordx4 {v(r,4)}, {v(vL16)}, {s(rWS,4)}, {s(sT2)} offen offset:{(i%4)*1024} sc1")))
        S = VA
        for i in range(16):
            r, t = gt[i]
            a.wait(vm=t)
            for d in range(4):
                t0 = S + 2 * d if i == 0 else TMP + 2 * d
                a(f"v_lshlrev_b32 {v(t0)}, 16, {v(r+d)}\nv_and_b32 {v(t0+1)}, 0xffff0000, {v(r+d)}")
            if i:
                for d in range(4): a(f"v_pk_add_f32 {v(S+2*d,2)}, {v(S+2*d,2)}, {v(TMP+2*d,2)}")
            if i >= 8:
                self.mv_release()
                if self.dma_ready(): self.dma_one()
        for d in range(4): a(f"v_cvt_pk_bf16_f32 {v(TMP+d)}, {v(S+2*d)}, {v(S+2*d+1)}")
        t = a.ds(f"ds_write_b128 v10, {v(TMP,4)} offset:{XB}")
        a(f"v_add_u32 v8, {XB}, {v(vL16)}\nv_add_u32 v9, {XB+2*REG}, {v(vL16)}")
        a(f"s_lshl_b32 {s(sT2)}, {s(sHST)}, 3\ns_add_u32 {s(sT2)}, {s(sT2)}, {s(sJ)}\ns_lshl_b32 {s(sT2)}, {s(sT2)}, 12\ns_add_u32 {s(sT2)}, {s(sT2)}, {WS_O}")
        a.wait(lg=t); a("s_barrier")
        KVA = PV
        for f in range(4): t = a.ds(f"ds_read_b128 {v(KVA+4*f,4)}, {'v8' if f < 2 else 'v9'} offset:{(f&1)*REG}")
        for g in self.flag_ops(WS_FO, 11, 31): g()
        a.wait(lg=t)
        for k in range(2):
            for T in range(2):
                c = "0" if k == 0 else v(VA + 16 * T, 16)
                a(f"v_mfma_f32_32x32x16_bf16 {v(VA+16*T,16)}, {v(KVA+8*T+4*k,4)}, {v(PQ+8*T+4*k,4)}, {c}")
        a(f"v_lshlrev_b32 v10, 3, {v(vL)}")
        for k in range(4):
            if self.mv_ready(0): self.mv_one()
        NA, NB = VA, VA + 16
        a(f"v_mov_b32 {v(TMP)}, {v(NA+12)}\nv_mov_b32 {v(TMP+1)}, {v(NB)}")
        a(f"v_permlane32_swap_b32 {v(TMP)}, {v(TMP+1)}")
        a(f"v_cndmask_b32 {v(TMP+2)}, {v(TMP+1)}, {v(NA+12)}, {s(sHI,2)}")
        a(f"v_cndmask_b32 {v(TMP+3)}, {v(NB)}, {v(TMP)}, {s(sHI,2)}")
        a(f"v_add_f32 {v(TMP+2)}, 0x358637bd, {v(TMP+2)}\nv_add_f32 {v(TMP+3)}, 0x358637bd, {v(TMP+3)}")
        a(f"v_rcp_f32 {v(TMP+2)}, {v(TMP+2)}\nv_rcp_f32 {v(TMP+3)}, {v(TMP+3)}")
        O = VB
        for T in range(2):
            for d in range(8):
                r = VA + 16 * T + 2 * d
                a(f"v_mul_f32 {v(r)}, {v(r)}, {v(TMP+2+T)}\nv_mul_f32 {v(r+1)}, {v(r+1)}, {v(TMP+2+T)}")
                dst = O + d if T == 0 else (TMP + 4 + d if d < 2 else O + 6 + d)
                a(f"v_cvt_pk_bf16_f32 {v(dst)}, {v(r)}, {v(r+1)}")
                if T == 0 and d == 3: a.vm(f"buffer_store_dwordx4 {v(O,4)}, {v(vL16)}, {s(rWS,4)}, {s(sT2)} offen sc1")
                if T == 1 and d == 1:
                    a(f"v_cndmask_b32 {v(O+6)}, {v(O+6)}, {v(TMP+4)}, {s(sHI,2)}\nv_cndmask_b32 {v(O+7)}, {v(O+7)}, {v(TMP+5)}, {s(sHI,2)}")
                    a.vm(f"buffer_store_dwordx4 {v(O+4,4)}, {v(vL16)}, {s(rWS,4)}, {s(sT2)} offen offset:1024 sc1")
                if T == 1 and d == 5: a.vm(f"buffer_store_dwordx4 {v(O+8,4)}, {v(vL16)}, {s(rWS,4)}, {s(sT2)} offen offset:2048 sc1")
        ls = a.vm(f"buffer_store_dwordx2 {v(O+12,2)}, v10, {s(rWS,4)}, {s(sT2)} offen offset:3072 sc1")
        a(f"v_mov_b32 v1, v11")
        self.mv_limit = 35
        print("attn: at o store: w2 issued", len(self.w2_issued), "moved", self.mv_next)
        self.mv_release()
        k = 0
        while self.dma_ready() and k < 6: self.dma_one(); k += 1
        self.res_init()
        a.wait(vm=ls)
        a.vm(f"buffer_store_dword v1, v31, {s(rWS,4)}, 0 offen sc1")
        self.stamp(10)
        self.w2_finish()
        self.junction()

    def phase2(self):
        a = self.a; o = self.o
        a.vm_issued = 1000; a.vm_done = 1000 - self.jout
        a(f"s_cmp_ge_u32 {s(sCS)}, 7\ns_cbranch_scc1 L_fin")
        ACC, HR, NH = 32, 96, 32
        a(f"s_lshl_b32 {s(sT1)}, {s(sWV)}, 13\ns_add_u32 {s(sT1)}, {s(sT1)}, {WS_O}\ns_add_u32 {s(sT2)}, {s(sT1)}, 4096")
        a(f"s_lshl_b32 {s(sT0)}, {s(sRB2)}, 2\ns_add_u32 {s(sT0)}, {s(sT0)}, {s(sWV)}\ns_lshl_b32 {s(sT0)}, {s(sT0)}, 7\ns_add_u32 {s(sT0)}, {s(sT0)}, {WS_FH}")
        a(f"s_add_u32 {s(sFA)}, {s(sWS)}, {s(sT0)}\ns_addc_u32 {s(sFA+1)}, {s(sWS+1)}, 0")
        for q in (3, 2, 1):
            a(f"s_xor_b32 {s(sT0)}, {s(sWV)}, {q}\ns_mul_i32 {s(sT0)}, {s(sT0)}, {REG}\nv_add_u32 v{8+q}, {s(sT0)}, {v(vL16)}")
        a(f"v_add_u32 v8, {s(sRB)}, {v(vL16)}")
        self.stamp(11)
        self.poll(4)
        self.stamp(12)
        if o['HLEAD'] == 1:
            order = [0, 7, 1, 2, 14, 3, 4, 5, 6, 21] + [t for t in range(7, 28) if t % 7] + list(range(28, 35))
        elif o['HLEAD'] == 2:
            order = [0, 7, 14, 21] + [t for t in range(28) if t % 7] + list(range(28, 35))
        else: order = list(range(35))
        assert sorted(order) == list(range(35))
        ht = {}
        def hload(k, b):
            t = order[k]
            if t == 28 and b == 0: self.poll(4, WS_FO - WS_FH); self.stamp(13)
            r = HR + 4 * ((2 * k + b) % NH)
            if t < 28:
                ht[k] = a.vm(f"buffer_load_dwordx4 {v(r,4)}, v{22+2*(t//7)+b}, {s(rWS,4)}, {s(sK2H[t%7])} offen sc1")
            elif t < 34:
                so = sT1 if t < 31 else sT2
                ht[k] = a.vm(f"buffer_load_dwordx4 {v(r,4)}, v{12+b}, {s(rWS,4)}, {s(so)} offen offset:{((t-28)%3)*1024} sc1")
            else:
                a.vm(f"buffer_load_dwordx2 {v(r,2)}, v{2+b}, {s(rWS,4)}, {s(sT1)} offen offset:3072 sc1")
                ht[k] = a.vm(f"buffer_load_dwordx2 {v(r+2,2)}, v{2+b}, {s(rWS,4)}, {s(sT2)} offen offset:3072 sc1")
        PD = o['PD']
        for k in range(PD): hload(k, 0); hload(k, 1)
        for k in range(35):
            t = order[k]
            a.wait(vm=ht[k])
            for q in (3, 2, 1, 0):
                ct, tt = q & 1, q >> 1
                c = v(ACC + 16 * q, 16) if (k or q == 0) else "0"
                a(f"v_mfma_f32_32x32x16_bf16 {v(ACC+16*q,16)}, {w2_reg(t,4*ct,4)}, {v(HR+4*((2*k+tt)%NH),4)}, {c}")
                if k + PD < 35 and q in (3, 1): hload(k + PD, 0 if q == 3 else 1)
            if k == 12: a("s_barrier")
        self.stamp(14)
        for q in (3, 2, 1):
            for h in range(4): t = a.ds(f"ds_write_b128 v{8+q}, {v(ACC+16*q+4*h,4)} offset:{(q-1)*4096 + h*1024}")
        a.wait(lg=t); a("s_barrier")
        rt = {}
        for h in range(4):
            for q in (1, 2, 3): rt[h] = a.ds(f"ds_read_b128 {v(ACC+16*q+4*h,4)}, v8 offset:{(q-1)*4096 + h*1024}")
        P = 96
        for h in range(4):
            a.wait(lg=rt[h])
            for k in (0, 2):
                r = ACC + 4 * h + k
                a(f"v_pk_add_f32 {v(r,2)}, {v(r,2)}, {v(r+16,2)}\nv_pk_add_f32 {v(r+32,2)}, {v(r+32,2)}, {v(r+48,2)}")
            for k in (0, 2):
                r = ACC + 4 * h + k
                a(f"v_pk_add_f32 {v(r,2)}, {v(r,2)}, {v(r+32,2)}")
            for k in (0, 2):
                r = ACC + 4 * h + k
                a(f"v_cvt_pk_bf16_f32 {v(P+2*h+k//2)}, {v(r)}, {v(r+1)}")
            if h & 1:
                m = h // 2
                a(f"v_permlane32_swap_b32 {v(P+4*m)}, {v(P+4*m+2)}\nv_permlane32_swap_b32 {v(P+4*m+1)}, {v(P+4*m+3)}")
                a.vm(f"buffer_store_dwordx4 {v(P+4*m,4)}, {v(vOA)}, {s(rOUT,4)}, {s(sXB)} offen offset:{32*m}")
        self.flush_stamp()
        a("L_fin:")
        if self.probe is not None:
            a.wait_all(vm=True); self.stamp(15); a.wait_all(lg=True)
            a("s_sub_u32 s1, s100, s0\ns_lshl_b32 s1, s1, 2\ns_add_u32 s1, s1, 4000")
            a("L_spin:\ns_memrealtime s[100:101]"); a.wait_all(lg=True)
            a("s_sub_u32 s100, s100, s0\ns_cmp_lt_u32 s100, s1\ns_cbranch_scc1 L_spin")
        if self.stamps:
            a.wait_all(vm=True)
            self.stamp(15); self.flush_stamp()
            a("s_memrealtime s[100:101]"); a.wait_all(lg=True); a("v_writelane_b32 v5, s100, 16")
            a(f"s_getreg_b32 s100, hwreg(HW_REG_XCC_ID)\nv_writelane_b32 v5, s100, 17")
            a(f"s_lshl_b32 {s(sT0)}, s2, 2\ns_add_u32 {s(sT0)}, {s(sT0)}, {s(sWV)}\ns_lshl_b32 {s(sT0)}, {s(sT0)}, 8\ns_add_u32 {s(sT0)}, {s(sT0)}, {WS_ST}")
            a(f"v_lshlrev_b32 v6, 2, {v(vL)}")
            a.vm(f"buffer_store_dword v5, v6, {s(rWS,4)}, {s(sT0)} offen")

    def text(self):
        hdr = open(f"cdna_kernels/{NAME}.s.ref").read().split("\n")
        top = [l for l in hdr if l.startswith(";") and "@launch" not in l and "Override" not in l and "grid=ceil" not in l]
        out = "\n".join(top) + "\n; @launch grid=(256,1,1) block=(256,1,1) lds=163840\n"
        out += f'.amdgcn_target "amdgcn-amd-amdhsa--gfx950"\n.text\n.globl {NAME}_kernel\n.p2align 8\n.type {NAME}_kernel,@function\n'
        out += self.a.text()
        out += f'''.section .rodata,"a"
.p2align 6
.amdhsa_kernel {NAME}_kernel
  .amdhsa_next_free_vgpr 512
  .amdhsa_next_free_sgpr 102
  .amdhsa_accum_offset 256
  .amdhsa_group_segment_fixed_size 0
  .amdhsa_kernarg_size 88
  .amdhsa_user_sgpr_count 2
  .amdhsa_user_sgpr_kernarg_segment_ptr 1
  .amdhsa_system_sgpr_workgroup_id_x 1
  .amdhsa_float_denorm_mode_32 3
.end_amdhsa_kernel
'''
        return out

if __name__ == "__main__":
    out = sys.argv[1]; stamps = False; probe = None; opt = {}
    for x in sys.argv[2:]:
        if x == "stamps": stamps = True
        elif x.startswith("probe="): probe = int(x[6:])
        else: k, val = x.split("="); opt[k] = int(val)
    g = Gen(stamps, probe, opt); g.build(); open(out, "w").write(g.text())
    print("instructions", sum(1 for i in g.a.L if i.kind != 'meta'), "nops", g.a.nops)
```

```python
import re

def regs_of(tok):
    tok = tok.strip()
    neg = tok.lstrip('-').strip('|')
    m = re.fullmatch(r'([vas])(\d+)', neg)
    if m: return [(m.group(1), int(m.group(2)))]
    m = re.fullmatch(r'([vas])\[(\d+):(\d+)\]', neg)
    if m: return [(m.group(1), i) for i in range(int(m.group(2)), int(m.group(3)) + 1)]
    if neg in ('vcc', 'vcc_lo', 'vcc_hi'): return [('s', 'vcc')]
    if neg == 'exec': return [('s', 'exec')]
    if neg == 'm0': return [('s', 'm0')]
    return []

TRANS = ('v_exp_f32', 'v_log_f32', 'v_rcp_f32', 'v_rsq_f32', 'v_sqrt_f32')

class Ins:
    def __init__(self, text):
        self.text = text
        t = text.split(';')[0].strip()
        self.label = t.endswith(':')
        self.op = t.split()[0] if t else ''
        rest = t[len(self.op):].strip()
        ops = [o.strip() for o in rest.split(',')] if rest else []
        if ops:
            last = ops[-1].split()
            ops[-1] = last[0] if last else ''
            self.mods = last[1:]
        else: self.mods = []
        self.ops = ops
        op = self.op
        self.kind = 'other'; self.w = []; self.r = []; self.c = []; self.ab = []
        R = lambda i: regs_of(ops[i]) if i < len(ops) else []
        if self.label or op.startswith('.') or not op: self.kind = 'meta'
        elif op.startswith('v_mfma'):
            self.kind = 'mfma'; self.w = R(0); self.ab = R(1) + R(2); self.c = R(3); self.r = self.ab + self.c
            self.passes = 8 if '32x32' in op else 4
        elif op.startswith('v_'):
            self.kind = 'valu'
            if op.startswith('v_cmp'):
                self.w = R(0); self.r = R(1) + R(2)
            elif op.startswith('v_permlane'):
                self.w = R(0) + R(1); self.r = R(0) + R(1)
            else:
                self.w = R(0); self.r = sum((R(i) for i in range(1, len(ops))), [])
                if op.startswith(('v_fmac', 'v_dot2c', 'v_writelane')) or '_dpp' in op: self.r += R(0)
                if op.startswith(('v_add_co', 'v_addc_co', 'v_sub_co')): self.w += R(1)
            self.trans = op.replace('_e64', '').replace('_e32', '') in TRANS
        elif op.startswith('ds_'):
            self.kind = 'ds'
            if op.startswith('ds_read'): self.w = R(0); self.r = R(1)
            else: self.r = sum((R(i) for i in range(len(ops))), [])
        elif op.startswith(('buffer_', 'global_')):
            self.kind = 'vmem'
            self.lds = 'lds' in self.mods or '_lds_' in op
            allr = sum((R(i) for i in range(len(ops))), [])
            if 'load' in op and not self.lds:
                self.w = R(0); self.r = sum((R(i) for i in range(1, len(ops))), [])
            else: self.r = allr
            if self.lds: self.r = self.r + [('s', 'm0')]
            self.wide = []
            if 'store_dwordx4' in op or 'store_dwordx3' in op:
                self.wide = R(0) if op.startswith('buffer') else R(1)
        elif op.startswith('s_'):
            self.kind = 'salu'
            if op.startswith(('s_waitcnt', 's_nop', 's_barrier', 's_branch', 's_cbranch', 's_endpgm', 's_sleep', 's_setprio')): pass
            elif op.startswith('s_cmp'): self.r = R(0) + R(1)
            else:
                self.w = R(0); self.r = sum((R(i) for i in range(1, len(ops))), [])
                if op.startswith(('s_addk', 's_bitset')): self.r = self.r + R(0)
    def states(self):
        if self.kind == 'meta': return 0
        if self.op == 's_nop': return int(self.ops[0]) + 1
        return 1

def need(p, c):
    n = 0
    pw = set(p.w)
    if p.kind == 'valu':
        vw = {x for x in pw if x[0] in 'va'}; sw = {x for x in pw if x[0] == 's'}
        if c.kind == 'mfma' and vw & set(c.r): n = max(n, 2)
        if c.kind == 'valu':
            if p.trans and not c.trans and vw & set(c.r): n = max(n, 1)
            if p.trans and c.trans and vw & set(c.r): n = max(n, 1)
            if c.op.startswith(('v_readfirstlane', 'v_readlane')) and vw & set(c.r): n = max(n, 1)
            if (c.op.startswith('v_permlane') or '_dpp' in c.op) and vw & set(c.r): n = max(n, 2)
            if sw & set(c.r): n = max(n, 4 if c.op.startswith(('v_readlane', 'v_writelane')) else 2)
        if c.kind == 'vmem' and sw & set(c.r): n = max(n, 5)
        if c.kind == 'salu' and sw & set(c.r): n = max(n, 1)
    if p.kind == 'mfma':
        big = {8: 12, 4: 8}[p.passes]
        if c.kind == 'mfma':
            if pw & set(c.ab): n = max(n, big)
            if pw & set(c.c) and not (c.c == p.w and c.passes == p.passes): n = max(n, big - 2)
            if pw & set(c.w) and not (c.c == p.w): n = max(n, big)
        elif c.kind in ('valu', 'ds', 'vmem'):
            if pw & (set(c.r) | set(c.w)): n = max(n, big)
        if c.kind == 'valu' and set(p.c) & set(c.w): n = max(n, {8: 7, 4: 3}[p.passes])
    if p.kind == 'salu' and ('s', 'm0') in pw and c.kind == 'vmem' and c.lds: n = max(n, 1)
    if p.kind == 'vmem' and p.wide and set(p.wide) & set(c.w): n = max(n, 2)
    return n

class Asm:
    def __init__(self):
        self.L = []
        self.vm_issued = 0; self.vm_done = 0
        self.lg_issued = 0; self.lg_done = 0
        self.nops = 0
    def raw(self, text):
        for line in text.split('\n'):
            line = line.strip()
            if line: self._one(line)
    def _one(self, line):
        c = Ins(line)
        if c.kind != 'meta':
            d = 0; pad = 0
            for p in reversed(self.L):
                if d >= 20: break
                if p.kind != 'meta':
                    pad = max(pad, need(p, c) - d)
                d += p.states()
            while pad > 0:
                k = min(pad, 16); self.L.append(Ins(f's_nop {k-1}')); pad -= k; self.nops += 1
        self.L.append(c)
        if c.kind == 'vmem': self.vm_issued += 1
        if c.kind == 'ds': self.lg_issued += 1
        return c
    def __call__(self, text): self.raw(text)
    def vm(self, line):
        self._one(line); return self.vm_issued
    def ds(self, line):
        if getattr(self, 'guard', True) and self.lg_issued - self.lg_done >= 15: self.wait(lg=self.lg_issued - 12)
        self._one(line); return self.lg_issued
    def wait(self, vm=None, lg=None):
        parts = []
        if vm is not None and vm > self.vm_done:
            n = min(63, self.vm_issued - vm)
            parts.append(f'vmcnt({n})'); self.vm_done = self.vm_issued - n
        if lg is not None and lg > self.lg_done:
            n = self.lg_issued - lg
            if n > 15: n = 15
            parts.append(f'lgkmcnt({n})'); self.lg_done = self.lg_issued - n
        if parts: self._one('s_waitcnt ' + ' '.join(parts)); return True
        return False
    def wait_all(self, vm=False, lg=False):
        parts = []
        if vm: parts.append('vmcnt(0)'); self.vm_done = self.vm_issued
        if lg: parts.append('lgkmcnt(0)'); self.lg_done = self.lg_issued
        self._one('s_waitcnt ' + ' '.join(parts))
    def state(self): return (self.vm_issued, self.vm_done, self.lg_issued, self.lg_done)
    def set_state(self, st): self.vm_issued, self.vm_done, self.lg_issued, self.lg_done = st
    def text(self):
        out = []
        for i in self.L:
            out.append(i.text if i.kind == 'meta' else '    ' + i.text)
        return '\n'.join(out) + '\n'
```

```python
import sys
from collections import deque
from asmlib import Asm

NAME = "parallel_sum__linear_attn_block__dense_activation_squared_relu__prompt"
WS_H = 0; WS_PQ = 0x900000; WS_KV = 0xB00000; WS_FL = 0xB80000; WS_FK = 0xB88000
WS_ST = 0xC00000; WS_SIZE = 0xD00000
HS = 140 * 1024
REG = 40960
INIT_WG = 248
SPIN = 40000

def v(a, n=1): return f"v{a}" if n == 1 else f"v[{a}:{a+n-1}]"
def s(a, n=1): return f"s{a}" if n == 1 else f"s[{a}:{a+n-1}]"

sX, sWQ, sWO, sW1, sB1, sW2, sB2, sOUT, sDBG, sWS = 4, 6, 8, 12, 14, 16, 18, 20, 22, 24
sWV, sRB, sSO = 3, 26, 27
rX, rWS = 28, 36
sXB = 61
sI, sM, sH, sCS, sRB2, sT0, sT1, sT2, sHST = 65, 66, 67, 68, 69, 70, 71, 72, 73
sROT, sCNT = 75, 77
sMSK = 10
sP = 84
rB1 = 32
aM = [40, 42, 44, 46, 10]
aONE, aL2E, aEPS, aKVO, aHST, aPQS, aBIA = 48, 50, 51, 52, 53, 54, 55
aFL = 58; sHI = 82; sG1 = 84
rW, rW2, rWO, rOUT, rB2, rWQ = 32, 40, 44, 48, 52, 56
sCOL, sSGL, sWOB, sW2B, sSO2, sFL = 62, 74, 76, 12, 13, 14
sKQ, sK1 = 84, 91
sHC = [None, 4, 5, 6]
sTG, sCB, sXB2 = 60, 78, 79

vL = 0; vXD = 1; vRN = 2; vXR = 14; vSR = 14; vL16 = 18; vGO = 19; vWR = 20
RINGB, RING = 28, 6
AS, VA, BI, TMP = 52, 176, 208, 220
def Uof(st): return 52 + 8 * st if st < 8 else 116 + 8 * (st - 8)
def Fof(st): return 84 + 4 * st if st < 23 else 236 + 4 * (st - 23)
def Rof(st): return Uof(st) + 4 if st < 23 else Fof(st)
bSD, bOA, bWK, bWD, bW2D, bP2R, bRD, bHB, bHO, bWA = 1, 4, 8, 10, 12, 14, 17, 20, 22, 24
ACC = 32

DEF = dict(D=4, CX=70, CK=200, CF=80, CQ=135, CW=80, CS=60, SLACK=600, TSLOT=38, TFRAG=68, XPRE=12, B0AT=16,
           PUBALL=14, PUBLAT=500, LAG=10, LAGV=10, KVLAG=22, B0=4, B1=6, B2=5, B3=5, F1AT=62, F3LAG=24, HPERM=1,
           DPRE=44, D0=0, DSPREAD=14, PLEAD=6, NLAST=3, NS=6, OUTM=0, PFA=0, PFB=0, PRIO=1, NOW2=1, L2PF=0, SPFB=0, SL1=6, SL2=20, LIM=80, LIM0=999, LK=16, LIMOFF=14, SPF=12, SPFN=0.7)

class Gen:
    def __init__(self, stamps=False, probe=None, opt=None):
        self.probe = probe; self.o = dict(DEF); self.o.update(opt or {})
        self.stamps = stamps; self.nlab = 0; self.parts = []
    def new(self):
        x = Asm(); x.guard = False; x.pending = None; x.m0 = None; x.so2 = None; return x
    def lab(self, p):
        self.nlab += 1; return f"L_{p}_{self.nlab}"
    def stamp(self, x, k):
        if self.probe == (x.tag, k): x("s_memrealtime s[100:101]")
        if not self.stamps: return
        if x.pending is not None: x(f"v_writelane_b32 v5, s100, {x.pending}\nv_writelane_b32 v5, s0, {32+x.pending}")
        x(f"s_memtime s[100:101]\ns_memrealtime s[0:1]")
        x.pending = k
    def flush_stamp(self, x):
        if self.stamps and x.pending is not None:
            x.wait_all(lg=True); x(f"v_writelane_b32 v5, s100, {x.pending}\nv_writelane_b32 v5, s0, {32+x.pending}"); x.pending = None
    def srd(self, x, r, p, size):
        x(f"s_mov_b32 {s(r)}, {s(p)}\ns_mov_b32 {s(r+1)}, {s(p+1)}\ns_mov_b32 {s(r+2)}, {size}\ns_mov_b32 {s(r+3)}, 0x20000")
    def lines(self, x, q, text): q.extend([(lambda l=l: x(l)) for l in text.split("\n")])
    def ids(self, x):
        x(f"s_and_b32 {s(sT0)}, s2, 3\ns_lshl3_add_u32 {s(sRB2)}, {s(sT0)}, {s(sT2)}\ns_and_b32 {s(sT0)}, s2, 4\ns_add_u32 {s(sRB2)}, {s(sRB2)}, {s(sT0)}")
        x(f"s_bfe_u32 {s(sT0)}, s2, 0x10002\ns_mul_i32 {s(sM)}, {s(sT0)}, 7\ns_add_u32 {s(sM)}, {s(sM)}, {s(sCS)}")
        if self.o['HPERM']: x(f"s_sub_u32 {s(sH)}, {s(sCS)}, {s(sT0)}\ns_add_u32 {s(sH)}, {s(sH)}, 3\ns_and_b32 {s(sH)}, {s(sH)}, 7")
        else: x(f"s_mov_b32 {s(sH)}, {s(sCS)}")
        x(f"s_lshl3_add_u32 {s(sH)}, {s(sT0)}, {s(sH)}")
    def rot_step(self, x):
        x(f"s_add_u32 {s(sROT)}, {s(sROT)}, 1\ns_cmp_eq_u32 {s(sROT)}, 7\ns_cselect_b32 {s(sROT)}, 0, {s(sROT)}")
    def poll_issue(self, x, n, base, off=0):
        x(f"s_load_dword{'x%d' % n if n > 1 else ''} {s(sP, n)}, {s(base, 2)}, {off} glc")
    def poll_check(self, x, n, base, off, bit):
        L = self.lab("poll"); E = self.lab("pend")
        def cond():
            regs = list(range(sP, sP + n, 2))
            while len(regs) > 1:
                r = regs.pop(); x(f"s_and_b64 {s(regs[0],2)}, {s(regs[0],2)}, {s(r,2)}")
            if n > 1: x(f"s_and_b32 {s(sP)}, {s(sP)}, {s(sP+1)}")
            x(f"s_and_b32 {s(sP)}, {s(sP)}, {bit}")
        x.wait_all(lg=True)
        cond()
        x(f"s_cbranch_scc1 {E}")
        x(f"s_mov_b32 {s(sCNT)}, 0\n{L}:")
        if self.o['SL1']: x(f"s_sleep {self.o['SL1']}")
        self.poll_issue(x, n, base, off)
        x.wait_all(lg=True)
        cond()
        x(f"s_cbranch_scc1 {E}")
        x(f"s_add_u32 {s(sCNT)}, {s(sCNT)}, 1\ns_cmp_lt_u32 {s(sCNT)}, {SPIN}\ns_cbranch_scc1 {L}")
        x(f"{E}:")
    def go_load(self):
        a = self.a
        a(f"v_and_b32 {v(vGO)}, 3, {v(vL)}\nv_lshlrev_b32 {v(vGO)}, 2, {v(vGO)}")
        self.tgo = a.vm(f"global_load_dword {v(vGO)}, {v(vGO)}, {s(sDBG,2)} sc1")
        return 3
    def go_check(self):
        a = self.a; E = self.lab("go"); L = self.lab("gol")
        a.wait(vm=self.tgo)
        a(f"v_cmp_eq_u32 vcc, 0, {v(vGO)}")
        a(f"s_cmp_eq_u64 vcc, 0\ns_cbranch_scc1 {E}")
        st = a.state()
        a(f"s_mov_b32 {s(sP)}, 0\n{L}:\ns_sleep 4")
        self.go_load(); a.wait_all(vm=True)
        a(f"v_cmp_eq_u32 vcc, 0, {v(vGO)}")
        a(f"s_cmp_eq_u64 vcc, 0\ns_cbranch_scc1 {E}")
        a(f"s_add_u32 {s(sP)}, {s(sP)}, 1\ns_cmp_lt_u32 {s(sP)}, {SPIN}\ns_cbranch_scc1 {L}")
        a.set_state(st)
        a(f"{E}:")
        return 4

    def set_m0(self, x, off):
        if x.m0 is not None and -32768 <= off - x.m0 <= 32767: x(f"s_addk_i32 m0, {off - x.m0}")
        else: x(f"s_add_u32 m0, {s(sRB)}, {off}")
        x.m0 = off
    def set_so2(self, base, off):
        b = self.b
        if b.so2 and b.so2[0] == base and -32768 <= off - b.so2[1] <= 32767: b(f"s_addk_i32 {s(sSO2)}, {off - b.so2[1]}")
        else: b(f"s_add_u32 {s(sSO2)}, {s(base)}, {off}")
        b.so2 = (base, off)
    def q_reset(self):
        self.dq = deque(); self.tick = {}; self.slot = {}; self.free = list(range(14, 20)); self.est = {}
        self.w2_issued = []; self.mv_next = 0; self.mv_sub = 0; self.mv_t = {}; self.mv_freed = set()
        self.wfree = [144 + 8 * k for k in range(14)]; self.wreg = {}; self.wkeep = False
        self.pub = -1; self.lastread = {}; self.allread = set(); self.reserve = []; self.want_reserve = 0
        self.forced = 0; self.publag = []; self.b_alive = True; self.blines = {}; self.lim = self.o['LIM']; self.b_gone = False; self.kx_done = False
    def enq(self, key):
        b = self.b; kind = key[0]
        def dma(pre, vaddr, srd, so, off, last=None):
            def f():
                if pre: pre()
                self.throttle(self.o['LK'] if key[:2] == ('p', 0) else (16 if kind == 's' else 8), self.o['LIM0'] if key[:2] == ('p', 0) else self.lim)
                self.tick[key] = b.vm(f"buffer_load_dwordx4 {v(vaddr)}, {s(srd,4)}, {s(so)} offen offset:{off} lds")
                if last: last()
            return f
        if kind == 'p':
            _, p, e = key
            kt, va, srd = (sKQ + e, bWK, rWQ) if p == 0 else (sK1 + e, bWD, rW)
            def pre(): self.set_m0(b, self.slot[key] * 2048); b(f"s_add_u32 {s(sSO)}, {s(sCOL+p)}, {s(kt)}")
            ops = [dma(pre, va, srd, sSO, 0), dma(None, va + 1, srd, sSO, 1024)]
        elif kind == 's':
            def pre(e):
                def f(): self.set_m0(b, self.slot[key] * 2048 + (e & 1) * 1024); b(f"s_add_u32 {s(sSO)}, {s(sSGL)}, {s(sKQ+e)}")
                return f
            ops = [dma(pre(e), bSD, rWQ, sSO, 0) for e in (2 * key[1], 2 * key[1] + 1) if e < 7]
        elif kind == 'w':
            t = key[1]
            def pre():
                self.set_m0(b, self.slot[key] * 2048)
                if t < 28: self.set_so2(sW2B, (t % 14) * 14336 + (t // 14) * 896 * 896)
                else: self.set_so2(sWOB, (t - 28) * 14336)
            srd = rW2 if t < 28 else rWO
            ops = [dma(pre, bW2D, srd, sSO2, 0), dma(None, bW2D + 1, srd, sSO2, 1024, lambda: self.w2_issued.append(t))]
        self.dq.append(dict(key=key, ops=deque(ops)))
    def cost(self, key):
        o = self.o
        return {'s': o['CQ'], 'w': o['CW']}.get(key[0]) or (o['CK'] if key[1] == 0 else o['CF'])
    def throttle(self, lines, lim):
        b = self.b
        tot = lines; t = b.vm_issued
        while t > b.vm_done and tot + self.blines.get(t, 8) <= lim: tot += self.blines.get(t, 8); t -= 1
        b.wait(vm=t)
        self.blines[b.vm_issued + 1] = lines
    def dma_ready(self):
        return bool(self.dq) and (self.dq[0].get('started') or len(self.free) > 0)
    def dma_one(self):
        it = self.dq[0]
        if not it.get('started'): it['started'] = True; self.slot[it['key']] = self.free.pop(0)
        self.vclk += self.cost(it['key']); self.est[it['key']] = self.vclk
        it['ops'].popleft()()
        self.pfacc = getattr(self, 'pfacc', 0) + self.o['SPFN']
        while self.pfacc >= 1: self.spf(1); self.pfacc -= 1
        if not it['ops']: self.dq.popleft()
    def issued(self, key): return key in self.tick and not any(it['key'] == key for it in self.dq)
    def mv_ready(self, lag):
        if self.mv_sub: return True
        if self.mv_next >= len(self.w2_issued) or not self.wfree: return False
        t = self.w2_issued[self.mv_next]
        return self.b.vm_issued - self.tick['w', t] >= lag or self.tick['w', t] <= self.b.vm_done
    def mv_one(self):
        b = self.b; t = self.w2_issued[self.mv_next]; c = 1
        if self.mv_sub == 0:
            self.wfree.sort(); self.wreg[t] = self.wfree.pop(0)
            c += bool(b.wait(vm=self.tick['w', t]))
        T, rd = self.mv_sub >> 1, self.mv_sub & 1
        self.mv_t[t] = b.ds(f"ds_read_b64_tr_b16 {v(self.wreg[t]+4*T+2*rd, 2)}, {v(bP2R+T)} offset:{self.slot['w', t]*2048 + rd*1024}")
        self.mv_sub += 1
        if self.mv_sub == 4: self.mv_sub = 0; self.mv_next += 1
        return c
    def mv_release(self):
        for k in range(self.mv_next):
            t = self.w2_issued[k]
            if t not in self.mv_freed and self.mv_t[t] <= self.b.lg_done:
                self.mv_freed.add(t); self.free.append(self.slot['w', t])
    def b_advance(self):
        b = self.b; o = self.o
        self.vclk = max(self.vclk, self.tprev)
        while self.dq and self.vclk <= self.clk + o['SLACK'] and not (o.get('NOW2') and self.dq[0]['key'][0] == 'w'):
            self.mv_release()
            if not self.dma_ready():
                if len(self.mv_freed) < self.mv_next:
                    b.wait(lg=self.mv_t[self.w2_issued[len(self.mv_freed)]]); continue
                if self.mv_ready(o.get('LAGMIN', 4)):
                    for k in range(4): self.mv_one()
                    continue
                break
            self.dma_one()
            if self.mv_ready(o['LAG']):
                for k in range(4): self.mv_one()
    def barrier(self, vm=None):
        if self.b_alive:
            self.b.wait(vm=vm); self.b("s_barrier")
        self.a("s_barrier"); self.tprev = self.clk
        for k, t in list(self.lastread.items()):
            if k in self.allread and t <= self.a.lg_done:
                del self.lastread[k]
                (self.reserve if len(self.reserve) < self.want_reserve else self.free).append(self.slot[k])
    def sync(self): self.publish(None)
    def publish(self, c):
        if not self.b_alive:
            assert c is None and self.b_gone
            self.barrier(); return
        self.b_advance()
        if c is not None:
            while not self.issued(self.cons[c]):
                assert self.dma_ready(), ("cannot publish", c)
                self.dma_one(); self.forced += 1
        self.spf(self.o['SPFB'])
        tgt = self.pub if c is None else c
        force_all = c is not None and c >= self.o['PUBALL'] and self.kx_done
        while (c != 0 and tgt + 1 < len(self.cons) and self.issued(self.cons[tgt + 1])
               and (force_all or self.est[self.cons[tgt + 1]] + self.o['PUBLAT'] <= self.clk)): tgt += 1
        tk = max(self.tick[k] for k in self.cons[:tgt + 1])
        self.publag.append((tgt, self.b.vm_issued - tk))
        self.barrier(vm=tk)
        self.pub = tgt
        if c is None: self.kx_done = True
        if tgt + 1 == len(self.cons) and self.kx_done: self.on_all_published()

    def frag_list(self, role):
        fr = []
        for stage, p in enumerate((0, 1, None, 2) if role == 'm' else (0,)):
            for st in range(28):
                if p is None:
                    e = st // 4
                    fr.append(dict(key=('s', e // 2), addr=vSR + (st & 3), sub=(e & 1) * 1024, rd=256, stage=stage, s=st, T=0))
                else:
                    for T in range(2):
                        fr.append(dict(key=('p', p, st // 4), addr=vWR + 4 * T + (st & 3), sub=0, rd=512, stage=stage, s=st, T=T))
        self.cons = []
        for f in fr:
            if f['key'] not in self.cons: self.cons.append(f['key'])
        for f in fr: f['c'] = self.cons.index(f['key'])
        self.fr = fr
    def read_frag(self, n):
        a = self.a
        if n >= len(self.fr): return
        f = self.fr[n]
        if f['c'] > self.pub: self.publish(f['c'])
        r = RINGB + 4 * (n % RING); off = self.slot[f['key']] * 2048 + f['sub']
        a.ds(f"ds_read_b64_tr_b16 {v(r,2)}, {v(f['addr'])} offset:{off}")
        f['t'] = a.ds(f"ds_read_b64_tr_b16 {v(r+2,2)}, {v(f['addr'])} offset:{off+f['rd']}")
        self.lastread[f['key']] = f['t']
        if n + 1 >= len(self.fr) or self.fr[n + 1]['key'] != f['key']: self.allread.add(f['key'])
    def pop(self, fillers):
        n0 = self.a.vm_issued
        r = fillers.popleft()() or 1
        if self.a.vm_issued > n0: self.vclk += self.o['CS']
        return r
    def fill(self, fillers, budget):
        self.clk += self.o['TSLOT'] + 4 * max(0, min(budget, len(fillers)) - 4)
        while fillers and budget > 0: budget -= self.pop(fillers)
    def run_stage(self, stage, acc, swap, fillers, budget=4, pre=None, forced=None, minfill=0, finish=0):
        a = self.a; D = self.o['D']
        idx = [n for n, f in enumerate(self.fr) if f['stage'] == stage]
        for line in (pre or []):
            a(line); self.fill(fillers, budget + 2)
        for k, n in enumerate(idx):
            f = self.fr[n]
            a.wait(lg=f['t'])
            w = v(RINGB + 4 * (n % RING), 4); x = v(Fof(f['s']), 4)
            c = acc(f['T']) if (pre or f['s'] > 0) else "0"
            a(f"v_mfma_f32_32x32x16_bf16 {acc(f['T'])}, {x if swap else w}, {w if swap else x}, {c}")
            self.read_frag(n + D)
            last = (n % 2 == 1)
            fl = forced(f['s'], f['T']) if forced else []
            self.fill(fillers, budget - len(fl) - (1 if last else 0))
            for g in fl: g()
            left = max(0, len(idx) - k - 1 - finish)
            while fillers and minfill and len(fillers) > left * minfill: self.pop(fillers); self.clk += 2
            fs = self.o.get('FSTEP', 5)
            if self.o.get('FINE') == stage and k % fs == 0 and 19 + k // fs < 32: self.stamp(a, 19 + k // fs)
            if last and n + 2 < len(self.fr): a.wait(lg=self.fr[n + 2]['t'])
    def cvt_forced(self, st, T):
        a = self.a; n = st + 2
        if not 8 <= n < 23: return []
        return [lambda d=d: a(f"v_cvt_pk_bf16_f32 {v(Fof(n)+d)}, {v(Uof(n)+2*d)}, {v(Uof(n)+2*d+1)}") for d in ((0, 1) if T == 0 else (2, 3))]
    def g3_ops(self):
        ops = []
        for st in range(23, 28):
            for d in range(4):
                r = Fof(st) + d; t0, t1 = (1, 4) if d & 1 else (7, vGO)
                self.lines(self.a, ops, f"v_lshlrev_b32 v{t0}, 16, {v(r)}\nv_and_b32 v{t1}, {s(sMSK)}, {v(r)}\nv_fma_f32 v{t0}, v{t0}, v2, v3\nv_fma_f32 v{t1}, v{t1}, v2, v3\nv_cvt_pk_bf16_f32 {v(r)}, v{t0}, v{t1}")
        return ops
    def phi_ops(self, src):
        a = self.a; ops = []
        for d in range(8):
            t0 = TMP + 2 * (d & 1)
            for k in range(2):
                x = src + 2 * d + k
                self.lines(a, ops, f"v_mul_f32 {v(t0+k)}, {s(aL2E)}, {v(x)}")
                def ex(e=t0+k):
                    a(f"v_exp_f32_e64 {v(e)}, {v(e)} clamp"); return 2
                ops.append(ex)
                self.lines(a, ops, f"v_max_f32 {v(x)}, {s(aEPS)}, {v(x)}\nv_add_f32 {v(t0+k)}, {v(t0+k)}, {v(x)}")
            self.lines(a, ops, f"v_cvt_pk_bf16_f32 {v(src+d)}, {v(t0)}, {v(t0+1)}")
        return ops

    def entry(self):
        p = self.new(); p.tag = 'p'
        p(f"{NAME}_kernel:")
        p("s_cmp_ge_u32 s2, 256\ns_cbranch_scc1 L_end")
        if self.stamps: p("s_memrealtime s[78:79]\ns_memtime s[80:81]")
        if self.probe is not None: p("s_memrealtime s[100:101]")
        p("s_load_dwordx16 s[4:19], s[0:1], 0\ns_load_dwordx4 s[20:23], s[0:1], 64\ns_load_dwordx2 s[24:25], s[0:1], 80")
        p("s_getpc_b64 s[98:99]\nL_pc:")
        p(f"s_lshr_b32 {s(sT1)}, s2, 3\ns_lshl_b32 s3, {s(sT1)}, 7")
        p("v_lshrrev_b32 v1, 5, v0\nv_lshl_add_u32 v1, v1, 12, s3")
        p("v_min_u32 v1, L_end - L_pc, v1")
        p.vm(f"global_load_dword {v(vGO)}, v1, s[98:99]")
        p(f"v_lshrrev_b32 v1, 6, v0\nv_and_b32 {v(vL)}, 63, v0")
        p(f"v_readfirstlane_b32 s99, v1")
        p(f"s_and_b32 {s(sT2)}, {s(sT1)}, 3\ns_and_b32 {s(sI)}, s2, 3\ns_lshl2_add_u32 {s(sI)}, {s(sI)}, {s(sT2)}")
        p(f"s_lshr_b32 {s(sCS)}, {s(sT1)}, 2")
        p(f"s_lshl1_add_u32 {s(sROT)}, {s(sT2)}, {s(sCS)}")
        p(f"s_cmp_ge_u32 {s(sROT)}, 7\ns_cselect_b32 {s(sT0)}, 7, 0\ns_sub_u32 {s(sROT)}, {s(sROT)}, {s(sT0)}")
        p(f"s_and_b32 {s(sWV)}, s99, 3\ns_mul_i32 {s(sRB)}, {s(sWV)}, {REG}")
        p(f"v_lshrrev_b32 v6, 3, {v(vL)}\nv_and_b32 v7, 7, {v(vL)}\nv_lshlrev_b32 {v(vL16)}, 4, {v(vL)}")
        p("s_cmp_ge_u32 s99, 4\ns_cbranch_scc1 L_B")
        return p
    def after_args(self, x):
        x.wait_all(lg=True)
        if self.probe is not None: x("s_mov_b32 s0, s100")
        if self.stamps: x("v_writelane_b32 v5, s78, 18\nv_writelane_b32 v5, s80, 0\nv_writelane_b32 v5, s99, 63")
        self.stamp(x, 1)

    def b_prologue(self):
        b = self.new(); b.tag = 'b'; b.vm_issued = 1
        b("L_B:")
        self.ids(b)
        for n in range(7):
            if n: self.rot_step(b)
            b(f"s_mul_i32 {s(sK1+n)}, {s(sROT)}, {64*3584}\ns_mul_i32 {s(sKQ+n)}, {s(sROT)}, {64*2688}")
        b(f"s_mul_i32 {s(sCOL)}, {s(sH)}, 56\ns_and_b32 {s(sT0)}, {s(sH)}, 1\ns_lshl_b32 {s(sT0)}, {s(sT0)}, 3\ns_sub_u32 {s(sCOL)}, {s(sCOL)}, {s(sT0)}")
        b(f"s_mul_i32 {s(sT0)}, {s(sWV)}, {16*2688}\ns_add_u32 {s(sCOL)}, {s(sCOL)}, {s(sT0)}\ns_addk_i32 {s(sCOL)}, 896")
        b(f"s_lshl_b32 {s(sT1)}, {s(sM)}, 6\ns_add_u32 {s(sSGL)}, {s(sT1)}, {s(sT0)}")
        b(f"s_mul_i32 {s(sT0)}, {s(sWV)}, {16*3584}\ns_lshl1_add_u32 {s(sCOL+1)}, {s(sT1)}, {s(sT0)}\ns_add_u32 {s(sCOL+2)}, {s(sCOL+1)}, 1792")
        b(f"v_and_b32 v32, 2, v6\nv_lshlrev_b32 v32, 1, v32\nv_xor_b32 v32, v7, v32\nv_lshlrev_b32 v33, 4, v32")
        b(f"v_mul_u32_u24 v34, 896, v6\nv_add_u32 {v(bW2D)}, v34, v33\nv_add_u32 {v(bW2D+1)}, 6144, {v(bW2D)}")
        b(f"v_mul_u32_u24 v34, 3584, v6\nv_add_u32 {v(bWD)}, v34, v33\nv_add_u32 {v(bWD+1)}, {8*3584-1024}, {v(bWD)}")
        b(f"v_lshrrev_b32 v32, 2, v32\nv_mul_u32_u24 v32, {896-64}, v32\nv_mul_u32_u24 v34, 2688, v6\nv_add3_u32 {v(bWK)}, v34, v33, v32\nv_add_u32 {v(bWK+1)}, {8*2688-1024}, {v(bWK)}")
        self.after_args(b)
        b(f"s_cmp_eq_u32 s2, {INIT_WG}\ns_cbranch_scc1 L_init\nL_noinit:")
        self.srd(b, rWQ, sWQ, 448 * 2688); self.srd(b, rW, sW1, 448 * 3584)
        self.srd(b, rW2, sW2, 1792 * 896); self.srd(b, rWO, sWO, 448 * 896); self.srd(b, rWS, sWS, WS_SIZE)
        b(f"s_cmp_ge_u32 {s(sCS)}, 7\ns_cbranch_scc1 L_Bh")
        return b
    def spf(self, n):
        for k in range(n):
            if self.pfq: self.b(self.pfq.popleft())
    def b_main_setup(self):
        b = self.b; o = self.o
        self.pfq = deque()
        if o['SPF']:
            b(f"s_lshr_b32 {s(sT0)}, s2, 3\ns_and_b32 {s(sT1)}, s2, 3\ns_lshl2_add_u32 {s(sT0)}, {s(sT0)}, {s(sT1)}\ns_lshl2_add_u32 {s(sT0)}, {s(sT0)}, {s(sWV)}")
            b(f"s_bfe_u32 {s(sT1)}, s2, 0x10002")
            b(f"s_mul_i32 {s(sT2)}, {s(sT0)}, 2688\ns_mul_i32 {s(sCNT)}, {s(sT1)}, 384\ns_add_u32 {s(sT2)}, {s(sT2)}, {s(sCNT)}\ns_add_u32 s82, {s(sWQ)}, {s(sT2)}\ns_addc_u32 s83, {s(sWQ+1)}, 0")
            L = lambda base, off, n: [f"s_load_dwordx2 s[80:81], {s(base,2)}, {off + 128*k + 60}" for k in range(n)]
            self.pfq.extend(L(82, 896, 4) + L(82, 1792, 4) + L(98, 0, 7) + L(82, 0, 4) + L(98, 1792, 7) + L(16, 0, 14) + L(8, 0, 4))
            for t in range(o['L2PF']):
                self.pfq.extend(L(22, (t % 14) * 14336 + (t // 14) * 896 * 896, 4) if t < 28 else L(20, (t - 28) * 14336, 4))
            self.spf(min(o['SPF'], 7))
            b(f"s_mul_i32 {s(sT2)}, {s(sT0)}, 3584\ns_mul_i32 {s(sCNT)}, {s(sT1)}, 896\ns_add_u32 {s(sT2)}, {s(sT2)}, {s(sCNT)}\ns_add_u32 s98, {s(sW1)}, {s(sT2)}\ns_addc_u32 s99, {s(sW1+1)}, 0")
            b(f"s_lshl1_add_u32 {s(sT0)}, {s(sT0)}, {s(sT1)}\ns_mul_i32 {s(sT2)}, {s(sT0)}, 1792\ns_add_u32 s16, s16, {s(sT2)}\ns_addc_u32 s17, s17, 0")
            b(f"s_mul_i32 {s(sT2)}, {s(sT0)}, 448\ns_and_b32 {s(sT2)}, {s(sT2)}, 0xffffff80\ns_add_u32 s8, s8, {s(sT2)}\ns_addc_u32 s9, s9, 0")
        self.srd(b, rX, sX, 1835008); self.srd(b, rOUT, sOUT, 1835008); self.srd(b, rB2, sB2, 896)
        b(f"s_lshl_b32 {s(sT0)}, {s(sCS)}, 7")
        b(f"s_mul_i32 {s(sW2B)}, {s(sWV)}, {224*896}\ns_add_u32 {s(sW2B)}, {s(sW2B)}, {s(sT0)}")
        b(f"s_mul_i32 {s(sWOB)}, {s(sWV)}, {112*896}\ns_add_u32 {s(sWOB)}, {s(sWOB)}, {s(sT0)}")
        for m in range(1, 4): b(f"s_movk_i32 {s(sHC[m])}, {4096*m}")
        b(f"s_mov_b32 {s(sMSK)}, 0xffff0000")
        b(f"s_lshr_b32 {s(sTG)}, {s(sWV)}, 1\ns_lshl1_add_u32 {s(sTG)}, {s(sRB2)}, {s(sTG)}")
        b(f"s_and_b32 {s(sT1)}, {s(sWV)}, 1\ns_lshl_b32 {s(sT1)}, {s(sT1)}, 6\ns_add_u32 {s(sCB)}, {s(sT0)}, {s(sT1)}")
        b(f"s_mul_i32 {s(sXB)}, {s(sTG)}, {32*896}\ns_add_u32 {s(sXB)}, {s(sXB)}, {s(sCB)}\ns_add_u32 {s(sXB2)}, {s(sXB)}, {16*896}")
        b(f"v_lshrrev_b32 v7, 2, {v(vL)}\nv_and_b32 v6, 3, {v(vL)}\nv_lshlrev_b32 v6, 4, v6")
        b(f"v_mul_u32_u24 {v(bOA)}, 896, v7\nv_add_u32 {v(bOA)}, {v(bOA)}, v6\nv_mul_u32_u24 {v(bSD)}, 2688, v7\nv_add_u32 {v(bSD)}, {v(bSD)}, v6")
        b(f"v_mul_u32_u24 {v(bRD)}, 68, v6\nv_lshl_add_u32 {v(bRD)}, v7, 4, {v(bRD)}\nv_add_u32 {v(bRD)}, {s(sRB)}, {v(bRD)}")
        b(f"v_lshrrev_b32 v32, 5, {v(vL)}\nv_bfe_u32 v33, {v(vL)}, 2, 2\nv_lshrrev_b32 v34, 1, v6\nv_bfe_u32 v35, {v(vL)}, 4, 1\nv_lshl_add_u32 v34, v35, 5, v34")
        b(f"v_and_b32 v35, 2, v33\nv_lshlrev_b32 v35, 5, v35\nv_xor_b32 v34, v34, v35\nv_lshl_add_u32 v32, v32, 2, v33\nv_lshl_add_u32 v32, v32, 7, v34")
        b(f"v_xor_b32 v32, {s(sT1)}, v32\nv_add_u32 {v(bP2R)}, {s(sRB)}, v32\nv_xor_b32 {v(bP2R+1)}, 64, {v(bP2R)}")
        b(f"s_mul_i32 {s(sCNT)}, {s(sWV)}, {14*1024}\ns_mul_i32 {s(sT0)}, {s(sTG)}, {HS}\ns_add_u32 {s(sT0)}, {s(sT0)}, {s(sCNT)}\nv_add_u32 v2, {s(sT0)}, {v(vL16)}")
        b(f"s_xor_b32 {s(sT0)}, {s(sTG)}, 1\ns_mul_i32 {s(sT0)}, {s(sT0)}, {HS}\ns_add_u32 {s(sT0)}, {s(sT0)}, {s(sCNT)}\nv_add_u32 v3, {s(sT0)}, {v(vL16)}")
        b(f"v_add_u32 {v(bHB)}, {56*1024}, v2\nv_add_u32 {v(bHB+1)}, {56*1024}, v3")
        b(f"s_mul_i32 {s(sT0)}, {s(sWV)}, 7168\ns_sub_u32 {s(sT0)}, {112*1024}, {s(sT0)}\nv_add_u32 {v(bHO)}, {s(sT0)}, v2\nv_add_u32 {v(bHO+1)}, {s(sT0)}, v3")
        for q in range(4):
            b(f"s_xor_b32 {s(sT0)}, {s(sWV)}, {q}\ns_mul_i32 {s(sT0)}, {s(sT0)}, {REG}\nv_add_u32 {v(bWA+q)}, {s(sT0)}, {v(vL16)}")
        b(f"s_lshl2_add_u32 {s(sT0)}, {s(sRB2)}, {s(sWV)}\ns_lshl_b32 {s(sT0)}, {s(sT0)}, 7\ns_add_u32 {s(sT0)}, {s(sT0)}, {WS_FL}")
        b(f"s_add_u32 {s(sFL)}, {s(sWS)}, {s(sT0)}\ns_addc_u32 {s(sFL+1)}, {s(sWS+1)}, 0")
        if o['L2PF']:
            b(f"s_lshr_b32 {s(sT0)}, s2, 3\ns_lshl_b32 {s(sT0)}, {s(sT0)}, 9\ns_mul_i32 {s(sT1)}, {s(sWV)}, {224*896}\ns_add_u32 {s(sT1)}, {s(sT1)}, {s(sT0)}")
            b(f"s_add_u32 s22, {s(rW2)}, {s(sT1)}\ns_addc_u32 s23, {s(rW2+1)}, 0")
            b(f"s_mul_i32 {s(sT1)}, {s(sWV)}, {112*896}\ns_add_u32 {s(sT1)}, {s(sT1)}, {s(sT0)}\ns_add_u32 s20, {s(rWO)}, {s(sT1)}\ns_addc_u32 s21, {s(rWO+1)}, 0")
        self.spf(o['SPF'] - 7)
    def b_pf(self, m):
        b = self.b
        if m & 1: b.vm(f"buffer_load_dword v40, v34, {s(rWQ,4)}, 0 offen offset:896")
        if m & 2: b.vm(f"buffer_load_dword v40, v33, {s(rW,4)}, 0 offen")
        if m & 4: b.vm(f"buffer_load_dword v40, v32, {s(rWQ,4)}, 0 offen")
        if m & 8: b.vm(f"buffer_load_dword v40, v33, {s(rW,4)}, 0 offen offset:1792")
        if m & 16:
            b.vm(f"buffer_load_dword v40, v35, {s(rW2,4)}, 0 offen"); b.vm(f"buffer_load_dword v40, v36, {s(rW2,4)}, 0 offen")
        if m & 32: b.vm(f"buffer_load_dword v40, v37, {s(rWO,4)}, 0 offen")
    def b_help_setup(self):
        b = self.b
        b(f"s_lshl2_add_u32 {s(sT2)}, {s(sRB2)}, {s(sWV)}\ns_lshl_b32 {s(sT0)}, {s(sT2)}, 2")
        b(f"v_min_u32 v6, 55, {v(vL)}\nv_mul_u32_u24 v7, 37, v6\nv_lshrrev_b32 v7, 9, v7\nv_mul_u32_u24 v32, 14, v7\nv_sub_u32 v6, v6, v32\nv_add_u32 v7, {s(sT0)}, v7")
        b(f"v_mul_u32_u24 v32, 2688, v7\nv_mul_u32_u24 v33, 3584, v7\nv_lshl_add_u32 v33, v6, 7, v33\nv_lshl_add_u32 v34, v6, 7, v32\nv_min_u32 v6, 6, v6\nv_lshl_add_u32 v32, v6, 7, v32")
        b(f"s_mul_i32 {s(sT0)}, {s(sT2)}, 98\ns_mul_i32 {s(sT1)}, {s(sT2)}, 25")
        b(f"v_min_u32 v35, 48, {v(vL)}\nv_add_lshl_u32 v35, v35, {s(sT0)}, 7\nv_add_u32 v36, {49*128}, v35\nv_min_u32 v37, 24, {v(vL)}\nv_add_lshl_u32 v37, v37, {s(sT1)}, 7")
        self.b_pf(self.o['PFA'])

    def a_layernorm(self):
        a = self.a; o = self.o
        if o['PRIO']: a(f"s_setprio {o['PRIO']}")
        a(f"s_lshl2_add_u32 {s(sHST)}, {s(sI)}, {s(sWV)}\ns_mul_i32 {s(sXB)}, {s(sHST)}, {32*896}\ns_lshl_b32 {s(sG1)}, {s(sROT)}, 7")
        a(f"v_lshrrev_b32 v8, 1, v6\nv_xor_b32 v8, v7, v8\nv_lshlrev_b32 v8, 4, v8\nv_xor_b32 v9, 64, v8")
        a(f"v_mul_u32_u24 v10, 896, v6")
        a(f"v_add_u32 {v(vXD)}, v10, v8\nv_add_u32 v9, v10, v9")
        a(f"v_add_u32 {v(vXD+1)}, 6144, v9\nv_add_u32 {v(vXD+2)}, {2*6144}, {v(vXD)}\nv_add_u32 {v(vXD+3)}, {3*6144}, v9")
        a("s_mov_b32 s30, 1835008\ns_mov_b32 s31, 0x20000")
        for n in range(1, 3): self.rot_step(a); a(f"s_lshl_b32 {s(sG1+n)}, {s(sROT)}, 7")
        xq = dict(n=0); xk = {}
        def xprep():
            n = xq['n']
            if n < 28 and n % 4 == 0: self.set_m0(a, (n // 4) * 4096); a(f"s_add_u32 {s(sSO)}, {s(sXB)}, {s(sG1+n//4)}")
        def xdma():
            n = xq['n']
            if n >= 28: return
            xk[n // 4] = a.vm(f"buffer_load_dwordx4 {v(vXD+n%4)}, {s(rX,4)}, {s(sSO)} offen offset:{(n%4)*1024} lds")
            xq['n'] += 1
            if xq['n'] != 12: xprep()
        xprep()
        self.after_args(a)
        a("s_mov_b32 s28, s4\ns_mov_b32 s29, s5")
        for k in range(12): xdma()
        for n in range(3, 7): self.rot_step(a); a(f"s_lshl_b32 {s(sG1+n)}, {s(sROT)}, 7")
        xprep()
        self.ids(a)
        self.srd(a, rWS, sWS, WS_SIZE); self.srd(a, rB1, sB1, 3584)
        T0 = 236
        a(f"v_and_b32 v8, 31, {v(vL)}\nv_lshrrev_b32 v10, 5, {v(vL)}")
        a(f"v_bfe_u32 v11, {v(vL)}, 1, 3\nv_xor_b32 v11, v10, v11\nv_lshlrev_b32 v11, 4, v11")
        a(f"v_lshl_add_u32 v11, v8, 7, v11\nv_add_u32 {v(vXR)}, {s(sRB)}, v11")
        for j in range(1, 4): a(f"v_xor_b32 {v(vXR+j)}, {32*j}, {v(vXR)}")
        a(f"s_mov_b32 vcc_lo, 0xf0f00f0f\ns_mov_b32 vcc_hi, vcc_lo\nv_mov_b32 v11, 0x3f803f80")
        for k in range(4): a(f"v_cndmask_b32 {v(48+k)}, 0, v11, vcc")
        for r, val in zip(aM, (0xaaaaaaaa, 0xcccccccc, 0xff00ff00, 0xf0f0f0f0, 0xffff0000)): a(f"s_mov_b32 {s(r)}, {val:#x}\ns_mov_b32 {s(r+1)}, {s(r)}")
        a(f"s_mov_b32 {s(sHI)}, 0\ns_mov_b32 {s(sHI+1)}, -1\ns_mov_b32 {s(aL2E)}, 0x3fb8aa3b\ns_mov_b32 {s(aEPS)}, 0x358637bd")
        a(f"s_and_b32 {s(sT0)}, {s(sH)}, 1\ns_cselect_b32 {s(aONE)}, 15, 0xf0000000\ns_mov_b32 {s(aONE+1)}, {s(aONE)}")
        a(f"v_bfe_u32 v11, {v(vL)}, 2, 2")
        a(f"v_and_b32 v12, 3, {v(vL)}\nv_lshlrev_b32 v12, 3, v12\nv_bfe_u32 v13, {v(vL)}, 4, 1\nv_lshl_add_u32 v12, v13, 5, v12")
        a(f"v_and_b32 v13, 2, v11\nv_lshlrev_b32 v13, 5, v13\nv_lshl_add_u32 v9, v10, 3, v11")
        a(f"v_lshl_add_u32 v7, v9, 6, v12")
        a(f"v_lshlrev_b32 v9, 7, v9\nv_xor_b32 v8, v12, v13\nv_add_u32 {v(vWR)}, v9, v8\nv_xor_b32 {v(vWR+4)}, 64, {v(vWR)}")
        for T in range(2):
            for r in range(1, 4): a(f"v_add_u32 {v(vWR+4*T+r)}, {REG*r}, {v(vWR+4*T)}")
        a(f"v_and_b32 v8, 1, {v(vL)}\nv_lshlrev_b32 v11, 10, v8\nv_lshrrev_b32 v12, 1, {v(vL)}\nv_lshl_add_u32 v11, v12, 4, v11\nv_add_u32 v10, {s(sRB)}, {v(vL16)}\nv_lshlrev_b32 v6, 3, {v(vL)}")
        a(f"s_lshl_b32 {s(sT0)}, {s(sM)}, 1\nv_add_u32 v8, {s(sT0)}, v8\nv_mul_u32_u24 v8, 37, v8\nv_lshrrev_b32 v8, 8, v8")
        a(f"v_mul_u32_u24 v9, 7, v8\nv_lshrrev_b32 v9, 1, v9\nv_sub_u32 v9, {s(sM)}, v9\nv_lshlrev_b32 v9, 3, v9\nv_lshl_add_u32 v9, v8, 7, v9")
        a(f"s_lshr_b32 {s(sT0)}, {s(sHST)}, 1\ns_lshl_b32 {s(sT0)}, {s(sT0)}, 9\ns_and_b32 {s(sCNT)}, {s(sHST)}, 1\ns_lshl2_add_u32 {s(sT0)}, {s(sCNT)}, {s(sT0)}")
        a(f"s_add_u32 {s(sT0)}, {s(sT0)}, {WS_FL}\nv_add_u32 v9, {s(sT0)}, v9\nv_mov_b32 v8, 1")
        misc = deque(); M = lambda t: self.lines(a, misc, t)
        M(f"s_lshl4_add_u32 {s(sT0)}, {s(sH)}, {s(sI)}\ns_lshl_b32 {s(sT0)}, {s(sT0)}, 5\ns_add_u32 {s(sT0)}, {s(sT0)}, {s(sWV)}")
        M(f"s_lshl_b32 {s(sT0)}, {s(sT0)}, 2\ns_add_u32 {s(sT0)}, {s(sT0)}, {WS_FK}\nv_mov_b32 v13, {s(sT0)}")
        M(f"s_lshr_b32 {s(sT0)}, {s(sWV)}, 1\ns_lshl1_add_u32 {s(sT0)}, {s(sH)}, {s(sT0)}\ns_lshl4_add_u32 {s(sT0)}, {s(sT0)}, {s(sI)}")
        M(f"s_and_b32 {s(sT1)}, {s(sWV)}, 1\ns_lshl1_add_u32 {s(sT0)}, {s(sT0)}, {s(sT1)}\ns_lshl_b32 {s(sT0)}, {s(sT0)}, 9\ns_add_u32 {s(aKVO)}, {s(sT0)}, {WS_KV}")
        M(f"s_mul_i32 {s(aHST)}, {s(sHST)}, 35\ns_add_u32 {s(aHST)}, {s(aHST)}, {s(sM)}\ns_lshl_b32 {s(aHST)}, {s(aHST)}, 12")
        M(f"s_mul_i32 {s(aPQS)}, {s(sHST)}, 14\ns_add_u32 {s(aPQS)}, {s(aPQS)}, {s(sM)}\ns_lshl_b32 {s(aPQS)}, {s(aPQS)}, 11\ns_add_u32 {s(aPQS)}, {s(aPQS)}, {WS_PQ}")
        M(f"s_lshl_b32 {s(aBIA)}, {s(sM)}, 7")
        xt = {}
        def xread(st):
            if st >= 28: return
            n = st // 4
            if st % 4 == 0:
                while xq['n'] < 4 * n + 4: xdma()
                a.wait(vm=xk[n])
                if n == 0: self.stamp(a, 2)
            xt[st] = a.ds(f"ds_read_b128 {v(Rof(st),4)}, {v(vXR+st%4)} offset:{n*4096}")
            if st % 4 == 3:
                for k in (2 * n, 2 * n + 1):
                    self.slot['x', k] = k; self.lastread['x', k] = xt[st]; self.allread.add(('x', k))
        for k in range(o['XPRE'] - 12): xdma()
        xread(0); xread(1)
        self.clk = 0; self.tprev = 0
        for st in range(28):
            r = Rof(st); b = Uof(st)
            a.wait(lg=xt[st])
            a(f"v_mfma_f32_32x32x16_bf16 v[28:43], {v(r,4)}, {v(r,4)}, {'v[28:43]' if st else 0}")
            xread(st + 2)
            xdma()
            self.clk += o['TFRAG'] if st < 16 else 52
            for d in range(4):
                if d == 2: a(f"v_mfma_f32_16x16x32_bf16 v[44:47], v[48:51], {v(r,4)}, {'v[44:47]' if st else 0}")
                if st < 23: a(f"v_lshlrev_b32 {v(b+2*d)}, 16, {v(r+d)}\nv_and_b32 {v(b+2*d+1)}, {s(sMSK)}, {v(r+d)}")
            if misc: misc.popleft()()
            if st == o['B0AT']:
                self.vclk = max(self.clk, 24 * o['CX']); self.stamp(self.b, 2); self.barrier(); self.stamp(self.b, 3)
        assert not misc
        self.stamp(a, 3)
        a(f"v_mov_b32 {v(vSR)}, v7")
        for r in range(1, 4): a(f"v_add_u32 {v(vSR+r)}, {REG*r}, v7")
        inv = 0x3b124925
        a(f"s_nop 2\nv_mul_f32 v44, {inv:#x}, v44")
        for lvl, step in enumerate((1, 2, 4)):
            for k in range(0, 16, 2 * step): a(f"v_cndmask_b32 {v(28+k)}, {v(28+k)}, {v(28+k+step)}, {s(aM[lvl],2)}")
        a(f"v_cndmask_b32 v29, v28, v36, {s(aM[4],2)}\nv_cndmask_b32 v28, v28, v36, {s(aM[4],2)}")
        a(f"v_permlane32_swap_b32 v29, v28")
        a(f"v_cndmask_b32 v28, v29, v28, {s(aM[3],2)}")
        a(f"v_mul_f32 v28, {inv:#x}, v28\nv_fma_f32 v28, -v44, v44, v28\nv_max_f32 v28, 0, v28\nv_add_f32 v28, 0x3727c5ac, v28")
        a(f"v_rsq_f32 v2, v28")
        a(f"v_mul_f32_e64 v3, -v44, v2")
        self.clk += 170
        for st in list(range(7, -1, -1)) + list(range(8, 23)):
            if st == 17:
                for k in range(o['D']): self.read_frag(k)
            for d in range(4):
                r = Uof(st) + 2 * d
                a(f"v_pk_fma_f32 {v(r,2)}, {v(r,2)}, v[2:3], v[2:3] op_sel:[0,0,1] op_sel_hi:[1,0,1]")
            self.clk += 21
            if st < 8:
                for d in (3, 2, 1, 0): a(f"v_cvt_pk_bf16_f32 {v(Fof(st)+d)}, {v(Uof(st)+2*d)}, {v(Uof(st)+2*d+1)}")
                self.clk += 21
        self.stamp(a, 4)

    def kv_chain(self, gap):
        a = self.a; ops = []; A = lambda t: self.lines(a, ops, t)
        PK, PV, KV, R = AS, AS + 8, AS + 16, AS
        st = {}
        def addr():
            s0, s1 = self.reserve
            a(f"s_lshr_b32 {s(sT0)}, {s(sWV)}, 1\ns_mul_i32 {s(sT0)}, {s(sT0)}, {(s1-s0)*2048}\ns_add_u32 {s(sT0)}, {s(sT0)}, {s0*2048}")
            return 3
        ops.append(self.go_load); ops.append(addr)
        A(f"s_and_b32 {s(sCNT)}, {s(sWV)}, 1\ns_lshl_b32 {s(sCNT)}, {s(sCNT)}, 9\ns_add_u32 {s(sT0)}, {s(sT0)}, {s(sCNT)}")
        A(f"v_add_u32 v11, {s(sT0)}, v11\nv_add_u32 v12, {2*REG}, v11\nv_mov_b32 {v(TMP+8)}, 0x3f803f80")
        ops += self.phi_ops(AS)
        for d in range(8):
            A(f"v_cvt_pk_bf16_f32 {v(PV+d)}, {v(AS+16+2*d)}, {v(AS+17+2*d)}\nv_cndmask_b32 {v(PV+d)}, {v(PV+d)}, {v(TMP+8)}, {s(aONE,2)}")
        ops.append(lambda: a(f"v_mfma_f32_32x32x16_bf16 {v(KV,16)}, {v(PK,4)}, {v(PV,4)}, 0") or -3)
        ops.append(self.go_check)
        ops.append(lambda: a(f"v_mfma_f32_32x32x16_bf16 {v(KV,16)}, {v(PK+4,4)}, {v(PV+4,4)}, {v(KV,16)}") or 99)
        ops += [gap] * 3
        for g in range(4):
            def w(g=g):
                st['w'] = a.ds(f"ds_write_b128 v10, {v(KV+4*g,4)} offset:{self.reserve[g>>1]*2048 + (g&1)*1024}"); self.clk += 30; return 99
            ops.append(w)
        ops.append(gap)
        def bar():
            a.wait(lg=st['w']); self.sync(); return 2
        ops.append(bar)
        for sw in range(4):
            def r(sw=sw):
                st['r'] = a.ds(f"ds_read_b128 {v(R+4*sw,4)}, {'v11' if sw < 2 else 'v12'} offset:{(sw&1)*REG}")
                if sw == 3:
                    self.want_reserve = 0
                    for k, sl in enumerate(self.reserve):
                        self.slot['kx', k] = sl; self.lastread['kx', k] = st['r']; self.allread.add(('kx', k))
                return 2
            ops.append(r)
        ops += [gap] * 2
        ops.append(lambda: a.wait(lg=st['r']) and 1)
        for k in range(4): A(f"v_add_f32 {v(R+k)}, {v(R+k)}, {v(R+4+k)}\nv_add_f32 {v(R+8+k)}, {v(R+8+k)}, {v(R+12+k)}")
        for k in range(4): A(f"v_add_f32 {v(R+k)}, {v(R+k)}, {v(R+8+k)}")
        A(f"v_cvt_pk_bf16_f32 {v(R)}, {v(R)}, {v(R+1)}\nv_cvt_pk_bf16_f32 {v(R+1)}, {v(R+2)}, {v(R+3)}")
        def stp():
            st['s'] = a.vm(f"buffer_store_dwordx2 {v(R,2)}, v6, {s(rWS,4)}, {s(aKVO)} offen sc1"); return 2
        ops.append(stp)
        def flg():
            a.wait(vm=st['s'])
            a.vm(f"buffer_store_dword v8, v13, {s(rWS,4)}, 0 offen sc1"); return 2
        return ops, flg

    def a_main(self):
        a = self.a; o = self.o
        self.want_reserve = 2
        fl = deque(self.g3_ops()); A = lambda t: self.lines(a, fl, t)
        tb = {}
        def forced(st, T):
            ops = self.cvt_forced(st, T)
            if (st, T) == (19, 0): self.lines(a, ops, f"v_and_b32 v12, 31, {v(vL)}\nv_lshlrev_b32 v12, 1, v12")
            if st in (19, 20, 21) and (st, T) not in ((19, 0), (21, 1)):
                k = 2 * st + T - 39
                ops.append(lambda: tb.update(t=a.vm(f"buffer_load_ushort {v(BI+2*k)}, v12, {s(rB1,4)}, {s(aBIA)} offen offset:{64*(k&1) + 1792*(k>>1)}")))
            if (st, T) == (23, 0): self.lines(a, ops, "\n".join(f"v_mov_b32 {v(BI+k)}, 0" for k in (1, 3, 5, 7)))
            if (st, T) == (23, 1): self.lines(a, ops, "\n".join(f"v_mov_b32 {v(BI+k)}, 0" for k in (9, 10, 11)))
            if (st, T) == (24, 0): self.lines(a, ops, f"v_mov_b32 {v(BI+8)}, 0x3f80\nv_cndmask_b32 {v(BI+8)}, {v(BI+8)}, 0, {s(sHI,2)}")
            return ops
        def bias(acc, tiles): return [f"v_mfma_f32_32x32x16_bf16 {acc(T)}, {v(BI+2*k,4)}, {v(BI+8,4)}, 0" for T, k in enumerate(tiles)]
        def store(r, soff, off):
            def f(): self.last_store = a.vm(f"buffer_store_dwordx4 {v(r,4)}, {v(vL16)}, {s(rWS,4)}, {s(soff)} offen offset:{off} sc1")
            return f
        def epi(T):
            ops = []; h = VA + 16 * T
            for d in range(8):
                t0 = h + 2 * d
                self.lines(a, ops, f"v_mul_f32_e64 {v(t0)}, {v(t0)}, |{v(t0)}|\nv_mul_f32_e64 {v(t0+1)}, {v(t0+1)}, |{v(t0+1)}|")
                self.lines(a, ops, f"v_cvt_pk_bf16_f32 {v(h+d)}, {v(t0)}, {v(t0+1)}\nv_pk_max_i16 {v(h+d)}, {v(h+d)}, 0")
                if d % 4 == 3: ops.append(store(h + d - 3, aHST, 2048 * T + (d // 4) * 1024))
            return ops
        accA = lambda T: v(VA + 16 * T, 16)
        self.run_stage(0, lambda T: v(AS + 16 * T, 16), True, fl, budget=o['B0'], forced=forced, minfill=2.4, finish=12)
        assert not fl and len(self.reserve) == 2
        self.stamp(a, 5)
        nop = lambda: 4; big = lambda: 99
        a.wait(vm=tb['t'])
        ops, flg = self.kv_chain(big)
        fl.extend(ops); fl.extend([big] * o['KVLAG']); fl.append(flg)
        self.run_stage(1, accA, False, fl, budget=o['B1'], pre=bias(accA, [0, 1]))
        print("stage 1 fillers left", len(fl))
        assert len(fl) <= o['KVLAG'] + 1
        pend_flag = len(fl); fl.clear()
        self.stamp(a, 6)
        fl.extend([big, big, big])
        e = epi(0) + epi(1)
        if pend_flag: e.insert(min(len(e), 3 * pend_flag), flg)
        fl.extend(e)
        self.run_stage(2, lambda T: v(AS + 16, 16), False, fl, budget=o['B2'], minfill=3)
        assert not fl
        self.stamp(a, 7)
        def flag(get, val):
            def f():
                a.wait(vm=get())
                a.vm(f"buffer_store_dword v8, v9, {s(rWS,4)}, 0 offen sc1")
                if val: a(f"v_mov_b32 v8, {val}")
                return 3
            return f
        l0 = self.last_store
        A(f"s_add_u32 {s(aHST)}, {s(aHST)}, {56*1024}")
        fl.extend([big, big, big])
        q = self.phi_ops(AS + 16)
        q = q[:36] + [store(AS + 16, aPQS, 0)] + q[36:] + [store(AS + 20, aPQS, 1024)]
        q.insert(o['F1AT'], flag(lambda: l0, 3))
        fl.extend(q); fl.extend([big] * o['F3LAG']); fl.append(flag(lambda: self.last_store, 7))
        self.run_stage(3, accA, False, fl, budget=o['B3'], pre=bias(accA, [2, 3]), minfill=2.5)
        assert not fl
        self.stamp(a, 8)
        assert not self.b_alive
        for g in epi(0) + epi(1): g()
        flag(lambda: self.last_store, 0)()
        self.stamp(a, 9); self.flush_stamp(a)
        a("s_branch L_fin")
        print("main: end of phase 1 at", self.clk, ": w2 issued", len(self.w2_issued), "moved", self.mv_next, "forced", self.forced, "publag", self.publag)

    def a_helper(self):
        a = self.a; o = self.o
        self.want_reserve = 2
        fl = deque(self.g3_ops())
        self.run_stage(0, lambda T: v(AS + 16 * T, 16), True, fl, budget=o['B0'], forced=self.cvt_forced, minfill=2.4, finish=12)
        assert not fl and not self.dq and len(self.reserve) == 2
        self.stamp(a, 5)
        ops, flg = self.kv_chain(lambda: 0)
        for g in ops: g()
        assert not self.b_alive
        flg()
        self.stamp(a, 6); self.flush_stamp(a)
        xs = [k for k in self.free if k not in self.reserve][0] * 2048
        G, S, TM, KVA, P, NUM = 84, 212, 228, 52, 84, 140
        W8 = 99
        a("L_join:")
        a(f"s_lshr_b32 {s(sT2)}, {s(sRB2)}, 3\ns_lshl3_add_u32 {s(sT1)}, {s(sT2)}, {s(W8)}")
        a(f"s_lshr_b32 {s(sT0)}, {s(sT1)}, 1\ns_lshl_b32 {s(sT0)}, {s(sT0)}, 11\ns_add_u32 {s(sT0)}, {s(sT0)}, {WS_FK}")
        a(f"v_lshrrev_b32 v1, 2, {v(vL)}\nv_and_b32 v7, 3, {v(vL)}\nv_lshlrev_b32 v7, 2, v7\nv_lshl_add_u32 v1, v1, 7, v7")
        a.vm(f"buffer_load_dword v14, v1, {s(rWS,4)}, {s(sT0)} offen sc1")
        a(f"s_lshl_b32 {s(sT1)}, {s(sT1)}, 14\ns_add_u32 {s(sSO)}, {s(sT1)}, {WS_KV}")
        a(f"s_and_b32 {s(sI)}, {s(sRB2)}, 7\ns_lshl3_add_u32 {s(sI)}, {s(sI)}, {s(W8)}")
        a(f"s_lshr_b32 {s(sCNT)}, {s(sI)}, 1\ns_lshl2_add_u32 {s(sCNT)}, {s(sCNT)}, {s(sT2)}\ns_lshl_b32 {s(sCNT)}, {s(sCNT)}, 7\ns_add_u32 {s(sCNT)}, {s(sCNT)}, {WS_FL}")
        a(f"s_add_u32 {s(aFL)}, {s(sWS)}, {s(sCNT)}\ns_addc_u32 {s(aFL+1)}, {s(sWS+1)}, 0")
        a(f"s_and_b32 {s(sT1)}, {s(W8)}, 1\ns_lshl2_add_u32 {s(sCNT)}, {s(sT1)}, {s(sCNT)}\ns_add_u32 {s(sCNT)}, {s(sCNT)}, 32\nv_mov_b32 v9, {s(sCNT)}\nv_mov_b32 v8, 1")
        a(f"s_mul_i32 {s(sT2)}, {s(sT2)}, 7168")
        a(f"s_mul_i32 s4, {s(sI)}, {28*1024}\ns_add_u32 s4, s4, {s(sT2)}\ns_add_u32 s4, s4, {WS_PQ}\ns_add_u32 s5, s4, 4096")
        a(f"s_mul_i32 s40, {s(sI)}, {HS}\ns_add_u32 s40, s40, {s(sT2)}\ns_add_u32 s40, s40, {112*1024}\ns_add_u32 s41, s40, 4096")
        a(f"s_lshl_b32 {s(sT1)}, {s(sT1)}, 10\ns_lshr_b32 {s(sT2)}, {s(W8)}, 1\ns_mul_i32 {s(sT2)}, {s(sT2)}, {REG}\ns_add_u32 {s(sT1)}, {s(sT1)}, {s(sT2)}\nv_add_u32 v10, {s(sT1)}, {v(vL16)}")
        a(f"s_cmp_eq_u32 {s(sWV)}, 2\ns_cselect_b32 s44, -1, 0\ns_mov_b32 s45, 0\ns_cmp_eq_u32 {s(sWV)}, 1\ns_cselect_b32 s47, -1, 0\ns_mov_b32 s46, 0")
        a(f"s_mov_b32 {s(sMSK)}, 0xffff0000\ns_mov_b32 {s(sHI)}, 0\ns_mov_b32 {s(sHI+1)}, -1\ns_mov_b32 {s(aEPS)}, 0x358637bd")
        a(f"v_add_u32 v12, {2*REG + xs}, {v(vL16)}\nv_add_u32 v11, {xs}, {v(vL16)}")
        a(f"s_mov_b32 {s(sCNT)}, 0\nL_kpoll:")
        a.wait_all(vm=True)
        a(f"v_cmp_eq_u32 vcc, 0, v14\ns_cmp_eq_u64 vcc, 0\ns_cbranch_scc1 L_kgo")
        if o['SL2']: a(f"s_sleep {o['SL2']}")
        a(f"buffer_load_dword v14, v1, {s(rWS,4)}, {s(sT0)} offen sc1")
        a(f"s_add_u32 {s(sCNT)}, {s(sCNT)}, 1\ns_cmp_lt_u32 {s(sCNT)}, {SPIN}\ns_cbranch_scc1 L_kpoll\nL_kgo:")
        self.stamp(a, 7)
        gt = []
        def acc(i):
            a.wait(vm=gt[i])
            for d in range(4):
                t0 = S + 2 * d if i == 0 else TM + 2 * d
                a(f"v_lshlrev_b32 {v(t0)}, 16, {v(G+4*i+d)}\nv_and_b32 {v(t0+1)}, {s(sMSK)}, {v(G+4*i+d)}")
                if i: a(f"v_pk_add_f32 {v(S+2*d,2)}, {v(S+2*d,2)}, {v(t0,2)}")
        for n in range(16):
            if n and n % 4 == 0: a(f"s_addk_i32 {s(sSO)}, 4096")
            gt.append(a.vm(f"buffer_load_dwordx4 {v(G+4*n,4)}, {v(vL16)}, {s(rWS,4)}, {s(sSO)} offen offset:{(n%4)*1024} sc1"))
            if n >= 6: acc(n - 6)
        for n in range(10, 16): acc(n)
        for d in range(4): a(f"v_cvt_pk_bf16_f32 {v(TM+d)}, {v(S+2*d)}, {v(S+2*d+1)}")
        for d in (0, 1): a(f"v_cndmask_b32 {v(TM+d)}, {v(TM+d)}, 0, s[44:45]")
        for d in (2, 3): a(f"v_cndmask_b32 {v(TM+d)}, {v(TM+d)}, 0, s[46:47]")
        a.ds(f"ds_write_b128 v10, {v(TM,4)} offset:{xs}")
        self.stamp(a, 8)
        self.poll_issue(a, 8, aFL); self.poll_check(a, 8, aFL, 0, 2)
        pt = {}
        for t in range(7):
            pt[t] = a.vm(f"buffer_load_dwordx4 {v(P+4*t,4)}, {v(vL16)}, {s(rWS,4)}, s{4+t//4} offen offset:{(t%4)*1024} sc1")
        a("s_barrier")
        self.stamp(a, 9)
        for u in range(4):
            for f in range(2): tk = a.ds(f"ds_read_b128 {v(KVA+8*u+4*f,4)}, {'v11' if u < 2 else 'v12'} offset:{(u&1)*REG + f*1024}")
        def nm(hp):
            Pp = P + 14 * hp
            a.wait(vm=pt[3 + 3 * hp], lg=tk)
            for k in range(2):
                for T in range(2):
                    N = v(NUM + 32 * hp + 16 * T, 16)
                    a(f"v_mfma_f32_32x32x16_bf16 {N}, {v(KVA+16*hp+8*T+4*k,4)}, {v(Pp+6*T+4*k,4)}, {N if k else 0}")
        def ov(hp):
            Pp = P + 14 * hp
            def sto(t): self.last_store = a.vm(f"buffer_store_dwordx4 {v(P+4*t,4)}, {v(vL16)}, {s(rWS,4)}, s{40+t//4} offen offset:{(t%4)*1024} sc1")
            NA = NUM + 32 * hp; NB = NA + 16; E = s(aEPS)
            a(f"v_add_f32 {v(TM)}, {E}, {v(NA+12)}\nv_add_f32 {v(TM+1)}, {E}, {v(NA+12)}\nv_add_f32 {v(TM+2)}, {E}, {v(NB)}\nv_add_f32 {v(TM+3)}, {E}, {v(NB)}")
            a(f"v_permlane32_swap_b32 {v(TM)}, {v(TM+1)}\nv_permlane32_swap_b32 {v(TM+2)}, {v(TM+3)}")
            a(f"v_rcp_f32 {v(TM+1)}, {v(TM+1)}\nv_rcp_f32 {v(TM+2)}, {v(TM+2)}")
            for T in range(2):
                for d in range(8):
                    r = NA + 16 * T + 2 * d
                    a(f"v_mul_f32 {v(r)}, {v(r)}, {v(TM+1+T)}\nv_mul_f32 {v(r+1)}, {v(r+1)}, {v(TM+1+T)}")
                    dst = Pp + d if T == 0 else (TM + 4 + d if d < 2 else Pp + 6 + d)
                    a(f"v_cvt_pk_bf16_f32 {v(dst)}, {v(r)}, {v(r+1)}")
                    if T == 1 and d == 1:
                        a(f"v_cndmask_b32 {v(Pp+6)}, {v(Pp+6)}, {v(TM+4)}, {s(sHI,2)}\nv_cndmask_b32 {v(Pp+7)}, {v(Pp+7)}, {v(TM+5)}, {s(sHI,2)}")
                    done = {(0,0,3): 0, (0,1,1): 1, (0,1,5): 2, (1,0,1): 3, (1,0,5): 4, (1,1,3): 5, (1,1,7): 6}.get((hp, T, d))
                    if done is not None: sto(done)
        nm(0); nm(1); ov(0); ov(1)
        a.wait(vm=self.last_store)
        a.vm(f"buffer_store_dword v8, v9, {s(rWS,4)}, 0 offen sc1")
        self.stamp(a, 10); self.flush_stamp(a)
        a("s_branch L_fin")

    def phase2(self):
        b = self.b; o = self.o
        NS = o['NS']; lagv = o['LAGV']
        RES, B2, XW, BW = 224, 240, 248, 28
        self.stamp(b, 8)
        tk = {}; ring = {}; freering = list(range(NS)); st = dict(cur=None, first=True)
        def mf(d, x, y, c): return f"v_mfma_f32_32x32x16_bf16 {d}, {x}, {y}, {c}"
        acc = lambda q: v(ACC + 16 * q, 16)
        def moved(t): return t in self.w2_issued[:self.mv_next]
        def old(t, lag): return b.vm_issued - t >= lag or t <= b.vm_done
        hline = lambda t, q, c: mf(acc(q), v(self.wreg[t] + 4 * (q & 1), 4), v(96 + 8 * ring[t] + 4 * (q >> 1), 4), c)
        kept = set()
        def give(t):
            r = self.wreg[t]
            if self.wkeep and r >= RES: kept.add(r)
            else: self.wfree.append(r)
        nl = o['NLAST']; lastH = list(range(35 - nl, 35))
        tasks = deque(range(35 - nl))
        def fillers():
            self.mv_release()
            for k in range(2):
                if self.mv_ready(o['LAG']): self.mv_one()
        def mfma(lag, fill=True):
            if st['cur'] is None:
                if not tasks: return False
                t = tasks[0]
                if not (('h', t, 1) in tk and old(tk['h', t, 1], lag) and moved(t)): return False
                tasks.popleft()
                b.wait(vm=tk['h', t, 1], lg=self.mv_t[t])
                st['cur'] = (t, deque(hline(t, q, "0" if st['first'] else acc(q)) for q in (3, 2, 1, 0))); st['first'] = False
            t, lines = st['cur']
            b(lines.popleft())
            if not lines: st['cur'] = None; freering.append(ring[t]); give(t)
            if fill: fillers()
            return True
        def progress():
            if mfma(0): return
            if self.mv_ready(0): self.mv_one(); return
            self.mv_release()
            if self.dma_ready(): self.dma_one(); return
            b.wait_all(lg=True); self.mv_release()
            assert self.dma_ready() or self.mv_ready(0), ("stuck", list(tasks))
        nD = sum(len(it['ops']) for it in self.dq); nD0 = nD
        pre = min(nD, o['DPRE']); nD -= pre; d0 = o['D0']
        seq = [('dma',)] * pre + [('check', 8, 0, 1, 9)]; given = 0
        for t in range(35):
            if t == 14: seq.append(('check', 8, 0, 4, 11))
            if t == 28: seq.append(('check', 2, 32, 1, 12))
            if t == 16: seq.append(('keep',))
            if t == o.get('RESAT', 30): seq.append(('res',))
            seq += [('h', t, 0), ('h', t, 1)]
            want = min(nD, -(-nD * (t + 1 - d0) // o['DSPREAD'])) if t >= d0 else 0
            seq += [('dma',)] * (want - given); given = max(given, want)
        assert given == nD
        out = []
        for it in seq:
            if it[0] == 'check': out.insert(max(0, len(out) - o['PLEAD']), ('issue',) + it[1:])
            out.append(it)
        barrier_done = False; owed = 0
        for it in out:
            kind = it[0]
            if kind == 'issue': self.poll_issue(b, it[1], sFL, it[2]); continue
            if kind == 'check':
                if it[4] == 9: self.stamp(b, 7)
                self.poll_check(b, it[1], sFL, it[2], it[3]); self.stamp(b, it[4]); continue
            if kind == 'keep':
                self.wkeep = True
                for r in list(self.wfree):
                    if r >= RES: self.wfree.remove(r); kept.add(r)
                continue
            if kind == 'dma':
                self.mv_release()
                while self.dq and not self.dma_ready() and (len(self.mv_freed) < self.mv_next or self.mv_ready(o.get('LAGMIN', 4))):
                    if len(self.mv_freed) < self.mv_next: b.wait(lg=self.mv_t[self.w2_issued[len(self.mv_freed)]]); self.mv_release()
                    else: self.mv_one()
                if not self.dma_ready(): owed += bool(self.dq); continue
            mfma(lagv, fill=False)
            if kind == 'dma': self.dma_one()
            elif kind == 'h':
                _, t, k = it
                if k == 0:
                    while not freering: progress()
                    ring[t] = freering.pop(0)
                u = t % 14; va = (2, bHB, bHO)[t // 14] + k
                so = s(sHC[u // 4]) if u >= 4 else "0"
                if t == o['LIMOFF']: self.lim = 999
                self.throttle(8, self.lim)
                tk['h', t, k] = b.vm(f"buffer_load_dwordx4 {v(96+8*ring[t]+4*k,4)}, v{va}, {s(rWS,4)}, {so} offen offset:{(u%4)*1024} sc1")
            elif kind == 'res':
                while XW not in kept: progress()
                b.vm(f"buffer_load_dwordx4 {v(XW,4)}, {v(bOA)}, {s(rX,4)}, {s(sXB)} offen")
                b.vm(f"buffer_load_dwordx4 {v(XW+4,4)}, {v(bOA)}, {s(rX,4)}, {s(sXB2)} offen")
                tk['res'] = b.vm(f"buffer_load_dwordx4 {v(BW,4)}, v6, {s(rB2,4)}, {s(sCB)} offen")
            fillers()
            if not mfma(lagv): fillers()
            self.mv_release()
            if owed and self.dma_ready():
                mfma(lagv, fill=False); self.dma_one(); owed -= 1; fillers(); mfma(lagv)
            if not barrier_done and self.mv_next == 35:
                st['since'] = st.get('since', 0) + 1
                if st['since'] == 2: b.wait(lg=max(self.mv_t.values())); b("s_barrier"); barrier_done = True
        self.stamp(b, 13)
        print("phase 2: dma", nD0, "left", len(self.dq), "tasks left after the last load:", list(tasks), "moved", self.mv_next, "barrier", barrier_done)
        while tasks or st['cur'] or self.mv_next < 35: progress()
        if not barrier_done:
            b.wait_all(lg=True); b("s_barrier")
        assert len(kept) == 4
        self.stamp(b, 14)
        ru = deque(); B = lambda t: self.lines(b, ru, t)
        for d in range(4): B(f"v_lshlrev_b32 {v(B2+2*d)}, 16, {v(BW+d)}\nv_and_b32 {v(B2+2*d+1)}, {s(sMSK)}, {v(BW+d)}")
        for d in range(8):
            B(f"v_lshlrev_b32 {v(RES+2*d)}, 16, {v(XW+d)}\nv_and_b32 {v(RES+2*d+1)}, {s(sMSK)}, {v(XW+d)}")
            B(f"v_add_f32 {v(RES+2*d)}, {v(RES+2*d)}, {v(B2+(2*d)%8)}\nv_add_f32 {v(RES+2*d+1)}, {v(RES+2*d+1)}, {v(B2+(2*d+1)%8)}")
        wq = deque()
        def wr(q, h): return b.ds(f"ds_write_b128 {v(bWA+q)}, {v(ACC+16*q+4*h,4)} offset:{q*4352 + h*1088}")
        b.wait(vm=tk['res'])
        for q in (3, 2, 1, 0):
            for j, t in enumerate(lastH):
                b.wait(vm=tk['h', t, 1], lg=self.mv_t[t])
                b(hline(t, q, acc(q)))
                if wq and (q < 2 or j == len(lastH) - 1): wr(*wq.popleft())
                else:
                    for k in range(6):
                        if ru: ru.popleft()()
            wq.extend((q, h) for h in range(4))
        while wq:
            t = wr(*wq.popleft())
            for k in range(5):
                if ru: ru.popleft()()
        while ru: ru.popleft()()
        b.wait(lg=t); b("s_barrier")
        rt = {}
        for m in range(2):
            for hi in range(2):
                for q in range(4): rt[m, hi] = b.ds(f"ds_read_b128 {v(ACC+16*q+8*m+4*hi,4)}, {v(bRD)} offset:{q*4352 + hi*512 + m*256}")
        Pk = 96; mod = {0: "", 1: " sc1", 2: " nt", 3: " sc0 sc1"}[o['OUTM']]
        for m in range(2):
            for hi in range(2):
                b.wait(lg=rt[m, hi])
                for k in (0, 2):
                    r = ACC + 8 * m + 4 * hi + k
                    b(f"v_pk_add_f32 {v(r,2)}, {v(r,2)}, {v(r+16,2)}\nv_pk_add_f32 {v(r+32,2)}, {v(r+32,2)}, {v(r+48,2)}")
                    b(f"v_pk_add_f32 {v(r,2)}, {v(r,2)}, {v(RES+8*m+4*hi+k,2)}")
                for k in (0, 2):
                    r = ACC + 8 * m + 4 * hi + k
                    b(f"v_pk_add_f32 {v(r,2)}, {v(r,2)}, {v(r+32,2)}")
                for k in (0, 2):
                    r = ACC + 8 * m + 4 * hi + k
                    b(f"v_cvt_pk_bf16_f32 {v(Pk+4*m+2*hi+k//2)}, {v(r)}, {v(r+1)}")
            b.vm(f"buffer_store_dwordx4 {v(Pk+4*m,4)}, {v(bOA)}, {s(rOUT,4)}, {s(sXB if m == 0 else sXB2)} offen{mod}")
        self.flush_stamp(b)

    def build(self):
        o = self.o
        p = self.entry()
        bp = self.b_prologue()
        P = lambda p_, e: ('p', p_, e)
        streams = {}
        for role in ('m', 'h'):
            self.a = a = self.new(); a.tag = 'a'; a.vm_issued = 1
            self.b = b = self.new(); b.tag = 'b'; b.set_state(bp.state()); b.pending = bp.pending
            self.q_reset(); self.frag_list(role)
            lab0 = self.nlab
            if role == 'm':
                self.b_main_setup()
                for k in [P(0, e) for e in range(7)] + [P(1, e) for e in range(7)] + [('s', h) for h in range(4)] + [P(2, e) for e in range(7)] + [('w', t) for t in range(35)]: self.enq(k)
                def leave():
                    self.b_alive = False
                    print("prefetches left", len(self.pfq))
                    if not o.get('PFKEEP'): self.pfq.clear()
                    print("B leaves at", self.clk, "free slots", len(self.free), "w2 issued", len(self.w2_issued), "moved", self.mv_next)
                self.on_all_published = leave
            else:
                b("L_Bh:"); self.pfq = deque()
                if o['PFA'] or o['PFB'] or o.get('PFC'): self.b_help_setup()
                for e in range(7): self.enq(P(0, e))
                st = dict(done=False)
                def gone():
                    self.b_pf(o.get('PFC', 0)); self.flush_stamp(b); b("s_branch L_join"); self.b_alive = False
                self.on_all_published = gone
                base_dma = self.dma_one
                def dma_pf():
                    base_dma()
                    if not self.dq and not st['done']: st['done'] = True; self.b_pf(o['PFB'])
                self.dma_one = dma_pf
            self.a_layernorm()
            ln = a.text()
            mark = len(a.L)
            if role == 'm':
                a(f"s_cmp_ge_u32 {s(sCS)}, 7\ns_cbranch_scc1 L_Ah")
                self.a_main(); self.phase2()
                streams['a'] = a.text(); streams['b'] = b.text(); ln_m = ln
            else:
                assert ln == ln_m, "layernorm code differs between the roles"
                a("L_Ah:")
                self.a_helper()
                a.L = a.L[mark:]
                streams['ah'] = a.text(); streams['bh'] = b.text()
            self.count = getattr(self, 'count', 0) + len(a.L) + len(b.L)
        f = self.new(); f.tag = 'f'
        f("L_fin:")
        if self.probe is not None:
            f.wait_all(vm=True); self.stamp(f, 15); f.wait_all(lg=True)
            f("s_sub_u32 s1, s100, s0\ns_lshl_b32 s1, s1, 2\ns_add_u32 s1, s1, 4000")
            f("L_spin:\ns_memrealtime s[100:101]"); f.wait_all(lg=True)
            f("s_sub_u32 s100, s100, s0\ns_cmp_lt_u32 s100, s1\ns_cbranch_scc1 L_spin")
        if self.stamps:
            f.wait_all(vm=True)
            self.stamp(f, 15); self.flush_stamp(f)
            f("s_memrealtime s[100:101]"); f.wait_all(lg=True); f("v_writelane_b32 v5, s100, 16")
            f(f"v_readlane_b32 {s(sT1)}, v5, 63\ns_nop 3\ns_lshl3_add_u32 {s(sT0)}, s2, {s(sT1)}\ns_lshl_b32 {s(sT0)}, {s(sT0)}, 8\ns_add_u32 {s(sT0)}, {s(sT0)}, {WS_ST}")
            f(f"v_lshlrev_b32 v6, 2, {v(vL)}")
            f.vm(f"buffer_store_dword v5, v6, {s(rWS,4)}, {s(sT0)} offen")
        f("L_end:\ns_endpgm")
        f("L_init:")
        self.srd(f, rWS, sWS, WS_SIZE)
        f(f"v_mov_b32 v40, 0\nv_mov_b32 v41, 0\nv_mov_b32 v42, 0\nv_mov_b32 v43, 0\nv_lshlrev_b32 v44, 7, {v(vL)}")
        f(f"s_lshl_b32 {s(sT0)}, {s(sWV)}, 12\ns_add_u32 {s(sT0)}, {s(sT0)}, {WS_FL}")
        f(f"s_lshl_b32 {s(sT1)}, {s(sWV)}, 13\ns_add_u32 {s(sT1)}, {s(sT1)}, {WS_FK}")
        for k in range(4): f(f"buffer_store_dwordx4 v[40:43], {v(vL16)}, {s(rWS,4)}, {s(sT0)} offen offset:{1024*k} sc1")
        f(f"buffer_store_dwordx4 v[40:43], v44, {s(rWS,4)}, {s(sT1)} offen sc1")
        f(f"v_mov_b32 v45, 1\ns_lshl_b32 {s(sT0)}, {s(sWV)}, 2\nv_mov_b32 v46, {s(sT0)}")
        f.wait_all(vm=True)
        f(f"global_store_dword v46, v45, {s(sDBG,2)} sc1")
        f("s_branch L_noinit")
        self.body = p.text() + streams['a'] + streams['ah'] + streams['bh'] + bp.text() + streams['b'] + f.text()

    def text(self):
        hdr = open(f"cdna_kernels/{NAME}.s.ref").read().split("\n")
        top = [l for l in hdr if l.startswith(";") and "@launch" not in l and "Override" not in l and "grid=ceil" not in l]
        out = "\n".join(top) + "\n; @launch grid=(256,1,1) block=(512,1,1) lds=163840\n"
        out += f'.amdgcn_target "amdgcn-amd-amdhsa--gfx950"\n.text\n.globl {NAME}_kernel\n.p2align 8\n.type {NAME}_kernel,@function\n'
        out += self.body
        out += f'''.section .rodata,"a"
.p2align 6
.amdhsa_kernel {NAME}_kernel
  .amdhsa_next_free_vgpr 256
  .amdhsa_next_free_sgpr 102
  .amdhsa_accum_offset 256
  .amdhsa_group_segment_fixed_size 0
  .amdhsa_kernarg_size 88
  .amdhsa_user_sgpr_count 2
  .amdhsa_user_sgpr_kernarg_segment_ptr 1
  .amdhsa_system_sgpr_workgroup_id_x 1
  .amdhsa_float_denorm_mode_32 3
.end_amdhsa_kernel
'''
        return out

if __name__ == "__main__":
    out = sys.argv[1]; stamps = False; probe = None; opt = {}
    for x in sys.argv[2:]:
        if x == "stamps": stamps = True
        elif x.startswith("probe="): probe = (x[6], int(x[7:]))
        else: k, val = x.split("="); opt[k] = float(val) if "." in val else int(val)
    g = Gen(stamps, probe, opt); g.build(); open(out, "w").write(g.text())
    print("lines", g.count)
```

```python
import sys
from collections import deque
from asmlib import Asm

NAME = "parallel_sum__linear_attn_block__dense_activation_squared_relu__prompt"
WS_H = 0; WS_PQ = 0x900000; WS_KV = 0xB00000; WS_FL = 0xB80000; WS_PL = 0xB84000; WS_FK = 0xB88000
WS_ST = 0xC00000; WS_SIZE = 0xD00000
HS = 140 * 1024
REG = 40960
INIT_WG = 248
SPIN = 40000

def v(a, n=1): return f"v{a}" if n == 1 else f"v[{a}:{a+n-1}]"
def s(a, n=1): return f"s{a}" if n == 1 else f"s[{a}:{a+n-1}]"

sX, sWQ, sWO, sW1, sB1, sW2, sB2, sOUT, sDBG, sWS = 4, 6, 8, 12, 14, 16, 18, 20, 22, 24
sWV, sRB, sSO = 3, 26, 27
rX, rWS = 28, 36
sXB = 61
sI, sJ, sROLE, sCS, sRB2, sT0, sT1, sT2, sHST = 65, 66, 67, 68, 69, 70, 71, 72, 73
sROT, sCNT = 75, 77
sMSK = 10
sP = 84
rB1 = 32
aM = [40, 42, 44, 46, 10]
aONE, aL2E, aEPS, aKVO, aHST, aPQS, aBIA, aBI2, aHS2 = 48, 50, 51, 52, 53, 54, 55, 56, 57
aONB = 62
aFL = 58; sHI = 82; sG1 = 84
rW, rW2, rWO, rOUT, rB2 = 32, 40, 44, 48, 52
sCOL, sSGL, sWOB, sW2B, sSO2, sFL = 62, 74, 76, 12, 13, 14
sK1 = 91; sRS = 56
sHC = [None, 84 + 8, 85 + 8, 86 + 8, 87 + 8, 88 + 8, 89 + 8, 4, 5]
sTG, sCB, sXB2 = 60, 78, 79

vL = 0; vXD = 1; vRN = 2; vXR = 14; vSR = 14; vL16 = 18; vGO = 19; vWR = 20
RINGB, RING = 28, 6
AS, VA, BI, TMP = 52, 176, 208, 232
def Uof(st): return 52 + 8 * st if st < 8 else 116 + 8 * (st - 8)
def Fof(st): return 84 + 4 * st if st < 23 else 236 + 4 * (st - 23)
def Rof(st): return Uof(st) + 4 if st < 23 else Fof(st)
bSD, bOA, bWK, bWD, bW2D, bP2R, bRD, bHB, bHO, bWA = 1, 4, 8, 10, 12, 14, 17, 20, 22, 24
ACC = 32

DEF = dict(D=4, CX=70, CK=150, CF=100, L1F=7, ALLF=12, CQ=140, CW=90, CS=60, SLACK=600, TSLOT=38, TFRAG=68, XPRE=12, B0AT=16,
           PUBALL=99, PUBLAT=500, LAG=10, LAGV=10, KVLAG=16, B0=4, B1=5, B2=5, B3=5, FLAG=26,
           DPRE=30, D0=0, DSPREAD=20, PLEAD=6, NLAST=3, NS=6, OUTM=0, PRIO=0, NOW2=3, SL1=2, SL2=3,
           LIM=80, LIM0=999, LIMOFF=14, SPF=0, VPFF=0, SPF0=0, SPFC=180, ROTX=1, WROT=0, LEADF=10, LEADK=21, LSTEP=0, XSLACK=100, BPRIO=0, KPRI=1, FKS=64, NI=4, LM=1, KVD=6, KPRE=2, RESE=1, CL=120, LIMFROM=7, QN=5, SYNCF=1, SYNCK=0, RESAT=26)

class Gen:
    def __init__(self, stamps=False, probe=None, opt=None):
        self.probe = probe; self.o = dict(DEF); self.o.update(opt or {})
        self.sm = self.fm = ' sc1'; self.lm = '' if self.o['LM'] else ' sc1'
        self.stamps = stamps; self.nlab = 0; self.parts = []
    def new(self):
        x = Asm(); x.guard = False; x.pending = None; x.m0 = None; x.so2 = None; return x
    def lab(self, p):
        self.nlab += 1; return f"L_{p}_{self.nlab}"
    def stamp(self, x, k):
        if self.probe == (x.tag, k): x("s_memrealtime s[100:101]")
        if not self.stamps: return
        if x.pending is not None: x(f"v_writelane_b32 v5, s100, {x.pending}\nv_writelane_b32 v5, s0, {32+x.pending}")
        x(f"s_memtime s[100:101]\ns_memrealtime s[0:1]")
        x.pending = k
    def flush_stamp(self, x):
        if self.stamps and x.pending is not None:
            x.wait_all(lg=True); x(f"v_writelane_b32 v5, s100, {x.pending}\nv_writelane_b32 v5, s0, {32+x.pending}"); x.pending = None
    def srd(self, x, r, p, size):
        x(f"s_mov_b32 {s(r)}, {s(p)}\ns_mov_b32 {s(r+1)}, {s(p+1)}\ns_mov_b32 {s(r+2)}, {size}\ns_mov_b32 {s(r+3)}, 0x20000")
    def lines(self, x, q, text): q.extend([(lambda l=l: x(l)) for l in text.split("\n")])
    def ids(self, x):
        x(f"s_and_b32 {s(sT0)}, s2, 3\ns_lshl3_add_u32 {s(sRB2)}, {s(sT0)}, {s(sT2)}\ns_and_b32 {s(sT0)}, s2, 4\ns_add_u32 {s(sRB2)}, {s(sRB2)}, {s(sT0)}")
        x(f"s_and_b32 {s(sJ)}, {s(sCS)}, 3\ns_add_u32 {s(sJ)}, {s(sJ)}, {s(sT0)}\ns_lshr_b32 {s(sROLE)}, {s(sCS)}, 2")
    def rot_step(self, x):
        x(f"s_add_u32 {s(sROT)}, {s(sROT)}, 1\ns_cmp_eq_u32 {s(sROT)}, 7\ns_cselect_b32 {s(sROT)}, 0, {s(sROT)}")
    def poll_issue(self, x, n, base, off=0):
        x(f"s_load_dword{'x%d' % n if n > 1 else ''} {s(sP, n)}, {s(base, 2)}, {off} glc")
    def poll_check(self, x, n, base, off, bit, cnt=None):
        L = self.lab("poll"); E = self.lab("pend"); y = self.slow
        def cond(x):
            regs = list(range(sP, sP + (cnt or n), 2))
            while len(regs) > 1:
                r = regs.pop(); x(f"s_and_b64 {s(regs[0],2)}, {s(regs[0],2)}, {s(r,2)}")
            if n > 1: x(f"s_and_b32 {s(sP)}, {s(sP)}, {s(sP+1)}")
            x(f"s_and_b32 {s(sP)}, {s(sP)}, {bit}")
        x.wait_all(lg=True)
        cond(x)
        x(f"s_cbranch_scc0 {L}\n{E}:")
        y(f"{L}:\ns_mov_b32 {s(sCNT)}, 0\n{L}_l:")
        if self.o['SL1']: y(f"s_sleep {self.o['SL1']}")
        self.poll_issue(y, n, base, off)
        y.wait_all(lg=True)
        cond(y)
        y(f"s_cbranch_scc1 {E}")
        y(f"s_add_u32 {s(sCNT)}, {s(sCNT)}, 1\ns_cmp_lt_u32 {s(sCNT)}, {SPIN}\ns_cbranch_scc1 {L}_l\ns_branch {E}")
    def go_load(self):
        a = self.a
        a(f"v_and_b32 {v(vGO)}, {4 * self.o['NI'] - 1}, {v(vL)}\nv_lshlrev_b32 {v(vGO)}, 2, {v(vGO)}")
        self.tgo = a.vm(f"global_load_dword {v(vGO)}, {v(vGO)}, {s(sDBG,2)}")
        return 3
    def go_check(self):
        a = self.a; E = self.lab("go"); L = self.lab("gol")
        assert self.b_alive
        a.wait(vm=self.tgo)
        a(f"v_cmp_eq_u32 vcc, 0, {v(vGO)}\ns_cbranch_vccnz {L}\n{E}:")
        y = self.slow
        y(f"{L}:\ns_mov_b32 {s(sP)}, 0\n{L}_l:\ns_sleep 8")
        y(f"v_and_b32 {v(vGO)}, {4 * self.o['NI'] - 1}, {v(vL)}\nv_lshlrev_b32 {v(vGO)}, 2, {v(vGO)}")
        y.vm(f"global_load_dword {v(vGO)}, {v(vGO)}, {s(sDBG,2)} sc1"); y.wait_all(vm=True)
        y(f"v_cmp_eq_u32 vcc, 0, {v(vGO)}\ns_cbranch_vccz {E}")
        y(f"s_add_u32 {s(sP)}, {s(sP)}, 1\ns_cmp_lt_u32 {s(sP)}, {SPIN}\ns_cbranch_scc1 {L}_l\ns_branch {E}")
        return 3

    def set_m0(self, x, off):
        if x.m0 is not None and -32768 <= off - x.m0 <= 32767: x(f"s_addk_i32 m0, {off - x.m0}")
        else: x(f"s_add_u32 m0, {s(sRB)}, {off}")
        x.m0 = off
    def set_so2(self, base, off):
        b = self.b
        if b.so2 and b.so2[0] == base and -32768 <= off - b.so2[1] <= 32767: b(f"s_addk_i32 {s(sSO2)}, {off - b.so2[1]}")
        else: b(f"s_add_u32 {s(sSO2)}, {s(base)}, {off}")
        b.so2 = (base, off)
    def q_reset(self):
        self.dq = deque(); self.tick = {}; self.slot = {}; self.free = list(range(14, 20)); self.est = {}
        self.w2_issued = []; self.mv_next = 0; self.mv_sub = 0; self.mv_t = {}; self.mv_freed = set()
        self.wfree = [96 + 8 * k for k in range(self.o['NS'], 20)]; self.wreg = {}; self.wkeep = False
        self.pub = -1; self.lastread = {}; self.allread = set(); self.reserve = []; self.hold = {14, 15, 16, 17} if self.role == 'k' else set()
        self.forced = 0; self.publag = []; self.b_alive = True; self.hook = None; self.vpf = False; self.kvst = None; self.blines = {}; self.lim = self.o['LIM']; self.b_gone = False; self.kx_done = False
    def enq(self, key):
        b = self.b; kind = key[0]
        def dma(pre, vaddr, srd, so, off, last=None):
            def f():
                if pre: pre()
                self.throttle(16 if self.heavy(key) else 8, self.o['LIM0'] if (key[:2] == ('p', 0) or self.pub < self.o['LIMFROM']) else self.lim)
                self.tick[key] = b.vm(f"buffer_load_dwordx4 {v(vaddr)}, {s(srd,4)}, {s(so)} offen offset:{off} lds")
                if last: last()
            return f
        if kind == 'p':
            _, p, e = key
            kt, va, srd = sK1 + e, (bWK if p < 2 else bWD), rW
            def pre(): self.set_m0(b, self.slot[key] * 2048); b(f"s_add_u32 {s(sSO)}, {s(sCOL+p)}, {s(kt)}")
            ops = [dma(pre, va, srd, sSO, 0), dma(None, va + 1, srd, sSO, 1024)]
        elif kind == 's':
            def pre(e):
                def f(): self.set_m0(b, self.slot[key] * 2048 + (e & 1) * 1024); b(f"s_add_u32 {s(sSO)}, {s(sSGL)}, {s(sK1+e)}")
                return f
            ops = [dma(pre(e), bSD, rW, sSO, 0) for e in (2 * key[1], 2 * key[1] + 1) if e < 7]
        elif kind == 'w':
            t = key[1]
            def pre():
                self.set_m0(b, self.slot[key] * 2048)
                if t < 24: self.set_so2(16 + (t % 8) // 2, (32 * (t // 8) + t % 2) * 14336)
                elif t < 32: b(f"s_add_u32 {s(sSO2)}, {s(7 if t < 28 else sWOB)}, {s(20 + t % 4)}"); b.so2 = None
                else: self.set_so2(sWOB, (t - 28) * 14336)
            srd = rW2 if t < 28 else rWO
            ops = [dma(pre, bW2D, srd, sSO2, 0), dma(None, bW2D + 1, srd, sSO2, 1024, lambda: self.w2_issued.append(t))]
        self.dq.append(dict(key=key, ops=deque(ops)))
    def cost(self, key):
        o = self.o
        if key[0] == 'w' and key[1] in self.lead: return o['CL']
        return {'s': o['CQ'], 'w': o['CW']}.get(key[0]) or (o['CK'] if self.heavy(key) else o['CF'])
    def heavy(self, key): return key[0] == 's' or (key[0] == 'p' and self.role == 'k' and key[1] < 2)
    def throttle(self, lines, lim):
        b = self.b
        tot = lines; t = b.vm_issued
        while t > b.vm_done and tot + self.blines.get(t, 8) <= lim: tot += self.blines.get(t, 8); t -= 1
        b.wait(vm=t)
        self.blines[b.vm_issued + 1] = lines
    def dma_ready(self):
        return bool(self.dq) and (self.dq[0].get('started') or len(self.free) > 0)
    def dma_one(self):
        it = self.dq[0]
        if not it.get('started'): it['started'] = True; self.slot[it['key']] = self.free.pop(0)
        self.vclk += self.cost(it['key']); self.est[it['key']] = self.vclk
        it['ops'].popleft()()
        if self.pub >= self.o['SPF0']: self.pfacc += self.cost(it['key']) / self.o['SPFC']
        while self.pfacc >= 1: self.spf(1); self.pfacc -= 1
        if not it['ops']: self.dq.popleft()
        self.kv_flag(self.b)
        left = sum(1 for it in self.dq if it['key'][0] != 'w')
        vp = self.o.get('VPF' + self.role.upper())
        if vp is not None and not self.vpf and left <= vp and not self.dq[0].get('started'):
            b = self.b; self.vpf = True; both = self.o.get('VPFK') is not None
            n2, no = (14, 4) if both else (25, 7)
            b(f"s_lshl2_add_u32 {s(sT2)}, s2, {s(sWV)}\ns_mul_i32 {s(sT0)}, {s(sT2)}, {n2}\ns_mul_i32 {s(sT1)}, {s(sT2)}, {no}")
            b(f"v_min_u32 v66, {n2-1}, {v(vL)}\nv_add_lshl_u32 v66, v66, {s(sT0)}, 7\nv_min_u32 v67, {no-1}, {v(vL)}\nv_add_lshl_u32 v67, v67, {s(sT1)}, 7")
            self.blines[b.vm(f"buffer_load_dword v66, v66, {s(rW2,4)}, 0 offen")] = n2
            b.vm(f"buffer_load_dword v67, v67, {s(rWO,4)}, 0 offen")
    def issued(self, key): return key in self.tick and not any(it['key'] == key for it in self.dq)
    def mv_ready(self, lag):
        if self.mv_sub: return True
        if self.mv_next >= len(self.w2_issued) or not self.wfree: return False
        t = self.w2_issued[self.mv_next]
        return self.b.vm_issued - self.tick['w', t] >= lag or self.tick['w', t] <= self.b.vm_done
    def mv_one(self):
        b = self.b; t = self.w2_issued[self.mv_next]; c = 1
        if self.mv_sub == 0:
            self.wfree.sort(); self.wreg[t] = self.wfree.pop(0)
            c += bool(b.wait(vm=self.tick['w', t]))
        T, rd = self.mv_sub >> 1, self.mv_sub & 1
        self.mv_t[t] = b.ds(f"ds_read_b64_tr_b16 {v(self.wreg[t]+4*T+2*rd, 2)}, {v(bP2R+T)} offset:{self.slot['w', t]*2048 + rd*1024}")
        self.mv_sub += 1
        if self.mv_sub == 4: self.mv_sub = 0; self.mv_next += 1
        return c
    def mv_release(self):
        for k in range(self.mv_next):
            t = self.w2_issued[k]
            if t not in self.mv_freed and self.mv_t[t] <= self.b.lg_done:
                self.mv_freed.add(t); self.free.append(self.slot['w', t])
    def b_advance(self):
        b = self.b; o = self.o
        self.vclk = max(self.vclk, self.tprev)
        while self.dq and self.vclk <= self.clk + o['SLACK'] and not (o.get('NOW2', 0) & (1 if self.role == 'f' else 2) and self.dq[0]['key'][0] == 'w' and self.dq[0]['key'][1] not in self.lead):
            self.mv_release()
            if not self.dma_ready():
                if len(self.mv_freed) < self.mv_next:
                    b.wait(lg=self.mv_t[self.w2_issued[len(self.mv_freed)]]); continue
                if self.mv_ready(o.get('LAGMIN', 4)):
                    for k in range(4): self.mv_one()
                    continue
                break
            self.dma_one()
            if self.mv_ready(o['LAG']):
                for k in range(4): self.mv_one()
    def barrier(self, vm=None):
        if self.b_alive:
            self.kv_flag(self.b, force=True)
            self.b.wait(vm=vm); self.b("s_barrier")
        self.a("s_barrier"); self.tprev = self.clk
        for k, t in list(self.lastread.items()):
            if k in self.allread and t <= self.a.lg_done:
                del self.lastread[k]
                (self.reserve if self.slot[k] in self.hold and k[0] == 'p' else self.free).append(self.slot[k])
    def sync(self, slack=None):
        keep = self.o['SLACK']
        if slack is not None: self.o['SLACK'] = slack
        self.publish(None); self.o['SLACK'] = keep
    def publish(self, c):
        if not self.b_alive:
            assert c is None and self.b_gone
            self.barrier(); return
        self.b_advance()
        if (c if c is not None else 99) >= self.o.get('ALL' + self.role.upper(), 99):
            while self.dma_ready() and self.dq[0]['key'][0] != 'w': self.dma_one()
            self.vclk = min(self.vclk, self.clk)
            for k in self.est: self.est[k] = min(self.est[k], self.clk - (0 if c is not None else self.o['PUBLAT']))
        if c is not None:
            while not self.issued(self.cons[c]):
                assert self.dma_ready(), ("cannot publish", c)
                self.dma_one(); self.forced += 1
        if not self.hook and self.pub >= self.o['SPF0']: self.spf(self.o.get('SPFB' + self.role.upper(), 0))
        tgt = self.pub if c is None else c
        force_all = c is not None and c >= self.o['PUBALL']
        while (c != 0 and tgt + 1 < len(self.cons) and self.issued(self.cons[tgt + 1])
               and (force_all or self.est[self.cons[tgt + 1]] + self.o['PUBLAT'] <= self.clk)): tgt += 1
        tk = max(self.tick[k] for k in self.cons[:tgt + 1])
        self.publag.append((tgt, self.b.vm_issued - tk))
        self.barrier(vm=tk)
        if self.hook: h, self.hook = self.hook, None; h()
        self.pub = tgt
        if c is None: self.syncs_left -= 1
        if tgt + 1 == len(self.cons) and self.syncs_left == 0: self.on_all_published()

    def frag_list(self, role):
        fr = []
        for stage, p in enumerate((0, 1, 2, None) if role == 'f' else (0, 1, 2)):
            for st in range(28):
                if p is None:
                    e = st // 4
                    fr.append(dict(key=('s', e // 2), addr=vSR + (st & 3), sub=(e & 1) * 1024, rd=256, stage=stage, s=st, T=0))
                else:
                    for T in range(2):
                        base = vSR if (role, p, T) == ('k', 2, 1) else vWR + 4 * T
                        fr.append(dict(key=('p', p, st // 4), addr=base + (st & 3), sub=0, rd=512, stage=stage, s=st, T=T))
        if role == 'k' and self.o.get('QSEQ', 1):
            q = [f for f in fr if f['stage'] == 2]
            fr = [f for f in fr if f['stage'] < 2] + [f for f in q if f['T'] == 0] + [f for f in q if f['T'] == 1]
        self.cons = []
        for f in fr:
            if f['key'] not in self.cons: self.cons.append(f['key'])
        for f in fr: f['c'] = self.cons.index(f['key'])
        self.fr = fr
    def read_frag(self, n):
        a = self.a
        if n >= len(self.fr): return
        f = self.fr[n]
        if f['c'] > self.pub: self.publish(f['c'])
        r = RINGB + 4 * (n % RING); off = self.slot[f['key']] * 2048 + f['sub']
        a.ds(f"ds_read_b64_tr_b16 {v(r,2)}, {v(f['addr'])} offset:{off}")
        f['t'] = a.ds(f"ds_read_b64_tr_b16 {v(r+2,2)}, {v(f['addr'])} offset:{off+f['rd']}")
        self.lastread[f['key']] = f['t']
        if not any(g['key'] == f['key'] for g in self.fr[n + 1:]): self.allread.add(f['key'])
    def pop(self, fillers):
        n0 = self.a.vm_issued
        r = fillers.popleft()() or 1
        if self.a.vm_issued > n0: self.vclk += self.o['CS']
        return r
    def fill(self, fillers, budget):
        self.clk += self.o['TSLOT'] + 4 * max(0, min(budget, len(fillers)) - 4)
        while fillers and budget > 0: budget -= self.pop(fillers)
    def run_stage(self, stage, acc, swap, fillers, budget=4, pre=None, forced=None, minfill=0, finish=0, syncs=()):
        a = self.a; D = self.o['D']
        idx = [n for n, f in enumerate(self.fr) if f['stage'] == stage]
        for line in (pre or []):
            a(line); self.fill(fillers, budget + 2)
        for k, n in enumerate(idx):
            f = self.fr[n]
            a.wait(lg=f['t'])
            w = v(RINGB + 4 * (n % RING), 4); x = v(Fof(f['s']), 4)
            c = acc(f['T']) if (pre or f['s'] > 0) else "0"
            a(f"v_mfma_f32_32x32x16_bf16 {acc(f['T'])}, {x if swap else w}, {w if swap else x}, {c}")
            if k in syncs: self.sync()
            self.read_frag(n + D)
            last = (n % 2 == 1)
            fl = forced(f['s'], f['T']) if forced else []
            self.fill(fillers, budget - len(fl) - (1 if last else 0))
            for g in fl: g()
            left = max(0, len(idx) - k - 1 - finish)
            while fillers and minfill and len(fillers) > left * minfill: self.pop(fillers); self.clk += 2
            fs = self.o.get('FSTEP', 5)
            if self.o.get('FINE') == stage and k % fs == 0 and 19 + k // fs < 32: self.stamp(a, 19 + k // fs)
            if last and n + 2 < len(self.fr): a.wait(lg=self.fr[n + 2]['t'])
    def cvt_forced(self, st, T):
        a = self.a; n = st + 2
        if not 8 <= n < 23: return []
        return [lambda d=d: a(f"v_cvt_pk_bf16_f32 {v(Fof(n)+d)}, {v(Uof(n)+2*d)}, {v(Uof(n)+2*d+1)}") for d in ((0, 1) if T == 0 else (2, 3))]
    def g3_ops(self):
        ops = []
        for st in range(23, 28):
            for d in range(4):
                r = Fof(st) + d; t0, t1 = (1, 4) if d & 1 else (7, vGO)
                self.lines(self.a, ops, f"v_lshlrev_b32 v{t0}, 16, {v(r)}\nv_and_b32 v{t1}, {s(sMSK)}, {v(r)}\nv_fma_f32 v{t0}, v{t0}, v2, v3\nv_fma_f32 v{t1}, v{t1}, v2, v3\nv_cvt_pk_bf16_f32 {v(r)}, v{t0}, v{t1}")
        return ops
    def phi_ops(self, src, dst=None):
        a = self.a; ops = []
        for d in range(8):
            t0 = TMP + 2 * (d & 1)
            for k in range(2):
                x = src + 2 * d + k
                self.lines(a, ops, f"v_mul_f32 {v(t0+k)}, {s(aL2E)}, {v(x)}")
                def ex(e=t0+k):
                    a(f"v_exp_f32_e64 {v(e)}, {v(e)} clamp"); return 2
                ops.append(ex)
                self.lines(a, ops, f"v_max_f32 {v(x)}, {s(aEPS)}, {v(x)}\nv_add_f32 {v(t0+k)}, {v(t0+k)}, {v(x)}")
            self.lines(a, ops, f"v_cvt_pk_bf16_f32 {v((dst or src)+d)}, {v(t0)}, {v(t0+1)}")
        return ops

    def entry(self):
        p = self.new(); p.tag = 'p'
        p(f"{NAME}_kernel:")
        p("s_cmp_ge_u32 s2, 256\ns_cbranch_scc1 L_end")
        if self.stamps: p("s_memrealtime s[78:79]\ns_memtime s[80:81]")
        if self.probe is not None: p("s_memrealtime s[100:101]")
        p("s_load_dwordx16 s[4:19], s[0:1], 0\ns_load_dwordx4 s[20:23], s[0:1], 64\ns_load_dwordx2 s[24:25], s[0:1], 80")
        p("s_getpc_b64 s[98:99]\nL_pc:")
        p(f"s_lshr_b32 {s(sT1)}, s2, 3\ns_lshl_b32 s3, {s(sT1)}, 7")
        p("v_lshrrev_b32 v1, 5, v0\nv_lshl_add_u32 v1, v1, 12, s3")
        p("v_min_u32 v1, L_last - L_pc, v1")
        p.vm(f"global_load_dword {v(vGO)}, v1, s[98:99]")
        p(f"v_lshrrev_b32 v1, 6, v0\nv_and_b32 {v(vL)}, 63, v0")
        p(f"v_readfirstlane_b32 s99, v1")
        p(f"s_and_b32 {s(sT2)}, {s(sT1)}, 3\ns_lshr_b32 {s(sCS)}, {s(sT1)}, 2")
        p(f"s_and_b32 {s(sI)}, s2, 3\ns_lshl2_add_u32 {s(sI)}, {s(sI)}, {s(sT2)}")
        p(f"s_lshl1_add_u32 {s(sROT)}, {s(sT2)}, {s(sCS)}")
        p(f"s_cmp_ge_u32 {s(sROT)}, 7\ns_cselect_b32 {s(sT0)}, 7, 0\ns_sub_u32 {s(sROT)}, {s(sROT)}, {s(sT0)}")
        if self.o['ROTX']:
            p(f"s_and_b32 {s(sT0)}, s2, 1\ns_add_u32 {s(sROT)}, {s(sROT)}, {s(sT0)}\ns_cmp_eq_u32 {s(sROT)}, 7\ns_cselect_b32 {s(sROT)}, 0, {s(sROT)}")
        p(f"s_and_b32 {s(sWV)}, s99, 3\ns_mul_i32 {s(sRB)}, {s(sWV)}, {REG}")
        p(f"v_lshrrev_b32 v6, 3, {v(vL)}\nv_and_b32 v7, 7, {v(vL)}\nv_lshlrev_b32 {v(vL16)}, 4, {v(vL)}")
        p("s_cmp_ge_u32 s99, 4\ns_cbranch_scc1 L_B")
        return p
    def after_args(self, x):
        x.wait_all(lg=True)
        if self.probe is not None: x("s_mov_b32 s0, s100")
        if self.stamps: x("v_writelane_b32 v5, s78, 18\nv_writelane_b32 v5, s80, 0\nv_writelane_b32 v5, s99, 63")
        self.stamp(x, 1)

    def b_prologue(self):
        b = self.new(); b.tag = 'b'; b.vm_issued = 1
        b("L_B:")
        self.ids(b)
        b(f"s_movk_i32 {s(sT0)}, 3584\ns_cselect_b32 {s(sRS)}, 2688, {s(sT0)}\ns_cselect_b32 {s(sCNT)}, 6, 7\ns_cbranch_scc1 L_Bck")
        b(f"s_lshl_b32 {s(sCOL)}, {s(sJ)}, 7\ns_add_u32 {s(sCOL+1)}, {s(sCOL)}, 1024\ns_add_u32 {s(sCOL+2)}, {s(sCOL)}, 2048\ns_branch L_Bcd\nL_Bck:")
        b(f"s_mul_i32 {s(sCOL)}, {s(sJ)}, 112\ns_add_u32 {s(sCOL+1)}, {s(sCOL)}, 1792\ns_addk_i32 {s(sCOL)}, 896\ns_lshl_b32 {s(sCOL+2)}, {s(sJ)}, 7\nL_Bcd:")
        b(f"s_mul_i32 {s(sT0)}, {s(sWV)}, {s(sRS)}\ns_lshl_b32 {s(sT0)}, {s(sT0)}, 4\ns_lshl_b32 {s(sSGL)}, {s(sJ)}, 6\ns_addk_i32 {s(sSGL)}, 3072")
        for r in (sCOL, sCOL + 1, sCOL + 2, sSGL): b(f"s_add_u32 {s(r)}, {s(r)}, {s(sT0)}")
        b(f"s_lshl_b32 {s(sT1)}, {s(sRS)}, 6")
        for n in range(7):
            if n: self.rot_step(b)
            b(f"s_mul_i32 {s(sK1+n)}, {s(sROT)}, {s(sT1)}")
        b(f"v_and_b32 v32, 2, v6\nv_lshlrev_b32 v32, 1, v32\nv_xor_b32 v32, v7, v32\nv_lshlrev_b32 v33, 4, v32")
        b(f"v_mul_u32_u24 v34, 896, v6\nv_add_u32 {v(bW2D)}, v34, v33\nv_add_u32 {v(bW2D+1)}, 6144, {v(bW2D)}")
        b(f"s_lshl_b32 {s(sT0)}, {s(sRS)}, 3\ns_addk_i32 {s(sT0)}, -1024")
        b(f"v_mul_u32_u24 v34, {s(sRS)}, v6\nv_add_u32 {v(bWD)}, v34, v33\nv_add_u32 {v(bWD+1)}, {s(sT0)}, {v(bWD)}")
        b(f"v_min_u32 v32, {s(sCNT)}, v32\nv_lshl_add_u32 {v(bWK)}, v32, 4, v34\nv_add_u32 {v(bWK+1)}, {s(sT0)}, {v(bWK)}")
        self.after_args(b)
        b(f"s_cmp_ge_u32 s2, {256 - self.o['NI']}\ns_cbranch_scc1 L_init\nL_noinit:")
        self.b = b
        self.b_main_setup()
        b(f"s_cmp_ge_u32 s2, {256 - self.o['NI']}\ns_cbranch_scc1 L_go\nL_gone:")
        if self.o['BPRIO']: b(f"s_setprio {self.o['BPRIO']}")
        b(f"s_cmp_lg_u32 {s(sROLE)}, 0\ns_cbranch_scc1 L_Bk")
        return b
    def spf(self, n):
        for k in range(n):
            if self.pfq: self.b(self.pfq.popleft())
    def b_main_setup(self):
        b = self.b; o = self.o
        self.pfq = deque()
        if o['SPF']:
            b(f"s_lshr_b32 {s(sT0)}, s2, 3\ns_and_b32 {s(sT1)}, s2, 3\ns_lshl2_add_u32 {s(sT0)}, {s(sT0)}, {s(sT1)}\ns_lshl2_add_u32 {s(sT0)}, {s(sT0)}, {s(sWV)}\ns_min_u32 {s(sT0)}, {s(sT0)}, 447")
            b(f"s_bfe_u32 {s(sT1)}, s2, 0x10002")
            b(f"s_mul_i32 {s(sT2)}, {s(sT0)}, 2688\ns_mul_i32 {s(sCNT)}, {s(sT1)}, 384\ns_add_u32 {s(sT2)}, {s(sT2)}, {s(sCNT)}\ns_add_u32 s82, {s(sWQ)}, {s(sT2)}\ns_addc_u32 s83, {s(sWQ+1)}, 0")
            L = lambda base, off, n: [f"s_load_dwordx2 s[80:81], {s(base,2)}, {off + 128*k + 60}" for k in range(n)]
            parts = dict(k=L(82, 896, 4), a=L(84, 0, 4), v=L(82, 1792, 4), b=L(84, 1024, 4), q=L(82, 0, 4), c=L(84, 2048, 4), s=L(86, 0, 2),
                         x=L(88, 0, 4), y=L(88, 458752, 4), z=L(88, 2 * 458752, 4), w=L(14, 0, 2), o=L(58, 0, 4))
            for ch in ["kabvcqsxyzwo", "kaxyzwo", "xyzwo", "kabvxyzwo", "kabxvcyqszwo", "ka", "kabv"][o.get('PFO', 0)]: self.pfq.extend(parts[ch])
            b(f"s_mul_i32 {s(sT2)}, {s(sT0)}, 3584\ns_lshl_b32 {s(sCNT)}, {s(sT1)}, 9\ns_add_u32 {s(sCNT)}, {s(sT2)}, {s(sCNT)}\ns_add_u32 s84, {s(sW1)}, {s(sCNT)}\ns_addc_u32 s85, {s(sW1+1)}, 0")
            b(f"s_lshl_b32 {s(sCNT)}, {s(sT1)}, 8\ns_add_u32 {s(sCNT)}, {s(sT2)}, {s(sCNT)}\ns_addk_i32 {s(sCNT)}, 3072\ns_add_u32 s86, {s(sW1)}, {s(sCNT)}\ns_addc_u32 s87, {s(sW1+1)}, 0")
            b(f"s_lshl1_add_u32 {s(sT0)}, {s(sT0)}, {s(sT1)}\ns_lshl_b32 {s(sT2)}, {s(sT0)}, 9\ns_add_u32 s88, {s(sW2)}, {s(sT2)}\ns_addc_u32 s89, {s(sW2+1)}, 0")
            b(f"s_lshl_b32 {s(sT2)}, {s(sT0)}, 8\ns_add_u32 {s(sT2)}, {s(sT2)}, {3*458752}\ns_add_u32 s14, {s(sW2)}, {s(sT2)}\ns_addc_u32 s15, {s(sW2+1)}, 0")
            b(f"s_mul_i32 {s(sT2)}, {s(sT0)}, 448\ns_and_b32 {s(sT2)}, {s(sT2)}, 0xffffff80\ns_add_u32 s58, {s(sWO)}, {s(sT2)}\ns_addc_u32 s59, {s(sWO+1)}, 0")
            self.spf(o.get('SPFE', 7))
        b(f"s_cmp_eq_u32 {s(sROLE)}, 0\ns_cselect_b32 {s(rW)}, {s(sW1)}, {s(sWQ)}\ns_cselect_b32 {s(rW+1)}, {s(sW1+1)}, {s(sWQ+1)}\ns_mul_i32 {s(rW+2)}, {s(sRS)}, 448\ns_mov_b32 {s(rW+3)}, 0x20000")
        b(f"s_cmp_lt_u32 {s(sCS)}, 7")
        b(f"s_mov_b32 {s(rW2)}, {s(sW2)}\ns_mov_b32 {s(rW2+1)}, {s(sW2+1)}\ns_cselect_b32 {s(rW2+2)}, {1792*896}, 0\ns_mov_b32 {s(rW2+3)}, 0x20000")
        b(f"s_mov_b32 {s(rWO)}, {s(sWO)}\ns_mov_b32 {s(rWO+1)}, {s(sWO+1)}\ns_cselect_b32 {s(rWO+2)}, {448*896}, 0\ns_mov_b32 {s(rWO+3)}, 0x20000")
        self.srd(b, rWS, sWS, WS_SIZE)
        b(f"s_mov_b64 s[8:9], {s(sDBG,2)}")
        self.srd(b, rX, sX, 1835008); self.srd(b, rOUT, sOUT, 1835008); self.srd(b, rB2, sB2, 896)
        b(f"s_lshl_b32 {s(sT0)}, {s(sCS)}, 7")
        b(f"s_mul_i32 {s(sW2B)}, {s(sWV)}, {8*14336}\ns_add_u32 {s(sW2B)}, {s(sW2B)}, {s(sT0)}")
        b(f"s_mul_i32 s7, {s(sWV)}, {4*14336}\ns_add_u32 s7, s7, {s(sT0)}\ns_add_u32 s7, s7, {96*14336}")
        b(f"s_mul_i32 {s(sWOB)}, {s(sWV)}, {112*896}\ns_add_u32 {s(sWOB)}, {s(sWOB)}, {s(sT0)}")
        b(f"s_mov_b32 {s(sMSK)}, 0xffff0000\ns_and_b32 s11, {s(sRB2)}, {3 if o['WROT'] else 0}")
        if o['WROT'] == 1: b(f"s_cmp_eq_u32 {s(sROLE)}, 0\ns_cselect_b32 s11, s11, 0")
        for k in range(4): b(f"s_xor_b32 {s(20+k)}, s11, {k}\ns_mul_i32 {s(20+k)}, {s(20+k)}, 14336\ns_lshl1_add_u32 {s(16+k)}, {s(20+k)}, {s(sW2B)}")
        b(f"s_lshr_b32 {s(sTG)}, {s(sWV)}, 1\ns_lshl1_add_u32 {s(sTG)}, {s(sRB2)}, {s(sTG)}")
        b(f"s_and_b32 {s(sT1)}, {s(sWV)}, 1\ns_lshl_b32 {s(sT1)}, {s(sT1)}, 6\ns_add_u32 {s(sCB)}, {s(sT0)}, {s(sT1)}")
        b(f"s_mul_i32 {s(sXB)}, {s(sTG)}, {32*896}\ns_add_u32 {s(sXB)}, {s(sXB)}, {s(sCB)}\ns_add_u32 {s(sXB2)}, {s(sXB)}, {16*896}")
        b(f"v_lshrrev_b32 v7, 2, {v(vL)}\nv_and_b32 v6, 3, {v(vL)}\nv_lshlrev_b32 v6, 4, v6")
        b(f"v_mul_u32_u24 {v(bOA)}, 896, v7\nv_add_u32 {v(bOA)}, {v(bOA)}, v6\nv_mul_u32_u24 {v(bSD)}, 3584, v7\nv_add_u32 {v(bSD)}, {v(bSD)}, v6")
        b(f"v_mul_u32_u24 {v(bRD)}, 68, v6\nv_lshl_add_u32 {v(bRD)}, v7, 4, {v(bRD)}\nv_add_u32 {v(bRD)}, {s(sRB)}, {v(bRD)}")
        b(f"v_lshrrev_b32 v32, 5, {v(vL)}\nv_bfe_u32 v33, {v(vL)}, 2, 2\nv_lshrrev_b32 v34, 1, v6\nv_bfe_u32 v35, {v(vL)}, 4, 1\nv_lshl_add_u32 v34, v35, 5, v34")
        b(f"v_and_b32 v35, 2, v33\nv_lshlrev_b32 v35, 5, v35\nv_xor_b32 v34, v34, v35\nv_lshl_add_u32 v32, v32, 2, v33\nv_lshl_add_u32 v32, v32, 7, v34")
        b(f"v_xor_b32 v32, {s(sT1)}, v32\nv_add_u32 {v(bP2R)}, {s(sRB)}, v32\nv_xor_b32 {v(bP2R+1)}, 64, {v(bP2R)}")
        b(f"s_mul_i32 {s(sCNT)}, {s(sWV)}, {8*1024}\ns_mul_i32 {s(sT0)}, {s(sTG)}, {HS}\ns_add_u32 {s(sT0)}, {s(sT0)}, {s(sCNT)}\nv_add_u32 v2, {s(sT0)}, {v(vL16)}")
        b(f"s_xor_b32 {s(sT0)}, {s(sTG)}, 1\ns_mul_i32 {s(sT0)}, {s(sT0)}, {HS}\ns_add_u32 {s(sT0)}, {s(sT0)}, {s(sCNT)}\nv_add_u32 v3, {s(sT0)}, {v(vL16)}")
        for q in range(4):
            b(f"s_xor_b32 {s(sT0)}, {s(sWV)}, {q}\ns_mul_i32 {s(sT0)}, {s(sT0)}, {REG}\nv_add_u32 {v(bWA+q)}, {s(sT0)}, {v(vL16)}")
        self.spf(o['SPF'] - o.get('SPFE', 7))

    def a_layernorm(self):
        a = self.a; o = self.o
        if o['PRIO']: a(f"s_setprio {o['PRIO']}")
        a(f"s_lshl2_add_u32 {s(sHST)}, {s(sI)}, {s(sWV)}\ns_mul_i32 {s(sXB)}, {s(sHST)}, {32*896}\ns_lshl_b32 {s(sG1)}, {s(sROT)}, 7")
        a(f"v_lshrrev_b32 v8, 1, v6\nv_xor_b32 v8, v7, v8\nv_lshlrev_b32 v8, 4, v8\nv_xor_b32 v9, 64, v8")
        a(f"v_mul_u32_u24 v10, 896, v6")
        a(f"v_add_u32 {v(vXD)}, v10, v8\nv_add_u32 v9, v10, v9")
        a(f"v_add_u32 {v(vXD+1)}, 6144, v9\nv_add_u32 {v(vXD+2)}, {2*6144}, {v(vXD)}\nv_add_u32 {v(vXD+3)}, {3*6144}, v9")
        a("s_mov_b32 s30, 1835008\ns_mov_b32 s31, 0x20000")
        for n in range(1, 3): self.rot_step(a); a(f"s_lshl_b32 {s(sG1+n)}, {s(sROT)}, 7")
        xq = dict(n=0); xk = {}
        def xprep():
            n = xq['n']
            if n < 28 and n % 4 == 0: self.set_m0(a, (n // 4) * 4096); a(f"s_add_u32 {s(sSO)}, {s(sXB)}, {s(sG1+n//4)}")
        def xdma():
            n = xq['n']
            if n >= 28: return
            xk[n // 4] = a.vm(f"buffer_load_dwordx4 {v(vXD+n%4)}, {s(rX,4)}, {s(sSO)} offen offset:{(n%4)*1024} lds")
            xq['n'] += 1
            if xq['n'] != 12: xprep()
        xprep()
        self.after_args(a)
        a("s_mov_b32 s28, s4\ns_mov_b32 s29, s5")
        for k in range(12): xdma()
        for n in range(3, 7): self.rot_step(a); a(f"s_lshl_b32 {s(sG1+n)}, {s(sROT)}, 7")
        xprep()
        self.ids(a)
        self.srd(a, rWS, sWS, WS_SIZE); self.srd(a, rB1, sB1, 3584)
        T0 = 236
        a(f"v_and_b32 v8, 31, {v(vL)}\nv_lshrrev_b32 v10, 5, {v(vL)}")
        a(f"v_bfe_u32 v11, {v(vL)}, 1, 3\nv_xor_b32 v11, v10, v11\nv_lshlrev_b32 v11, 4, v11")
        a(f"v_lshl_add_u32 v11, v8, 7, v11\nv_add_u32 {v(vXR)}, {s(sRB)}, v11")
        for j in range(1, 4): a(f"v_xor_b32 {v(vXR+j)}, {32*j}, {v(vXR)}")
        a(f"s_mov_b32 vcc_lo, 0xf0f00f0f\ns_mov_b32 vcc_hi, vcc_lo\nv_mov_b32 v11, 0x3f803f80")
        for k in range(4): a(f"v_cndmask_b32 {v(48+k)}, 0, v11, vcc")
        for r, val in zip(aM, (0xaaaaaaaa, 0xcccccccc, 0xff00ff00, 0xf0f0f0f0, 0xffff0000)): a(f"s_mov_b32 {s(r)}, {val:#x}\ns_mov_b32 {s(r+1)}, {s(r)}")
        a(f"s_mov_b32 {s(sHI)}, 0\ns_mov_b32 {s(sHI+1)}, -1\ns_mov_b32 {s(aL2E)}, 0x3fb8aa3b\ns_mov_b32 {s(aEPS)}, 0x358637bd")
        a(f"s_mov_b32 {s(aONE)}, 0xf0000000\ns_mov_b32 {s(aONE+1)}, {s(aONE)}\ns_mov_b32 {s(aONB)}, 15\ns_mov_b32 {s(aONB+1)}, 15")
        a(f"s_cmp_eq_u32 {s(sROLE)}, 0\ns_cselect_b32 {s(sT1)}, 64, 48\ns_cselect_b64 vcc, -1, 0")
        a(f"v_bfe_u32 v11, {v(vL)}, 2, 2")
        a(f"v_and_b32 v12, 3, {v(vL)}\nv_lshlrev_b32 v12, 3, v12\nv_bfe_u32 v13, {v(vL)}, 4, 1\nv_lshl_add_u32 v12, v13, 5, v12")
        a(f"v_and_b32 v13, 2, v11\nv_lshlrev_b32 v13, 5, v13\nv_lshl_add_u32 v9, v10, 3, v11")
        a(f"v_lshl_add_u32 v7, v9, 6, v12")
        a(f"v_lshlrev_b32 v9, 7, v9\nv_xor_b32 v8, v12, v13\nv_add_u32 {v(vWR)}, v9, v8")
        a(f"v_xor_b32 v8, 64, {v(vWR)}\nv_cndmask_b32 v7, v8, v7, vcc\nv_add_u32 v8, {s(sT1)}, v12\nv_xor_b32 v8, v8, v13\nv_add_u32 {v(vWR+4)}, v9, v8")
        for T in range(2):
            for r in range(1, 4): a(f"v_add_u32 {v(vWR+4*T+r)}, {REG*r}, {v(vWR+4*T)}")
        a(f"v_add_u32 v10, {s(sRB)}, {v(vL16)}\nv_mov_b32 v8, 1")
        a(f"s_lshr_b32 {s(sT0)}, {s(sHST)}, 1\ns_lshr_b32 {s(sT1)}, {s(sJ)}, 1\ns_lshl2_add_u32 {s(sT0)}, {s(sT0)}, {s(sT1)}\ns_lshl_b32 {s(sT0)}, {s(sT0)}, 7")
        a(f"s_and_b32 {s(sT1)}, {s(sHST)}, 1\ns_lshl3_add_u32 {s(sT0)}, {s(sT1)}, {s(sT0)}\ns_and_b32 {s(sT1)}, {s(sJ)}, 1\ns_lshl2_add_u32 {s(sT0)}, {s(sT1)}, {s(sT0)}")
        a(f"s_lshl_b32 {s(sT1)}, {s(sHST)}, 7\ns_lshl2_add_u32 {s(sT1)}, {s(sJ)}, {s(sT1)}\ns_add_u32 {s(sT1)}, {s(sT1)}, {WS_PL - WS_FL}")
        a(f"s_cmp_eq_u32 {s(sROLE)}, 0\ns_cselect_b32 {s(sT0)}, {s(sT0)}, {s(sT1)}\ns_add_u32 {s(sT0)}, {s(sT0)}, {WS_FL}\nv_mov_b32 v9, {s(sT0)}")
        misc = deque(); M = lambda t: self.lines(a, misc, t)
        M(f"s_lshl4_add_u32 {s(sT0)}, {s(sJ)}, {s(sI)}\ns_lshl_b32 {s(sT0)}, {s(sT0)}, 7\ns_lshl2_add_u32 {s(sT0)}, {s(sWV)}, {s(sT0)}")
        M(f"s_add_u32 {s(sT0)}, {s(sT0)}, {WS_FK}\nv_mov_b32 v13, {s(sT0)}")
        M(f"s_lshl2_add_u32 {s(sT0)}, {s(sJ)}, {s(sWV)}\ns_lshl4_add_u32 {s(sT0)}, {s(sT0)}, {s(sI)}\ns_lshl_b32 {s(sT0)}, {s(sT0)}, 10\ns_add_u32 {s(aKVO)}, {s(sT0)}, {WS_KV}")
        M(f"s_mul_i32 {s(aHST)}, {s(sHST)}, 35\ns_lshl1_add_u32 {s(aHS2)}, {s(aHST)}, {s(sJ)}\ns_add_u32 {s(aHST)}, {s(aHST)}, {s(sJ)}\ns_lshl_b32 {s(aHST)}, {s(aHST)}, 12")
        M(f"s_add_u32 {s(aHS2)}, {s(aHS2)}, 48\ns_lshl_b32 {s(aHS2)}, {s(aHS2)}, 11")
        M(f"s_mul_i32 {s(aPQS)}, {s(sHST)}, 7\ns_add_u32 {s(aPQS)}, {s(aPQS)}, {s(sJ)}\ns_lshl_b32 {s(aPQS)}, {s(aPQS)}, 12\ns_add_u32 {s(aPQS)}, {s(aPQS)}, {WS_PQ}")
        misc.append(lambda: a(f"s_cmp_eq_u32 {s(sJ)}, 7\ns_cselect_b32 {s(aPQS)}, {WS_SIZE}, {s(aPQS)}"))
        M(f"s_lshl_b32 {s(aBIA)}, {s(sJ)}, 7\ns_lshl_b32 {s(aBI2)}, {s(sJ)}, 6")
        xt = {}
        def xread(st):
            if st >= 28: return
            n = st // 4
            if st % 4 == 0:
                while xq['n'] < 4 * n + 4: xdma()
                a.wait(vm=xk[n])
                if n == 0: self.stamp(a, 2)
            xt[st] = a.ds(f"ds_read_b128 {v(Rof(st),4)}, {v(vXR+st%4)} offset:{n*4096}")
            if st % 4 == 3:
                for k in (2 * n, 2 * n + 1):
                    self.slot['x', k] = k; self.lastread['x', k] = xt[st]; self.allread.add(('x', k))
        for k in range(o['XPRE'] - 12): xdma()
        xread(0); xread(1)
        self.clk = 0; self.tprev = 0
        for st in range(28):
            r = Rof(st); b = Uof(st)
            a.wait(lg=xt[st])
            a(f"v_mfma_f32_32x32x16_bf16 v[28:43], {v(r,4)}, {v(r,4)}, {'v[28:43]' if st else 0}")
            xread(st + 2)
            xdma()
            self.clk += o['TFRAG'] if st < 16 else 52
            for d in range(4):
                if d == 2: a(f"v_mfma_f32_16x16x32_bf16 v[44:47], v[48:51], {v(r,4)}, {'v[44:47]' if st else 0}")
                if st < 23: a(f"v_lshlrev_b32 {v(b+2*d)}, 16, {v(r+d)}\nv_and_b32 {v(b+2*d+1)}, {s(sMSK)}, {v(r+d)}")
            if misc: misc.popleft()()
            if st == o['B0AT']:
                self.vclk = max(self.clk, 24 * o['CX']); self.stamp(self.b, 2); self.barrier(); self.stamp(self.b, 3)
        assert not misc
        self.stamp(a, 3)
        a(f"v_mov_b32 {v(vSR)}, v7")
        for r in range(1, 4): a(f"v_add_u32 {v(vSR+r)}, {REG*r}, v7")
        inv = 0x3b124925
        a(f"s_nop 2\nv_mul_f32 v44, {inv:#x}, v44")
        for lvl, step in enumerate((1, 2, 4)):
            for k in range(0, 16, 2 * step): a(f"v_cndmask_b32 {v(28+k)}, {v(28+k)}, {v(28+k+step)}, {s(aM[lvl],2)}")
        a(f"v_cndmask_b32 v29, v28, v36, {s(aM[4],2)}\nv_cndmask_b32 v28, v28, v36, {s(aM[4],2)}")
        a(f"v_permlane32_swap_b32 v29, v28")
        a(f"v_cndmask_b32 v28, v29, v28, {s(aM[3],2)}")
        a(f"v_mul_f32 v28, {inv:#x}, v28\nv_fma_f32 v28, -v44, v44, v28\nv_max_f32 v28, 0, v28\nv_add_f32 v28, 0x3727c5ac, v28")
        a(f"v_rsq_f32 v2, v28")
        a(f"v_mul_f32_e64 v3, -v44, v2")
        self.clk += 170
        for st in list(range(7, -1, -1)) + list(range(8, 23)):
            if st == 17:
                for k in range(o['D']): self.read_frag(k)
            for d in range(4):
                r = Uof(st) + 2 * d
                a(f"v_pk_fma_f32 {v(r,2)}, {v(r,2)}, v[2:3], v[2:3] op_sel:[0,0,1] op_sel_hi:[1,0,1]")
            self.clk += 21
            if st < 8:
                for d in (3, 2, 1, 0): a(f"v_cvt_pk_bf16_f32 {v(Fof(st)+d)}, {v(Uof(st)+2*d)}, {v(Uof(st)+2*d+1)}")
                self.clk += 21
        self.stamp(a, 4)

    def store(self, r, soff, off):
        def f(): self.last_store = self.a.vm(f"buffer_store_dwordx4 {v(r,4)}, {v(vL16)}, {s(rWS,4)}, {s(soff)} offen offset:{off} sc1")
        return f
    def flag(self, get, val, va="v9"):
        a = self.a
        def f():
            a.wait(vm=get())
            a.vm(f"buffer_store_dword v8, {va}, {s(rWS,4)}, 0 offen sc1")
            if val: a(f"v_mov_b32 v8, {val}")
            return 3
        return f
    def a_ffn(self):
        a = self.a; o = self.o
        fl = deque(self.g3_ops()); A = lambda t: self.lines(a, fl, t)
        SEL = BI + 14; tb = {}
        def forced(st, T):
            ops = self.cvt_forced(st, T)
            if (st, T) == (19, 1): self.lines(a, ops, f"v_and_b32 v12, 31, {v(vL)}\nv_lshlrev_b32 v12, 1, v12")
            k = 2 * st + T - 40
            if 0 <= k < 7:
                so, off = (aBIA, 64 * (k & 1) + 1024 * (k >> 1)) if k < 6 else (aBI2, 3072)
                ops.append(lambda: tb.update({k: a.vm(f"buffer_load_ushort {v(BI+2*k)}, v12, {s(rB1,4)}, {s(so)} offen offset:{off}")}))
            if (st, T) == (24, 0): self.lines(a, ops, "\n".join(f"v_mov_b32 {v(BI+k)}, 0" for k in (1, 3, 5, 7)))
            if (st, T) == (24, 1): self.lines(a, ops, "\n".join(f"v_mov_b32 {v(BI+k)}, 0" for k in (9, 11, 13)))
            if (st, T) == (25, 0): self.lines(a, ops, "\n".join(f"v_mov_b32 {v(SEL+k)}, 0" for k in (1, 2, 3)))
            if (st, T) == (25, 1): self.lines(a, ops, f"v_mov_b32 {v(SEL)}, 0x3f80\nv_cndmask_b32 {v(SEL)}, {v(SEL)}, 0, {s(sHI,2)}")
            return ops
        def bias(acc, tiles, cont=False): return [f"v_mfma_f32_32x32x16_bf16 {acc(T)}, {v(BI+2*k,4)}, {v(SEL,4)}, {acc(T) if cont else 0}" for T, k in enumerate(tiles)]
        def epi(h, so, off):
            ops = []
            for d in range(8):
                t0 = h + 2 * d
                self.lines(a, ops, f"v_mul_f32_e64 {v(t0)}, {v(t0)}, |{v(t0)}|\nv_mul_f32_e64 {v(t0+1)}, {v(t0+1)}, |{v(t0+1)}|")
                self.lines(a, ops, f"v_cvt_pk_bf16_f32 {v(h+d)}, {v(t0)}, {v(t0+1)}\nv_pk_max_i16 {v(h+d)}, {v(h+d)}, 0")
                if d % 4 == 3: ops.append(self.store(h + d - 3, so, off + (d // 4) * 1024))
            return ops
        accS = lambda T: v(AS + 16 * T, 16); accA = lambda T: v(VA + 16 * T, 16)
        big = lambda: 99; last = lambda: self.last_store
        sy = [(), (), (), ()]
        for k in range(o['SYNCF']): sy[2 + k // 2] += ((4, 32)[k % 2],)
        self.syncs_left = o['SYNCF']
        self.run_stage(0, accS, False, fl, budget=o['B0'], forced=forced, minfill=2.4, finish=12)
        assert not fl
        self.stamp(a, 5)
        fl.extend([self.go_load] + [big] * o.get('BIASLAG', 5))
        fl.append(lambda: a.wait(vm=tb[6]) and 1)
        for line in bias(accS, [0, 1], True) + bias(accA, [2, 3], True): fl.append(lambda line=line: a(line) or 2)
        fl.extend([big, big])
        fl.extend(epi(AS, aHST, 0) + epi(AS + 16, aHST, 2048)); fl.append(self.go_check)
        fl.extend([big] * o['FLAG']); fl.append(self.flag(last, 3))
        self.run_stage(1, accA, False, fl, budget=o['B1'], minfill=2.2)
        assert not fl
        self.stamp(a, 6)
        A(f"s_add_u32 {s(aHST)}, {s(aHST)}, 32768"); fl.extend([big, big, big])
        fl.extend(epi(VA, aHST, 0) + epi(VA + 16, aHST, 2048)); fl.extend([big] * o['FLAG']); fl.append(self.flag(last, 7))
        self.run_stage(2, accS, False, fl, budget=o['B2'], pre=bias(accS, [4, 5]), minfill=2, syncs=sy[2])
        assert not fl
        self.stamp(a, 7)
        A(f"s_add_u32 {s(aHST)}, {s(aHST)}, 32768"); fl.extend([big, big, big])
        fl.extend(epi(AS, aHST, 0) + epi(AS + 16, aHST, 2048))
        self.run_stage(3, accA, False, fl, budget=o['B3'], pre=bias(accA, [6]), minfill=3, syncs=sy[3])
        assert not fl and not self.b_alive
        self.stamp(a, 8)
        for g in epi(VA, aHS2, 0): g()
        self.flag(last, 0)()
        self.stamp(a, 9); self.flush_stamp(a)
        a("s_branch L_fin")
        print("F: end of phase 1 at", self.clk, "forced", self.forced, "publag", self.publag)

    def a_kvq(self):
        a = self.a; o = self.o
        fl = deque(self.g3_ops()); A = lambda t: self.lines(a, fl, t)
        accS = lambda T: v(AS + 16 * T, 16); accA = lambda T: v(VA + 16 * T, 16)
        big = lambda: 99; last = lambda: self.last_store
        self.syncs_left = 1 + o['SYNCK']
        self.run_stage(0, accS, True, fl, budget=o['B0'], forced=self.cvt_forced, minfill=2.4, finish=12)
        assert not fl
        self.stamp(a, 5)
        PK, PV, KV = (208, 224), (216, VA + 16), (VA, 208)
        self.hold = {14, 15, 16, 17}; XB = 14 * 2048
        fl.extend([self.go_load, big, big])
        A(f"v_mov_b32 v1, 0x3f803f80")
        fl.extend(self.phi_ops(AS, PK[0]) + self.phi_ops(AS + 16, PK[1])); fl.append(self.go_check)
        self.run_stage(1, accA, True, fl, budget=o['B1'], minfill=3)
        assert not fl and set(self.reserve) == self.hold
        self.stamp(a, 6)
        st = {}
        def chain():
            kvm = lambda T, k: a(f"v_mfma_f32_32x32x16_bf16 {v(KV[T],16)}, {v(PK[T]+4*k,4)}, {v(PV[T]+4*k,4)}, {v(KV[T],16) if k else 0}")
            wr = lambda g: a.ds(f"ds_write_b128 v10, {v(KV[g>>2]+4*(g&3),4)} offset:{XB + g*1024}")
            for T in range(2):
                for d in range(8):
                    a(f"v_cvt_pk_bf16_f32 {v(PV[T]+d)}, {v(VA+16*T+2*d)}, {v(VA+16*T+2*d+1)}\nv_cndmask_b32 {v(PV[T]+d)}, {v(PV[T]+d)}, v1, {s(aONE if T == 0 else aONB,2)}")
                    if T == 1 and d in (0, 1): kvm(0, d)
            kvm(1, 0); kvm(1, 1)
            for g in range(8): st['w'] = wr(g)
            self.clk += 700
            return 99
        def bar():
            a.wait(lg=st['w']); self.hook = self.b_kv; self.sync(o['XSLACK']); self.stamp(a, 8); return 2
        fl.extend([big] * o['KPRE'] + [chain, big, bar])
        q = []
        for T in range(2):
            p = self.phi_ops(AS + 16 * T)
            q.append(p[:36] + [self.store(AS + 16 * T, aPQS, 2048 * T)] + p[36:] + [self.store(AS + 16 * T + 4, aPQS, 2048 * T + 1024)])
        q0 = deque(q[0])
        def forced(stp, T):
            self.slotk = 28 * T + stp; ops = []
            if T == 1 and stp >= 3 and not fl:
                for k in range(o.get('QN', 4)):
                    if q0: ops.append(q0.popleft())
            return ops
        self.run_stage(2, accS, False, fl, budget=o.get('BK2', 9), forced=forced, syncs=(44,) if o['SYNCK'] else ())
        assert not fl and not self.b_alive
        self.stamp(a, 7)
        rest = list(q0) + q[1]
        for g in rest: g()
        self.flag(last, 0)()
        self.stamp(a, 9); self.flush_stamp(a)
        print("K: end of phase 1 at", self.clk, "forced", self.forced, "publag", self.publag)
        a(f"s_cmp_lt_u32 {s(sCS)}, 7\ns_cbranch_scc1 L_fin")
        xs = self.xs * 2048
        G, S, TM, KVA, P, NUM = 84, 212, 228, 52, 84, 140
        W8 = 99
        a(f"s_setprio {o['BPRIO']}")
        self.join_setup(a); self.poll_issue(a, 8, aFL)
        a("L_join:")
        self.poll_check(a, 8, aFL, 0, 1)
        self.stamp(a, 12)
        pt = {}
        for t in range(7):
            pt[t] = a.vm(f"buffer_load_dwordx4 {v(P+4*t,4)}, {v(vL16)}, {s(rWS,4)}, s{4+t//4} offen offset:{(t%4)*1024}{self.lm}")
        a("s_barrier")
        self.stamp(a, 13)
        for u in range(4):
            for f in range(2): tk = a.ds(f"ds_read_b128 {v(KVA+8*u+4*f,4)}, {'v11' if u < 2 else 'v12'} offset:{(u&1)*REG + f*1024}")
        def nm(hp):
            Pp = P + 14 * hp
            a.wait(vm=pt[3 + 3 * hp], lg=tk)
            for k in range(2):
                for T in range(2):
                    N = v(NUM + 32 * hp + 16 * T, 16)
                    a(f"v_mfma_f32_32x32x16_bf16 {N}, {v(KVA+16*hp+8*T+4*k,4)}, {v(Pp+6*T+4*k,4)}, {N if k else 0}")
        def ov(hp):
            Pp = P + 14 * hp
            def sto(t): self.last_store = a.vm(f"buffer_store_dwordx4 {v(P+4*t,4)}, {v(vL16)}, {s(rWS,4)}, s{40+t//4} offen offset:{(t%4)*1024}{self.sm}")
            NA = NUM + 32 * hp; NB = NA + 16; E = s(aEPS)
            a(f"v_add_f32 {v(TM)}, {E}, {v(NA+12)}\nv_add_f32 {v(TM+1)}, {E}, {v(NA+12)}\nv_add_f32 {v(TM+2)}, {E}, {v(NB)}\nv_add_f32 {v(TM+3)}, {E}, {v(NB)}")
            a(f"v_permlane32_swap_b32 {v(TM)}, {v(TM+1)}\nv_permlane32_swap_b32 {v(TM+2)}, {v(TM+3)}")
            a(f"v_rcp_f32 {v(TM+1)}, {v(TM+1)}\nv_rcp_f32 {v(TM+2)}, {v(TM+2)}")
            for T in range(2):
                for d in range(8):
                    r = NA + 16 * T + 2 * d
                    a(f"v_mul_f32 {v(r)}, {v(r)}, {v(TM+1+T)}\nv_mul_f32 {v(r+1)}, {v(r+1)}, {v(TM+1+T)}")
                    dst = Pp + d if T == 0 else (TM + 4 + d if d < 2 else Pp + 6 + d)
                    a(f"v_cvt_pk_bf16_f32 {v(dst)}, {v(r)}, {v(r+1)}")
                    if T == 1 and d == 1:
                        a(f"v_cndmask_b32 {v(Pp+6)}, {v(Pp+6)}, {v(TM+4)}, {s(sHI,2)}\nv_cndmask_b32 {v(Pp+7)}, {v(Pp+7)}, {v(TM+5)}, {s(sHI,2)}")
                    done = {(0,0,3): 0, (0,1,1): 1, (0,1,5): 2, (1,0,1): 3, (1,0,5): 4, (1,1,3): 5, (1,1,7): 6}.get((hp, T, d))
                    if done is not None: sto(done)
        nm(0); nm(1); ov(0); ov(1)
        a.wait(vm=self.last_store)
        a.vm(f"buffer_store_dword v8, v9, {s(rWS,4)}, 0 offen{self.fm}")
        self.stamp(a, 14); self.flush_stamp(a)
        a("s_branch L_fin")

    def join_setup(self, a):
        W8 = 99; xs = self.xs * 2048
        a(f"s_lshr_b32 {s(sT2)}, {s(sRB2)}, 3")
        a(f"s_and_b32 {s(sI)}, {s(sRB2)}, 7\ns_lshl3_add_u32 {s(sI)}, {s(sI)}, {s(W8)}")
        a(f"s_lshl_b32 {s(sCNT)}, {s(sI)}, 7\ns_add_u32 {s(sCNT)}, {s(sCNT)}, {WS_PL}\ns_add_u32 {s(aFL)}, {s(sWS)}, {s(sCNT)}\ns_addc_u32 {s(aFL+1)}, {s(sWS+1)}, 0")
        a(f"s_lshr_b32 {s(sCNT)}, {s(sI)}, 1\ns_lshl2_add_u32 {s(sCNT)}, {s(sCNT)}, {s(sT2)}\ns_lshl_b32 {s(sCNT)}, {s(sCNT)}, 7\ns_add_u32 {s(sCNT)}, {s(sCNT)}, {WS_FL}")
        a(f"s_and_b32 {s(sT1)}, {s(W8)}, 1\ns_lshl2_add_u32 {s(sCNT)}, {s(sT1)}, {s(sCNT)}\ns_add_u32 {s(sCNT)}, {s(sCNT)}, 16\nv_mov_b32 v9, {s(sCNT)}\nv_mov_b32 v8, 1")
        a(f"s_mul_i32 {s(sT2)}, {s(sT2)}, 7168")
        a(f"s_mul_i32 s4, {s(sI)}, {28*1024}\ns_add_u32 s4, s4, {s(sT2)}\ns_add_u32 s4, s4, {WS_PQ}\ns_add_u32 s5, s4, 4096")
        a(f"s_mul_i32 s40, {s(sI)}, {HS}\ns_add_u32 s40, s40, {s(sT2)}\ns_add_u32 s40, s40, {112*1024}\ns_add_u32 s41, s40, 4096")
        a(f"s_mov_b32 {s(sHI)}, 0\ns_mov_b32 {s(sHI+1)}, -1\ns_mov_b32 {s(aEPS)}, 0x358637bd")
        a(f"v_add_u32 v12, {2*REG + xs}, {v(vL16)}\nv_add_u32 v11, {xs}, {v(vL16)}")
    def b_kv(self):
        b = self.b; XB = 14 * 2048; R = ACC
        if self.o.get('KPRI'): b("s_setprio 3")
        self.stamp(b, 6)
        b(f"s_lshl_b32 {s(sT0)}, {s(sWV)}, 11\ns_add_u32 {s(sT0)}, {s(sT0)}, {XB}\nv_add_u32 v64, {s(sT0)}, {v(vL16)}\nv_add_u32 v65, {2*REG}, v64")
        rt = [b.ds(f"ds_read_b128 {v(R+8*sw+4*h,4)}, v{64 + (sw >> 1)} offset:{(sw&1)*REG + h*1024}") for sw in range(4) for h in range(2)]
        b(f"s_lshl2_add_u32 {s(sT0)}, {s(sJ)}, {s(sWV)}\ns_lshl4_add_u32 {s(sT0)}, {s(sT0)}, {s(sI)}\ns_lshl_b32 {s(sT0)}, {s(sT0)}, 10\ns_add_u32 {s(sT0)}, {s(sT0)}, {WS_KV}")
        FS = self.o['FKS']
        b(f"s_lshr_b32 s57, {s(sWV)}, 1\ns_lshl1_add_u32 s57, {s(sJ)}, s57\ns_lshl4_add_u32 s57, s57, {s(sI)}\ns_lshl_b32 s57, s57, 1\ns_and_b32 {s(sT1)}, {s(sWV)}, 1\ns_add_u32 s57, s57, {s(sT1)}")
        b(f"s_mul_i32 s57, s57, {FS}\ns_add_u32 s57, s57, {WS_FK}\nv_mov_b32 v16, 1")
        b.wait(lg=rt[3])
        for k in range(8): b(f"v_add_f32 {v(R+k)}, {v(R+k)}, {v(R+8+k)}")
        b.wait(lg=rt[7])
        for k in range(8): b(f"v_add_f32 {v(R+16+k)}, {v(R+16+k)}, {v(R+24+k)}")
        for d in range(4):
            b(f"v_add_f32 {v(R+2*d)}, {v(R+2*d)}, {v(R+16+2*d)}\nv_add_f32 {v(R+2*d+1)}, {v(R+2*d+1)}, {v(R+17+2*d)}\nv_cvt_pk_bf16_f32 {v(R+d)}, {v(R+2*d)}, {v(R+2*d+1)}")
        self.kvst = b.vm(f"buffer_store_dwordx4 {v(R,4)}, {v(vL16)}, {s(rWS,4)}, {s(sT0)} offen sc1")
        if self.o.get('KPRI'): b(f"s_setprio {self.o['BPRIO']}")
        self.stamp(b, 4)
        self.vclk = max(self.vclk, self.clk) + 400
        self.hold = set()
        for sl in self.reserve:
            self.slot['kx', sl] = sl; self.lastread['kx', sl] = 0; self.allread.add(('kx', sl))
    def kv_flag(self, x, force=False):
        if self.kvst and (force or x.vm_issued - self.kvst >= self.o['KVD'] or x.vm_done >= self.kvst):
            x.wait(vm=self.kvst); x.vm(f"buffer_store_dword v16, off, {s(rWS,4)}, s57 sc1"); self.stamp(x, 5)
            if x is self.bmain: self.kvst = None
    def b_gather(self):
        b = self.b; o = self.o; G, S, TM = 32, 160, 176; xs = self.xs * 2048
        b(f"s_lshr_b32 {s(sT2)}, {s(sRB2)}, 3\ns_lshl2_add_u32 {s(sT1)}, {s(sT2)}, {s(sWV)}")
        b(f"s_and_b32 {s(sCNT)}, {s(sWV)}, 1\ns_cselect_b32 s44, -1, 0\ns_cselect_b32 s47, 0, -1\ns_mov_b32 s45, 0\ns_mov_b32 s46, 0")
        b(f"s_mul_i32 s42, {s(sT1)}, {32*o['FKS']}\ns_add_u32 s42, s42, {WS_FK}\nv_and_b32 v1, 31, {v(vL)}\nv_mul_u32_u24 v1, {o['FKS']}, v1")
        b(f"s_lshl_b32 {s(sT1)}, {s(sT1)}, 15\ns_add_u32 {s(sSO)}, {s(sT1)}, {WS_KV}")
        self.kv_flag(b, force=True)
        self.join_setup(b)
        SM = 184
        b.wait_all(lg=True)
        b(f"v_bfe_u32 v2, {v(vL)}, 3, 2\nv_bfe_u32 v3, {v(vL)}, 1, 1\nv_lshl_add_u32 v2, v2, 1, v3\ns_mov_b32 vcc_lo, 0x0f0f0f0f\ns_mov_b32 vcc_hi, 0xf0f0f0f0\nv_cndmask_b32 v2, 63, v2, vcc")
        b(f"s_mov_b32 vcc_lo, 0xaaaaaaaa\ns_mov_b32 vcc_hi, vcc_lo\nv_mov_b32 v3, 0x3f80\nv_mov_b32 v4, 0x3f800000\nv_cndmask_b32 v3, v3, v4, vcc")
        for k in range(8): b(f"v_cmp_eq_u32 vcc, {k}, v2\nv_cndmask_b32 {v(SM+k)}, 0, v3, vcc")
        if o.get('KWAIT', 1): b.wait_all(vm=True)
        b(f"s_mov_b32 {s(sCNT)}, 0\nL_kpoll:")
        b.vm(f"buffer_load_dword v14, v1, {s(rWS,4)}, s42 offen sc1")
        b.wait_all(vm=True)
        b(f"v_cmp_eq_u32 vcc, 0, v14\ns_cbranch_vccz L_kgo")
        if o['SL2']: b(f"s_sleep {o['SL2']}")
        b(f"s_add_u32 {s(sCNT)}, {s(sCNT)}, 1\ns_cmp_lt_u32 {s(sCNT)}, {SPIN}\ns_cbranch_scc1 L_kpoll\nL_kgo:")
        self.stamp(b, 10)
        gt = []
        def acc(n):
            b.wait(vm=gt[n])
            b(f"v_mfma_f32_32x32x16_bf16 {v(S,16)}, {v(SM+4*(n//16),4)}, {v(G+4*n,4)}, {v(S,16) if n else 0}")
        for n in range(32):
            if n >= 11: acc(n - 11)
            if n and n % 4 == 0: b(f"s_addk_i32 {s(sSO)}, 4096")
            gt.append(b.vm(f"buffer_load_dwordx4 {v(G+4*n,4)}, {v(vL16)}, {s(rWS,4)}, {s(sSO)} offen offset:{(n%4)*1024}{self.lm}"))
        for n in range(21, 32):
            acc(n)
            if n == 26: self.poll_issue(b, 8, aFL)
        for d in range(8): b(f"v_cvt_pk_bf16_f32 {v(TM+d)}, {v(S+2*d)}, {v(S+2*d+1)}")
        for d in (0, 1): b(f"v_cndmask_b32 {v(TM+d)}, {v(TM+d)}, 0, s[44:45]")
        for d in (6, 7): b(f"v_cndmask_b32 {v(TM+d)}, {v(TM+d)}, 0, s[46:47]")
        for f in range(2): b.ds(f"ds_write_b128 {v(bWA)}, {v(TM+4*f,4)} offset:{xs + f*1024}")
        self.stamp(b, 11); self.flush_stamp(b)
        b("s_branch L_join")

    def phase2(self):
        b = self.b; o = self.o
        NS = o['NS']; lagv = o['LAGV']
        RES, B2, XW, BW = 224, 240, 248, 28
        self.stamp(b, 8)
        b(f"s_lshl2_add_u32 {s(sT0)}, {s(sRB2)}, {s(sWV)}\ns_lshl_b32 {s(sT0)}, {s(sT0)}, 7\ns_add_u32 {s(sT0)}, {s(sT0)}, {WS_FL}")
        b(f"s_add_u32 {s(sFL)}, {s(sWS)}, {s(sT0)}\ns_addc_u32 {s(sFL+1)}, {s(sWS+1)}, 0")
        HP = [92, 93, 94, 95]; HU = [96, 97, 4, 5]
        for k in range(4): b(f"s_xor_b32 {s(sT0)}, s11, {k}\ns_lshl_b32 {s(HP[k])}, {s(sT0)}, 11\ns_lshl_b32 {s(HU[k])}, {s(sT0)}, 10")
        b(f"s_movk_i32 s6, 4096\ns_lshl_b32 {s(sT0)}, {s(sWV)}, 12\ns_sub_u32 {s(sT0)}, {96*1024}, {s(sT0)}\ns_lshl_b32 {s(sT1)}, {s(sWV)}, 10\ns_sub_u32 {s(sT1)}, {112*1024}, {s(sT1)}")
        for k in range(2): b(f"v_add_u32 v{20+k}, 0x8000, v{2+k}\nv_add_u32 v{22+k}, 0x10000, v{2+k}\nv_add_u32 v{8+k}, {s(sT0)}, v{2+k}\nv_add_u32 v{10+k}, {s(sT1)}, v{2+k}")
        tk = {}; ring = {}; freering = list(range(NS)); st = dict(cur=None, first=True)
        def mf(d, x, y, c): return f"v_mfma_f32_32x32x16_bf16 {d}, {x}, {y}, {c}"
        acc = lambda q: v(ACC + 16 * q, 16)
        def moved(t): return t in self.w2_issued[:self.mv_next]
        def old(t, lag): return b.vm_issued - t >= lag or t <= b.vm_done
        hline = lambda t, q, c: mf(acc(q), v(self.wreg[t] + 4 * (q & 1), 4), v(96 + 8 * ring[t] + 4 * (q >> 1), 4), c)
        kept = set()
        def give(t):
            r = self.wreg[t]
            if self.wkeep and r >= RES: kept.add(r)
            elif st.get('ns', NS) < o.get('NS2', NS) and t >= o.get('NSAT', 4) and r < RES: st['ns'] = st.get('ns', NS) + 1; freering.append((r - 96) // 8)
            else: self.wfree.append(r)
        nl = o['NLAST']; lastH = list(range(35 - nl, 35))
        tasks = deque(range(35 - nl))
        def fillers():
            self.mv_release()
            for k in range(2):
                if self.mv_ready(o['LAG']): self.mv_one()
        def mfma(lag, fill=True):
            if st['cur'] is None:
                if not tasks: return False
                t = tasks[0]
                if not (('h', t, 1) in tk and old(tk['h', t, 1], lag) and moved(t)): return False
                tasks.popleft()
                b.wait(vm=tk['h', t, 1], lg=self.mv_t[t])
                st['cur'] = (t, deque(hline(t, q, "0" if st['first'] else acc(q)) for q in (3, 2, 1, 0))); st['first'] = False
            t, lines = st['cur']
            b(lines.popleft())
            if not lines: st['cur'] = None; freering.append(ring[t]); give(t)
            if fill: fillers()
            return True
        def progress():
            if mfma(0): return
            if self.mv_ready(0): self.mv_one(); return
            self.mv_release()
            if self.dma_ready(): self.dma_one(); return
            b.wait_all(lg=True); self.mv_release()
            assert self.dma_ready() or self.mv_ready(0), ("stuck", list(tasks))
        nD = sum(len(it['ops']) for it in self.dq); nD0 = nD
        pre = min(nD, self.dpre); nD -= pre; d0 = o['D0']
        seq = [('dma',)] * pre + [('check', 4, 0, 1, 9)]; given = 0
        for t in range(35):
            if t == 8: seq.append(('check', 4, 0, 2, 10))
            if t == 16: seq.append(('check', 4, 0, 4, 11))
            if t == 28: seq.append(('check', 2, 16, 1, 12))
            if t == 14: seq.append(('keep',))
            if t == o.get('RESAT', 30): seq.append(('res',))
            seq += [('h', t, 0), ('h', t, 1)]
            want = min(nD, -(-nD * (t + 1 - d0) // self.dspread)) if t >= d0 else 0
            seq += [('dma',)] * (want - given); given = max(given, want)
        assert given == nD
        out = []
        for it in seq:
            if it[0] == 'check': out.insert(max(0, len(out) - o['PLEAD']), ('issue',) + it[1:])
            out.append(it)
        barrier_done = False; owed = 0
        for it in out:
            kind = it[0]
            if kind == 'issue': self.poll_issue(b, it[1], sFL, it[2]); continue
            if kind == 'check':
                self.kv_flag(b, force=True)
                if it[4] == 9: self.stamp(b, 7)
                self.poll_check(b, it[1], sFL, it[2], it[3]); self.stamp(b, it[4]); continue
            if kind == 'keep':
                self.wkeep = True
                for r in list(self.wfree):
                    if r >= RES: self.wfree.remove(r); kept.add(r)
                continue
            if kind == 'dma':
                self.mv_release()
                while self.dq and not self.dma_ready() and (len(self.mv_freed) < self.mv_next or self.mv_ready(o.get('LAGMIN', 4))):
                    if len(self.mv_freed) < self.mv_next: b.wait(lg=self.mv_t[self.w2_issued[len(self.mv_freed)]]); self.mv_release()
                    else: self.mv_one()
                if not self.dma_ready(): owed += bool(self.dq); continue
            mfma(lagv, fill=False)
            if kind == 'dma': self.dma_one()
            elif kind == 'h':
                _, t, k = it
                if k == 0:
                    while not freering: progress()
                    ring[t] = freering.pop(0)
                if t < 24: va, so, u = (2, 20, 22)[t // 8] + k, s(HP[(t % 8) // 2]), t % 2
                elif t < 32: va, so, u = (8 if t < 28 else 10) + k, s(HU[t % 4]), 0
                else: va, so, u = 10 + k, "s6", t - 32
                if t == o['LIMOFF']: self.lim = 999; lagv = o.get('LAGV2', lagv)
                if t == o.get('LAGEND', 99): lagv = o.get('LAGV3', lagv)
                self.throttle(8, self.lim)
                tk['h', t, k] = b.vm(f"buffer_load_dwordx4 {v(96+8*ring[t]+4*k,4)}, v{va}, {s(rWS,4)}, {so} offen offset:{(u%4)*1024}{self.lm}")
            elif kind == 'res':
                while XW not in kept: progress()
                b.vm(f"buffer_load_dwordx4 {v(XW,4)}, {v(bOA)}, {s(rX,4)}, {s(sXB)} offen")
                b.vm(f"buffer_load_dwordx4 {v(XW+4,4)}, {v(bOA)}, {s(rX,4)}, {s(sXB2)} offen")
                tk['res'] = b.vm(f"buffer_load_dwordx4 {v(BW,4)}, v6, {s(rB2,4)}, {s(sCB)} offen")
            if o.get('BFINE'):
                st.setdefault('v0', b.vm_issued - 1); k = (b.vm_issued - st['v0']) // o['BFINE']
                if k > st.get('fk', -1) and k < 12: st['fk'] = k; self.stamp(b, 19 + k)
            fillers()
            if not mfma(lagv): fillers()
            self.mv_release()
            if owed and self.dma_ready():
                mfma(lagv, fill=False); self.dma_one(); owed -= 1; fillers(); mfma(lagv)
            if not barrier_done and self.mv_next == 35:
                st['since'] = st.get('since', 0) + 1
                if st['since'] == 2: b.wait(lg=max(self.mv_t.values())); b("s_barrier"); barrier_done = True
        self.stamp(b, 13)
        print("phase 2: dma", nD0, "left", len(self.dq), "tasks left after the last load:", list(tasks), "moved", self.mv_next, "barrier", barrier_done)
        while tasks or st['cur'] or self.mv_next < 35: progress()
        if not barrier_done:
            b.wait_all(lg=True); b("s_barrier")
        assert len(kept) == 4
        self.stamp(b, 14)
        ru = deque(); B = lambda t: self.lines(b, ru, t)
        for d in range(4): B(f"v_lshlrev_b32 {v(B2+2*d)}, 16, {v(BW+d)}\nv_and_b32 {v(B2+2*d+1)}, {s(sMSK)}, {v(BW+d)}")
        for d in range(8):
            B(f"v_lshlrev_b32 {v(RES+2*d)}, 16, {v(XW+d)}\nv_and_b32 {v(RES+2*d+1)}, {s(sMSK)}, {v(XW+d)}")
            B(f"v_add_f32 {v(RES+2*d)}, {v(RES+2*d)}, {v(B2+(2*d)%8)}\nv_add_f32 {v(RES+2*d+1)}, {v(RES+2*d+1)}, {v(B2+(2*d+1)%8)}")
        wq = deque()
        def wr(q, h): return b.ds(f"ds_write_b128 {v(bWA+q)}, {v(ACC+16*q+4*h,4)} offset:{q*4352 + h*1088}")
        b.wait(vm=tk['res'])
        for q in (3, 2, 1, 0):
            for j, t in enumerate(lastH):
                b.wait(vm=tk['h', t, 1], lg=self.mv_t[t])
                b(hline(t, q, acc(q)))
                if wq and (q < 2 or j == len(lastH) - 1): wr(*wq.popleft())
                else:
                    for k in range(6):
                        if ru: ru.popleft()()
            wq.extend((q, h) for h in range(4))
        while wq:
            t = wr(*wq.popleft())
            for k in range(5):
                if ru: ru.popleft()()
        while ru: ru.popleft()()
        b.wait(lg=t); b("s_barrier")
        rt = {}
        for m in range(2):
            for hi in range(2):
                for q in range(4): rt[m, hi] = b.ds(f"ds_read_b128 {v(ACC+16*q+8*m+4*hi,4)}, {v(bRD)} offset:{q*4352 + hi*512 + m*256}")
        Pk = 96; mod = {0: "", 1: " sc1", 2: " nt", 3: " sc0 sc1"}[o['OUTM']]
        for m in range(2):
            for hi in range(2):
                b.wait(lg=rt[m, hi])
                for k in (0, 2):
                    r = ACC + 8 * m + 4 * hi + k
                    b(f"v_pk_add_f32 {v(r,2)}, {v(r,2)}, {v(r+16,2)}\nv_pk_add_f32 {v(r+32,2)}, {v(r+32,2)}, {v(r+48,2)}")
                    b(f"v_pk_add_f32 {v(r,2)}, {v(r,2)}, {v(RES+8*m+4*hi+k,2)}")
                for k in (0, 2):
                    r = ACC + 8 * m + 4 * hi + k
                    b(f"v_pk_add_f32 {v(r,2)}, {v(r,2)}, {v(r+32,2)}")
                for k in (0, 2):
                    r = ACC + 8 * m + 4 * hi + k
                    b(f"v_cvt_pk_bf16_f32 {v(Pk+4*m+2*hi+k//2)}, {v(r)}, {v(r+1)}")
            b.vm(f"buffer_store_dwordx4 {v(Pk+4*m,4)}, {v(bOA)}, {s(rOUT,4)}, {s(sXB if m == 0 else sXB2)} offen{mod}")
        self.flush_stamp(b)

    def build(self):
        o = self.o
        self.slow = self.new(); self.slow.tag = 's'
        p = self.entry()
        bp = self.b_prologue()
        P = lambda p_, e: ('p', p_, e)
        streams = {}
        pf0 = list(self.pfq)
        for role in ('f', 'k'):
            self.role = role
            self.a = a = self.new(); a.tag = 'a'; a.vm_issued = 1
            self.bmain = self.b = b = self.new(); b.tag = 'b'; b.set_state(bp.state()); b.pending = bp.pending
            self.q_reset(); self.frag_list(role); self.pfq = deque(pf0); self.pfacc = 0; self.syncs_left = 9
            self.dpre = o.get('DPRE' + role.upper(), o['DPRE']); self.dspread = o.get('DSPREAD' + role.upper(), o['DSPREAD'])
            if role == 'k': b("L_Bk:")
            self.lead = lead = [0, 1, 8, 9, 16, 17, 24, 28] if o['WROT'] & (1 if role == 'f' else 2) else []
            order = list(self.cons)
            la = o.get('L1' + role.upper())
            if la is not None:
                ld = [('p', 1, 0), ('p', 2, 0)] + ([('s', 0)] if role == 'f' else [])
                if o.get('L1N'): ld = ld[:o['L1N']]
                order = [k for k in order if k not in ld]; order[la:la] = ld
            at = o['LEAD' + role.upper()]
            for n, t in enumerate(lead): order.insert(min(len(order), at + n * (1 + o['LSTEP'])), ('w', t))
            for k in order + [('w', t) for t in range(35) if t not in lead]: self.enq(k)
            def leave():
                self.b_alive = False
                print(role, "B leaves at", self.clk, "free slots", len(self.free), "w2 issued", len(self.w2_issued), "moved", self.mv_next, "prefetches left", len(self.pfq))
                self.spf(99)
                if role == 'k':
                    self.xs = self.free[0]
                    b(f"s_cmp_ge_u32 {s(sCS)}, 7\ns_cbranch_scc1 L_red")
                    self.red = r = self.new(); r.tag = 'b'; r.pending = b.pending; r.set_state(b.state())
                    r("L_red:"); self.b = r; self.b_gather(); self.b = b
            self.on_all_published = leave
            self.a_layernorm()
            ln = a.text(); mark = len(a.L)
            if role == 'f':
                a(f"s_cmp_lg_u32 {s(sROLE)}, 0\ns_cbranch_scc1 L_Ak")
                self.a_ffn(); ln_f = ln
            else:
                assert ln == ln_f, "layernorm code differs between the roles"
                a("L_Ak:"); self.a_kvq(); a.L = a.L[mark:]
            self.phase2()
            if role == 'f': b("s_branch L_fin")
            streams['a' + role] = a.text(); streams['b' + role] = b.text()
            self.count = getattr(self, 'count', 0) + len(a.L) + len(b.L)
        f = self.new(); f.tag = 'f'
        f("L_fin:")
        if self.probe is not None:
            f.wait_all(vm=True); self.stamp(f, 15); f.wait_all(lg=True)
            f("s_sub_u32 s1, s100, s0\ns_lshl_b32 s1, s1, 2\ns_add_u32 s1, s1, 4000")
            f("L_spin:\ns_memrealtime s[100:101]"); f.wait_all(lg=True)
            f("s_sub_u32 s100, s100, s0\ns_cmp_lt_u32 s100, s1\ns_cbranch_scc1 L_spin")
        if self.stamps:
            f.wait_all(vm=True)
            self.stamp(f, 15); self.flush_stamp(f)
            f("s_memrealtime s[100:101]"); f.wait_all(lg=True); f("v_writelane_b32 v5, s100, 16")
            f(f"v_readlane_b32 {s(sT1)}, v5, 63\ns_nop 3\ns_lshl3_add_u32 {s(sT0)}, s2, {s(sT1)}\ns_lshl_b32 {s(sT0)}, {s(sT0)}, 8\ns_add_u32 {s(sT0)}, {s(sT0)}, {WS_ST}")
            f(f"v_lshlrev_b32 v6, 2, {v(vL)}")
            f.vm(f"buffer_store_dword v5, v6, {s(rWS,4)}, {s(sT0)} offen")
        f("L_end:\ns_endpgm")
        f("L_init:")
        self.srd(f, rWS, sWS, WS_SIZE)
        f(f"v_mov_b32 v40, 0\nv_mov_b32 v41, 0\nv_mov_b32 v42, 0\nv_mov_b32 v43, 0\nv_lshlrev_b32 v44, 7, {v(vL)}")
        NI = o['NI']; per = (32768 + 512 * o['FKS']) // (4 * NI)
        f(f"s_sub_u32 {s(sT1)}, s2, {256 - NI}\ns_lshl2_add_u32 {s(sT1)}, {s(sT1)}, {s(sWV)}\ns_mul_i32 {s(sT0)}, {s(sT1)}, {per}\ns_add_u32 {s(sT0)}, {s(sT0)}, {WS_FL}")
        for k in range(per // 1024):
            if k and k % 4 == 0: f(f"s_addk_i32 {s(sT0)}, 4096")
            f(f"buffer_store_dwordx4 v[40:43], {v(vL16)}, {s(rWS,4)}, {s(sT0)} offen offset:{1024*(k%4)} sc1")
        f("s_branch L_noinit\nL_go:")
        f(f"s_sub_u32 {s(sT1)}, s2, {256 - NI}\ns_lshl2_add_u32 {s(sT1)}, {s(sT1)}, {s(sWV)}\ns_lshl_b32 {s(sT1)}, {s(sT1)}, 2\nv_mov_b32 v45, 1\nv_mov_b32 v46, {s(sT1)}")
        f.wait_all(vm=True)
        f(f"global_store_dword v46, v45, s[8:9] sc1\ns_branch L_gone")
        self.body = p.text() + streams['af'] + streams['ak'] + bp.text() + streams['bf'] + streams['bk'] + f.text() + self.red.text() + self.slow.text() + 'L_last:\n    s_endpgm\n'

    def text(self):
        hdr = open(f"cdna_kernels/{NAME}.s.ref").read().split("\n")
        top = [l for l in hdr if l.startswith(";") and "@launch" not in l and "Override" not in l and "grid=ceil" not in l]
        out = "\n".join(top) + "\n; @launch grid=(256,1,1) block=(512,1,1) lds=163840\n"
        out += f'.amdgcn_target "amdgcn-amd-amdhsa--gfx950"\n.text\n.globl {NAME}_kernel\n.p2align 8\n.type {NAME}_kernel,@function\n'
        out += self.body
        out += f'''.section .rodata,"a"
.p2align 6
.amdhsa_kernel {NAME}_kernel
  .amdhsa_next_free_vgpr 256
  .amdhsa_next_free_sgpr 102
  .amdhsa_accum_offset 256
  .amdhsa_group_segment_fixed_size 0
  .amdhsa_kernarg_size 88
  .amdhsa_user_sgpr_count 2
  .amdhsa_user_sgpr_kernarg_segment_ptr 1
  .amdhsa_system_sgpr_workgroup_id_x 1
  .amdhsa_float_denorm_mode_32 3
.end_amdhsa_kernel
'''
        return out

if __name__ == "__main__":
    out = sys.argv[1]; stamps = False; probe = None; opt = {}
    for x in sys.argv[2:]:
        if x == "stamps": stamps = True
        elif x.startswith("probe="): probe = (x[6], int(x[7:]))
        else: k, val = x.split("="); opt[k] = float(val) if "." in val else int(val)
    g = Gen(stamps, probe, opt); g.build(); open(out, "w").write(g.text())
    print("lines", g.count)
```

```python
import sys
from collections import deque
from asmlib import Asm

NAME = "parallel_sum__linear_attn_block__dense_activation_squared_relu__prompt"
WS_H = 0; WS_PQ = 0x900000; WS_KV = 0xB00000; WS_FL = 0xB80000; WS_PL = 0xB84000; WS_FK = 0xB88000
WS_ST = 0xC00000; WS_SIZE = 0xD00000
HS = 140 * 1024
REG = 40960
INIT_WG = 248
SPIN = 40000

def v(a, n=1): return f"v{a}" if n == 1 else f"v[{a}:{a+n-1}]"
def s(a, n=1): return f"s{a}" if n == 1 else f"s[{a}:{a+n-1}]"

sX, sWQ, sWO, sW1, sB1, sW2, sB2, sOUT, sDBG, sWS = 4, 6, 8, 12, 14, 16, 18, 20, 22, 24
sWV, sRB, sSO = 3, 26, 27
rX, rWS = 28, 36
sXB = 61
sI, sJ, sROLE, sCS, sRB2, sT0, sT1, sT2, sHST = 65, 66, 67, 68, 69, 70, 71, 72, 73
sROT, sCNT = 75, 77
sMSK = 10
sP = 84
rB1 = 32
aM = [40, 42, 44, 46, 10]
aONE, aL2E, aEPS, aKVO, aHST, aPQS, aBIA, aBI2, aHS2 = 48, 50, 51, 52, 53, 54, 55, 56, 57
aONB = 62
aFL = 58; sHI = 82; sG1 = 84
rW, rW2, rWO, rOUT, rB2 = 32, 40, 44, 48, 52
sCOL, sSGL, sWOB, sW2B, sSO2, sFL = 62, 74, 76, 12, 13, 14
sK1 = 91; sRS = 56
sHC = [None, 84 + 8, 85 + 8, 86 + 8, 87 + 8, 88 + 8, 89 + 8, 4, 5]
sTG, sCB, sXB2 = 60, 78, 79

vL = 0; vXD = 1; vRN = 2; vXR = 14; vSR = 14; vL16 = 18; vGO = 19; vWR = 20
RINGB, RING = 28, 6
AS, VA, BI, TMP = 52, 176, 208, 232
def Uof(st): return 52 + 8 * st if st < 8 else 116 + 8 * (st - 8)
def Fof(st): return 84 + 4 * st if st < 23 else 236 + 4 * (st - 23)
def Rof(st): return Uof(st) + 4 if st < 23 else Fof(st)
bSD, bOA, bWK, bWD, bW2D, bP2R, bRD, bHB, bHO, bWA = 1, 4, 8, 10, 12, 14, 17, 20, 22, 24
ACC = 32

DEF = dict(D=4, CX=70, CK=150, CF=100, L1F=7, ALLF=12, CQ=140, CW=90, CS=60, SLACK=600, TSLOT=38, TFRAG=68, XPRE=12, B0AT=16,
           PUBALL=99, PUBLAT=500, LAG=10, LAGV=10, KVLAG=16, B0=4, B1=5, B2=5, B3=5, FLAG=26,
           DPRE=30, D0=0, DSPREAD=20, PLEAD=6, NLAST=3, NS=6, OUTM=0, PRIO=0, NOW2=3, SL1=2, SL2=3,
           LIM=80, LIM0=999, LIMOFF=14, SPF=8, PFO=5, L1N=1, VPFF=0, SPF0=0, SPFC=180, ROTX=1, WROT=0, LEADF=10, LEADK=21, LSTEP=0, XSLACK=100, BPRIO=0, KPRI=1, FKS=64, NI=4, LM=1, KVD=6, KPRE=2, RESE=1, CL=120, LIMFROM=7, QN=5, SYNCF=1, SYNCK=0, RESAT=26)

class Gen:
    def __init__(self, stamps=False, probe=None, opt=None):
        self.probe = probe; self.o = dict(DEF); self.o.update(opt or {})
        self.sm = self.fm = ' sc1'; self.lm = '' if self.o['LM'] else ' sc1'
        self.stamps = stamps; self.nlab = 0; self.parts = []
    def new(self):
        x = Asm(); x.guard = False; x.pending = None; x.m0 = None; x.so2 = None; return x
    def lab(self, p):
        self.nlab += 1; return f"L_{p}_{self.nlab}"
    def stamp(self, x, k):
        if self.probe == (x.tag, k): x("s_memrealtime s[100:101]")
        if not self.stamps: return
        if x.pending is not None: x(f"v_writelane_b32 v5, s100, {x.pending}\nv_writelane_b32 v5, s0, {32+x.pending}")
        x(f"s_memtime s[100:101]\ns_memrealtime s[0:1]")
        x.pending = k
    def flush_stamp(self, x):
        if self.stamps and x.pending is not None:
            x.wait_all(lg=True); x(f"v_writelane_b32 v5, s100, {x.pending}\nv_writelane_b32 v5, s0, {32+x.pending}"); x.pending = None
    def srd(self, x, r, p, size):
        x(f"s_mov_b32 {s(r)}, {s(p)}\ns_mov_b32 {s(r+1)}, {s(p+1)}\ns_mov_b32 {s(r+2)}, {size}\ns_mov_b32 {s(r+3)}, 0x20000")
    def lines(self, x, q, text): q.extend([(lambda l=l: x(l)) for l in text.split("\n")])
    def ids(self, x):
        x(f"s_and_b32 {s(sT0)}, s2, 3\ns_lshl3_add_u32 {s(sRB2)}, {s(sT0)}, {s(sT2)}\ns_and_b32 {s(sT0)}, s2, 4\ns_add_u32 {s(sRB2)}, {s(sRB2)}, {s(sT0)}")
        x(f"s_and_b32 {s(sJ)}, {s(sCS)}, 3\ns_add_u32 {s(sJ)}, {s(sJ)}, {s(sT0)}\ns_lshr_b32 {s(sROLE)}, {s(sCS)}, 2")
    def rot_step(self, x):
        x(f"s_add_u32 {s(sROT)}, {s(sROT)}, 1\ns_cmp_eq_u32 {s(sROT)}, 7\ns_cselect_b32 {s(sROT)}, 0, {s(sROT)}")
    def poll_issue(self, x, n, base, off=0):
        x(f"s_load_dword{'x%d' % n if n > 1 else ''} {s(sP, n)}, {s(base, 2)}, {off} glc")
    def poll_check(self, x, n, base, off, bit, cnt=None):
        L = self.lab("poll"); E = self.lab("pend"); y = self.slow
        def cond(x):
            regs = list(range(sP, sP + (cnt or n), 2))
            while len(regs) > 1:
                r = regs.pop(); x(f"s_and_b64 {s(regs[0],2)}, {s(regs[0],2)}, {s(r,2)}")
            if n > 1: x(f"s_and_b32 {s(sP)}, {s(sP)}, {s(sP+1)}")
            x(f"s_and_b32 {s(sP)}, {s(sP)}, {bit}")
        x.wait_all(lg=True)
        cond(x)
        x(f"s_cbranch_scc0 {L}\n{E}:")
        y(f"{L}:\ns_mov_b32 {s(sCNT)}, 0\n{L}_l:")
        if self.o['SL1']: y(f"s_sleep {self.o['SL1']}")
        self.poll_issue(y, n, base, off)
        y.wait_all(lg=True)
        cond(y)
        y(f"s_cbranch_scc1 {E}")
        y(f"s_add_u32 {s(sCNT)}, {s(sCNT)}, 1\ns_cmp_lt_u32 {s(sCNT)}, {SPIN}\ns_cbranch_scc1 {L}_l\ns_branch {E}")
    def go_load(self):
        a = self.a
        a(f"v_and_b32 {v(vGO)}, {4 * self.o['NI'] - 1}, {v(vL)}\nv_lshlrev_b32 {v(vGO)}, 2, {v(vGO)}")
        self.tgo = a.vm(f"global_load_dword {v(vGO)}, {v(vGO)}, {s(sDBG,2)}")
        return 3
    def go_check(self):
        a = self.a; E = self.lab("go"); L = self.lab("gol")
        assert self.b_alive
        a.wait(vm=self.tgo)
        a(f"v_cmp_eq_u32 vcc, 0, {v(vGO)}\ns_cbranch_vccnz {L}\n{E}:")
        y = self.slow
        y(f"{L}:\ns_mov_b32 {s(sP)}, 0\n{L}_l:\ns_sleep 8")
        y(f"v_and_b32 {v(vGO)}, {4 * self.o['NI'] - 1}, {v(vL)}\nv_lshlrev_b32 {v(vGO)}, 2, {v(vGO)}")
        y.vm(f"global_load_dword {v(vGO)}, {v(vGO)}, {s(sDBG,2)} sc1"); y.wait_all(vm=True)
        y(f"v_cmp_eq_u32 vcc, 0, {v(vGO)}\ns_cbranch_vccz {E}")
        y(f"s_add_u32 {s(sP)}, {s(sP)}, 1\ns_cmp_lt_u32 {s(sP)}, {SPIN}\ns_cbranch_scc1 {L}_l\ns_branch {E}")
        return 3

    def set_m0(self, x, off):
        if x.m0 is not None and -32768 <= off - x.m0 <= 32767: x(f"s_addk_i32 m0, {off - x.m0}")
        else: x(f"s_add_u32 m0, {s(sRB)}, {off}")
        x.m0 = off
    def set_so2(self, base, off):
        b = self.b
        if b.so2 and b.so2[0] == base and -32768 <= off - b.so2[1] <= 32767: b(f"s_addk_i32 {s(sSO2)}, {off - b.so2[1]}")
        else: b(f"s_add_u32 {s(sSO2)}, {s(base)}, {off}")
        b.so2 = (base, off)
    def q_reset(self):
        self.dq = deque(); self.tick = {}; self.slot = {}; self.free = list(range(14, 20)); self.est = {}
        self.w2_issued = []; self.mv_next = 0; self.mv_sub = 0; self.mv_t = {}; self.mv_freed = set()
        self.wfree = [96 + 8 * k for k in range(self.o['NS'], 20)]; self.wreg = {}; self.wkeep = False
        self.pub = -1; self.lastread = {}; self.allread = set(); self.reserve = []; self.hold = {14, 15, 16, 17} if self.role == 'k' else set()
        self.forced = 0; self.publag = []; self.b_alive = True; self.hook = None; self.vpf = False; self.kvst = None; self.blines = {}; self.lim = self.o['LIM']; self.b_gone = False; self.kx_done = False
    def enq(self, key):
        b = self.b; kind = key[0]
        def dma(pre, vaddr, srd, so, off, last=None):
            def f():
                if pre: pre()
                self.throttle(16 if self.heavy(key) else 8, self.o['LIM0'] if (key[:2] == ('p', 0) or self.pub < self.o['LIMFROM']) else self.lim)
                self.tick[key] = b.vm(f"buffer_load_dwordx4 {v(vaddr)}, {s(srd,4)}, {s(so)} offen offset:{off} lds")
                if last: last()
            return f
        if kind == 'p':
            _, p, e = key
            kt, va, srd = sK1 + e, (bWK if p < 2 else bWD), rW
            def pre(): self.set_m0(b, self.slot[key] * 2048); b(f"s_add_u32 {s(sSO)}, {s(sCOL+p)}, {s(kt)}")
            ops = [dma(pre, va, srd, sSO, 0), dma(None, va + 1, srd, sSO, 1024)]
        elif kind == 's':
            def pre(e):
                def f(): self.set_m0(b, self.slot[key] * 2048 + (e & 1) * 1024); b(f"s_add_u32 {s(sSO)}, {s(sSGL)}, {s(sK1+e)}")
                return f
            ops = [dma(pre(e), bSD, rW, sSO, 0) for e in (2 * key[1], 2 * key[1] + 1) if e < 7]
        elif kind == 'w':
            t = key[1]
            def pre():
                self.set_m0(b, self.slot[key] * 2048)
                if t < 24: self.set_so2(16 + (t % 8) // 2, (32 * (t // 8) + t % 2) * 14336)
                elif t < 32: b(f"s_add_u32 {s(sSO2)}, {s(7 if t < 28 else sWOB)}, {s(20 + t % 4)}"); b.so2 = None
                else: self.set_so2(sWOB, (t - 28) * 14336)
            srd = rW2 if t < 28 else rWO
            ops = [dma(pre, bW2D, srd, sSO2, 0), dma(None, bW2D + 1, srd, sSO2, 1024, lambda: self.w2_issued.append(t))]
        self.dq.append(dict(key=key, ops=deque(ops)))
    def cost(self, key):
        o = self.o
        if key[0] == 'w' and key[1] in self.lead: return o['CL']
        return {'s': o['CQ'], 'w': o['CW']}.get(key[0]) or (o['CK'] if self.heavy(key) else o['CF'])
    def heavy(self, key): return key[0] == 's' or (key[0] == 'p' and self.role == 'k' and key[1] < 2)
    def throttle(self, lines, lim):
        b = self.b
        tot = lines; t = b.vm_issued
        while t > b.vm_done and tot + self.blines.get(t, 8) <= lim: tot += self.blines.get(t, 8); t -= 1
        b.wait(vm=t)
        self.blines[b.vm_issued + 1] = lines
    def dma_ready(self):
        return bool(self.dq) and (self.dq[0].get('started') or len(self.free) > 0)
    def dma_one(self):
        it = self.dq[0]
        if not it.get('started'): it['started'] = True; self.slot[it['key']] = self.free.pop(0)
        self.vclk += self.cost(it['key']); self.est[it['key']] = self.vclk
        it['ops'].popleft()()
        if self.pub >= self.o['SPF0']: self.pfacc += self.cost(it['key']) / self.o['SPFC']
        while self.pfacc >= 1: self.spf(1); self.pfacc -= 1
        if not it['ops']: self.dq.popleft()
        self.kv_flag(self.b)
        left = sum(1 for it in self.dq if it['key'][0] != 'w')
        vp = self.o.get('VPF' + self.role.upper())
        if vp is not None and not self.vpf and left <= vp and not self.dq[0].get('started'):
            b = self.b; self.vpf = True; both = self.o.get('VPFK') is not None
            n2, no = (14, 4) if both else (25, 7)
            b(f"s_lshl2_add_u32 {s(sT2)}, s2, {s(sWV)}\ns_mul_i32 {s(sT0)}, {s(sT2)}, {n2}\ns_mul_i32 {s(sT1)}, {s(sT2)}, {no}")
            b(f"v_min_u32 v66, {n2-1}, {v(vL)}\nv_add_lshl_u32 v66, v66, {s(sT0)}, 7\nv_min_u32 v67, {no-1}, {v(vL)}\nv_add_lshl_u32 v67, v67, {s(sT1)}, 7")
            self.blines[b.vm(f"buffer_load_dword v66, v66, {s(rW2,4)}, 0 offen")] = n2
            b.vm(f"buffer_load_dword v67, v67, {s(rWO,4)}, 0 offen")
    def issued(self, key): return key in self.tick and not any(it['key'] == key for it in self.dq)
    def mv_ready(self, lag):
        if self.mv_sub: return True
        if self.mv_next >= len(self.w2_issued) or not self.wfree: return False
        t = self.w2_issued[self.mv_next]
        return self.b.vm_issued - self.tick['w', t] >= lag or self.tick['w', t] <= self.b.vm_done
    def mv_one(self):
        b = self.b; t = self.w2_issued[self.mv_next]; c = 1
        if self.mv_sub == 0:
            self.wfree.sort(); self.wreg[t] = self.wfree.pop(0)
            c += bool(b.wait(vm=self.tick['w', t]))
        T, rd = self.mv_sub >> 1, self.mv_sub & 1
        self.mv_t[t] = b.ds(f"ds_read_b64_tr_b16 {v(self.wreg[t]+4*T+2*rd, 2)}, {v(bP2R+T)} offset:{self.slot['w', t]*2048 + rd*1024}")
        self.mv_sub += 1
        if self.mv_sub == 4: self.mv_sub = 0; self.mv_next += 1
        return c
    def mv_release(self):
        for k in range(self.mv_next):
            t = self.w2_issued[k]
            if t not in self.mv_freed and self.mv_t[t] <= self.b.lg_done:
                self.mv_freed.add(t); self.free.append(self.slot['w', t])
    def b_advance(self):
        b = self.b; o = self.o
        self.vclk = max(self.vclk, self.tprev)
        while self.dq and self.vclk <= self.clk + o['SLACK'] and not (o.get('NOW2', 0) & (1 if self.role == 'f' else 2) and self.dq[0]['key'][0] == 'w' and self.dq[0]['key'][1] not in self.lead):
            self.mv_release()
            if not self.dma_ready():
                if len(self.mv_freed) < self.mv_next:
                    b.wait(lg=self.mv_t[self.w2_issued[len(self.mv_freed)]]); continue
                if self.mv_ready(o.get('LAGMIN', 4)):
                    for k in range(4): self.mv_one()
                    continue
                break
            self.dma_one()
            if self.mv_ready(o['LAG']):
                for k in range(4): self.mv_one()
    def barrier(self, vm=None):
        if self.b_alive:
            self.kv_flag(self.b, force=True)
            self.b.wait(vm=vm); self.b("s_barrier")
        self.a("s_barrier"); self.tprev = self.clk
        for k, t in list(self.lastread.items()):
            if k in self.allread and t <= self.a.lg_done:
                del self.lastread[k]
                (self.reserve if self.slot[k] in self.hold and k[0] == 'p' else self.free).append(self.slot[k])
    def sync(self, slack=None):
        keep = self.o['SLACK']
        if slack is not None: self.o['SLACK'] = slack
        self.publish(None); self.o['SLACK'] = keep
    def publish(self, c):
        if not self.b_alive:
            assert c is None and self.b_gone
            self.barrier(); return
        self.b_advance()
        if (c if c is not None else 99) >= self.o.get('ALL' + self.role.upper(), 99):
            while self.dma_ready() and self.dq[0]['key'][0] != 'w': self.dma_one()
            self.vclk = min(self.vclk, self.clk)
            for k in self.est: self.est[k] = min(self.est[k], self.clk - (0 if c is not None else self.o['PUBLAT']))
        if c is not None:
            while not self.issued(self.cons[c]):
                assert self.dma_ready(), ("cannot publish", c)
                self.dma_one(); self.forced += 1
        if not self.hook and self.pub >= self.o['SPF0']: self.spf(self.o.get('SPFB' + self.role.upper(), 0))
        tgt = self.pub if c is None else c
        force_all = c is not None and c >= self.o['PUBALL']
        while (c != 0 and tgt + 1 < len(self.cons) and self.issued(self.cons[tgt + 1])
               and (force_all or self.est[self.cons[tgt + 1]] + self.o['PUBLAT'] <= self.clk)): tgt += 1
        tk = max(self.tick[k] for k in self.cons[:tgt + 1])
        self.publag.append((tgt, self.b.vm_issued - tk))
        self.barrier(vm=tk)
        if self.hook: h, self.hook = self.hook, None; h()
        self.pub = tgt
        if c is None: self.syncs_left -= 1
        if tgt + 1 == len(self.cons) and self.syncs_left == 0: self.on_all_published()

    def frag_list(self, role):
        fr = []
        for stage, p in enumerate((0, 1, 2, None) if role == 'f' else (0, 1, 2)):
            for st in range(28):
                if p is None:
                    e = st // 4
                    fr.append(dict(key=('s', e // 2), addr=vSR + (st & 3), sub=(e & 1) * 1024, rd=256, stage=stage, s=st, T=0))
                else:
                    for T in range(2):
                        base = vSR if (role, p, T) == ('k', 2, 1) else vWR + 4 * T
                        fr.append(dict(key=('p', p, st // 4), addr=base + (st & 3), sub=0, rd=512, stage=stage, s=st, T=T))
        if role == 'k' and self.o.get('QSEQ', 1):
            q = [f for f in fr if f['stage'] == 2]
            fr = [f for f in fr if f['stage'] < 2] + [f for f in q if f['T'] == 0] + [f for f in q if f['T'] == 1]
        self.cons = []
        for f in fr:
            if f['key'] not in self.cons: self.cons.append(f['key'])
        for f in fr: f['c'] = self.cons.index(f['key'])
        self.fr = fr
    def read_frag(self, n):
        a = self.a
        if n >= len(self.fr): return
        f = self.fr[n]
        if f['c'] > self.pub: self.publish(f['c'])
        r = RINGB + 4 * (n % RING); off = self.slot[f['key']] * 2048 + f['sub']
        a.ds(f"ds_read_b64_tr_b16 {v(r,2)}, {v(f['addr'])} offset:{off}")
        f['t'] = a.ds(f"ds_read_b64_tr_b16 {v(r+2,2)}, {v(f['addr'])} offset:{off+f['rd']}")
        self.lastread[f['key']] = f['t']
        if not any(g['key'] == f['key'] for g in self.fr[n + 1:]): self.allread.add(f['key'])
    def pop(self, fillers):
        n0 = self.a.vm_issued
        r = fillers.popleft()() or 1
        if self.a.vm_issued > n0: self.vclk += self.o['CS']
        return r
    def fill(self, fillers, budget):
        self.clk += self.o['TSLOT'] + 4 * max(0, min(budget, len(fillers)) - 4)
        while fillers and budget > 0: budget -= self.pop(fillers)
    def run_stage(self, stage, acc, swap, fillers, budget=4, pre=None, forced=None, minfill=0, finish=0, syncs=()):
        a = self.a; D = self.o['D']
        idx = [n for n, f in enumerate(self.fr) if f['stage'] == stage]
        for line in (pre or []):
            a(line); self.fill(fillers, budget + 2)
        for k, n in enumerate(idx):
            f = self.fr[n]
            a.wait(lg=f['t'])
            w = v(RINGB + 4 * (n % RING), 4); x = v(Fof(f['s']), 4)
            c = acc(f['T']) if (pre or f['s'] > 0) else "0"
            a(f"v_mfma_f32_32x32x16_bf16 {acc(f['T'])}, {x if swap else w}, {w if swap else x}, {c}")
            if k in syncs: self.sync()
            self.read_frag(n + D)
            last = (n % 2 == 1)
            fl = forced(f['s'], f['T']) if forced else []
            self.fill(fillers, budget - len(fl) - (1 if last else 0))
            for g in fl: g()
            left = max(0, len(idx) - k - 1 - finish)
            while fillers and minfill and len(fillers) > left * minfill: self.pop(fillers); self.clk += 2
            fs = self.o.get('FSTEP', 5)
            if self.o.get('FINE') == stage and k % fs == 0 and 19 + k // fs < 32: self.stamp(a, 19 + k // fs)
            if last and n + 2 < len(self.fr): a.wait(lg=self.fr[n + 2]['t'])
    def cvt_forced(self, st, T):
        a = self.a; n = st + 2
        if not 8 <= n < 23: return []
        return [lambda d=d: a(f"v_cvt_pk_bf16_f32 {v(Fof(n)+d)}, {v(Uof(n)+2*d)}, {v(Uof(n)+2*d+1)}") for d in ((0, 1) if T == 0 else (2, 3))]
    def g3_ops(self):
        ops = []
        for st in range(23, 28):
            for d in range(4):
                r = Fof(st) + d; t0, t1 = (1, 4) if d & 1 else (7, vGO)
                self.lines(self.a, ops, f"v_lshlrev_b32 v{t0}, 16, {v(r)}\nv_and_b32 v{t1}, {s(sMSK)}, {v(r)}\nv_fma_f32 v{t0}, v{t0}, v2, v3\nv_fma_f32 v{t1}, v{t1}, v2, v3\nv_cvt_pk_bf16_f32 {v(r)}, v{t0}, v{t1}")
        return ops
    def phi_ops(self, src, dst=None):
        a = self.a; ops = []
        for d in range(8):
            t0 = TMP + 2 * (d & 1)
            for k in range(2):
                x = src + 2 * d + k
                self.lines(a, ops, f"v_mul_f32 {v(t0+k)}, {s(aL2E)}, {v(x)}")
                def ex(e=t0+k):
                    a(f"v_exp_f32_e64 {v(e)}, {v(e)} clamp"); return 2
                ops.append(ex)
                self.lines(a, ops, f"v_max_f32 {v(x)}, {s(aEPS)}, {v(x)}\nv_add_f32 {v(t0+k)}, {v(t0+k)}, {v(x)}")
            self.lines(a, ops, f"v_cvt_pk_bf16_f32 {v((dst or src)+d)}, {v(t0)}, {v(t0+1)}")
        return ops

    def entry(self):
        p = self.new(); p.tag = 'p'
        p(f"{NAME}_kernel:")
        p("s_cmp_ge_u32 s2, 256\ns_cbranch_scc1 L_end")
        if self.stamps: p("s_memrealtime s[78:79]\ns_memtime s[80:81]")
        if self.probe is not None: p("s_memrealtime s[100:101]")
        p("s_load_dwordx16 s[4:19], s[0:1], 0\ns_load_dwordx4 s[20:23], s[0:1], 64\ns_load_dwordx2 s[24:25], s[0:1], 80")
        p("s_getpc_b64 s[98:99]\nL_pc:")
        p(f"s_lshr_b32 {s(sT1)}, s2, 3\ns_lshl_b32 s3, {s(sT1)}, 7")
        p("v_lshrrev_b32 v1, 5, v0\nv_lshl_add_u32 v1, v1, 12, s3")
        p("v_min_u32 v1, L_last - L_pc, v1")
        p.vm(f"global_load_dword {v(vGO)}, v1, s[98:99]")
        p(f"v_lshrrev_b32 v1, 6, v0\nv_and_b32 {v(vL)}, 63, v0")
        p(f"v_readfirstlane_b32 s99, v1")
        p(f"s_and_b32 {s(sT2)}, {s(sT1)}, 3\ns_lshr_b32 {s(sCS)}, {s(sT1)}, 2")
        p(f"s_and_b32 {s(sI)}, s2, 3\ns_lshl2_add_u32 {s(sI)}, {s(sI)}, {s(sT2)}")
        p(f"s_lshl1_add_u32 {s(sROT)}, {s(sT2)}, {s(sCS)}")
        p(f"s_cmp_ge_u32 {s(sROT)}, 7\ns_cselect_b32 {s(sT0)}, 7, 0\ns_sub_u32 {s(sROT)}, {s(sROT)}, {s(sT0)}")
        if self.o['ROTX']:
            p(f"s_and_b32 {s(sT0)}, s2, 1\ns_add_u32 {s(sROT)}, {s(sROT)}, {s(sT0)}\ns_cmp_eq_u32 {s(sROT)}, 7\ns_cselect_b32 {s(sROT)}, 0, {s(sROT)}")
        p(f"s_and_b32 {s(sWV)}, s99, 3\ns_mul_i32 {s(sRB)}, {s(sWV)}, {REG}")
        p(f"v_lshrrev_b32 v6, 3, {v(vL)}\nv_and_b32 v7, 7, {v(vL)}\nv_lshlrev_b32 {v(vL16)}, 4, {v(vL)}")
        p("s_cmp_ge_u32 s99, 4\ns_cbranch_scc1 L_B")
        return p
    def after_args(self, x):
        x.wait_all(lg=True)
        if self.probe is not None: x("s_mov_b32 s0, s100")
        if self.stamps: x("v_writelane_b32 v5, s78, 18\nv_writelane_b32 v5, s80, 0\nv_writelane_b32 v5, s99, 63")
        self.stamp(x, 1)

    def b_prologue(self):
        b = self.new(); b.tag = 'b'; b.vm_issued = 1
        b("L_B:")
        self.ids(b)
        b(f"s_movk_i32 {s(sT0)}, 3584\ns_cselect_b32 {s(sRS)}, 2688, {s(sT0)}\ns_cselect_b32 {s(sCNT)}, 6, 7\ns_cbranch_scc1 L_Bck")
        b(f"s_lshl_b32 {s(sCOL)}, {s(sJ)}, 7\ns_add_u32 {s(sCOL+1)}, {s(sCOL)}, 1024\ns_add_u32 {s(sCOL+2)}, {s(sCOL)}, 2048\ns_branch L_Bcd\nL_Bck:")
        b(f"s_mul_i32 {s(sCOL)}, {s(sJ)}, 112\ns_add_u32 {s(sCOL+1)}, {s(sCOL)}, 1792\ns_addk_i32 {s(sCOL)}, 896\ns_lshl_b32 {s(sCOL+2)}, {s(sJ)}, 7\nL_Bcd:")
        b(f"s_mul_i32 {s(sT0)}, {s(sWV)}, {s(sRS)}\ns_lshl_b32 {s(sT0)}, {s(sT0)}, 4\ns_lshl_b32 {s(sSGL)}, {s(sJ)}, 6\ns_addk_i32 {s(sSGL)}, 3072")
        for r in (sCOL, sCOL + 1, sCOL + 2, sSGL): b(f"s_add_u32 {s(r)}, {s(r)}, {s(sT0)}")
        b(f"s_lshl_b32 {s(sT1)}, {s(sRS)}, 6")
        for n in range(7):
            if n: self.rot_step(b)
            b(f"s_mul_i32 {s(sK1+n)}, {s(sROT)}, {s(sT1)}")
        b(f"v_and_b32 v32, 2, v6\nv_lshlrev_b32 v32, 1, v32\nv_xor_b32 v32, v7, v32\nv_lshlrev_b32 v33, 4, v32")
        b(f"v_mul_u32_u24 v34, 896, v6\nv_add_u32 {v(bW2D)}, v34, v33\nv_add_u32 {v(bW2D+1)}, 6144, {v(bW2D)}")
        b(f"s_lshl_b32 {s(sT0)}, {s(sRS)}, 3\ns_addk_i32 {s(sT0)}, -1024")
        b(f"v_mul_u32_u24 v34, {s(sRS)}, v6\nv_add_u32 {v(bWD)}, v34, v33\nv_add_u32 {v(bWD+1)}, {s(sT0)}, {v(bWD)}")
        b(f"v_min_u32 v32, {s(sCNT)}, v32\nv_lshl_add_u32 {v(bWK)}, v32, 4, v34\nv_add_u32 {v(bWK+1)}, {s(sT0)}, {v(bWK)}")
        self.after_args(b)
        b(f"s_cmp_ge_u32 s2, {256 - self.o['NI']}\ns_cbranch_scc1 L_init\nL_noinit:")
        self.b = b
        self.b_main_setup()
        b(f"s_cmp_ge_u32 s2, {256 - self.o['NI']}\ns_cbranch_scc1 L_go\nL_gone:")
        if self.o['BPRIO']: b(f"s_setprio {self.o['BPRIO']}")
        b(f"s_cmp_lg_u32 {s(sROLE)}, 0\ns_cbranch_scc1 L_Bk")
        return b
    def spf(self, n):
        for k in range(n):
            if self.pfq: self.b(self.pfq.popleft())
    def b_main_setup(self):
        b = self.b; o = self.o
        self.pfq = deque()
        if o['SPF']:
            b(f"s_lshr_b32 {s(sT0)}, s2, 3\ns_and_b32 {s(sT1)}, s2, 3\ns_lshl2_add_u32 {s(sT0)}, {s(sT0)}, {s(sT1)}\ns_lshl2_add_u32 {s(sT0)}, {s(sT0)}, {s(sWV)}\ns_min_u32 {s(sT0)}, {s(sT0)}, 447")
            b(f"s_bfe_u32 {s(sT1)}, s2, 0x10002")
            b(f"s_mul_i32 {s(sT2)}, {s(sT0)}, 2688\ns_mul_i32 {s(sCNT)}, {s(sT1)}, 384\ns_add_u32 {s(sT2)}, {s(sT2)}, {s(sCNT)}\ns_add_u32 s82, {s(sWQ)}, {s(sT2)}\ns_addc_u32 s83, {s(sWQ+1)}, 0")
            L = lambda base, off, n: [f"s_load_dwordx2 s[80:81], {s(base,2)}, {off + 128*k + 60}" for k in range(n)]
            parts = dict(k=L(82, 896, 4), a=L(84, 0, 4), v=L(82, 1792, 4), b=L(84, 1024, 4), q=L(82, 0, 4), c=L(84, 2048, 4), s=L(86, 0, 2),
                         x=L(88, 0, 4), y=L(88, 458752, 4), z=L(88, 2 * 458752, 4), w=L(14, 0, 2), o=L(58, 0, 4))
            for ch in ["kabvcqsxyzwo", "kaxyzwo", "xyzwo", "kabvxyzwo", "kabxvcyqszwo", "ka", "kabv"][o.get('PFO', 0)]: self.pfq.extend(parts[ch])
            b(f"s_mul_i32 {s(sT2)}, {s(sT0)}, 3584\ns_lshl_b32 {s(sCNT)}, {s(sT1)}, 9\ns_add_u32 {s(sCNT)}, {s(sT2)}, {s(sCNT)}\ns_add_u32 s84, {s(sW1)}, {s(sCNT)}\ns_addc_u32 s85, {s(sW1+1)}, 0")
            b(f"s_lshl_b32 {s(sCNT)}, {s(sT1)}, 8\ns_add_u32 {s(sCNT)}, {s(sT2)}, {s(sCNT)}\ns_addk_i32 {s(sCNT)}, 3072\ns_add_u32 s86, {s(sW1)}, {s(sCNT)}\ns_addc_u32 s87, {s(sW1+1)}, 0")
            b(f"s_lshl1_add_u32 {s(sT0)}, {s(sT0)}, {s(sT1)}\ns_lshl_b32 {s(sT2)}, {s(sT0)}, 9\ns_add_u32 s88, {s(sW2)}, {s(sT2)}\ns_addc_u32 s89, {s(sW2+1)}, 0")
            b(f"s_lshl_b32 {s(sT2)}, {s(sT0)}, 8\ns_add_u32 {s(sT2)}, {s(sT2)}, {3*458752}\ns_add_u32 s14, {s(sW2)}, {s(sT2)}\ns_addc_u32 s15, {s(sW2+1)}, 0")
            b(f"s_mul_i32 {s(sT2)}, {s(sT0)}, 448\ns_and_b32 {s(sT2)}, {s(sT2)}, 0xffffff80\ns_add_u32 s58, {s(sWO)}, {s(sT2)}\ns_addc_u32 s59, {s(sWO+1)}, 0")
            self.spf(o.get('SPFE', 7))
        b(f"s_cmp_eq_u32 {s(sROLE)}, 0\ns_cselect_b32 {s(rW)}, {s(sW1)}, {s(sWQ)}\ns_cselect_b32 {s(rW+1)}, {s(sW1+1)}, {s(sWQ+1)}\ns_mul_i32 {s(rW+2)}, {s(sRS)}, 448\ns_mov_b32 {s(rW+3)}, 0x20000")
        b(f"s_cmp_lt_u32 {s(sCS)}, 7")
        b(f"s_mov_b32 {s(rW2)}, {s(sW2)}\ns_mov_b32 {s(rW2+1)}, {s(sW2+1)}\ns_cselect_b32 {s(rW2+2)}, {1792*896}, 0\ns_mov_b32 {s(rW2+3)}, 0x20000")
        b(f"s_mov_b32 {s(rWO)}, {s(sWO)}\ns_mov_b32 {s(rWO+1)}, {s(sWO+1)}\ns_cselect_b32 {s(rWO+2)}, {448*896}, 0\ns_mov_b32 {s(rWO+3)}, 0x20000")
        self.srd(b, rWS, sWS, WS_SIZE)
        b(f"s_mov_b64 s[8:9], {s(sDBG,2)}")
        self.srd(b, rX, sX, 1835008); self.srd(b, rOUT, sOUT, 1835008); self.srd(b, rB2, sB2, 896)
        b(f"s_lshl_b32 {s(sT0)}, {s(sCS)}, 7")
        b(f"s_mul_i32 {s(sW2B)}, {s(sWV)}, {8*14336}\ns_add_u32 {s(sW2B)}, {s(sW2B)}, {s(sT0)}")
        b(f"s_mul_i32 s7, {s(sWV)}, {4*14336}\ns_add_u32 s7, s7, {s(sT0)}\ns_add_u32 s7, s7, {96*14336}")
        b(f"s_mul_i32 {s(sWOB)}, {s(sWV)}, {112*896}\ns_add_u32 {s(sWOB)}, {s(sWOB)}, {s(sT0)}")
        b(f"s_mov_b32 {s(sMSK)}, 0xffff0000\ns_and_b32 s11, {s(sRB2)}, {3 if o['WROT'] else 0}")
        if o['WROT'] == 1: b(f"s_cmp_eq_u32 {s(sROLE)}, 0\ns_cselect_b32 s11, s11, 0")
        for k in range(4): b(f"s_xor_b32 {s(20+k)}, s11, {k}\ns_mul_i32 {s(20+k)}, {s(20+k)}, 14336\ns_lshl1_add_u32 {s(16+k)}, {s(20+k)}, {s(sW2B)}")
        b(f"s_lshr_b32 {s(sTG)}, {s(sWV)}, 1\ns_lshl1_add_u32 {s(sTG)}, {s(sRB2)}, {s(sTG)}")
        b(f"s_and_b32 {s(sT1)}, {s(sWV)}, 1\ns_lshl_b32 {s(sT1)}, {s(sT1)}, 6\ns_add_u32 {s(sCB)}, {s(sT0)}, {s(sT1)}")
        b(f"s_mul_i32 {s(sXB)}, {s(sTG)}, {32*896}\ns_add_u32 {s(sXB)}, {s(sXB)}, {s(sCB)}\ns_add_u32 {s(sXB2)}, {s(sXB)}, {16*896}")
        b(f"v_lshrrev_b32 v7, 2, {v(vL)}\nv_and_b32 v6, 3, {v(vL)}\nv_lshlrev_b32 v6, 4, v6")
        b(f"v_mul_u32_u24 {v(bOA)}, 896, v7\nv_add_u32 {v(bOA)}, {v(bOA)}, v6\nv_mul_u32_u24 {v(bSD)}, 3584, v7\nv_add_u32 {v(bSD)}, {v(bSD)}, v6")
        b(f"v_mul_u32_u24 {v(bRD)}, 68, v6\nv_lshl_add_u32 {v(bRD)}, v7, 4, {v(bRD)}\nv_add_u32 {v(bRD)}, {s(sRB)}, {v(bRD)}")
        b(f"v_lshrrev_b32 v32, 5, {v(vL)}\nv_bfe_u32 v33, {v(vL)}, 2, 2\nv_lshrrev_b32 v34, 1, v6\nv_bfe_u32 v35, {v(vL)}, 4, 1\nv_lshl_add_u32 v34, v35, 5, v34")
        b(f"v_and_b32 v35, 2, v33\nv_lshlrev_b32 v35, 5, v35\nv_xor_b32 v34, v34, v35\nv_lshl_add_u32 v32, v32, 2, v33\nv_lshl_add_u32 v32, v32, 7, v34")
        b(f"v_xor_b32 v32, {s(sT1)}, v32\nv_add_u32 {v(bP2R)}, {s(sRB)}, v32\nv_xor_b32 {v(bP2R+1)}, 64, {v(bP2R)}")
        b(f"s_mul_i32 {s(sCNT)}, {s(sWV)}, {8*1024}\ns_mul_i32 {s(sT0)}, {s(sTG)}, {HS}\ns_add_u32 {s(sT0)}, {s(sT0)}, {s(sCNT)}\nv_add_u32 v2, {s(sT0)}, {v(vL16)}")
        b(f"s_xor_b32 {s(sT0)}, {s(sTG)}, 1\ns_mul_i32 {s(sT0)}, {s(sT0)}, {HS}\ns_add_u32 {s(sT0)}, {s(sT0)}, {s(sCNT)}\nv_add_u32 v3, {s(sT0)}, {v(vL16)}")
        for q in range(4):
            b(f"s_xor_b32 {s(sT0)}, {s(sWV)}, {q}\ns_mul_i32 {s(sT0)}, {s(sT0)}, {REG}\nv_add_u32 {v(bWA+q)}, {s(sT0)}, {v(vL16)}")
        self.spf(o['SPF'] - o.get('SPFE', 7))

    def a_layernorm(self):
        a = self.a; o = self.o
        if o['PRIO']: a(f"s_setprio {o['PRIO']}")
        a(f"s_lshl2_add_u32 {s(sHST)}, {s(sI)}, {s(sWV)}\ns_mul_i32 {s(sXB)}, {s(sHST)}, {32*896}\ns_lshl_b32 {s(sG1)}, {s(sROT)}, 7")
        a(f"v_lshrrev_b32 v8, 1, v6\nv_xor_b32 v8, v7, v8\nv_lshlrev_b32 v8, 4, v8\nv_xor_b32 v9, 64, v8")
        a(f"v_mul_u32_u24 v10, 896, v6")
        a(f"v_add_u32 {v(vXD)}, v10, v8\nv_add_u32 v9, v10, v9")
        a(f"v_add_u32 {v(vXD+1)}, 6144, v9\nv_add_u32 {v(vXD+2)}, {2*6144}, {v(vXD)}\nv_add_u32 {v(vXD+3)}, {3*6144}, v9")
        a("s_mov_b32 s30, 1835008\ns_mov_b32 s31, 0x20000")
        for n in range(1, 3): self.rot_step(a); a(f"s_lshl_b32 {s(sG1+n)}, {s(sROT)}, 7")
        xq = dict(n=0); xk = {}
        def xprep():
            n = xq['n']
            if n < 28 and n % 4 == 0: self.set_m0(a, (n // 4) * 4096); a(f"s_add_u32 {s(sSO)}, {s(sXB)}, {s(sG1+n//4)}")
        def xdma():
            n = xq['n']
            if n >= 28: return
            xk[n // 4] = a.vm(f"buffer_load_dwordx4 {v(vXD+n%4)}, {s(rX,4)}, {s(sSO)} offen offset:{(n%4)*1024} lds")
            xq['n'] += 1
            if xq['n'] != 12: xprep()
        xprep()
        self.after_args(a)
        a("s_mov_b32 s28, s4\ns_mov_b32 s29, s5")
        for k in range(12): xdma()
        for n in range(3, 7): self.rot_step(a); a(f"s_lshl_b32 {s(sG1+n)}, {s(sROT)}, 7")
        xprep()
        self.ids(a)
        self.srd(a, rWS, sWS, WS_SIZE); self.srd(a, rB1, sB1, 3584)
        T0 = 236
        a(f"v_and_b32 v8, 31, {v(vL)}\nv_lshrrev_b32 v10, 5, {v(vL)}")
        a(f"v_bfe_u32 v11, {v(vL)}, 1, 3\nv_xor_b32 v11, v10, v11\nv_lshlrev_b32 v11, 4, v11")
        a(f"v_lshl_add_u32 v11, v8, 7, v11\nv_add_u32 {v(vXR)}, {s(sRB)}, v11")
        for j in range(1, 4): a(f"v_xor_b32 {v(vXR+j)}, {32*j}, {v(vXR)}")
        a(f"s_mov_b32 vcc_lo, 0xf0f00f0f\ns_mov_b32 vcc_hi, vcc_lo\nv_mov_b32 v11, 0x3f803f80")
        for k in range(4): a(f"v_cndmask_b32 {v(48+k)}, 0, v11, vcc")
        for r, val in zip(aM, (0xaaaaaaaa, 0xcccccccc, 0xff00ff00, 0xf0f0f0f0, 0xffff0000)): a(f"s_mov_b32 {s(r)}, {val:#x}\ns_mov_b32 {s(r+1)}, {s(r)}")
        a(f"s_mov_b32 {s(sHI)}, 0\ns_mov_b32 {s(sHI+1)}, -1\ns_mov_b32 {s(aL2E)}, 0x3fb8aa3b\ns_mov_b32 {s(aEPS)}, 0x358637bd")
        a(f"s_mov_b32 {s(aONE)}, 0xf0000000\ns_mov_b32 {s(aONE+1)}, {s(aONE)}\ns_mov_b32 {s(aONB)}, 15\ns_mov_b32 {s(aONB+1)}, 15")
        a(f"s_cmp_eq_u32 {s(sROLE)}, 0\ns_cselect_b32 {s(sT1)}, 64, 48\ns_cselect_b64 vcc, -1, 0")
        a(f"v_bfe_u32 v11, {v(vL)}, 2, 2")
        a(f"v_and_b32 v12, 3, {v(vL)}\nv_lshlrev_b32 v12, 3, v12\nv_bfe_u32 v13, {v(vL)}, 4, 1\nv_lshl_add_u32 v12, v13, 5, v12")
        a(f"v_and_b32 v13, 2, v11\nv_lshlrev_b32 v13, 5, v13\nv_lshl_add_u32 v9, v10, 3, v11")
        a(f"v_lshl_add_u32 v7, v9, 6, v12")
        a(f"v_lshlrev_b32 v9, 7, v9\nv_xor_b32 v8, v12, v13\nv_add_u32 {v(vWR)}, v9, v8")
        a(f"v_xor_b32 v8, 64, {v(vWR)}\nv_cndmask_b32 v7, v8, v7, vcc\nv_add_u32 v8, {s(sT1)}, v12\nv_xor_b32 v8, v8, v13\nv_add_u32 {v(vWR+4)}, v9, v8")
        for T in range(2):
            for r in range(1, 4): a(f"v_add_u32 {v(vWR+4*T+r)}, {REG*r}, {v(vWR+4*T)}")
        a(f"v_add_u32 v10, {s(sRB)}, {v(vL16)}\nv_mov_b32 v8, 1")
        a(f"s_lshr_b32 {s(sT0)}, {s(sHST)}, 1\ns_lshr_b32 {s(sT1)}, {s(sJ)}, 1\ns_lshl2_add_u32 {s(sT0)}, {s(sT0)}, {s(sT1)}\ns_lshl_b32 {s(sT0)}, {s(sT0)}, 7")
        a(f"s_and_b32 {s(sT1)}, {s(sHST)}, 1\ns_lshl3_add_u32 {s(sT0)}, {s(sT1)}, {s(sT0)}\ns_and_b32 {s(sT1)}, {s(sJ)}, 1\ns_lshl2_add_u32 {s(sT0)}, {s(sT1)}, {s(sT0)}")
        a(f"s_lshl_b32 {s(sT1)}, {s(sHST)}, 7\ns_lshl2_add_u32 {s(sT1)}, {s(sJ)}, {s(sT1)}\ns_add_u32 {s(sT1)}, {s(sT1)}, {WS_PL - WS_FL}")
        a(f"s_cmp_eq_u32 {s(sROLE)}, 0\ns_cselect_b32 {s(sT0)}, {s(sT0)}, {s(sT1)}\ns_add_u32 {s(sT0)}, {s(sT0)}, {WS_FL}\nv_mov_b32 v9, {s(sT0)}")
        misc = deque(); M = lambda t: self.lines(a, misc, t)
        M(f"s_lshl4_add_u32 {s(sT0)}, {s(sJ)}, {s(sI)}\ns_lshl_b32 {s(sT0)}, {s(sT0)}, 7\ns_lshl2_add_u32 {s(sT0)}, {s(sWV)}, {s(sT0)}")
        M(f"s_add_u32 {s(sT0)}, {s(sT0)}, {WS_FK}\nv_mov_b32 v13, {s(sT0)}")
        M(f"s_lshl2_add_u32 {s(sT0)}, {s(sJ)}, {s(sWV)}\ns_lshl4_add_u32 {s(sT0)}, {s(sT0)}, {s(sI)}\ns_lshl_b32 {s(sT0)}, {s(sT0)}, 10\ns_add_u32 {s(aKVO)}, {s(sT0)}, {WS_KV}")
        M(f"s_mul_i32 {s(aHST)}, {s(sHST)}, 35\ns_lshl1_add_u32 {s(aHS2)}, {s(aHST)}, {s(sJ)}\ns_add_u32 {s(aHST)}, {s(aHST)}, {s(sJ)}\ns_lshl_b32 {s(aHST)}, {s(aHST)}, 12")
        M(f"s_add_u32 {s(aHS2)}, {s(aHS2)}, 48\ns_lshl_b32 {s(aHS2)}, {s(aHS2)}, 11")
        M(f"s_mul_i32 {s(aPQS)}, {s(sHST)}, 7\ns_add_u32 {s(aPQS)}, {s(aPQS)}, {s(sJ)}\ns_lshl_b32 {s(aPQS)}, {s(aPQS)}, 12\ns_add_u32 {s(aPQS)}, {s(aPQS)}, {WS_PQ}")
        misc.append(lambda: a(f"s_cmp_eq_u32 {s(sJ)}, 7\ns_cselect_b32 {s(aPQS)}, {WS_SIZE}, {s(aPQS)}"))
        M(f"s_lshl_b32 {s(aBIA)}, {s(sJ)}, 7\ns_lshl_b32 {s(aBI2)}, {s(sJ)}, 6")
        xt = {}
        def xread(st):
            if st >= 28: return
            n = st // 4
            if st % 4 == 0:
                while xq['n'] < 4 * n + 4: xdma()
                a.wait(vm=xk[n])
                if n == 0: self.stamp(a, 2)
            xt[st] = a.ds(f"ds_read_b128 {v(Rof(st),4)}, {v(vXR+st%4)} offset:{n*4096}")
            if st % 4 == 3:
                for k in (2 * n, 2 * n + 1):
                    self.slot['x', k] = k; self.lastread['x', k] = xt[st]; self.allread.add(('x', k))
        for k in range(o['XPRE'] - 12): xdma()
        xread(0); xread(1)
        self.clk = 0; self.tprev = 0
        for st in range(28):
            r = Rof(st); b = Uof(st)
            a.wait(lg=xt[st])
            a(f"v_mfma_f32_32x32x16_bf16 v[28:43], {v(r,4)}, {v(r,4)}, {'v[28:43]' if st else 0}")
            xread(st + 2)
            xdma()
            self.clk += o['TFRAG'] if st < 16 else 52
            for d in range(4):
                if d == 2: a(f"v_mfma_f32_16x16x32_bf16 v[44:47], v[48:51], {v(r,4)}, {'v[44:47]' if st else 0}")
                if st < 23: a(f"v_lshlrev_b32 {v(b+2*d)}, 16, {v(r+d)}\nv_and_b32 {v(b+2*d+1)}, {s(sMSK)}, {v(r+d)}")
            if misc: misc.popleft()()
            if st == o['B0AT']:
                self.vclk = max(self.clk, 24 * o['CX']); self.stamp(self.b, 2); self.barrier(); self.stamp(self.b, 3)
        assert not misc
        self.stamp(a, 3)
        a(f"v_mov_b32 {v(vSR)}, v7")
        for r in range(1, 4): a(f"v_add_u32 {v(vSR+r)}, {REG*r}, v7")
        inv = 0x3b124925
        a(f"s_nop 2\nv_mul_f32 v44, {inv:#x}, v44")
        for lvl, step in enumerate((1, 2, 4)):
            for k in range(0, 16, 2 * step): a(f"v_cndmask_b32 {v(28+k)}, {v(28+k)}, {v(28+k+step)}, {s(aM[lvl],2)}")
        a(f"v_cndmask_b32 v29, v28, v36, {s(aM[4],2)}\nv_cndmask_b32 v28, v28, v36, {s(aM[4],2)}")
        a(f"v_permlane32_swap_b32 v29, v28")
        a(f"v_cndmask_b32 v28, v29, v28, {s(aM[3],2)}")
        a(f"v_mul_f32 v28, {inv:#x}, v28\nv_fma_f32 v28, -v44, v44, v28\nv_max_f32 v28, 0, v28\nv_add_f32 v28, 0x3727c5ac, v28")
        a(f"v_rsq_f32 v2, v28")
        a(f"v_mul_f32_e64 v3, -v44, v2")
        self.clk += 170
        for st in list(range(7, -1, -1)) + list(range(8, 23)):
            if st == 17:
                for k in range(o['D']): self.read_frag(k)
            for d in range(4):
                r = Uof(st) + 2 * d
                a(f"v_pk_fma_f32 {v(r,2)}, {v(r,2)}, v[2:3], v[2:3] op_sel:[0,0,1] op_sel_hi:[1,0,1]")
            self.clk += 21
            if st < 8:
                for d in (3, 2, 1, 0): a(f"v_cvt_pk_bf16_f32 {v(Fof(st)+d)}, {v(Uof(st)+2*d)}, {v(Uof(st)+2*d+1)}")
                self.clk += 21
        self.stamp(a, 4)

    def store(self, r, soff, off):
        def f(): self.last_store = self.a.vm(f"buffer_store_dwordx4 {v(r,4)}, {v(vL16)}, {s(rWS,4)}, {s(soff)} offen offset:{off} sc1")
        return f
    def flag(self, get, val, va="v9"):
        a = self.a
        def f():
            a.wait(vm=get())
            a.vm(f"buffer_store_dword v8, {va}, {s(rWS,4)}, 0 offen sc1")
            if val: a(f"v_mov_b32 v8, {val}")
            return 3
        return f
    def a_ffn(self):
        a = self.a; o = self.o
        fl = deque(self.g3_ops()); A = lambda t: self.lines(a, fl, t)
        SEL = BI + 14; tb = {}
        def forced(st, T):
            ops = self.cvt_forced(st, T)
            if (st, T) == (19, 1): self.lines(a, ops, f"v_and_b32 v12, 31, {v(vL)}\nv_lshlrev_b32 v12, 1, v12")
            k = 2 * st + T - 40
            if 0 <= k < 7:
                so, off = (aBIA, 64 * (k & 1) + 1024 * (k >> 1)) if k < 6 else (aBI2, 3072)
                ops.append(lambda: tb.update({k: a.vm(f"buffer_load_ushort {v(BI+2*k)}, v12, {s(rB1,4)}, {s(so)} offen offset:{off}")}))
            if (st, T) == (24, 0): self.lines(a, ops, "\n".join(f"v_mov_b32 {v(BI+k)}, 0" for k in (1, 3, 5, 7)))
            if (st, T) == (24, 1): self.lines(a, ops, "\n".join(f"v_mov_b32 {v(BI+k)}, 0" for k in (9, 11, 13)))
            if (st, T) == (25, 0): self.lines(a, ops, "\n".join(f"v_mov_b32 {v(SEL+k)}, 0" for k in (1, 2, 3)))
            if (st, T) == (25, 1): self.lines(a, ops, f"v_mov_b32 {v(SEL)}, 0x3f80\nv_cndmask_b32 {v(SEL)}, {v(SEL)}, 0, {s(sHI,2)}")
            return ops
        def bias(acc, tiles, cont=False): return [f"v_mfma_f32_32x32x16_bf16 {acc(T)}, {v(BI+2*k,4)}, {v(SEL,4)}, {acc(T) if cont else 0}" for T, k in enumerate(tiles)]
        def epi(h, so, off):
            ops = []
            for d in range(8):
                t0 = h + 2 * d
                self.lines(a, ops, f"v_mul_f32_e64 {v(t0)}, {v(t0)}, |{v(t0)}|\nv_mul_f32_e64 {v(t0+1)}, {v(t0+1)}, |{v(t0+1)}|")
                self.lines(a, ops, f"v_cvt_pk_bf16_f32 {v(h+d)}, {v(t0)}, {v(t0+1)}\nv_pk_max_i16 {v(h+d)}, {v(h+d)}, 0")
                if d % 4 == 3: ops.append(self.store(h + d - 3, so, off + (d // 4) * 1024))
            return ops
        accS = lambda T: v(AS + 16 * T, 16); accA = lambda T: v(VA + 16 * T, 16)
        big = lambda: 99; last = lambda: self.last_store
        sy = [(), (), (), ()]
        for k in range(o['SYNCF']): sy[2 + k // 2] += ((4, 32)[k % 2],)
        self.syncs_left = o['SYNCF']
        self.run_stage(0, accS, False, fl, budget=o['B0'], forced=forced, minfill=2.4, finish=12)
        assert not fl
        self.stamp(a, 5)
        fl.extend([self.go_load] + [big] * o.get('BIASLAG', 5))
        fl.append(lambda: a.wait(vm=tb[6]) and 1)
        for line in bias(accS, [0, 1], True) + bias(accA, [2, 3], True): fl.append(lambda line=line: a(line) or 2)
        fl.extend([big, big])
        fl.extend(epi(AS, aHST, 0) + epi(AS + 16, aHST, 2048)); fl.append(self.go_check)
        fl.extend([big] * o['FLAG']); fl.append(self.flag(last, 3))
        self.run_stage(1, accA, False, fl, budget=o['B1'], minfill=2.2)
        assert not fl
        self.stamp(a, 6)
        A(f"s_add_u32 {s(aHST)}, {s(aHST)}, 32768"); fl.extend([big, big, big])
        fl.extend(epi(VA, aHST, 0) + epi(VA + 16, aHST, 2048)); fl.extend([big] * o['FLAG']); fl.append(self.flag(last, 7))
        self.run_stage(2, accS, False, fl, budget=o['B2'], pre=bias(accS, [4, 5]), minfill=2, syncs=sy[2])
        assert not fl
        self.stamp(a, 7)
        A(f"s_add_u32 {s(aHST)}, {s(aHST)}, 32768"); fl.extend([big, big, big])
        fl.extend(epi(AS, aHST, 0) + epi(AS + 16, aHST, 2048))
        self.run_stage(3, accA, False, fl, budget=o['B3'], pre=bias(accA, [6]), minfill=3, syncs=sy[3])
        assert not fl and not self.b_alive
        self.stamp(a, 8)
        for g in epi(VA, aHS2, 0): g()
        self.flag(last, 0)()
        self.stamp(a, 9); self.flush_stamp(a)
        a("s_branch L_afin")
        print("F: end of phase 1 at", self.clk, "forced", self.forced, "publag", self.publag)

    def a_kvq(self):
        a = self.a; o = self.o
        fl = deque(self.g3_ops()); A = lambda t: self.lines(a, fl, t)
        accS = lambda T: v(AS + 16 * T, 16); accA = lambda T: v(VA + 16 * T, 16)
        big = lambda: 99; last = lambda: self.last_store
        self.syncs_left = 1 + o['SYNCK']
        self.run_stage(0, accS, True, fl, budget=o['B0'], forced=self.cvt_forced, minfill=2.4, finish=12)
        assert not fl
        self.stamp(a, 5)
        PK, PV, KV = (208, 224), (216, VA + 16), (VA, 208)
        self.hold = {14, 15, 16, 17}; XB = 14 * 2048
        fl.extend([self.go_load, big, big])
        A(f"v_mov_b32 v1, 0x3f803f80")
        fl.extend(self.phi_ops(AS, PK[0]) + self.phi_ops(AS + 16, PK[1])); fl.append(self.go_check)
        self.run_stage(1, accA, True, fl, budget=o['B1'], minfill=3)
        assert not fl and set(self.reserve) == self.hold
        self.stamp(a, 6)
        st = {}
        def chain():
            kvm = lambda T, k: a(f"v_mfma_f32_32x32x16_bf16 {v(KV[T],16)}, {v(PK[T]+4*k,4)}, {v(PV[T]+4*k,4)}, {v(KV[T],16) if k else 0}")
            wr = lambda g: a.ds(f"ds_write_b128 v10, {v(KV[g>>2]+4*(g&3),4)} offset:{XB + g*1024}")
            for T in range(2):
                for d in range(8):
                    a(f"v_cvt_pk_bf16_f32 {v(PV[T]+d)}, {v(VA+16*T+2*d)}, {v(VA+16*T+2*d+1)}\nv_cndmask_b32 {v(PV[T]+d)}, {v(PV[T]+d)}, v1, {s(aONE if T == 0 else aONB,2)}")
                    if T == 1 and d in (0, 1): kvm(0, d)
            kvm(1, 0); kvm(1, 1)
            for g in range(8): st['w'] = wr(g)
            self.clk += 700
            return 99
        def bar():
            a.wait(lg=st['w']); self.hook = self.b_kv; self.sync(o['XSLACK']); self.stamp(a, 8); return 2
        fl.extend([big] * o['KPRE'] + [chain, big, bar])
        q = []
        for T in range(2):
            p = self.phi_ops(AS + 16 * T)
            q.append(p[:36] + [self.store(AS + 16 * T, aPQS, 2048 * T)] + p[36:] + [self.store(AS + 16 * T + 4, aPQS, 2048 * T + 1024)])
        q0 = deque(q[0])
        def forced(stp, T):
            self.slotk = 28 * T + stp; ops = []
            if T == 1 and stp >= 3 and not fl:
                for k in range(o.get('QN', 4)):
                    if q0: ops.append(q0.popleft())
            return ops
        self.run_stage(2, accS, False, fl, budget=o.get('BK2', 9), forced=forced, syncs=(44,) if o['SYNCK'] else ())
        assert not fl and not self.b_alive
        self.stamp(a, 7)
        rest = list(q0) + q[1]
        for g in rest: g()
        self.flag(last, 0)()
        self.stamp(a, 9); self.flush_stamp(a)
        print("K: end of phase 1 at", self.clk, "forced", self.forced, "publag", self.publag)
        a(f"s_cmp_lt_u32 {s(sCS)}, 7\ns_cbranch_scc1 L_afin")
        xs = self.xs * 2048
        G, S, TM, KVA, P, NUM = 84, 212, 228, 52, 84, 140
        W8 = 99
        a(f"s_setprio {o['BPRIO']}")
        self.join_setup(a); self.poll_issue(a, 8, aFL)
        a("L_join:")
        self.poll_check(a, 8, aFL, 0, 1)
        self.stamp(a, 12)
        pt = {}
        for t in range(7):
            pt[t] = a.vm(f"buffer_load_dwordx4 {v(P+4*t,4)}, {v(vL16)}, {s(rWS,4)}, s{4+t//4} offen offset:{(t%4)*1024}{self.lm}")
        a("s_barrier")
        self.stamp(a, 13)
        for u in range(4):
            for f in range(2): tk = a.ds(f"ds_read_b128 {v(KVA+8*u+4*f,4)}, {'v11' if u < 2 else 'v12'} offset:{(u&1)*REG + f*1024}")
        def nm(hp):
            Pp = P + 14 * hp
            a.wait(vm=pt[3 + 3 * hp], lg=tk)
            for k in range(2):
                for T in range(2):
                    N = v(NUM + 32 * hp + 16 * T, 16)
                    a(f"v_mfma_f32_32x32x16_bf16 {N}, {v(KVA+16*hp+8*T+4*k,4)}, {v(Pp+6*T+4*k,4)}, {N if k else 0}")
        def ov(hp):
            Pp = P + 14 * hp
            def sto(t): self.last_store = a.vm(f"buffer_store_dwordx4 {v(P+4*t,4)}, {v(vL16)}, {s(rWS,4)}, s{40+t//4} offen offset:{(t%4)*1024}{self.sm}")
            NA = NUM + 32 * hp; NB = NA + 16; E = s(aEPS)
            a(f"v_add_f32 {v(TM)}, {E}, {v(NA+12)}\nv_add_f32 {v(TM+1)}, {E}, {v(NA+12)}\nv_add_f32 {v(TM+2)}, {E}, {v(NB)}\nv_add_f32 {v(TM+3)}, {E}, {v(NB)}")
            a(f"v_permlane32_swap_b32 {v(TM)}, {v(TM+1)}\nv_permlane32_swap_b32 {v(TM+2)}, {v(TM+3)}")
            a(f"v_rcp_f32 {v(TM+1)}, {v(TM+1)}\nv_rcp_f32 {v(TM+2)}, {v(TM+2)}")
            for T in range(2):
                for d in range(8):
                    r = NA + 16 * T + 2 * d
                    a(f"v_mul_f32 {v(r)}, {v(r)}, {v(TM+1+T)}\nv_mul_f32 {v(r+1)}, {v(r+1)}, {v(TM+1+T)}")
                    dst = Pp + d if T == 0 else (TM + 4 + d if d < 2 else Pp + 6 + d)
                    a(f"v_cvt_pk_bf16_f32 {v(dst)}, {v(r)}, {v(r+1)}")
                    if T == 1 and d == 1:
                        a(f"v_cndmask_b32 {v(Pp+6)}, {v(Pp+6)}, {v(TM+4)}, {s(sHI,2)}\nv_cndmask_b32 {v(Pp+7)}, {v(Pp+7)}, {v(TM+5)}, {s(sHI,2)}")
                    done = {(0,0,3): 0, (0,1,1): 1, (0,1,5): 2, (1,0,1): 3, (1,0,5): 4, (1,1,3): 5, (1,1,7): 6}.get((hp, T, d))
                    if done is not None: sto(done)
        nm(0); nm(1); ov(0); ov(1)
        a.wait(vm=self.last_store)
        a.vm(f"buffer_store_dword v8, v9, {s(rWS,4)}, 0 offen{self.fm}")
        self.stamp(a, 14); self.flush_stamp(a)
        a("s_branch L_fin")

    def join_setup(self, a):
        W8 = 99; xs = self.xs * 2048
        a(f"s_lshr_b32 {s(sT2)}, {s(sRB2)}, 3")
        a(f"s_and_b32 {s(sI)}, {s(sRB2)}, 7\ns_lshl3_add_u32 {s(sI)}, {s(sI)}, {s(W8)}")
        a(f"s_lshl_b32 {s(sCNT)}, {s(sI)}, 7\ns_add_u32 {s(sCNT)}, {s(sCNT)}, {WS_PL}\ns_add_u32 {s(aFL)}, {s(sWS)}, {s(sCNT)}\ns_addc_u32 {s(aFL+1)}, {s(sWS+1)}, 0")
        a(f"s_lshr_b32 {s(sCNT)}, {s(sI)}, 1\ns_lshl2_add_u32 {s(sCNT)}, {s(sCNT)}, {s(sT2)}\ns_lshl_b32 {s(sCNT)}, {s(sCNT)}, 7\ns_add_u32 {s(sCNT)}, {s(sCNT)}, {WS_FL}")
        a(f"s_and_b32 {s(sT1)}, {s(W8)}, 1\ns_lshl2_add_u32 {s(sCNT)}, {s(sT1)}, {s(sCNT)}\ns_add_u32 {s(sCNT)}, {s(sCNT)}, 16\nv_mov_b32 v9, {s(sCNT)}\nv_mov_b32 v8, 1")
        a(f"s_mul_i32 {s(sT2)}, {s(sT2)}, 7168")
        a(f"s_mul_i32 s4, {s(sI)}, {28*1024}\ns_add_u32 s4, s4, {s(sT2)}\ns_add_u32 s4, s4, {WS_PQ}\ns_add_u32 s5, s4, 4096")
        a(f"s_mul_i32 s40, {s(sI)}, {HS}\ns_add_u32 s40, s40, {s(sT2)}\ns_add_u32 s40, s40, {112*1024}\ns_add_u32 s41, s40, 4096")
        a(f"s_mov_b32 {s(sHI)}, 0\ns_mov_b32 {s(sHI+1)}, -1\ns_mov_b32 {s(aEPS)}, 0x358637bd")
        a(f"v_add_u32 v12, {2*REG + xs}, {v(vL16)}\nv_add_u32 v11, {xs}, {v(vL16)}")
    def b_kv(self):
        b = self.b; XB = 14 * 2048; R = ACC
        if self.o.get('KPRI'): b("s_setprio 3")
        self.stamp(b, 6)
        b(f"s_lshl_b32 {s(sT0)}, {s(sWV)}, 11\ns_add_u32 {s(sT0)}, {s(sT0)}, {XB}\nv_add_u32 v64, {s(sT0)}, {v(vL16)}\nv_add_u32 v65, {2*REG}, v64")
        rt = [b.ds(f"ds_read_b128 {v(R+8*sw+4*h,4)}, v{64 + (sw >> 1)} offset:{(sw&1)*REG + h*1024}") for sw in range(4) for h in range(2)]
        b(f"s_lshl2_add_u32 {s(sT0)}, {s(sJ)}, {s(sWV)}\ns_lshl4_add_u32 {s(sT0)}, {s(sT0)}, {s(sI)}\ns_lshl_b32 {s(sT0)}, {s(sT0)}, 10\ns_add_u32 {s(sT0)}, {s(sT0)}, {WS_KV}")
        FS = self.o['FKS']
        b(f"s_lshr_b32 s57, {s(sWV)}, 1\ns_lshl1_add_u32 s57, {s(sJ)}, s57\ns_lshl4_add_u32 s57, s57, {s(sI)}\ns_lshl_b32 s57, s57, 1\ns_and_b32 {s(sT1)}, {s(sWV)}, 1\ns_add_u32 s57, s57, {s(sT1)}")
        b(f"s_mul_i32 s57, s57, {FS}\ns_add_u32 s57, s57, {WS_FK}\nv_mov_b32 v16, 1")
        b.wait(lg=rt[3])
        for k in range(8): b(f"v_add_f32 {v(R+k)}, {v(R+k)}, {v(R+8+k)}")
        b.wait(lg=rt[7])
        for k in range(8): b(f"v_add_f32 {v(R+16+k)}, {v(R+16+k)}, {v(R+24+k)}")
        for d in range(4):
            b(f"v_add_f32 {v(R+2*d)}, {v(R+2*d)}, {v(R+16+2*d)}\nv_add_f32 {v(R+2*d+1)}, {v(R+2*d+1)}, {v(R+17+2*d)}\nv_cvt_pk_bf16_f32 {v(R+d)}, {v(R+2*d)}, {v(R+2*d+1)}")
        self.kvst = b.vm(f"buffer_store_dwordx4 {v(R,4)}, {v(vL16)}, {s(rWS,4)}, {s(sT0)} offen sc1")
        if self.o.get('KPRI'): b(f"s_setprio {self.o['BPRIO']}")
        self.stamp(b, 4)
        self.vclk = max(self.vclk, self.clk) + 400
        self.hold = set()
        for sl in self.reserve:
            self.slot['kx', sl] = sl; self.lastread['kx', sl] = 0; self.allread.add(('kx', sl))
    def kv_flag(self, x, force=False):
        if self.kvst and (force or x.vm_issued - self.kvst >= self.o['KVD'] or x.vm_done >= self.kvst):
            x.wait(vm=self.kvst); x.vm(f"buffer_store_dword v16, off, {s(rWS,4)}, s57 sc1"); self.stamp(x, 5)
            if x is self.bmain: self.kvst = None
    def b_gather(self):
        b = self.b; o = self.o; G, S, TM = 32, 160, 176; xs = self.xs * 2048
        b(f"s_lshr_b32 {s(sT2)}, {s(sRB2)}, 3\ns_lshl2_add_u32 {s(sT1)}, {s(sT2)}, {s(sWV)}")
        b(f"s_and_b32 {s(sCNT)}, {s(sWV)}, 1\ns_cselect_b32 s44, -1, 0\ns_cselect_b32 s47, 0, -1\ns_mov_b32 s45, 0\ns_mov_b32 s46, 0")
        b(f"s_mul_i32 s42, {s(sT1)}, {32*o['FKS']}\ns_add_u32 s42, s42, {WS_FK}\nv_and_b32 v1, 31, {v(vL)}\nv_mul_u32_u24 v1, {o['FKS']}, v1")
        b(f"s_lshl_b32 {s(sT1)}, {s(sT1)}, 15\ns_add_u32 {s(sSO)}, {s(sT1)}, {WS_KV}")
        self.kv_flag(b, force=True)
        self.join_setup(b)
        SM = 184
        b.wait_all(lg=True)
        b(f"v_bfe_u32 v2, {v(vL)}, 3, 2\nv_bfe_u32 v3, {v(vL)}, 1, 1\nv_lshl_add_u32 v2, v2, 1, v3\ns_mov_b32 vcc_lo, 0x0f0f0f0f\ns_mov_b32 vcc_hi, 0xf0f0f0f0\nv_cndmask_b32 v2, 63, v2, vcc")
        b(f"s_mov_b32 vcc_lo, 0xaaaaaaaa\ns_mov_b32 vcc_hi, vcc_lo\nv_mov_b32 v3, 0x3f80\nv_mov_b32 v4, 0x3f800000\nv_cndmask_b32 v3, v3, v4, vcc")
        for k in range(8): b(f"v_cmp_eq_u32 vcc, {k}, v2\nv_cndmask_b32 {v(SM+k)}, 0, v3, vcc")
        if o.get('KWAIT', 1): b.wait_all(vm=True)
        b(f"s_mov_b32 {s(sCNT)}, 0\nL_kpoll:")
        b.vm(f"buffer_load_dword v14, v1, {s(rWS,4)}, s42 offen sc1")
        b.wait_all(vm=True)
        b(f"v_cmp_eq_u32 vcc, 0, v14\ns_cbranch_vccz L_kgo")
        if o['SL2']: b(f"s_sleep {o['SL2']}")
        b(f"s_add_u32 {s(sCNT)}, {s(sCNT)}, 1\ns_cmp_lt_u32 {s(sCNT)}, {SPIN}\ns_cbranch_scc1 L_kpoll\nL_kgo:")
        self.stamp(b, 10)
        gt = []
        def acc(n):
            b.wait(vm=gt[n])
            b(f"v_mfma_f32_32x32x16_bf16 {v(S,16)}, {v(SM+4*(n//16),4)}, {v(G+4*n,4)}, {v(S,16) if n else 0}")
        for n in range(32):
            if n >= 11: acc(n - 11)
            if n and n % 4 == 0: b(f"s_addk_i32 {s(sSO)}, 4096")
            gt.append(b.vm(f"buffer_load_dwordx4 {v(G+4*n,4)}, {v(vL16)}, {s(rWS,4)}, {s(sSO)} offen offset:{(n%4)*1024}{self.lm}"))
        for n in range(21, 32):
            acc(n)
            if n == 26: self.poll_issue(b, 8, aFL)
        for d in range(8): b(f"v_cvt_pk_bf16_f32 {v(TM+d)}, {v(S+2*d)}, {v(S+2*d+1)}")
        for d in (0, 1): b(f"v_cndmask_b32 {v(TM+d)}, {v(TM+d)}, 0, s[44:45]")
        for d in (6, 7): b(f"v_cndmask_b32 {v(TM+d)}, {v(TM+d)}, 0, s[46:47]")
        for f in range(2): b.ds(f"ds_write_b128 {v(bWA)}, {v(TM+4*f,4)} offset:{xs + f*1024}")
        self.stamp(b, 11); self.flush_stamp(b)
        b("s_branch L_join")

    def phase2(self):
        b = self.b; o = self.o
        NS = o['NS']; lagv = o['LAGV']
        RES, B2, XW, BW = 224, 240, 248, 28
        self.stamp(b, 8)
        b(f"s_lshl2_add_u32 {s(sT0)}, {s(sRB2)}, {s(sWV)}\ns_lshl_b32 {s(sT0)}, {s(sT0)}, 7\ns_add_u32 {s(sT0)}, {s(sT0)}, {WS_FL}")
        b(f"s_add_u32 {s(sFL)}, {s(sWS)}, {s(sT0)}\ns_addc_u32 {s(sFL+1)}, {s(sWS+1)}, 0")
        HP = [92, 93, 94, 95]; HU = [96, 97, 4, 5]
        for k in range(4): b(f"s_xor_b32 {s(sT0)}, s11, {k}\ns_lshl_b32 {s(HP[k])}, {s(sT0)}, 11\ns_lshl_b32 {s(HU[k])}, {s(sT0)}, 10")
        b(f"s_movk_i32 s6, 4096\ns_lshl_b32 {s(sT0)}, {s(sWV)}, 12\ns_sub_u32 {s(sT0)}, {96*1024}, {s(sT0)}\ns_lshl_b32 {s(sT1)}, {s(sWV)}, 10\ns_sub_u32 {s(sT1)}, {112*1024}, {s(sT1)}")
        for k in range(2): b(f"v_add_u32 v{20+k}, 0x8000, v{2+k}\nv_add_u32 v{22+k}, 0x10000, v{2+k}\nv_add_u32 v{8+k}, {s(sT0)}, v{2+k}\nv_add_u32 v{10+k}, {s(sT1)}, v{2+k}")
        tk = {}; ring = {}; freering = list(range(NS)); st = dict(cur=None, first=True)
        def mf(d, x, y, c): return f"v_mfma_f32_32x32x16_bf16 {d}, {x}, {y}, {c}"
        acc = lambda q: v(ACC + 16 * q, 16)
        def moved(t): return t in self.w2_issued[:self.mv_next]
        def old(t, lag): return b.vm_issued - t >= lag or t <= b.vm_done
        hline = lambda t, q, c: mf(acc(q), v(self.wreg[t] + 4 * (q & 1), 4), v(96 + 8 * ring[t] + 4 * (q >> 1), 4), c)
        kept = set()
        def give(t):
            r = self.wreg[t]
            if self.wkeep and r >= RES: kept.add(r)
            elif st.get('ns', NS) < o.get('NS2', NS) and t >= o.get('NSAT', 4) and r < RES: st['ns'] = st.get('ns', NS) + 1; freering.append((r - 96) // 8)
            else: self.wfree.append(r)
        nl = o['NLAST']; lastH = list(range(35 - nl, 35))
        tasks = deque(range(35 - nl))
        def fillers():
            self.mv_release()
            for k in range(2):
                if self.mv_ready(o['LAG']): self.mv_one()
        def mfma(lag, fill=True):
            if st['cur'] is None:
                if not tasks: return False
                t = tasks[0]
                if not (('h', t, 1) in tk and old(tk['h', t, 1], lag) and moved(t)): return False
                tasks.popleft()
                b.wait(vm=tk['h', t, 1], lg=self.mv_t[t])
                st['cur'] = (t, deque(hline(t, q, "0" if st['first'] else acc(q)) for q in (3, 2, 1, 0))); st['first'] = False
            t, lines = st['cur']
            b(lines.popleft())
            if not lines: st['cur'] = None; freering.append(ring[t]); give(t)
            if fill: fillers()
            return True
        def progress():
            if mfma(0): return
            if self.mv_ready(0): self.mv_one(); return
            self.mv_release()
            if self.dma_ready(): self.dma_one(); return
            b.wait_all(lg=True); self.mv_release()
            assert self.dma_ready() or self.mv_ready(0), ("stuck", list(tasks))
        nD = sum(len(it['ops']) for it in self.dq); nD0 = nD
        pre = min(nD, self.dpre); nD -= pre; d0 = o['D0']
        seq = [('dma',)] * pre + [('check', 4, 0, 1, 9)]; given = 0
        for t in range(35):
            if t == 8: seq.append(('check', 4, 0, 2, 10))
            if t == 16: seq.append(('check', 4, 0, 4, 11))
            if t == 28: seq.append(('check', 2, 16, 1, 12))
            if t == 14: seq.append(('keep',))
            if t == o.get('RESAT', 30): seq.append(('res',))
            seq += [('h', t, 0), ('h', t, 1)]
            want = min(nD, -(-nD * (t + 1 - d0) // self.dspread)) if t >= d0 else 0
            seq += [('dma',)] * (want - given); given = max(given, want)
        assert given == nD
        out = []
        for it in seq:
            if it[0] == 'check': out.insert(max(0, len(out) - o['PLEAD']), ('issue',) + it[1:])
            out.append(it)
        barrier_done = False; owed = 0
        for it in out:
            kind = it[0]
            if kind == 'issue': self.poll_issue(b, it[1], sFL, it[2]); continue
            if kind == 'check':
                self.kv_flag(b, force=True)
                if it[4] == 9: self.stamp(b, 7)
                self.poll_check(b, it[1], sFL, it[2], it[3]); self.stamp(b, it[4]); continue
            if kind == 'keep':
                self.wkeep = True
                for r in list(self.wfree):
                    if r >= RES: self.wfree.remove(r); kept.add(r)
                continue
            if kind == 'dma':
                self.mv_release()
                while self.dq and not self.dma_ready() and (len(self.mv_freed) < self.mv_next or self.mv_ready(o.get('LAGMIN', 4))):
                    if len(self.mv_freed) < self.mv_next: b.wait(lg=self.mv_t[self.w2_issued[len(self.mv_freed)]]); self.mv_release()
                    else: self.mv_one()
                if not self.dma_ready(): owed += bool(self.dq); continue
            mfma(lagv, fill=False)
            if kind == 'dma': self.dma_one()
            elif kind == 'h':
                _, t, k = it
                if k == 0:
                    while not freering: progress()
                    ring[t] = freering.pop(0)
                if t < 24: va, so, u = (2, 20, 22)[t // 8] + k, s(HP[(t % 8) // 2]), t % 2
                elif t < 32: va, so, u = (8 if t < 28 else 10) + k, s(HU[t % 4]), 0
                else: va, so, u = 10 + k, "s6", t - 32
                if t == o['LIMOFF']: self.lim = 999; lagv = o.get('LAGV2', lagv)
                if t == o.get('LAGEND', 99): lagv = o.get('LAGV3', lagv)
                self.throttle(8, self.lim)
                tk['h', t, k] = b.vm(f"buffer_load_dwordx4 {v(96+8*ring[t]+4*k,4)}, v{va}, {s(rWS,4)}, {so} offen offset:{(u%4)*1024}{self.lm}")
            elif kind == 'res':
                while XW not in kept: progress()
                b.vm(f"buffer_load_dwordx4 {v(XW,4)}, {v(bOA)}, {s(rX,4)}, {s(sXB)} offen")
                b.vm(f"buffer_load_dwordx4 {v(XW+4,4)}, {v(bOA)}, {s(rX,4)}, {s(sXB2)} offen")
                tk['res'] = b.vm(f"buffer_load_dwordx4 {v(BW,4)}, v6, {s(rB2,4)}, {s(sCB)} offen")
            if o.get('BFINE'):
                st.setdefault('v0', b.vm_issued - 1); k = (b.vm_issued - st['v0']) // o['BFINE']
                if k > st.get('fk', -1) and k < 12: st['fk'] = k; self.stamp(b, 19 + k)
            fillers()
            if not mfma(lagv): fillers()
            self.mv_release()
            if owed and self.dma_ready():
                mfma(lagv, fill=False); self.dma_one(); owed -= 1; fillers(); mfma(lagv)
            if not barrier_done and self.mv_next == 35:
                st['since'] = st.get('since', 0) + 1
                if st['since'] == 2: b.wait(lg=max(self.mv_t.values())); b("s_barrier"); barrier_done = True
        self.stamp(b, 13)
        print("phase 2: dma", nD0, "left", len(self.dq), "tasks left after the last load:", list(tasks), "moved", self.mv_next, "barrier", barrier_done)
        while tasks or st['cur'] or self.mv_next < 35: progress()
        if not barrier_done:
            b.wait_all(lg=True); b("s_barrier")
        assert len(kept) == 4
        self.stamp(b, 14)
        ru = deque(); B = lambda t: self.lines(b, ru, t)
        for d in range(4): B(f"v_lshlrev_b32 {v(B2+2*d)}, 16, {v(BW+d)}\nv_and_b32 {v(B2+2*d+1)}, {s(sMSK)}, {v(BW+d)}")
        for d in range(8):
            B(f"v_lshlrev_b32 {v(RES+2*d)}, 16, {v(XW+d)}\nv_and_b32 {v(RES+2*d+1)}, {s(sMSK)}, {v(XW+d)}")
            B(f"v_add_f32 {v(RES+2*d)}, {v(RES+2*d)}, {v(B2+(2*d)%8)}\nv_add_f32 {v(RES+2*d+1)}, {v(RES+2*d+1)}, {v(B2+(2*d+1)%8)}")
        wq = deque()
        def wr(q, h): return b.ds(f"ds_write_b128 {v(bWA+q)}, {v(ACC+16*q+4*h,4)} offset:{q*4352 + h*1088}")
        b.wait(vm=tk['res'])
        for q in (3, 2, 1, 0):
            for j, t in enumerate(lastH):
                b.wait(vm=tk['h', t, 1], lg=self.mv_t[t])
                b(hline(t, q, acc(q)))
                if wq and (q < 2 or j == len(lastH) - 1): wr(*wq.popleft())
                else:
                    for k in range(6):
                        if ru: ru.popleft()()
            wq.extend((q, h) for h in range(4))
        while wq:
            t = wr(*wq.popleft())
            for k in range(5):
                if ru: ru.popleft()()
        while ru: ru.popleft()()
        b.wait(lg=t); b("s_barrier")
        rt = {}
        for m in range(2):
            for hi in range(2):
                for q in range(4): rt[m, hi] = b.ds(f"ds_read_b128 {v(ACC+16*q+8*m+4*hi,4)}, {v(bRD)} offset:{q*4352 + hi*512 + m*256}")
        Pk = 96; mod = {0: "", 1: " sc1", 2: " nt", 3: " sc0 sc1"}[o['OUTM']]
        for m in range(2):
            for hi in range(2):
                b.wait(lg=rt[m, hi])
                for k in (0, 2):
                    r = ACC + 8 * m + 4 * hi + k
                    b(f"v_pk_add_f32 {v(r,2)}, {v(r,2)}, {v(r+16,2)}\nv_pk_add_f32 {v(r+32,2)}, {v(r+32,2)}, {v(r+48,2)}")
                    b(f"v_pk_add_f32 {v(r,2)}, {v(r,2)}, {v(RES+8*m+4*hi+k,2)}")
                for k in (0, 2):
                    r = ACC + 8 * m + 4 * hi + k
                    b(f"v_pk_add_f32 {v(r,2)}, {v(r,2)}, {v(r+32,2)}")
                for k in (0, 2):
                    r = ACC + 8 * m + 4 * hi + k
                    b(f"v_cvt_pk_bf16_f32 {v(Pk+4*m+2*hi+k//2)}, {v(r)}, {v(r+1)}")
            b.vm(f"buffer_store_dwordx4 {v(Pk+4*m,4)}, {v(bOA)}, {s(rOUT,4)}, {s(sXB if m == 0 else sXB2)} offen{mod}")
        self.flush_stamp(b)

    def build(self):
        o = self.o
        self.slow = self.new(); self.slow.tag = 's'
        p = self.entry()
        bp = self.b_prologue()
        P = lambda p_, e: ('p', p_, e)
        streams = {}
        pf0 = list(self.pfq)
        for role in ('f', 'k'):
            self.role = role
            self.a = a = self.new(); a.tag = 'a'; a.vm_issued = 1
            self.bmain = self.b = b = self.new(); b.tag = 'b'; b.set_state(bp.state()); b.pending = bp.pending
            self.q_reset(); self.frag_list(role); self.pfq = deque(pf0); self.pfacc = 0; self.syncs_left = 9
            self.dpre = o.get('DPRE' + role.upper(), o['DPRE']); self.dspread = o.get('DSPREAD' + role.upper(), o['DSPREAD'])
            if role == 'k': b("L_Bk:")
            self.lead = lead = [0, 1, 8, 9, 16, 17, 24, 28] if o['WROT'] & (1 if role == 'f' else 2) else []
            order = list(self.cons)
            la = o.get('L1' + role.upper())
            if la is not None:
                ld = [('p', 1, 0), ('p', 2, 0)] + ([('s', 0)] if role == 'f' else [])
                if o.get('L1N'): ld = ld[:o['L1N']]
                order = [k for k in order if k not in ld]; order[la:la] = ld
            at = o['LEAD' + role.upper()]
            for n, t in enumerate(lead): order.insert(min(len(order), at + n * (1 + o['LSTEP'])), ('w', t))
            for k in order + [('w', t) for t in range(35) if t not in lead]: self.enq(k)
            def leave():
                self.b_alive = False
                print(role, "B leaves at", self.clk, "free slots", len(self.free), "w2 issued", len(self.w2_issued), "moved", self.mv_next, "prefetches left", len(self.pfq))
                self.spf(99)
                if role == 'k':
                    self.xs = self.free[0]
                    b(f"s_cmp_ge_u32 {s(sCS)}, 7\ns_cbranch_scc1 L_red")
                    self.red = r = self.new(); r.tag = 'b'; r.pending = b.pending; r.set_state(b.state())
                    r("L_red:"); self.b = r; self.b_gather(); self.b = b
            self.on_all_published = leave
            self.a_layernorm()
            ln = a.text(); mark = len(a.L)
            if role == 'f':
                a(f"s_cmp_lg_u32 {s(sROLE)}, 0\ns_cbranch_scc1 L_Ak")
                self.a_ffn(); ln_f = ln
            else:
                assert ln == ln_f, "layernorm code differs between the roles"
                a("L_Ak:"); self.a_kvq(); a.L = a.L[mark:]
            self.phase2()
            if role == 'f': b("s_branch L_fin")
            streams['a' + role] = a.text(); streams['b' + role] = b.text()
            self.count = getattr(self, 'count', 0) + len(a.L) + len(b.L)
        f = self.new(); f.tag = 'f'
        if self.probe is not None: f("s_branch L_fin\nL_afin:\ns_barrier\ns_barrier")
        else: f("L_afin:")
        f("L_fin:")
        if self.probe is not None:
            f.wait_all(vm=True); self.stamp(f, 15); f.wait_all(lg=True)
            f("s_sub_u32 s1, s100, s0\ns_lshl_b32 s1, s1, 2\ns_add_u32 s1, s1, 4000")
            f("L_spin:\ns_memrealtime s[100:101]"); f.wait_all(lg=True)
            f("s_sub_u32 s100, s100, s0\ns_cmp_lt_u32 s100, s1\ns_cbranch_scc1 L_spin")
        if self.stamps:
            f.wait_all(vm=True)
            self.stamp(f, 15); self.flush_stamp(f)
            f("s_memrealtime s[100:101]"); f.wait_all(lg=True); f("v_writelane_b32 v5, s100, 16")
            f(f"v_readlane_b32 {s(sT1)}, v5, 63\ns_nop 3\ns_lshl3_add_u32 {s(sT0)}, s2, {s(sT1)}\ns_lshl_b32 {s(sT0)}, {s(sT0)}, 8\ns_add_u32 {s(sT0)}, {s(sT0)}, {WS_ST}")
            f(f"v_lshlrev_b32 v6, 2, {v(vL)}")
            f.vm(f"buffer_store_dword v5, v6, {s(rWS,4)}, {s(sT0)} offen")
        f("L_end:\ns_endpgm")
        f("L_init:")
        self.srd(f, rWS, sWS, WS_SIZE)
        f(f"v_mov_b32 v40, 0\nv_mov_b32 v41, 0\nv_mov_b32 v42, 0\nv_mov_b32 v43, 0\nv_lshlrev_b32 v44, 7, {v(vL)}")
        NI = o['NI']; per = (32768 + 512 * o['FKS']) // (4 * NI)
        f(f"s_sub_u32 {s(sT1)}, s2, {256 - NI}\ns_lshl2_add_u32 {s(sT1)}, {s(sT1)}, {s(sWV)}\ns_mul_i32 {s(sT0)}, {s(sT1)}, {per}\ns_add_u32 {s(sT0)}, {s(sT0)}, {WS_FL}")
        for k in range(per // 1024):
            if k and k % 4 == 0: f(f"s_addk_i32 {s(sT0)}, 4096")
            f(f"buffer_store_dwordx4 v[40:43], {v(vL16)}, {s(rWS,4)}, {s(sT0)} offen offset:{1024*(k%4)} sc1")
        f("s_branch L_noinit\nL_go:")
        f(f"s_sub_u32 {s(sT1)}, s2, {256 - NI}\ns_lshl2_add_u32 {s(sT1)}, {s(sT1)}, {s(sWV)}\ns_lshl_b32 {s(sT1)}, {s(sT1)}, 2\nv_mov_b32 v45, 1\nv_mov_b32 v46, {s(sT1)}")
        f.wait_all(vm=True)
        f(f"global_store_dword v46, v45, s[8:9] sc1\ns_branch L_gone")
        self.body = p.text() + streams['af'] + streams['ak'] + bp.text() + streams['bf'] + streams['bk'] + f.text() + self.red.text() + self.slow.text() + 'L_last:\n    s_endpgm\n'

    def text(self):
        hdr = open(f"cdna_kernels/{NAME}.s.ref").read().split("\n")
        top = [l for l in hdr if l.startswith(";") and "@launch" not in l and "Override" not in l and "grid=ceil" not in l]
        out = "\n".join(top) + "\n; @launch grid=(256,1,1) block=(512,1,1) lds=163840\n"
        out += f'.amdgcn_target "amdgcn-amd-amdhsa--gfx950"\n.text\n.globl {NAME}_kernel\n.p2align 8\n.type {NAME}_kernel,@function\n'
        out += self.body
        out += f'''.section .rodata,"a"
.p2align 6
.amdhsa_kernel {NAME}_kernel
  .amdhsa_next_free_vgpr 256
  .amdhsa_next_free_sgpr 102
  .amdhsa_accum_offset 256
  .amdhsa_group_segment_fixed_size 0
  .amdhsa_kernarg_size 88
  .amdhsa_user_sgpr_count 2
  .amdhsa_user_sgpr_kernarg_segment_ptr 1
  .amdhsa_system_sgpr_workgroup_id_x 1
  .amdhsa_float_denorm_mode_32 3
.end_amdhsa_kernel
'''
        return out

if __name__ == "__main__":
    out = sys.argv[1]; stamps = False; probe = None; opt = {}
    for x in sys.argv[2:]:
        if x == "stamps": stamps = True
        elif x.startswith("probe="): probe = (x[6], int(x[7:]))
        else: k, val = x.split("="); opt[k] = float(val) if "." in val else int(val)
    g = Gen(stamps, probe, opt); g.build(); open(out, "w").write(g.text())
    print("lines", g.count)
```

```python
import sys
from collections import deque
from asmlib import Asm

NAME = "parallel_sum__linear_attn_block__dense_activation_squared_relu__prompt"
WS_H = 0; WS_PQ = 0x900000; WS_KV = 0xB00000; WS_FL = 0xB80000; WS_PL = 0xB84000; WS_FK = 0xB88000
WS_ST = 0xC00000; WS_PX = 0xD00000; WS_SIZE = 0xF00000
XO = 40960 - 17408
HS = 140 * 1024
REG = 40960
INIT_WG = 248
SPIN = 40000

def v(a, n=1): return f"v{a}" if n == 1 else f"v[{a}:{a+n-1}]"
def s(a, n=1): return f"s{a}" if n == 1 else f"s[{a}:{a+n-1}]"

sX, sWQ, sWO, sW1, sB1, sW2, sB2, sOUT, sDBG, sWS = 4, 6, 8, 12, 14, 16, 18, 20, 22, 24
sWV, sRB, sSO = 3, 26, 27
rX, rWS = 28, 36
sXB = 61
sI, sJ, sROLE, sCS, sRB2, sT0, sT1, sT2, sHST = 65, 66, 67, 68, 69, 70, 71, 72, 73
sROT, sCNT = 75, 77
sMSK = 10
sP = 84
rB1 = 32
aM = [40, 42, 44, 46, 10]
aONE, aL2E, aEPS, aKVO, aHST, aPQS, aBIA, aBI2, aHS2 = 48, 50, 51, 52, 53, 54, 55, 56, 57
aONB = 62
aFL = 58; sHI = 82; sG1 = 84
rW, rW2, rWO, rOUT, rB2 = 32, 40, 44, 48, 52
sCOL, sSGL, sWOB, sW2B, sSO2, sFL = 62, 74, 76, 12, 13, 14
sK1 = 91; sRS = 56
sHC = [None, 84 + 8, 85 + 8, 86 + 8, 87 + 8, 88 + 8, 89 + 8, 4, 5]
sTG, sCB, sXB2 = 60, 78, 79

vL = 0; vXD = 1; vRN = 2; vXR = 14; vSR = 14; vL16 = 18; vGO = 19; vWR = 20
RINGB, RING = 28, 6
AS, VA, BI, TMP = 52, 176, 208, 232
def Uof(st): return 52 + 8 * st if st < 8 else 116 + 8 * (st - 8)
def Fof(st): return 84 + 4 * st if st < 23 else 236 + 4 * (st - 23)
def Rof(st): return Uof(st) + 4 if st < 23 else Fof(st)
bSD, bOA, bWK, bWD, bW2D, bP2R, bRD, bHB, bHO, bWA = 1, 4, 8, 10, 12, 14, 17, 20, 22, 24
ACC = 32

DEF = dict(D=4, CX=70, CK=150, CF=100, L1F=7, ALLF=12, CQ=140, CW=90, CS=60, SLACK=600, TSLOT=38, TFRAG=68, XPRE=12, B0AT=16,
           PUBALL=99, PUBLAT=500, LAG=10, LAGV=10, KVLAG=16, B0=4, B1=5, B2=5, B3=5, FLAG=26,
           NSPL=12, DM='o4e', RUSH=12, NK=6, PXAT=12, DYN=0, DPRE=24, D0=0, DSPREAD=3, PLEAD=6, NLAST=3, NS=6, OUTM=0, PRIO=0, NOW2=3, SL1=2, SL2=3,
           LIM=80, LIM0=999, LIMOFF=14, SPF=8, PFO=5, L1N=1, VPFF=0, SPF0=0, SPFC=180, ROTX=1, WROT=0, LEADF=10, LEADK=21, LSTEP=0, XSLACK=100, BPRIO=0, KPRI=1, FKS=64, NI=4, LM=1, KVD=6, KPRE=2, RESE=0, CL=120, LIMFROM=7, QN=5, SYNCF=1, SYNCK=0, RESAT=26)

class Gen:
    def __init__(self, stamps=False, probe=None, opt=None):
        self.probe = probe; self.o = dict(DEF); self.o.update(opt or {})
        self.sm = self.fm = ' sc1'; self.lm = '' if self.o['LM'] else ' sc1'
        self.stamps = stamps; self.nlab = 0; self.parts = []
    def new(self):
        x = Asm(); x.guard = False; x.pending = None; x.m0 = None; x.so2 = None; return x
    def lab(self, p):
        self.nlab += 1; return f"L_{p}_{self.nlab}"
    def stamp(self, x, k):
        if self.probe == (x.tag, k): x("s_memrealtime s[100:101]")
        if not self.stamps: return
        if x.pending is not None: x(f"v_writelane_b32 v5, s100, {x.pending}\nv_writelane_b32 v5, s0, {32+x.pending}")
        x(f"s_memtime s[100:101]\ns_memrealtime s[0:1]")
        x.pending = k
    def flush_stamp(self, x):
        if self.stamps and x.pending is not None:
            x.wait_all(lg=True); x(f"v_writelane_b32 v5, s100, {x.pending}\nv_writelane_b32 v5, s0, {32+x.pending}"); x.pending = None
    def srd(self, x, r, p, size):
        x(f"s_mov_b32 {s(r)}, {s(p)}\ns_mov_b32 {s(r+1)}, {s(p+1)}\ns_mov_b32 {s(r+2)}, {size}\ns_mov_b32 {s(r+3)}, 0x20000")
    def lines(self, x, q, text): q.extend([(lambda l=l: x(l)) for l in text.split("\n")])
    def ids(self, x):
        x(f"s_bfe_u32 {s(sT0)}, s2, 0x10002\ns_lshl1_add_u32 {s(sRB2)}, {s(sI)}, {s(sT0)}")
        x(f"s_and_b32 {s(sJ)}, {s(sCS)}, 3\ns_lshl2_add_u32 {s(sJ)}, {s(sT0)}, {s(sJ)}\ns_lshr_b32 {s(sROLE)}, {s(sCS)}, 2")
    def rot_step(self, x):
        x(f"s_add_u32 {s(sROT)}, {s(sROT)}, 1\ns_cmp_eq_u32 {s(sROT)}, 7\ns_cselect_b32 {s(sROT)}, 0, {s(sROT)}")
    def poll_issue(self, x, n, base, off=0):
        x(f"s_load_dword{'x%d' % n if n > 1 else ''} {s(sP, n)}, {s(base, 2)}, {off} glc")
    def poll_check(self, x, n, base, off, bit, cnt=None):
        L = self.lab("poll"); E = self.lab("pend"); y = self.slow
        def cond(x):
            regs = list(range(sP, sP + (cnt or n), 2))
            while len(regs) > 1:
                r = regs.pop(); x(f"s_and_b64 {s(regs[0],2)}, {s(regs[0],2)}, {s(r,2)}")
            if n > 1: x(f"s_and_b32 {s(sP)}, {s(sP)}, {s(sP+1)}")
            x(f"s_and_b32 {s(sP)}, {s(sP)}, {bit}")
        x.wait_all(lg=True)
        cond(x)
        x(f"s_cbranch_scc0 {L}\n{E}:")
        y(f"{L}:\ns_mov_b32 {s(sCNT)}, 0\n{L}_l:")
        if self.o['SL1']: y(f"s_sleep {self.o['SL1']}")
        self.poll_issue(y, n, base, off)
        y.wait_all(lg=True)
        cond(y)
        y(f"s_cbranch_scc1 {E}")
        y(f"s_add_u32 {s(sCNT)}, {s(sCNT)}, 1\ns_cmp_lt_u32 {s(sCNT)}, {SPIN}\ns_cbranch_scc1 {L}_l\ns_branch {E}")
    def go_load(self):
        a = self.a
        a(f"v_and_b32 {v(vGO)}, {4 * self.o['NI'] - 1}, {v(vL)}\nv_lshlrev_b32 {v(vGO)}, 2, {v(vGO)}")
        self.tgo = a.vm(f"global_load_dword {v(vGO)}, {v(vGO)}, {s(sDBG,2)}")
        return 3
    def go_check(self):
        a = self.a; E = self.lab("go"); L = self.lab("gol")
        assert self.b_alive
        a.wait(vm=self.tgo)
        a(f"v_cmp_eq_u32 vcc, 0, {v(vGO)}\ns_cbranch_vccnz {L}\n{E}:")
        y = self.slow
        y(f"{L}:\ns_mov_b32 {s(sP)}, 0\n{L}_l:\ns_sleep 8")
        y(f"v_and_b32 {v(vGO)}, {4 * self.o['NI'] - 1}, {v(vL)}\nv_lshlrev_b32 {v(vGO)}, 2, {v(vGO)}")
        y.vm(f"global_load_dword {v(vGO)}, {v(vGO)}, {s(sDBG,2)} sc1"); y.wait_all(vm=True)
        y(f"v_cmp_eq_u32 vcc, 0, {v(vGO)}\ns_cbranch_vccz {E}")
        y(f"s_add_u32 {s(sP)}, {s(sP)}, 1\ns_cmp_lt_u32 {s(sP)}, {SPIN}\ns_cbranch_scc1 {L}_l\ns_branch {E}")
        return 3

    def set_m0(self, x, off):
        if x.m0 is not None and -32768 <= off - x.m0 <= 32767: x(f"s_addk_i32 m0, {off - x.m0}")
        else: x(f"s_add_u32 m0, {s(sRB)}, {off}")
        x.m0 = off
    def set_so2(self, base, off):
        b = self.b
        if b.so2 and b.so2[0] == base and -32768 <= off - b.so2[1] <= 32767: b(f"s_addk_i32 {s(sSO2)}, {off - b.so2[1]}")
        else: b(f"s_add_u32 {s(sSO2)}, {s(base)}, {off}")
        b.so2 = (base, off)
    def q_reset(self):
        self.dq = deque(); self.tick = {}; self.slot = {}; self.free = list(range(14, 20)); self.est = {}
        self.w2_issued = []; self.mv_next = 0; self.mv_sub = 0; self.mv_t = {}; self.mv_freed = set()
        self.wfree = [96 + 8 * k for k in range(6, 20)]; self.wreg = {}; self.wkeep = False
        self.pub = -1; self.lastread = {}; self.allread = set(); self.reserve = []; self.hold = {14, 15, 16, 17} if self.role == 'k' else set()
        self.forced = 0; self.publag = []; self.b_alive = True; self.hook = None; self.w2pre = 0; self.vpf = False; self.kvst = None; self.blines = {}; self.lim = self.o['LIM']; self.b_gone = False; self.kx_done = False
    def enq(self, key):
        b = self.b; kind = key[0]
        def dma(pre, vaddr, srd, so, off, last=None):
            def f():
                if pre: pre()
                self.throttle(16 if self.heavy(key) else 8, self.o['LIM0'] if (key[:2] == ('p', 0) or self.pub < self.o['LIMFROM']) else self.lim)
                self.tick[key] = b.vm(f"buffer_load_dwordx4 {v(vaddr)}, {s(srd,4)}, {s(so)} offen offset:{off} lds")
                if last: last()
            return f
        if kind == 'p':
            _, p, e = key
            kt, va, srd = sK1 + e, (bWK if p < 2 else bWD), rW
            def pre(): self.set_m0(b, self.slot[key] * 2048); b(f"s_add_u32 {s(sSO)}, {s(sCOL+p)}, {s(kt)}")
            ops = [dma(pre, va, srd, sSO, 0), dma(None, va + 1, srd, sSO, 1024)]
        elif kind == 's':
            def pre(e):
                def f(): self.set_m0(b, self.slot[key] * 2048 + (e & 1) * 1024); b(f"s_add_u32 {s(sSO)}, {s(sSGL)}, {s(sK1+e)}")
                return f
            ops = [dma(pre(e), bSD, rW, sSO, 0) for e in (2 * key[1], 2 * key[1] + 1) if e < 7]
        elif kind == 'w':
            t = key[1]
            def pre():
                self.set_m0(b, self.slot[key] * 2048)
                if t < 12: self.set_so2(sW2B, (32 * (t // 4) + t % 4) * 14336)
                elif t < 14: self.set_so2(7, (t - 12) * 14336)
                elif t < 21: self.set_so2(sWOB, (t - 14) * 14336)
                elif t < 33: self.set_so2(4, (32 * ((t - 21) // 4) + (t - 21) % 4) * 14336)
                else: self.set_so2(5, (t - 33) * 14336)
            srd = rWO if 14 <= t < 21 else rW2
            ops = [dma(pre, bW2D, srd, sSO2, 0), dma(None, bW2D + 1, srd, sSO2, 1024, lambda: self.w2_issued.append(t))]
        self.dq.append(dict(key=key, ops=deque(ops)))
    def cost(self, key):
        o = self.o
        if key[0] == 'w' and key[1] in self.lead: return o['CL']
        return {'s': o['CQ'], 'w': o['CW']}.get(key[0]) or (o['CK'] if self.heavy(key) else o['CF'])
    def heavy(self, key): return key[0] == 's' or (key[0] == 'p' and self.role == 'k' and key[1] < 2)
    def throttle(self, lines, lim):
        b = self.b
        tot = lines; t = b.vm_issued
        while t > b.vm_done and tot + self.blines.get(t, 8) <= lim: tot += self.blines.get(t, 8); t -= 1
        b.wait(vm=t)
        self.blines[b.vm_issued + 1] = lines
    def dma_ready(self):
        return bool(self.dq) and (self.dq[0].get('started') or len(self.cand()) > 0)
    def cand(self):
        k = self.dq[0]['key']
        return [f for f in self.free if not (k[0] == 'w' and self.worder.index(k[1]) >= self.o.get('HIOK', 8) and f > 10)]
    def dma_one(self):
        it = self.dq[0]
        if not it.get('started'): it['started'] = True; f = self.cand()[0]; self.free.remove(f); self.slot[it['key']] = f
        self.vclk += self.cost(it['key']); self.est[it['key']] = self.vclk
        it['ops'].popleft()()
        if self.pub >= self.o['SPF0']: self.pfacc += self.cost(it['key']) / self.o['SPFC']
        while self.pfacc >= 1: self.spf(1); self.pfacc -= 1
        if not it['ops']: self.dq.popleft()
        self.kv_flag(self.b)
        left = sum(1 for it in self.dq if it['key'][0] != 'w')
        vp = self.o.get('VPF' + self.role.upper())
        if vp is not None and not self.vpf and left <= vp and not self.dq[0].get('started'):
            b = self.b; self.vpf = True; both = self.o.get('VPFK') is not None
            n2, no = (14, 4) if both else (25, 7)
            b(f"s_lshl2_add_u32 {s(sT2)}, s2, {s(sWV)}\ns_mul_i32 {s(sT0)}, {s(sT2)}, {n2}\ns_mul_i32 {s(sT1)}, {s(sT2)}, {no}")
            b(f"v_min_u32 v66, {n2-1}, {v(vL)}\nv_add_lshl_u32 v66, v66, {s(sT0)}, 7\nv_min_u32 v67, {no-1}, {v(vL)}\nv_add_lshl_u32 v67, v67, {s(sT1)}, 7")
            self.blines[b.vm(f"buffer_load_dword v66, v66, {s(rW2,4)}, 0 offen")] = n2
            b.vm(f"buffer_load_dword v67, v67, {s(rWO,4)}, 0 offen")
    def issued(self, key): return key in self.tick and not any(it['key'] == key for it in self.dq)
    def mv_ready(self, lag):
        if self.mv_sub: return True
        if self.mv_next >= len(self.w2_issued) or not self.wfree: return False
        t = self.w2_issued[self.mv_next]
        return self.b.vm_issued - self.tick['w', t] >= lag or self.tick['w', t] <= self.b.vm_done
    def mv_one(self):
        b = self.b; t = self.w2_issued[self.mv_next]; c = 1
        if self.mv_sub == 0:
            self.wfree.sort(); self.wreg[t] = self.wfree.pop(0)
            c += bool(b.wait(vm=self.tick['w', t]))
        T, rd = self.mv_sub >> 1, self.mv_sub & 1
        self.mv_t[t] = b.ds(f"ds_read_b64_tr_b16 {v(self.wreg[t]+4*T+2*rd, 2)}, {v(bP2R+T)} offset:{self.slot['w', t]*2048 + rd*1024}")
        self.mv_sub += 1
        if self.mv_sub == 4: self.mv_sub = 0; self.mv_next += 1
        return c
    def mv_release(self):
        for k in range(self.mv_next):
            t = self.w2_issued[k]
            if t not in self.mv_freed and self.mv_t[t] <= self.b.lg_done:
                self.mv_freed.add(t); self.free.append(self.slot['w', t])
    def b_advance(self):
        b = self.b; o = self.o
        self.vclk = max(self.vclk, self.tprev)
        while self.dq and self.vclk <= self.clk + o['SLACK'] and not (o.get('NOW2', 0) & (1 if self.role == 'f' else 2) and self.dq[0]['key'][0] == 'w' and self.dq[0]['key'][1] not in self.lead):
            self.mv_release()
            if not self.dma_ready():
                if len(self.mv_freed) < self.mv_next:
                    b.wait(lg=self.mv_t[self.w2_issued[len(self.mv_freed)]]); continue
                if self.mv_ready(o.get('LAGMIN', 4)):
                    for k in range(4): self.mv_one()
                    continue
                break
            self.dma_one()
            if self.mv_ready(o['LAG']):
                for k in range(4): self.mv_one()
    def barrier(self, vm=None):
        if self.b_alive:
            self.kv_flag(self.b, force=True)
            self.b.wait(vm=vm); self.b("s_barrier")
        self.a("s_barrier"); self.tprev = self.clk
        for k, t in list(self.lastread.items()):
            if k in self.allread and t <= self.a.lg_done:
                del self.lastread[k]
                (self.reserve if self.slot[k] in self.hold and k[0] == 'p' else self.free).append(self.slot[k])
    def sync(self, slack=None):
        keep = self.o['SLACK']
        if slack is not None: self.o['SLACK'] = slack
        self.publish(None); self.o['SLACK'] = keep
    def publish(self, c):
        if not self.b_alive:
            assert c is None and self.b_gone
            self.barrier(); return
        self.b_advance()
        if (c if c is not None else 99) >= self.o.get('ALL' + self.role.upper(), 99):
            while self.dma_ready() and self.dq[0]['key'][0] != 'w': self.dma_one()
            self.vclk = min(self.vclk, self.clk)
            for k in self.est: self.est[k] = min(self.est[k], self.clk - (0 if c is not None else self.o['PUBLAT']))
        if self.dq and self.dq[0]['key'][0] == 'w':
            keep, self.lim = self.lim, 999
            while self.w2pre < self.o.get('W2PRE' + self.role.upper(), 0) and self.dma_ready() and len(self.free) + bool(self.dq[0].get('started')) > (self.role == 'k'):
                self.dma_one(); self.w2pre += 1
            self.lim = keep
        if c is not None:
            while not self.issued(self.cons[c]):
                assert self.dma_ready(), ("cannot publish", c)
                self.dma_one(); self.forced += 1
        if not self.hook and self.pub >= self.o['SPF0']: self.spf(self.o.get('SPFB' + self.role.upper(), 0))
        tgt = self.pub if c is None else c
        force_all = c is not None and c >= self.o['PUBALL']
        while (c != 0 and tgt + 1 < len(self.cons) and self.issued(self.cons[tgt + 1])
               and (force_all or self.est[self.cons[tgt + 1]] + self.o['PUBLAT'] <= self.clk)): tgt += 1
        tk = max(self.tick[k] for k in self.cons[:tgt + 1])
        self.publag.append((tgt, self.b.vm_issued - tk))
        self.barrier(vm=tk)
        if self.hook: h, self.hook = self.hook, None; h()
        self.pub = tgt
        if c is None: self.syncs_left -= 1
        if tgt + 1 == len(self.cons) and self.syncs_left == 0: self.on_all_published()

    def frag_list(self, role):
        fr = []
        for stage, p in enumerate((0, 1, 2, None) if role == 'f' else (0, 1, 2)):
            for st in range(28):
                if p is None:
                    e = st // 4
                    fr.append(dict(key=('s', e // 2), addr=vSR + (st & 3), sub=(e & 1) * 1024, rd=256, stage=stage, s=st, T=0))
                else:
                    for T in range(2):
                        base = vSR if (role, p, T) == ('k', 2, 1) else vWR + 4 * T
                        fr.append(dict(key=('p', p, st // 4), addr=base + (st & 3), sub=0, rd=512, stage=stage, s=st, T=T))
        if role == 'k' and self.o.get('QSEQ', 1):
            q = [f for f in fr if f['stage'] == 2]
            fr = [f for f in fr if f['stage'] < 2] + [f for f in q if f['T'] == 0] + [f for f in q if f['T'] == 1]
        self.cons = []
        for f in fr:
            if f['key'] not in self.cons: self.cons.append(f['key'])
        for f in fr: f['c'] = self.cons.index(f['key'])
        self.fr = fr
    def read_frag(self, n):
        a = self.a
        if n >= len(self.fr): return
        f = self.fr[n]
        if f['c'] > self.pub: self.publish(f['c'])
        r = RINGB + 4 * (n % RING); off = self.slot[f['key']] * 2048 + f['sub']
        a.ds(f"ds_read_b64_tr_b16 {v(r,2)}, {v(f['addr'])} offset:{off}")
        f['t'] = a.ds(f"ds_read_b64_tr_b16 {v(r+2,2)}, {v(f['addr'])} offset:{off+f['rd']}")
        self.lastread[f['key']] = f['t']
        if not any(g['key'] == f['key'] for g in self.fr[n + 1:]): self.allread.add(f['key'])
    def pop(self, fillers):
        n0 = self.a.vm_issued
        r = fillers.popleft()() or 1
        if self.a.vm_issued > n0: self.vclk += self.o['CS']
        return r
    def fill(self, fillers, budget):
        self.clk += self.o['TSLOT'] + 4 * max(0, min(budget, len(fillers)) - 4)
        while fillers and budget > 0: budget -= self.pop(fillers)
    def run_stage(self, stage, acc, swap, fillers, budget=4, pre=None, forced=None, minfill=0, finish=0, syncs=()):
        a = self.a; D = self.o['D']
        idx = [n for n, f in enumerate(self.fr) if f['stage'] == stage]
        for line in (pre or []):
            a(line); self.fill(fillers, budget + 2)
        for k, n in enumerate(idx):
            f = self.fr[n]
            a.wait(lg=f['t'])
            w = v(RINGB + 4 * (n % RING), 4); x = v(Fof(f['s']), 4)
            c = acc(f['T']) if (pre or f['s'] > 0) else "0"
            a(f"v_mfma_f32_32x32x16_bf16 {acc(f['T'])}, {x if swap else w}, {w if swap else x}, {c}")
            if k in syncs: self.sync()
            self.read_frag(n + D)
            last = (n % 2 == 1)
            fl = forced(f['s'], f['T']) if forced else []
            self.fill(fillers, budget - len(fl) - (1 if last else 0))
            for g in fl: g()
            left = max(0, len(idx) - k - 1 - finish)
            while fillers and minfill and len(fillers) > left * minfill: self.pop(fillers); self.clk += 2
            fs = self.o.get('FSTEP', 5)
            if self.o.get('FINE') == stage and k % fs == 0 and 19 + k // fs < 32: self.stamp(a, 19 + k // fs)
            if last and n + 2 < len(self.fr): a.wait(lg=self.fr[n + 2]['t'])
    def cvt_forced(self, st, T):
        a = self.a; n = st + 2
        if not 8 <= n < 23: return []
        return [lambda d=d: a(f"v_cvt_pk_bf16_f32 {v(Fof(n)+d)}, {v(Uof(n)+2*d)}, {v(Uof(n)+2*d+1)}") for d in ((0, 1) if T == 0 else (2, 3))]
    def g3_ops(self):
        ops = []
        for st in range(23, 28):
            for d in range(4):
                r = Fof(st) + d; t0, t1 = (1, 4) if d & 1 else (7, vGO)
                self.lines(self.a, ops, f"v_lshlrev_b32 v{t0}, 16, {v(r)}\nv_and_b32 v{t1}, {s(sMSK)}, {v(r)}\nv_fma_f32 v{t0}, v{t0}, v2, v3\nv_fma_f32 v{t1}, v{t1}, v2, v3\nv_cvt_pk_bf16_f32 {v(r)}, v{t0}, v{t1}")
        return ops
    def phi_ops(self, src, dst=None):
        a = self.a; ops = []
        for d in range(8):
            t0 = TMP + 2 * (d & 1)
            for k in range(2):
                x = src + 2 * d + k
                self.lines(a, ops, f"v_mul_f32 {v(t0+k)}, {s(aL2E)}, {v(x)}")
                def ex(e=t0+k):
                    a(f"v_exp_f32_e64 {v(e)}, {v(e)} clamp"); return 2
                ops.append(ex)
                self.lines(a, ops, f"v_max_f32 {v(x)}, {s(aEPS)}, {v(x)}\nv_add_f32 {v(t0+k)}, {v(t0+k)}, {v(x)}")
            self.lines(a, ops, f"v_cvt_pk_bf16_f32 {v((dst or src)+d)}, {v(t0)}, {v(t0+1)}")
        return ops

    def entry(self):
        p = self.new(); p.tag = 'p'
        p(f"{NAME}_kernel:")
        p("s_cmp_ge_u32 s2, 256\ns_cbranch_scc1 L_end")
        if self.stamps: p("s_memrealtime s[78:79]\ns_memtime s[80:81]")
        if self.probe is not None: p("s_memrealtime s[100:101]")
        p("s_load_dwordx16 s[4:19], s[0:1], 0\ns_load_dwordx4 s[20:23], s[0:1], 64\ns_load_dwordx2 s[24:25], s[0:1], 80")
        p("s_getpc_b64 s[98:99]\nL_pc:")
        p(f"s_lshr_b32 {s(sT1)}, s2, 3\ns_lshl_b32 s3, {s(sT1)}, 7")
        p("v_lshrrev_b32 v1, 5, v0\nv_lshl_add_u32 v1, v1, 12, s3")
        p("v_min_u32 v1, L_last - L_pc, v1")
        p.vm(f"global_load_dword {v(vGO)}, v1, s[98:99]")
        p(f"v_lshrrev_b32 v1, 6, v0\nv_and_b32 {v(vL)}, 63, v0")
        p(f"v_readfirstlane_b32 s99, v1")
        p(f"s_and_b32 {s(sT2)}, {s(sT1)}, 3\ns_lshr_b32 {s(sCS)}, {s(sT1)}, 2")
        p(f"s_and_b32 {s(sI)}, s2, 3\ns_lshl2_add_u32 {s(sI)}, {s(sI)}, {s(sT2)}")
        p(f"s_lshl1_add_u32 {s(sROT)}, {s(sT2)}, {s(sCS)}")
        p(f"s_cmp_ge_u32 {s(sROT)}, 7\ns_cselect_b32 {s(sT0)}, 7, 0\ns_sub_u32 {s(sROT)}, {s(sROT)}, {s(sT0)}")
        if self.o['ROTX']:
            p(f"s_and_b32 {s(sT0)}, s2, 1\ns_add_u32 {s(sROT)}, {s(sROT)}, {s(sT0)}\ns_cmp_eq_u32 {s(sROT)}, 7\ns_cselect_b32 {s(sROT)}, 0, {s(sROT)}")
        p(f"s_and_b32 {s(sWV)}, s99, 3\ns_mul_i32 {s(sRB)}, {s(sWV)}, {REG}")
        p(f"v_lshrrev_b32 v6, 3, {v(vL)}\nv_and_b32 v7, 7, {v(vL)}\nv_lshlrev_b32 {v(vL16)}, 4, {v(vL)}")
        p("s_cmp_ge_u32 s99, 4\ns_cbranch_scc1 L_B")
        return p
    def after_args(self, x):
        x.wait_all(lg=True)
        if self.probe is not None: x("s_mov_b32 s0, s100")
        if self.stamps: x("v_writelane_b32 v5, s78, 18\nv_writelane_b32 v5, s80, 0\nv_writelane_b32 v5, s99, 63")
        self.stamp(x, 1)

    def b_prologue(self):
        b = self.new(); b.tag = 'b'; b.vm_issued = 1
        b("L_B:")
        self.ids(b)
        b(f"s_movk_i32 {s(sT0)}, 3584\ns_cselect_b32 {s(sRS)}, 2688, {s(sT0)}\ns_cselect_b32 {s(sCNT)}, 6, 7\ns_cbranch_scc1 L_Bck")
        b(f"s_lshl_b32 {s(sCOL)}, {s(sJ)}, 7\ns_add_u32 {s(sCOL+1)}, {s(sCOL)}, 1024\ns_add_u32 {s(sCOL+2)}, {s(sCOL)}, 2048\ns_branch L_Bcd\nL_Bck:")
        b(f"s_mul_i32 {s(sCOL)}, {s(sJ)}, 112\ns_add_u32 {s(sCOL+1)}, {s(sCOL)}, 1792\ns_addk_i32 {s(sCOL)}, 896\ns_lshl_b32 {s(sCOL+2)}, {s(sJ)}, 7\nL_Bcd:")
        b(f"s_mul_i32 {s(sT0)}, {s(sWV)}, {s(sRS)}\ns_lshl_b32 {s(sT0)}, {s(sT0)}, 4\ns_lshl_b32 {s(sSGL)}, {s(sJ)}, 6\ns_addk_i32 {s(sSGL)}, 3072")
        for r in (sCOL, sCOL + 1, sCOL + 2, sSGL): b(f"s_add_u32 {s(r)}, {s(r)}, {s(sT0)}")
        b(f"s_lshl_b32 {s(sT1)}, {s(sRS)}, 6")
        for n in range(7):
            if n: self.rot_step(b)
            b(f"s_mul_i32 {s(sK1+n)}, {s(sROT)}, {s(sT1)}")
        b(f"v_and_b32 v32, 2, v6\nv_lshlrev_b32 v32, 1, v32\nv_xor_b32 v32, v7, v32\nv_lshlrev_b32 v33, 4, v32")
        b(f"v_mul_u32_u24 v34, 896, v6\nv_add_u32 {v(bW2D)}, v34, v33\nv_add_u32 {v(bW2D+1)}, 6144, {v(bW2D)}")
        b(f"s_lshl_b32 {s(sT0)}, {s(sRS)}, 3\ns_addk_i32 {s(sT0)}, -1024")
        b(f"v_mul_u32_u24 v34, {s(sRS)}, v6\nv_add_u32 {v(bWD)}, v34, v33\nv_add_u32 {v(bWD+1)}, {s(sT0)}, {v(bWD)}")
        b(f"v_min_u32 v32, {s(sCNT)}, v32\nv_lshl_add_u32 {v(bWK)}, v32, 4, v34\nv_add_u32 {v(bWK+1)}, {s(sT0)}, {v(bWK)}")
        self.after_args(b)
        b(f"s_cmp_ge_u32 s2, {256 - self.o['NI']}\ns_cbranch_scc1 L_init\nL_noinit:")
        self.b = b
        self.b_main_setup()
        b(f"s_cmp_ge_u32 s2, {256 - self.o['NI']}\ns_cbranch_scc1 L_go\nL_gone:")
        if self.o['BPRIO']: b(f"s_setprio {self.o['BPRIO']}")
        b(f"s_cmp_lg_u32 {s(sROLE)}, 0\ns_cbranch_scc1 L_Bk")
        return b
    def spf(self, n):
        for k in range(n):
            if self.pfq: self.b(self.pfq.popleft())
    def b_main_setup(self):
        b = self.b; o = self.o
        self.pfq = deque()
        if o['SPF']:
            b(f"s_lshr_b32 {s(sT0)}, s2, 3\ns_and_b32 {s(sT1)}, s2, 3\ns_lshl2_add_u32 {s(sT0)}, {s(sT0)}, {s(sT1)}\ns_lshl2_add_u32 {s(sT0)}, {s(sT0)}, {s(sWV)}\ns_min_u32 {s(sT0)}, {s(sT0)}, 447")
            b(f"s_bfe_u32 {s(sT1)}, s2, 0x10002")
            b(f"s_mul_i32 {s(sT2)}, {s(sT0)}, 2688\ns_mul_i32 {s(sCNT)}, {s(sT1)}, 384\ns_add_u32 {s(sT2)}, {s(sT2)}, {s(sCNT)}\ns_add_u32 s82, {s(sWQ)}, {s(sT2)}\ns_addc_u32 s83, {s(sWQ+1)}, 0")
            L = lambda base, off, n: [f"s_load_dwordx2 s[80:81], {s(base,2)}, {off + 128*k + 60}" for k in range(n)]
            parts = dict(k=L(82, 896, 4), a=L(84, 0, 4), v=L(82, 1792, 4), b=L(84, 1024, 4), q=L(82, 0, 4), c=L(84, 2048, 4), s=L(86, 0, 2),
                         x=L(88, 0, 4), y=L(88, 458752, 4), z=L(88, 2 * 458752, 4), w=L(14, 0, 2), o=L(58, 0, 4))
            for ch in ["kabvcqsxyzwo", "kaxyzwo", "xyzwo", "kabvxyzwo", "kabxvcyqszwo", "ka", "kabv"][o.get('PFO', 0)]: self.pfq.extend(parts[ch])
            b(f"s_mul_i32 {s(sT2)}, {s(sT0)}, 3584\ns_lshl_b32 {s(sCNT)}, {s(sT1)}, 9\ns_add_u32 {s(sCNT)}, {s(sT2)}, {s(sCNT)}\ns_add_u32 s84, {s(sW1)}, {s(sCNT)}\ns_addc_u32 s85, {s(sW1+1)}, 0")
            b(f"s_lshl_b32 {s(sCNT)}, {s(sT1)}, 8\ns_add_u32 {s(sCNT)}, {s(sT2)}, {s(sCNT)}\ns_addk_i32 {s(sCNT)}, 3072\ns_add_u32 s86, {s(sW1)}, {s(sCNT)}\ns_addc_u32 s87, {s(sW1+1)}, 0")
            b(f"s_lshl1_add_u32 {s(sT0)}, {s(sT0)}, {s(sT1)}\ns_lshl_b32 {s(sT2)}, {s(sT0)}, 9\ns_add_u32 s88, {s(sW2)}, {s(sT2)}\ns_addc_u32 s89, {s(sW2+1)}, 0")
            b(f"s_lshl_b32 {s(sT2)}, {s(sT0)}, 8\ns_add_u32 {s(sT2)}, {s(sT2)}, {3*458752}\ns_add_u32 s14, {s(sW2)}, {s(sT2)}\ns_addc_u32 s15, {s(sW2+1)}, 0")
            b(f"s_mul_i32 {s(sT2)}, {s(sT0)}, 448\ns_and_b32 {s(sT2)}, {s(sT2)}, 0xffffff80\ns_add_u32 s58, {s(sWO)}, {s(sT2)}\ns_addc_u32 s59, {s(sWO+1)}, 0")
            self.spf(o.get('SPFE', 7))
        b(f"s_cmp_eq_u32 {s(sROLE)}, 0\ns_cselect_b32 {s(rW)}, {s(sW1)}, {s(sWQ)}\ns_cselect_b32 {s(rW+1)}, {s(sW1+1)}, {s(sWQ+1)}\ns_mul_i32 {s(rW+2)}, {s(sRS)}, 448\ns_mov_b32 {s(rW+3)}, 0x20000")
        b(f"s_cmp_lt_u32 {s(sCS)}, 7")
        b(f"s_mov_b32 {s(rW2)}, {s(sW2)}\ns_mov_b32 {s(rW2+1)}, {s(sW2+1)}\ns_cselect_b32 {s(rW2+2)}, {1792*896}, 0\ns_mov_b32 {s(rW2+3)}, 0x20000")
        b(f"s_mov_b32 {s(rWO)}, {s(sWO)}\ns_mov_b32 {s(rWO+1)}, {s(sWO+1)}\ns_cselect_b32 {s(rWO+2)}, {448*896}, 0\ns_mov_b32 {s(rWO+3)}, 0x20000")
        self.srd(b, rWS, sWS, WS_SIZE)
        b(f"s_mov_b64 s[8:9], {s(sDBG,2)}")
        self.srd(b, rX, sX, 1835008); self.srd(b, rOUT, sOUT, 1835008); self.srd(b, rB2, sB2, 896)
        b(f"s_lshl_b32 {s(sT0)}, {s(sCS)}, 7")
        b(f"s_and_b32 s11, s2, 4\ns_add_u32 s11, s11, {s(sWV)}")
        b(f"s_mul_i32 {s(sW2B)}, s11, {4*14336}\ns_add_u32 {s(sW2B)}, {s(sW2B)}, {s(sT0)}")
        b(f"s_mul_i32 s7, s11, {2*14336}\ns_add_u32 s7, s7, {s(sT0)}\ns_add_u32 s7, s7, {96*14336}")
        b(f"s_xor_b32 s6, s11, 4\ns_mul_i32 s4, s6, {4*14336}\ns_add_u32 s4, s4, {s(sT0)}\ns_mul_i32 s5, s6, {2*14336}\ns_add_u32 s5, s5, {s(sT0)}\ns_add_u32 s5, s5, {96*14336}")
        b(f"s_mul_i32 {s(sWOB)}, {s(sWV)}, {112*896}\ns_add_u32 {s(sWOB)}, {s(sWOB)}, {s(sT0)}")
        b(f"s_mov_b32 {s(sMSK)}, 0xffff0000\ns_mov_b32 s16, 32768\ns_mov_b32 s17, 65536\ns_lshl_b32 s18, s11, 11\ns_sub_u32 s18, {96*1024}, s18")
        b(f"s_mul_i32 s19, {s(sWV)}, 7168\ns_add_u32 s19, s19, {112*1024}\ns_lshl_b32 s20, s11, 12\ns_sub_u32 s19, s19, s20\ns_add_u32 s20, s19, 4096")
        b(f"s_lshl2_add_u32 s21, s2, {s(sWV)}\ns_lshl_b32 s21, s21, 11\ns_add_u32 s21, s21, {WS_PX}\ns_lshl2_add_u32 s22, {s(sCS)}, 32")
        b(f"s_lshr_b32 {s(sTG)}, {s(sWV)}, 1\ns_lshl1_add_u32 {s(sTG)}, {s(sRB2)}, {s(sTG)}")
        b(f"s_and_b32 {s(sT1)}, {s(sWV)}, 1\ns_lshl_b32 {s(sT1)}, {s(sT1)}, 6\ns_add_u32 {s(sCB)}, {s(sT0)}, {s(sT1)}")
        b(f"s_mul_i32 {s(sXB)}, {s(sTG)}, {32*896}\ns_add_u32 {s(sXB)}, {s(sXB)}, {s(sCB)}\ns_add_u32 {s(sXB2)}, {s(sXB)}, {16*896}")
        b(f"v_lshrrev_b32 v7, 2, {v(vL)}\nv_and_b32 v6, 3, {v(vL)}\nv_lshlrev_b32 v6, 4, v6")
        b(f"v_mul_u32_u24 {v(bOA)}, 896, v7\nv_add_u32 {v(bOA)}, {v(bOA)}, v6\nv_mul_u32_u24 {v(bSD)}, 3584, v7\nv_add_u32 {v(bSD)}, {v(bSD)}, v6")
        b(f"v_mul_u32_u24 {v(bRD)}, 68, v6\nv_lshl_add_u32 {v(bRD)}, v7, 4, {v(bRD)}\nv_add_u32 {v(bRD)}, {s(sRB)}, {v(bRD)}\nv_add_u32 {v(bRD)}, {XO}, {v(bRD)}")
        b(f"v_lshrrev_b32 v32, 5, {v(vL)}\nv_bfe_u32 v33, {v(vL)}, 2, 2\nv_lshrrev_b32 v34, 1, v6\nv_bfe_u32 v35, {v(vL)}, 4, 1\nv_lshl_add_u32 v34, v35, 5, v34")
        b(f"v_and_b32 v35, 2, v33\nv_lshlrev_b32 v35, 5, v35\nv_xor_b32 v34, v34, v35\nv_lshl_add_u32 v32, v32, 2, v33\nv_lshl_add_u32 v32, v32, 7, v34")
        b(f"v_xor_b32 v32, {s(sT1)}, v32\nv_add_u32 {v(bP2R)}, {s(sRB)}, v32\nv_xor_b32 {v(bP2R+1)}, 64, {v(bP2R)}")
        b(f"s_lshl_b32 {s(sCNT)}, s11, 12")
        for k, r in enumerate((2, 3, 20, 21)):
            b(f"s_xor_b32 {s(sT0)}, {s(sTG)}, {k}\ns_mul_i32 {s(sT0)}, {s(sT0)}, {HS}\ns_add_u32 {s(sT0)}, {s(sT0)}, {s(sCNT)}\nv_add_u32 v{r}, {s(sT0)}, {v(vL16)}")
        for q in range(4):
            b(f"s_xor_b32 {s(sT0)}, {s(sWV)}, {q}\ns_mul_i32 {s(sT0)}, {s(sT0)}, {REG}\ns_add_u32 {s(sT0)}, {s(sT0)}, {XO}\nv_add_u32 {v(bWA+q)}, {s(sT0)}, {v(vL16)}")
        self.spf(o['SPF'] - o.get('SPFE', 7))

    def a_layernorm(self):
        a = self.a; o = self.o
        if o['PRIO']: a(f"s_setprio {o['PRIO']}")
        a(f"s_lshl2_add_u32 {s(sHST)}, {s(sI)}, {s(sWV)}\ns_mul_i32 {s(sXB)}, {s(sHST)}, {32*896}\ns_lshl_b32 {s(sG1)}, {s(sROT)}, 7")
        a(f"v_lshrrev_b32 v8, 1, v6\nv_xor_b32 v8, v7, v8\nv_lshlrev_b32 v8, 4, v8\nv_xor_b32 v9, 64, v8")
        a(f"v_mul_u32_u24 v10, 896, v6")
        a(f"v_add_u32 {v(vXD)}, v10, v8\nv_add_u32 v9, v10, v9")
        a(f"v_add_u32 {v(vXD+1)}, 6144, v9\nv_add_u32 {v(vXD+2)}, {2*6144}, {v(vXD)}\nv_add_u32 {v(vXD+3)}, {3*6144}, v9")
        a("s_mov_b32 s30, 1835008\ns_mov_b32 s31, 0x20000")
        for n in range(1, 3): self.rot_step(a); a(f"s_lshl_b32 {s(sG1+n)}, {s(sROT)}, 7")
        xq = dict(n=0); xk = {}
        def xprep():
            n = xq['n']
            if n < 28 and n % 4 == 0: self.set_m0(a, (n // 4) * 4096); a(f"s_add_u32 {s(sSO)}, {s(sXB)}, {s(sG1+n//4)}")
        def xdma():
            n = xq['n']
            if n >= 28: return
            xk[n // 4] = a.vm(f"buffer_load_dwordx4 {v(vXD+n%4)}, {s(rX,4)}, {s(sSO)} offen offset:{(n%4)*1024} lds")
            xq['n'] += 1
            if xq['n'] != 12: xprep()
        xprep()
        self.after_args(a)
        a("s_mov_b32 s28, s4\ns_mov_b32 s29, s5")
        for k in range(12): xdma()
        for n in range(3, 7): self.rot_step(a); a(f"s_lshl_b32 {s(sG1+n)}, {s(sROT)}, 7")
        xprep()
        self.ids(a)
        self.srd(a, rWS, sWS, WS_SIZE); self.srd(a, rB1, sB1, 3584)
        T0 = 236
        a(f"v_and_b32 v8, 31, {v(vL)}\nv_lshrrev_b32 v10, 5, {v(vL)}")
        a(f"v_bfe_u32 v11, {v(vL)}, 1, 3\nv_xor_b32 v11, v10, v11\nv_lshlrev_b32 v11, 4, v11")
        a(f"v_lshl_add_u32 v11, v8, 7, v11\nv_add_u32 {v(vXR)}, {s(sRB)}, v11")
        for j in range(1, 4): a(f"v_xor_b32 {v(vXR+j)}, {32*j}, {v(vXR)}")
        a(f"s_mov_b32 vcc_lo, 0xf0f00f0f\ns_mov_b32 vcc_hi, vcc_lo\nv_mov_b32 v11, 0x3f803f80")
        for k in range(4): a(f"v_cndmask_b32 {v(48+k)}, 0, v11, vcc")
        for r, val in zip(aM, (0xaaaaaaaa, 0xcccccccc, 0xff00ff00, 0xf0f0f0f0, 0xffff0000)): a(f"s_mov_b32 {s(r)}, {val:#x}\ns_mov_b32 {s(r+1)}, {s(r)}")
        a(f"s_mov_b32 {s(sHI)}, 0\ns_mov_b32 {s(sHI+1)}, -1\ns_mov_b32 {s(aL2E)}, 0x3fb8aa3b\ns_mov_b32 {s(aEPS)}, 0x358637bd")
        a(f"s_mov_b32 {s(aONE)}, 0xf0000000\ns_mov_b32 {s(aONE+1)}, {s(aONE)}\ns_mov_b32 {s(aONB)}, 15\ns_mov_b32 {s(aONB+1)}, 15")
        a(f"s_cmp_eq_u32 {s(sROLE)}, 0\ns_cselect_b32 {s(sT1)}, 64, 48\ns_cselect_b64 vcc, -1, 0")
        a(f"v_bfe_u32 v11, {v(vL)}, 2, 2")
        a(f"v_and_b32 v12, 3, {v(vL)}\nv_lshlrev_b32 v12, 3, v12\nv_bfe_u32 v13, {v(vL)}, 4, 1\nv_lshl_add_u32 v12, v13, 5, v12")
        a(f"v_and_b32 v13, 2, v11\nv_lshlrev_b32 v13, 5, v13\nv_lshl_add_u32 v9, v10, 3, v11")
        a(f"v_lshl_add_u32 v7, v9, 6, v12")
        a(f"v_lshlrev_b32 v9, 7, v9\nv_xor_b32 v8, v12, v13\nv_add_u32 {v(vWR)}, v9, v8")
        a(f"v_xor_b32 v8, 64, {v(vWR)}\nv_cndmask_b32 v7, v8, v7, vcc\nv_add_u32 v8, {s(sT1)}, v12\nv_xor_b32 v8, v8, v13\nv_add_u32 {v(vWR+4)}, v9, v8")
        for T in range(2):
            for r in range(1, 4): a(f"v_add_u32 {v(vWR+4*T+r)}, {REG*r}, {v(vWR+4*T)}")
        a(f"v_add_u32 v10, {s(sRB)}, {v(vL16)}\nv_mov_b32 v8, 1")
        a(f"s_lshl3_add_u32 {s(sT0)}, {s(sI)}, {s(sJ)}\ns_lshl_b32 {s(sT0)}, {s(sT0)}, 7\ns_lshl2_add_u32 {s(sT0)}, {s(sWV)}, {s(sT0)}")
        a(f"s_lshl_b32 {s(sT1)}, {s(sHST)}, 7\ns_lshl2_add_u32 {s(sT1)}, {s(sJ)}, {s(sT1)}\ns_add_u32 {s(sT1)}, {s(sT1)}, {WS_PL - WS_FL}")
        a(f"s_cmp_eq_u32 {s(sROLE)}, 0\ns_cselect_b32 {s(sT0)}, {s(sT0)}, {s(sT1)}\ns_add_u32 {s(sT0)}, {s(sT0)}, {WS_FL}\nv_mov_b32 v9, {s(sT0)}")
        misc = deque(); M = lambda t: self.lines(a, misc, t)
        M(f"s_lshl4_add_u32 {s(sT0)}, {s(sJ)}, {s(sI)}\ns_lshl_b32 {s(sT0)}, {s(sT0)}, 7\ns_lshl2_add_u32 {s(sT0)}, {s(sWV)}, {s(sT0)}")
        M(f"s_add_u32 {s(sT0)}, {s(sT0)}, {WS_FK}\nv_mov_b32 v13, {s(sT0)}")
        M(f"s_lshl2_add_u32 {s(sT0)}, {s(sJ)}, {s(sWV)}\ns_lshl4_add_u32 {s(sT0)}, {s(sT0)}, {s(sI)}\ns_lshl_b32 {s(sT0)}, {s(sT0)}, 10\ns_add_u32 {s(aKVO)}, {s(sT0)}, {WS_KV}")
        M(f"s_mul_i32 {s(aHST)}, {s(sHST)}, 35\ns_lshl1_add_u32 {s(aHS2)}, {s(aHST)}, {s(sJ)}\ns_add_u32 {s(aHST)}, {s(aHST)}, {s(sJ)}\ns_lshl_b32 {s(aHST)}, {s(aHST)}, 12")
        M(f"s_add_u32 {s(aHS2)}, {s(aHS2)}, 48\ns_lshl_b32 {s(aHS2)}, {s(aHS2)}, 11")
        M(f"s_mul_i32 {s(aPQS)}, {s(sHST)}, 7\ns_add_u32 {s(aPQS)}, {s(aPQS)}, {s(sJ)}\ns_lshl_b32 {s(aPQS)}, {s(aPQS)}, 12\ns_add_u32 {s(aPQS)}, {s(aPQS)}, {WS_PQ}")
        misc.append(lambda: a(f"s_cmp_eq_u32 {s(sJ)}, 7\ns_cselect_b32 {s(aPQS)}, {WS_SIZE}, {s(aPQS)}"))
        M(f"s_lshl_b32 {s(aBIA)}, {s(sJ)}, 7\ns_lshl_b32 {s(aBI2)}, {s(sJ)}, 6")
        xt = {}
        def xread(st):
            if st >= 28: return
            n = st // 4
            if st % 4 == 0:
                while xq['n'] < 4 * n + 4: xdma()
                a.wait(vm=xk[n])
                if n == 0: self.stamp(a, 2)
            xt[st] = a.ds(f"ds_read_b128 {v(Rof(st),4)}, {v(vXR+st%4)} offset:{n*4096}")
            if st % 4 == 3:
                for k in (2 * n, 2 * n + 1):
                    self.slot['x', k] = k; self.lastread['x', k] = xt[st]; self.allread.add(('x', k))
        for k in range(o['XPRE'] - 12): xdma()
        xread(0); xread(1)
        self.clk = 0; self.tprev = 0
        for st in range(28):
            r = Rof(st); b = Uof(st)
            a.wait(lg=xt[st])
            a(f"v_mfma_f32_32x32x16_bf16 v[28:43], {v(r,4)}, {v(r,4)}, {'v[28:43]' if st else 0}")
            xread(st + 2)
            xdma()
            self.clk += o['TFRAG'] if st < 16 else 52
            for d in range(4):
                if d == 2: a(f"v_mfma_f32_16x16x32_bf16 v[44:47], v[48:51], {v(r,4)}, {'v[44:47]' if st else 0}")
                if st < 23: a(f"v_lshlrev_b32 {v(b+2*d)}, 16, {v(r+d)}\nv_and_b32 {v(b+2*d+1)}, {s(sMSK)}, {v(r+d)}")
            if misc: misc.popleft()()
            if st == o['B0AT']:
                self.vclk = max(self.clk, 24 * o['CX']); self.stamp(self.b, 2); self.barrier(); self.stamp(self.b, 3)
                self.res_at = o['RESE']
        assert not misc
        self.stamp(a, 3)
        a(f"v_mov_b32 {v(vSR)}, v7")
        for r in range(1, 4): a(f"v_add_u32 {v(vSR+r)}, {REG*r}, v7")
        inv = 0x3b124925
        a(f"s_nop 2\nv_mul_f32 v44, {inv:#x}, v44")
        for lvl, step in enumerate((1, 2, 4)):
            for k in range(0, 16, 2 * step): a(f"v_cndmask_b32 {v(28+k)}, {v(28+k)}, {v(28+k+step)}, {s(aM[lvl],2)}")
        a(f"v_cndmask_b32 v29, v28, v36, {s(aM[4],2)}\nv_cndmask_b32 v28, v28, v36, {s(aM[4],2)}")
        a(f"v_permlane32_swap_b32 v29, v28")
        a(f"v_cndmask_b32 v28, v29, v28, {s(aM[3],2)}")
        a(f"v_mul_f32 v28, {inv:#x}, v28\nv_fma_f32 v28, -v44, v44, v28\nv_max_f32 v28, 0, v28\nv_add_f32 v28, 0x3727c5ac, v28")
        a(f"v_rsq_f32 v2, v28")
        a(f"v_mul_f32_e64 v3, -v44, v2")
        self.clk += 170
        for st in list(range(7, -1, -1)) + list(range(8, 23)):
            if st == 17:
                for k in range(o['D']): self.read_frag(k)
            for d in range(4):
                r = Uof(st) + 2 * d
                a(f"v_pk_fma_f32 {v(r,2)}, {v(r,2)}, v[2:3], v[2:3] op_sel:[0,0,1] op_sel_hi:[1,0,1]")
            self.clk += 21
            if st < 8:
                for d in (3, 2, 1, 0): a(f"v_cvt_pk_bf16_f32 {v(Fof(st)+d)}, {v(Uof(st)+2*d)}, {v(Uof(st)+2*d+1)}")
                self.clk += 21
        self.stamp(a, 4)

    def store(self, r, soff, off):
        def f(): self.last_store = self.a.vm(f"buffer_store_dwordx4 {v(r,4)}, {v(vL16)}, {s(rWS,4)}, {s(soff)} offen offset:{off} sc1")
        return f
    def flag(self, get, val, va="v9"):
        a = self.a
        def f():
            a.wait(vm=get())
            a.vm(f"buffer_store_dword v8, {va}, {s(rWS,4)}, 0 offen sc1")
            if val: a(f"v_mov_b32 v8, {val}")
            return 3
        return f
    def a_ffn(self):
        a = self.a; o = self.o
        fl = deque(self.g3_ops()); A = lambda t: self.lines(a, fl, t)
        SEL = BI + 14; tb = {}
        def forced(st, T):
            ops = self.cvt_forced(st, T)
            if (st, T) == (19, 1): self.lines(a, ops, f"v_and_b32 v12, 31, {v(vL)}\nv_lshlrev_b32 v12, 1, v12")
            k = 2 * st + T - 40
            if 0 <= k < 7:
                so, off = (aBIA, 64 * (k & 1) + 1024 * (k >> 1)) if k < 6 else (aBI2, 3072)
                ops.append(lambda: tb.update({k: a.vm(f"buffer_load_ushort {v(BI+2*k)}, v12, {s(rB1,4)}, {s(so)} offen offset:{off}")}))
            if (st, T) == (24, 0): self.lines(a, ops, "\n".join(f"v_mov_b32 {v(BI+k)}, 0" for k in (1, 3, 5, 7)))
            if (st, T) == (24, 1): self.lines(a, ops, "\n".join(f"v_mov_b32 {v(BI+k)}, 0" for k in (9, 11, 13)))
            if (st, T) == (25, 0): self.lines(a, ops, "\n".join(f"v_mov_b32 {v(SEL+k)}, 0" for k in (1, 2, 3)))
            if (st, T) == (25, 1): self.lines(a, ops, f"v_mov_b32 {v(SEL)}, 0x3f80\nv_cndmask_b32 {v(SEL)}, {v(SEL)}, 0, {s(sHI,2)}")
            return ops
        def bias(acc, tiles, cont=False): return [f"v_mfma_f32_32x32x16_bf16 {acc(T)}, {v(BI+2*k,4)}, {v(SEL,4)}, {acc(T) if cont else 0}" for T, k in enumerate(tiles)]
        def epi(h, so, off):
            ops = []
            for d in range(8):
                t0 = h + 2 * d
                self.lines(a, ops, f"v_mul_f32_e64 {v(t0)}, {v(t0)}, |{v(t0)}|\nv_mul_f32_e64 {v(t0+1)}, {v(t0+1)}, |{v(t0+1)}|")
                self.lines(a, ops, f"v_cvt_pk_bf16_f32 {v(h+d)}, {v(t0)}, {v(t0+1)}\nv_pk_max_i16 {v(h+d)}, {v(h+d)}, 0")
                if d % 4 == 3: ops.append(self.store(h + d - 3, so, off + (d // 4) * 1024))
            return ops
        accS = lambda T: v(AS + 16 * T, 16); accA = lambda T: v(VA + 16 * T, 16)
        big = lambda: 99; last = lambda: self.last_store
        sy = [(), (), (), ()]
        for k in range(o['SYNCF']): sy[2 + k // 2] += ((4, 32)[k % 2],)
        self.syncs_left = o['SYNCF']
        self.run_stage(0, accS, False, fl, budget=o['B0'], forced=forced, minfill=2.4, finish=12)
        assert not fl
        self.stamp(a, 5)
        fl.extend([self.go_load] + [big] * o.get('BIASLAG', 5))
        fl.append(lambda: a.wait(vm=tb[6]) and 1)
        for line in bias(accS, [0, 1], True) + bias(accA, [2, 3], True): fl.append(lambda line=line: a(line) or 2)
        fl.extend([big, big])
        fl.extend(epi(AS, aHST, 0) + epi(AS + 16, aHST, 2048)); fl.append(self.go_check)
        fl.extend([big] * o['FLAG']); fl.append(self.flag(last, 3))
        self.run_stage(1, accA, False, fl, budget=o['B1'], minfill=2.2)
        assert not fl
        self.stamp(a, 6)
        A(f"s_add_u32 {s(aHST)}, {s(aHST)}, 32768"); fl.extend([big, big, big])
        fl.extend(epi(VA, aHST, 0) + epi(VA + 16, aHST, 2048)); fl.extend([big] * o['FLAG']); fl.append(self.flag(last, 7))
        self.run_stage(2, accS, False, fl, budget=o['B2'], pre=bias(accS, [4, 5]), minfill=2, syncs=sy[2])
        assert not fl
        self.stamp(a, 7)
        A(f"s_add_u32 {s(aHST)}, {s(aHST)}, 32768"); fl.extend([big, big, big])
        fl.extend(epi(AS, aHST, 0) + epi(AS + 16, aHST, 2048))
        self.run_stage(3, accA, False, fl, budget=o['B3'], pre=bias(accA, [6]), minfill=3, syncs=sy[3])
        assert not fl and not self.b_alive
        self.stamp(a, 8)
        l2 = self.last_store
        for g in epi(VA, aHS2, 0): g()
        l3 = self.last_store
        self.flag(lambda: l2, 15)(); self.flag(lambda: l3, 0)()
        self.stamp(a, 9); self.flush_stamp(a)
        a("s_branch L_amid")
        print("F: end of phase 1 at", self.clk, "forced", self.forced, "publag", self.publag)

    def a_kvq(self):
        a = self.a; o = self.o
        fl = deque(self.g3_ops()); A = lambda t: self.lines(a, fl, t)
        accS = lambda T: v(AS + 16 * T, 16); accA = lambda T: v(VA + 16 * T, 16)
        big = lambda: 99; last = lambda: self.last_store
        self.syncs_left = 1 + o['SYNCK']
        self.run_stage(0, accS, True, fl, budget=o['B0'], forced=self.cvt_forced, minfill=2.4, finish=12)
        assert not fl
        self.stamp(a, 5)
        PK, PV, KV = (208, 224), (216, VA + 16), (VA, 208)
        self.hold = {14, 15, 16, 17}; XB = 14 * 2048
        fl.extend([self.go_load, big, big])
        A(f"v_mov_b32 v1, 0x3f803f80")
        fl.extend(self.phi_ops(AS, PK[0]) + self.phi_ops(AS + 16, PK[1])); fl.append(self.go_check)
        self.run_stage(1, accA, True, fl, budget=o['B1'], minfill=3)
        assert not fl and set(self.reserve) == self.hold
        self.stamp(a, 6)
        st = {}
        def chain():
            kvm = lambda T, k: a(f"v_mfma_f32_32x32x16_bf16 {v(KV[T],16)}, {v(PK[T]+4*k,4)}, {v(PV[T]+4*k,4)}, {v(KV[T],16) if k else 0}")
            wr = lambda g: a.ds(f"ds_write_b128 v10, {v(KV[g>>2]+4*(g&3),4)} offset:{XB + g*1024}")
            for T in range(2):
                for d in range(8):
                    a(f"v_cvt_pk_bf16_f32 {v(PV[T]+d)}, {v(VA+16*T+2*d)}, {v(VA+16*T+2*d+1)}\nv_cndmask_b32 {v(PV[T]+d)}, {v(PV[T]+d)}, v1, {s(aONE if T == 0 else aONB,2)}")
                    if T == 1 and d in (0, 1): kvm(0, d)
            kvm(1, 0); kvm(1, 1)
            for g in range(8): st['w'] = wr(g)
            self.clk += 700
            return 99
        def bar():
            a.wait(lg=st['w']); self.hook = self.b_kv; self.sync(o['XSLACK']); self.stamp(a, 8); return 2
        fl.extend([big] * o['KPRE'] + [chain, big, bar])
        q = []
        for T in range(2):
            p = self.phi_ops(AS + 16 * T)
            q.append(p[:36] + [self.store(AS + 16 * T, aPQS, 2048 * T)] + p[36:] + [self.store(AS + 16 * T + 4, aPQS, 2048 * T + 1024)])
        q0 = deque(q[0])
        def forced(stp, T):
            self.slotk = 28 * T + stp; ops = []
            if T == 1 and stp >= 3 and not fl:
                for k in range(o.get('QN', 4)):
                    if q0: ops.append(q0.popleft())
            return ops
        self.run_stage(2, accS, False, fl, budget=o.get('BK2', 9), forced=forced, syncs=(44,) if o['SYNCK'] else ())
        assert not fl and not self.b_alive
        self.stamp(a, 7)
        rest = list(q0) + q[1]
        for g in rest: g()
        self.flag(last, 0)()
        self.stamp(a, 9); self.flush_stamp(a)
        print("K: end of phase 1 at", self.clk, "forced", self.forced, "publag", self.publag)
        a(f"s_cmp_lt_u32 {s(sCS)}, 7\ns_cbranch_scc1 L_amid")
        xs = self.xs * 2048
        G, S, TM, KVA, P, NUM = 84, 212, 228, 52, 84, 140
        W8 = 99
        a(f"s_setprio {o['BPRIO']}")
        self.join_setup(a); self.poll_issue(a, 8, aFL)
        a("L_join:")
        self.poll_check(a, 8, aFL, 0, 1)
        self.stamp(a, 12)
        pt = {}
        for t in range(7):
            pt[t] = a.vm(f"buffer_load_dwordx4 {v(P+4*t,4)}, {v(vL16)}, {s(rWS,4)}, s{4+t//4} offen offset:{(t%4)*1024}{self.lm}")
        a("s_barrier")
        self.stamp(a, 13)
        for u in range(4):
            for f in range(2): tk = a.ds(f"ds_read_b128 {v(KVA+8*u+4*f,4)}, {'v11' if u < 2 else 'v12'} offset:{(u&1)*REG + f*1024}")
        def nm(hp):
            Pp = P + 14 * hp
            a.wait(vm=pt[3 + 3 * hp], lg=tk)
            for k in range(2):
                for T in range(2):
                    N = v(NUM + 32 * hp + 16 * T, 16)
                    a(f"v_mfma_f32_32x32x16_bf16 {N}, {v(KVA+16*hp+8*T+4*k,4)}, {v(Pp+6*T+4*k,4)}, {N if k else 0}")
        def ov(hp):
            Pp = P + 14 * hp
            def sto(t): self.last_store = a.vm(f"buffer_store_dwordx4 {v(P+4*t,4)}, {v(vL16)}, {s(rWS,4)}, s{40+t//4} offen offset:{(t%4)*1024}{self.sm}")
            NA = NUM + 32 * hp; NB = NA + 16; E = s(aEPS)
            a(f"v_add_f32 {v(TM)}, {E}, {v(NA+12)}\nv_add_f32 {v(TM+1)}, {E}, {v(NA+12)}\nv_add_f32 {v(TM+2)}, {E}, {v(NB)}\nv_add_f32 {v(TM+3)}, {E}, {v(NB)}")
            a(f"v_permlane32_swap_b32 {v(TM)}, {v(TM+1)}\nv_permlane32_swap_b32 {v(TM+2)}, {v(TM+3)}")
            a(f"v_rcp_f32 {v(TM+1)}, {v(TM+1)}\nv_rcp_f32 {v(TM+2)}, {v(TM+2)}")
            for T in range(2):
                for d in range(8):
                    r = NA + 16 * T + 2 * d
                    a(f"v_mul_f32 {v(r)}, {v(r)}, {v(TM+1+T)}\nv_mul_f32 {v(r+1)}, {v(r+1)}, {v(TM+1+T)}")
                    dst = Pp + d if T == 0 else (TM + 4 + d if d < 2 else Pp + 6 + d)
                    a(f"v_cvt_pk_bf16_f32 {v(dst)}, {v(r)}, {v(r+1)}")
                    if T == 1 and d == 1:
                        a(f"v_cndmask_b32 {v(Pp+6)}, {v(Pp+6)}, {v(TM+4)}, {s(sHI,2)}\nv_cndmask_b32 {v(Pp+7)}, {v(Pp+7)}, {v(TM+5)}, {s(sHI,2)}")
                    done = {(0,0,3): 0, (0,1,1): 1, (0,1,5): 2, (1,0,1): 3, (1,0,5): 4, (1,1,3): 5, (1,1,7): 6}.get((hp, T, d))
                    if done is not None: sto(done)
        nm(0); nm(1); ov(0); ov(1)
        a.wait(vm=self.last_store)
        a.vm(f"buffer_store_dword v8, v9, {s(rWS,4)}, 0 offen{self.fm}")
        self.stamp(a, 14); self.flush_stamp(a)
        a("s_branch L_fin")

    def join_setup(self, a):
        W8 = 99; xs = self.xs * 2048
        a(f"s_lshr_b32 {s(sT2)}, {s(sRB2)}, 3")
        a(f"s_and_b32 {s(sI)}, {s(sRB2)}, 7\ns_lshl3_add_u32 {s(sI)}, {s(sI)}, {s(W8)}")
        a(f"s_lshl_b32 {s(sCNT)}, {s(sI)}, 7\ns_add_u32 {s(sCNT)}, {s(sCNT)}, {WS_PL}\ns_add_u32 {s(aFL)}, {s(sWS)}, {s(sCNT)}\ns_addc_u32 {s(aFL+1)}, {s(sWS+1)}, 0")
        a(f"s_lshr_b32 {s(sCNT)}, {s(sI)}, 1\ns_lshl2_add_u32 {s(sCNT)}, {s(sCNT)}, {s(sT2)}\ns_lshl_b32 {s(sCNT)}, {s(sCNT)}, 7\ns_add_u32 {s(sCNT)}, {s(sCNT)}, {WS_FL}")
        a(f"s_and_b32 {s(sT1)}, {s(W8)}, 1\ns_lshl2_add_u32 {s(sCNT)}, {s(sT1)}, {s(sCNT)}\ns_add_u32 {s(sCNT)}, {s(sCNT)}, 16\nv_mov_b32 v9, {s(sCNT)}\nv_mov_b32 v8, 1")
        a(f"s_mul_i32 {s(sT2)}, {s(sT2)}, 7168")
        a(f"s_mul_i32 s4, {s(sI)}, {28*1024}\ns_add_u32 s4, s4, {s(sT2)}\ns_add_u32 s4, s4, {WS_PQ}\ns_add_u32 s5, s4, 4096")
        a(f"s_mul_i32 s40, {s(sI)}, {HS}\ns_add_u32 s40, s40, {s(sT2)}\ns_add_u32 s40, s40, {112*1024}\ns_add_u32 s41, s40, 4096")
        a(f"s_mov_b32 {s(sHI)}, 0\ns_mov_b32 {s(sHI+1)}, -1\ns_mov_b32 {s(aEPS)}, 0x358637bd")
        a(f"v_add_u32 v12, {2*REG + xs}, {v(vL16)}\nv_add_u32 v11, {xs}, {v(vL16)}")
    def b_kv(self):
        b = self.b; XB = 14 * 2048; R = ACC
        if self.o.get('KPRI'): b("s_setprio 3")
        self.stamp(b, 6)
        b(f"s_lshl_b32 {s(sT0)}, {s(sWV)}, 11\ns_add_u32 {s(sT0)}, {s(sT0)}, {XB}\nv_add_u32 v64, {s(sT0)}, {v(vL16)}\nv_add_u32 v65, {2*REG}, v64")
        rt = [b.ds(f"ds_read_b128 {v(R+8*sw+4*h,4)}, v{64 + (sw >> 1)} offset:{(sw&1)*REG + h*1024}") for sw in range(4) for h in range(2)]
        b(f"s_lshl2_add_u32 {s(sT0)}, {s(sJ)}, {s(sWV)}\ns_lshl4_add_u32 {s(sT0)}, {s(sT0)}, {s(sI)}\ns_lshl_b32 {s(sT0)}, {s(sT0)}, 10\ns_add_u32 {s(sT0)}, {s(sT0)}, {WS_KV}")
        FS = self.o['FKS']
        b(f"s_lshr_b32 s57, {s(sWV)}, 1\ns_lshl1_add_u32 s57, {s(sJ)}, s57\ns_lshl4_add_u32 s57, s57, {s(sI)}\ns_lshl_b32 s57, s57, 1\ns_and_b32 {s(sT1)}, {s(sWV)}, 1\ns_add_u32 s57, s57, {s(sT1)}")
        b(f"s_mul_i32 s57, s57, {FS}\ns_add_u32 s57, s57, {WS_FK}\nv_mov_b32 v16, 1")
        b.wait(lg=rt[3])
        for k in range(8): b(f"v_add_f32 {v(R+k)}, {v(R+k)}, {v(R+8+k)}")
        b.wait(lg=rt[7])
        for k in range(8): b(f"v_add_f32 {v(R+16+k)}, {v(R+16+k)}, {v(R+24+k)}")
        for d in range(4):
            b(f"v_add_f32 {v(R+2*d)}, {v(R+2*d)}, {v(R+16+2*d)}\nv_add_f32 {v(R+2*d+1)}, {v(R+2*d+1)}, {v(R+17+2*d)}\nv_cvt_pk_bf16_f32 {v(R+d)}, {v(R+2*d)}, {v(R+2*d+1)}")
        self.kvst = b.vm(f"buffer_store_dwordx4 {v(R,4)}, {v(vL16)}, {s(rWS,4)}, {s(sT0)} offen sc1")
        if self.o.get('KPRI'): b(f"s_setprio {self.o['BPRIO']}")
        self.stamp(b, 4)
        self.vclk = max(self.vclk, self.clk) + 400
        self.hold = set()
        for sl in self.reserve:
            self.slot['kx', sl] = sl; self.lastread['kx', sl] = 0; self.allread.add(('kx', sl))
    def kv_flag(self, x, force=False):
        if self.kvst and (force or x.vm_issued - self.kvst >= self.o['KVD'] or x.vm_done >= self.kvst):
            x.wait(vm=self.kvst); x.vm(f"buffer_store_dword v16, off, {s(rWS,4)}, s57 sc1"); self.stamp(x, 5)
            if x is self.bmain: self.kvst = None
    def b_gather(self):
        b = self.b; o = self.o; G, S, TM = 32, 160, 176; xs = self.xs * 2048
        b(f"s_lshr_b32 {s(sT2)}, {s(sRB2)}, 3\ns_lshl2_add_u32 {s(sT1)}, {s(sT2)}, {s(sWV)}")
        b(f"s_and_b32 {s(sCNT)}, {s(sWV)}, 1\ns_cselect_b32 s44, -1, 0\ns_cselect_b32 s47, 0, -1\ns_mov_b32 s45, 0\ns_mov_b32 s46, 0")
        b(f"s_mul_i32 s42, {s(sT1)}, {32*o['FKS']}\ns_add_u32 s42, s42, {WS_FK}\nv_and_b32 v1, 31, {v(vL)}\nv_mul_u32_u24 v1, {o['FKS']}, v1")
        b(f"s_lshl_b32 {s(sT1)}, {s(sT1)}, 15\ns_add_u32 {s(sSO)}, {s(sT1)}, {WS_KV}")
        self.kv_flag(b, force=True)
        self.join_setup(b)
        SM = 184
        b(f"v_add_u32 v13, {s(sRB)}, {v(vL16)}")
        b.wait_all(lg=True)
        b(f"v_bfe_u32 v2, {v(vL)}, 3, 2\nv_bfe_u32 v3, {v(vL)}, 1, 1\nv_lshl_add_u32 v2, v2, 1, v3\ns_mov_b32 vcc_lo, 0x0f0f0f0f\ns_mov_b32 vcc_hi, 0xf0f0f0f0\nv_cndmask_b32 v2, 63, v2, vcc")
        b(f"s_mov_b32 vcc_lo, 0xaaaaaaaa\ns_mov_b32 vcc_hi, vcc_lo\nv_mov_b32 v3, 0x3f80\nv_mov_b32 v4, 0x3f800000\nv_cndmask_b32 v3, v3, v4, vcc")
        for k in range(8): b(f"v_cmp_eq_u32 vcc, {k}, v2\nv_cndmask_b32 {v(SM+k)}, 0, v3, vcc")
        if o['DYN']:
            y = self.slow
            FS = o['FKS']
            b(f"v_and_b32 v1, 15, {v(vL)}\nv_lshlrev_b32 v1, 1, v1\nv_bfe_u32 v2, {v(vL)}, 4, 1\nv_add_u32 v1, v1, v2\nv_mul_u32_u24 v1, {FS}, v1\nv_add_u32 v15, 16384, {v(vL16)}")
            b(f"s_mov_b32 s60, 0xffff\ns_mov_b32 s61, 0\ns_mov_b32 {s(sCNT)}, 0")
            if o.get('KWAIT', 1): b.wait_all(vm=True)
            take = lambda x: x("v_cmp_ne_u32 vcc, 0, v14\ns_lshr_b32 s62, vcc_lo, 16\ns_and_b32 s62, s62, vcc_lo\ns_or_b32 s61, s61, s62")
            gt = []; pt = None
            def acc(n):
                b.wait(vm=gt[n])
                b(f"v_mfma_f32_32x32x16_bf16 {v(S,16)}, {v(SM+4*(n%2),4)}, {v(G+4*n,4)}, {v(S,16) if n else 0}")
            for k in range(16):
                if pt and b.vm_done >= pt: take(b); pt = None
                b(f"s_and_b32 s62, s60, s61\ns_cbranch_scc0 L_dyn{k}\nL_dyr{k}:")
                y(f"L_dyn{k}:")
                if k and o['SL2']: y(f"s_sleep {o['SL2']}")
                y(f"buffer_load_dword v14, v1, {s(rWS,4)}, s42 offen sc1"); y.wait_all(vm=True); take(y)
                y(f"s_and_b32 s62, s60, s61\ns_cbranch_scc1 L_dyr{k}\ns_add_u32 {s(sCNT)}, {s(sCNT)}, 1\ns_cmp_lt_u32 {s(sCNT)}, {SPIN}\ns_cbranch_scc1 L_dyn{k}")
                y(f"s_mov_b32 s61, 0xffff\ns_mov_b32 s62, s60\ns_branch L_dyr{k}")
                if k == 0: self.stamp(b, 10)
                b(f"s_ff1_i32_b32 s63, s62\ns_bitset0_b32 s60, s63\ns_lshl_b32 s63, s63, 10\ns_add_u32 s63, s63, {s(sSO)}")
                for f in range(2):
                    n = 2 * k + f
                    if n >= 11: acc(n - 11)
                    gt.append(b.vm(f"buffer_load_dwordx4 {v(G+4*n,4)}, {v(vL16) if f == 0 else 'v15'}, {s(rWS,4)}, s63 offen{self.lm}"))
                if pt is None and k in (1, 8): pt = b.vm(f"buffer_load_dword v14, v1, {s(rWS,4)}, s42 offen sc1")
        else:
            if o.get('KWAIT', 1): b.wait_all(vm=True)
            b(f"s_mov_b32 {s(sCNT)}, 0\nL_kpoll:")
            b.vm(f"buffer_load_dword v14, v1, {s(rWS,4)}, s42 offen sc1")
            b.wait_all(vm=True)
            b(f"v_cmp_eq_u32 vcc, 0, v14\ns_cbranch_vccz L_kgo")
            if o['SL2']: b(f"s_sleep {o['SL2']}")
            b(f"s_add_u32 {s(sCNT)}, {s(sCNT)}, 1\ns_cmp_lt_u32 {s(sCNT)}, {SPIN}\ns_cbranch_scc1 L_kpoll\nL_kgo:")
            self.stamp(b, 10)
            gt = []
            def acc(n):
                b.wait(vm=gt[n])
                b(f"v_mfma_f32_32x32x16_bf16 {v(S,16)}, {v(SM+4*(n//16),4)}, {v(G+4*n,4)}, {v(S,16) if n else 0}")
            for n in range(32):
                if n >= 11: acc(n - 11)
                if n and n % 4 == 0: b(f"s_addk_i32 {s(sSO)}, 4096")
                gt.append(b.vm(f"buffer_load_dwordx4 {v(G+4*n,4)}, {v(vL16)}, {s(rWS,4)}, {s(sSO)} offen offset:{(n%4)*1024}{self.lm}"))
        for n in range(21, 32):
            acc(n)
            if n == 26: self.poll_issue(b, 8, aFL)
        for d in range(8): b(f"v_cvt_pk_bf16_f32 {v(TM+d)}, {v(S+2*d)}, {v(S+2*d+1)}")
        for d in (0, 1): b(f"v_cndmask_b32 {v(TM+d)}, {v(TM+d)}, 0, s[44:45]")
        for d in (6, 7): b(f"v_cndmask_b32 {v(TM+d)}, {v(TM+d)}, 0, s[46:47]")
        for f in range(2): b.ds(f"ds_write_b128 v13, {v(TM+4*f,4)} offset:{xs + f*1024}")
        self.stamp(b, 11); self.flush_stamp(b)
        b("s_branch L_join")

    def tile_sum(self, x, rd, RES, Pk, store):
        rt = {}
        for m in range(2):
            for hi in range(2):
                for q in range(4): rt[m, hi] = x.ds(f"ds_read_b128 {v(ACC+16*q+8*m+4*hi,4)}, {v(rd)} offset:{q*4352 + hi*512 + m*256}")
        for m in range(2):
            for hi in range(2):
                x.wait(lg=rt[m, hi])
                R = [ACC + 8 * m + 4 * hi + k for k in range(4)]
                if x.tag == 'b':
                    for r in R[::2]:
                        x(f"v_pk_add_f32 {v(r,2)}, {v(r,2)}, {v(r+16,2)}\nv_pk_add_f32 {v(r+32,2)}, {v(r+32,2)}, {v(r+48,2)}\nv_pk_add_f32 {v(r,2)}, {v(r,2)}, {v(RES+r-ACC,2)}")
                    for r in R[::2]: x(f"v_pk_add_f32 {v(r,2)}, {v(r,2)}, {v(r+32,2)}")
                else:
                    for r in R: x(f"v_add_f32 {v(r)}, {v(r)}, {v(r+16)}\nv_add_f32 {v(r+32)}, {v(r+32)}, {v(r+48)}")
                    for r in R: x(f"v_add_f32 {v(r)}, {v(r)}, {v(RES+r-ACC)}")
                    for r in R: x(f"v_add_f32 {v(r)}, {v(r)}, {v(r+32)}")
                for k in (0, 2): x(f"v_cvt_pk_bf16_f32 {v(Pk+4*m+2*hi+k//2)}, {v(R[k])}, {v(R[k]+1)}")
            store(m)
    def a_mid(self, a):
        RES, B2, XW, BW = 112, 128, 96, 104
        a("L_amid:\ns_setprio 2")
        self.srd(a, rB1, sB2, 896)
        a(f"s_xor_b32 {s(sT2)}, {s(sRB2)}, 1\ns_lshr_b32 {s(sT0)}, {s(sWV)}, 1\ns_lshl1_add_u32 {s(sT0)}, {s(sT2)}, {s(sT0)}\ns_mul_i32 {s(sXB)}, {s(sT0)}, {32*896}")
        a(f"s_and_b32 {s(sT1)}, {s(sWV)}, 1\ns_lshl1_add_u32 {s(sT1)}, {s(sCS)}, {s(sT1)}\ns_lshl_b32 {s(sT1)}, {s(sT1)}, 6\ns_add_u32 {s(sXB)}, {s(sXB)}, {s(sT1)}\ns_add_u32 {s(sT0)}, {s(sXB)}, {16*896}")
        a(f"v_lshrrev_b32 v7, 2, {v(vL)}\nv_and_b32 v6, 3, {v(vL)}\nv_lshlrev_b32 v6, 4, v6\nv_mul_u32_u24 v4, 896, v7\nv_add_u32 v4, v4, v6")
        a.vm(f"buffer_load_dwordx4 {v(XW,4)}, v4, {s(rX,4)}, {s(sXB)} offen")
        a.vm(f"buffer_load_dwordx4 {v(XW+4,4)}, v4, {s(rX,4)}, {s(sT0)} offen")
        a.vm(f"buffer_load_dwordx4 {v(BW,4)}, v6, {s(rB1,4)}, {s(sT1)} offen")
        a("s_barrier")
        a(f"v_mul_u32_u24 v17, 68, v6\nv_lshl_add_u32 v17, v7, 4, v17\ns_add_u32 {s(sT0)}, {s(sRB)}, {XO}\nv_add_u32 v17, {s(sT0)}, v17\nv_mov_b32 v8, 1")
        a(f"s_xor_b32 s40, s2, 4\ns_lshl2_add_u32 s40, s40, {s(sWV)}\ns_lshl_b32 s40, s40, 11\ns_add_u32 s40, s40, {WS_PX}")
        a(f"s_lshl2_add_u32 s41, {s(sT2)}, {s(sWV)}\ns_lshl_b32 s41, s41, 7\ns_lshl2_add_u32 s41, {s(sCS)}, s41\ns_add_u32 s41, s41, {WS_FL + 32}")
        a.wait_all(vm=True)
        for d in range(4): a(f"v_lshlrev_b32 {v(B2+2*d)}, 16, {v(BW+d)}\nv_and_b32 {v(B2+2*d+1)}, {s(sMSK)}, {v(BW+d)}")
        for d in range(8):
            a(f"v_lshlrev_b32 {v(RES+2*d)}, 16, {v(XW+d)}\nv_and_b32 {v(RES+2*d+1)}, {s(sMSK)}, {v(XW+d)}")
            a(f"v_add_f32 {v(RES+2*d)}, {v(RES+2*d)}, {v(B2+(2*d)%8)}\nv_add_f32 {v(RES+2*d+1)}, {v(RES+2*d+1)}, {v(B2+(2*d+1)%8)}")
        a("s_barrier")
        self.stamp(a, 10)
        self.tile_sum(a, 17, RES, 96, lambda m: a.vm(f"buffer_store_dwordx4 {v(96+4*m,4)}, {v(vL16)}, {s(rWS,4)}, s40 offen offset:{1024*m} sc1"))
        self.stamp(a, 11)
        a.wait_all(vm=True)
        a.vm(f"buffer_store_dword v8, off, {s(rWS,4)}, s41 sc1")
        self.stamp(a, 12); self.flush_stamp(a)

    def phase2(self):
        b = self.b; o = self.o; lagv = o['LAGV']
        RES, XW = 232, 248
        self.stamp(b, 8)
        b(f"s_lshl2_add_u32 {s(sT0)}, {s(sRB2)}, {s(sWV)}\ns_lshl_b32 {s(sT0)}, {s(sT0)}, 7\ns_add_u32 {s(sT0)}, {s(sT0)}, {WS_FL}")
        b(f"s_add_u32 {s(sFL)}, {s(sWS)}, {s(sT0)}\ns_addc_u32 {s(sFL+1)}, {s(sWS+1)}, 0")
        b(f"s_xor_b32 {s(sT0)}, {s(sT0)}, 512\ns_add_u32 s92, {s(sWS)}, {s(sT0)}\ns_addc_u32 s93, {s(sWS+1)}, 0")
        b(f"s_sub_u32 s94, s6, s11\ns_lshl_b32 s95, s94, 11\ns_add_u32 s95, s95, s18\ns_lshl_b32 s94, s94, 12\ns_add_u32 s94, s94, s17")
        acc = lambda q: v(ACC + 16 * q, 16)
        tk = {}; reg = {}; ring = [96 + 4 * k for k in range(12)]; st = dict(cur=None, nm=0, x2=None, nw=0)
        fresh = set(range(4)); kept = set(); used = {}; wq = deque(); wt = {}; ru = deque(); tasks = deque()
        W = lambda u: u[1] + {'o': 14, 'e': 21}.get(u[0], 0)
        def wr():
            g, q, h = wq.popleft()
            wt[q] = b.ds(f"ds_write_b128 {v(bWA+q)}, {v(ACC+16*q+4*h,4)} offset:{q*4352 + h*1088}"); st['nw'] += 1
            if st['nw'] == 16: st['x2'] = st['nm'] + 2
        def x2(force=False):
            if st['x2'] is not None and (force or st['nm'] >= st['x2']):
                st['x2'] = None; b.wait(lg=max(wt.values())); b("s_barrier"); self.stamp(b, 6)
        def fillers():
            self.mv_release()
            if wq and st.get('rush') and st['nw'] < 16:
                wr()
                if st['nw'] == 16: x2(force=True)
                return
            if wq and st['nm'] >= wq[0][0]: wr(); return
            x2()
            n = 0
            for k in range(2):
                if self.mv_ready(o['LAG']): self.mv_one(); n += 1
            if ru and ru[0] == 'wait':
                if b.vm_done < tk['px']: return
                ru.popleft()
            for k in range(5 - n):
                if ru: ru.popleft()()
        def mfma(lag, fill=True):
            if st['cur'] is None:
                if not tasks: return False
                u = tasks[0]; w = W(u); qs = (2 * u[2] + 1, 2 * u[2])
                if not (b.vm_issued - tk[u] >= lag or tk[u] <= b.vm_done) or w not in self.w2_issued[:self.mv_next]: return False
                if any(x[1] in qs for x in wq): return False
                tasks.popleft()
                b.wait(vm=tk[u], lg=max([self.mv_t[w]] + [wt[q] for q in qs if q in fresh and q in wt]))
                st['cur'] = (u, deque(f"v_mfma_f32_32x32x16_bf16 {acc(q)}, {v(self.wreg[w]+4*(q&1),4)}, {v(reg[u],4)}, {0 if q in fresh else acc(q)}" for q in qs))
                fresh.difference_update(qs)
            u, lines = st['cur']
            b(lines.popleft()); st['nm'] += 1
            if not lines:
                st['cur'] = None; ring.append(reg[u]); w = W(u); qs = (2 * u[2] + 1, 2 * u[2])
                if u[0] != 'g':
                    used[w] = used.get(w, 0) + 1
                    if used[w] == 2: (kept.add if self.wreg[w] >= RES else self.wfree.append)(self.wreg[w])
                if u == lastof[u[0] == 'g', u[2]]:
                    wq.extend((st['nm'] + 3, q, h) for q in qs for h in range(4)); fresh.update(qs)
            if fill: fillers()
            return True
        def progress():
            if mfma(0): return
            if wq: wr(); return
            if self.mv_ready(0): self.mv_one(); return
            self.mv_release()
            if self.dma_ready(): self.dma_one(); return
            b.wait_all(lg=True); self.mv_release()
            assert self.dma_ready() or self.mv_ready(0), ("stuck", list(tasks))
        both = lambda p, us: [('h', (p, u, tt)) for u in us for tt in (1, 0)]
        split = lambda p, us: [('h', (p, u, tt)) for tt in (1, 0) for u in us]
        nD = sum(len(it['ops']) for it in self.dq); nD0 = nD
        ns = o['NSPL']; gl = o.get('GL', 4)
        hs = [('check', 4, 0, 1, 9)] + both('g', range(4)) + [('check', 4, 0, 2, 10)]
        if ns > 8: hs += both('g', range(4, 8)) + [('check', 4, 0, 4, 0)]
        if ns == 14: hs += both('g', range(8, 12)) + [('check', 4, 0, 8, 11)] + split('g', (12, 13)) + [('x1',)]
        else: hs += both('g', range(ns - 4, ns - gl)) + split('g', range(ns - gl, ns)) + [('x1',)]
        korder = list(range(ns - 1, -1, -1)); nk = o.get('NK', 4)
        kl = split('k', korder[:nk]) + both('k', korder[nk:])
        kl.insert(o.get('RUSH', 4), ('rush',)); hs += kl
        for t in self.late:
            p, u = ('k', t) if t < 14 else ('e', t - 21)
            if u in (8, 12): hs.insert(len(hs) - (o.get('CE', 0) if p == 'k' else o.get('CE2', 0)), ('check', 4, 0, 4 if u == 8 else 8, 11 if (p, u) == ('k', 12) else 0, sFL if p == 'k' else 92))
            hs += both(p, [u])
        dm = [int(c, 36) for c in str(o.get('DM' + self.role.upper(), o.get('DM', 'o')))]
        seq = []; n = 0; given = 0; started = False
        for it in hs:
            if it[0] == 'check' and dm:
                k = min(nD, dm.pop(0)); seq += [('dma',)] * k; nD -= k
            seq.append(it)
            if it[0] == 'rush': started = True; dm = []
            if it[0] == 'h' and started:
                n += 1
                if n % 2 == 0 and n > o.get('DS0', 0):
                    want = min(nD, 2 * -(-nD * (n - o.get('DS0', 0)) // (4 * self.dspread)))
                    seq += [('dma',)] * (want - given); given = max(given, want)
        assert given == nD
        ol = split('o', range(7)); px = o.get('PXAT', 9)
        seq += [('check', 2, 16, 1, 12)] + ol[:px] + [('check', 1, 's22', 1, 0), ('px',)] + ol[px:]
        seq.insert(len(seq) - o.get('X3AT', 1), ('x3',))
        lastof = {(True, tt): ('g', ns - 1, tt) for tt in (0, 1)}; lastof.update({(False, tt): ('o', 6, tt) for tt in (0, 1)})
        out = []
        for it in seq:
            if it[0] == 'check':
                j = len(out); n = 0
                while j > 0 and n < o['PLEAD'] and out[j - 1][0] != 'check': j -= 1; n += 1
                out.insert(j, ('issue',) + it[1:])
            out.append(it)
        for it in out:
            kind = it[0]
            base = it[5] if len(it) > 5 else sFL
            if kind == 'issue': self.poll_issue(b, it[1], base, it[2]); continue
            if kind == 'check':
                self.kv_flag(b, force=True)
                if it[4] == 9: self.stamp(b, 7)
                if it[4] == 11:
                    for k in range(o.get('DRAIN', 8)): mfma(o.get('DLAG', 4))
                self.poll_check(b, it[1], base, it[2], it[3])
                if it[4]: self.stamp(b, it[4])
                if it[4] == 11: self.lim = 999
                continue
            if kind == 'x1':
                while self.mv_next < o.get('HIOK', 8) or self.mv_sub: progress()
                b.wait(lg=max(self.mv_t.values())); b("s_barrier"); self.lim = o.get('LIM2', 999); continue
            if kind == 'rush':
                while any(u[0] == 'g' for u in tasks) or st['cur']: mfma(0, fill=False)
                st['rush'] = True; continue
            if kind == 'x3':
                assert st['nw'] == 16
                x2(force=True); b("s_barrier"); continue
            if kind == 'dma':
                self.mv_release()
                while self.dq and not self.dma_ready() and (len(self.mv_freed) < self.mv_next or self.mv_ready(o.get('LAGMIN', 4))):
                    if len(self.mv_freed) < self.mv_next: b.wait(lg=self.mv_t[self.w2_issued[len(self.mv_freed)]]); self.mv_release()
                    else: self.mv_one()
                if not self.dma_ready(): st['owed'] = st.get('owed', 0) + bool(self.dq); continue
            mfma(lagv, fill=False)
            if kind == 'dma': self.dma_one()
            elif kind == 'h':
                u = it[1]; p, t, tt = u
                while not ring: progress()
                reg[u] = ring.pop(0)
                va = (20 if p == 'g' else 2) + tt
                if p == 'o': so = s(19 + t // 4)
                elif p == 'e': so = s(92 + t // 4)
                else: so = "0" if t < 4 else s(15 + t // 4)
                self.throttle(8, self.lim)
                tk[u] = b.vm(f"buffer_load_dwordx4 {v(reg[u],4)}, v{va}, {s(rWS,4)}, {so} offen offset:{(t%4)*1024}{self.lm}")
                tasks.append(u)
            elif kind == 'px':
                while len(kept) < 3: progress()
                for m in range(2): tk['px'] = b.vm(f"buffer_load_dwordx4 {v(XW+4*m,4)}, {v(vL16)}, {s(rWS,4)}, s21 offen offset:{1024*m}{self.lm}")
                ru.append('wait')
                for d in range(8): self.lines(b, ru, f"v_lshlrev_b32 {v(RES+2*d)}, 16, {v(XW+d)}\nv_and_b32 {v(RES+2*d+1)}, {s(sMSK)}, {v(XW+d)}")
            if o.get('BFINE'):
                st.setdefault('v0', b.vm_issued - 1); k = (b.vm_issued - st['v0']) // o['BFINE']
                if k > st.get('fk', -1) and k < 12: st['fk'] = k; self.stamp(b, 19 + k)
            fillers()
            if not mfma(lagv): fillers()
            self.mv_release()
            if st.get('owed') and self.dma_ready():
                mfma(lagv, fill=False); self.dma_one(); st['owed'] -= 1; fillers(); mfma(lagv)
        self.stamp(b, 13)
        print("phase 2: dma", nD0, "tasks left after the last load:", len(tasks), "moved", self.mv_next, "writes", st['nw'])
        while tasks or st['cur']: progress()
        self.stamp(b, 14)
        if ru and ru[0] == 'wait': ru.popleft(); b.wait(vm=tk['px'])
        for k in range(10):
            if ru: ru.popleft()()
        while wq:
            wr()
            for k in range(5):
                if ru: ru.popleft()()
        assert not ru and st['nw'] == 32
        b.wait(lg=max(wt.values())); b("s_barrier")
        mod = {0: "", 1: " sc1", 2: " nt"}[o['OUTM']]
        self.tile_sum(b, bRD, RES, 96, lambda m: b.vm(f"buffer_store_dwordx4 {v(96+4*m,4)}, {v(bOA)}, {s(rOUT,4)}, {s(sXB if m == 0 else sXB2)} offen{mod}"))
        self.flush_stamp(b)

    def build(self):
        o = self.o
        self.slow = self.new(); self.slow.tag = 's'
        p = self.entry()
        bp = self.b_prologue()
        P = lambda p_, e: ('p', p_, e)
        streams = {}
        pf0 = list(self.pfq)
        for role in ('f', 'k'):
            self.role = role
            self.a = a = self.new(); a.tag = 'a'; a.vm_issued = 1
            self.bmain = self.b = b = self.new(); b.tag = 'b'; b.set_state(bp.state()); b.pending = bp.pending
            self.q_reset(); self.frag_list(role); self.pfq = deque(pf0); self.pfacc = 0; self.syncs_left = 9
            self.dpre = o.get('DPRE' + role.upper(), o['DPRE']); self.dspread = o.get('DSPREAD' + role.upper(), o['DSPREAD'])
            if role == 'k': b("L_Bk:")
            self.lead = lead = [0, 1, 8, 9, 16, 17, 24, 28] if o['WROT'] & (1 if role == 'f' else 2) else []
            order = list(self.cons)
            la = o.get('L1' + role.upper())
            if la is not None:
                ld = [('p', 1, 0), ('p', 2, 0)] + ([('s', 0)] if role == 'f' else [])
                if o.get('L1N'): ld = ld[:o['L1N']]
                order = [k for k in order if k not in ld]; order[la:la] = ld
            at = o['LEAD' + role.upper()]
            for n, t in enumerate(lead): order.insert(min(len(order), at + n * (1 + o['LSTEP'])), ('w', t))
            ns = o['NSPL']
            late = [t for lo, hi in ((ns, 12), (max(ns, 12), 14)) for base in (0, 21) for t in range(base + lo, base + hi)]
            self.late = late; self.worder = list(range(ns)) + late + list(range(14, 21))
            for k in order + [('w', t) for t in self.worder]: self.enq(k)
            def leave():
                self.b_alive = False
                print(role, "B leaves at", self.clk, "free slots", len(self.free), "w2 issued", len(self.w2_issued), "moved", self.mv_next, "prefetches left", len(self.pfq))
                self.spf(99)
                if role == 'k':
                    self.xs = self.free[0]
                    b(f"s_cmp_ge_u32 {s(sCS)}, 7\ns_cbranch_scc1 L_red")
                    self.red = r = self.new(); r.tag = 'b'; r.pending = b.pending; r.set_state(b.state())
                    r("L_red:"); self.b = r; self.b_gather(); self.b = b
            self.on_all_published = leave
            self.a_layernorm()
            ln = a.text(); mark = len(a.L)
            if role == 'f':
                a(f"s_cmp_lg_u32 {s(sROLE)}, 0\ns_cbranch_scc1 L_Ak")
                self.a_ffn(); ln_f = ln
            else:
                assert ln == ln_f, "layernorm code differs between the roles"
                a("L_Ak:"); self.a_kvq(); a.L = a.L[mark:]
            self.phase2()
            if role == 'f': b("s_branch L_fin")
            streams['a' + role] = a.text(); streams['b' + role] = b.text()
            self.count = getattr(self, 'count', 0) + len(a.L) + len(b.L)
        f = self.new(); f.tag = 'f'
        f("s_branch L_fin")
        self.a_mid(f)
        if self.probe is not None: f("s_barrier\ns_barrier")
        f("L_fin:")
        if self.probe is not None:
            f.wait_all(vm=True); self.stamp(f, 15); f.wait_all(lg=True)
            f("s_sub_u32 s1, s100, s0\ns_lshl_b32 s1, s1, 2\ns_add_u32 s1, s1, 4000")
            f("L_spin:\ns_memrealtime s[100:101]"); f.wait_all(lg=True)
            f("s_sub_u32 s100, s100, s0\ns_cmp_lt_u32 s100, s1\ns_cbranch_scc1 L_spin")
        if self.stamps:
            f.wait_all(vm=True)
            self.stamp(f, 15); self.flush_stamp(f)
            f("s_memrealtime s[100:101]"); f.wait_all(lg=True); f("v_writelane_b32 v5, s100, 16")
            f(f"v_readlane_b32 {s(sT1)}, v5, 63\ns_nop 3\ns_lshl3_add_u32 {s(sT0)}, s2, {s(sT1)}\ns_lshl_b32 {s(sT0)}, {s(sT0)}, 8\ns_add_u32 {s(sT0)}, {s(sT0)}, {WS_ST}")
            f(f"v_lshlrev_b32 v6, 2, {v(vL)}")
            f.vm(f"buffer_store_dword v5, v6, {s(rWS,4)}, {s(sT0)} offen")
        f("L_end:\ns_endpgm")
        f("L_init:")
        self.srd(f, rWS, sWS, WS_SIZE)
        f(f"v_mov_b32 v40, 0\nv_mov_b32 v41, 0\nv_mov_b32 v42, 0\nv_mov_b32 v43, 0\nv_lshlrev_b32 v44, 7, {v(vL)}")
        NI = o['NI']; per = (32768 + 512 * o['FKS']) // (4 * NI)
        f(f"s_sub_u32 {s(sT1)}, s2, {256 - NI}\ns_lshl2_add_u32 {s(sT1)}, {s(sT1)}, {s(sWV)}\ns_mul_i32 {s(sT0)}, {s(sT1)}, {per}\ns_add_u32 {s(sT0)}, {s(sT0)}, {WS_FL}")
        for k in range(per // 1024):
            if k and k % 4 == 0: f(f"s_addk_i32 {s(sT0)}, 4096")
            f(f"buffer_store_dwordx4 v[40:43], {v(vL16)}, {s(rWS,4)}, {s(sT0)} offen offset:{1024*(k%4)} sc1")
        f("s_branch L_noinit\nL_go:")
        f(f"s_sub_u32 {s(sT1)}, s2, {256 - NI}\ns_lshl2_add_u32 {s(sT1)}, {s(sT1)}, {s(sWV)}\ns_lshl_b32 {s(sT1)}, {s(sT1)}, 2\nv_mov_b32 v45, 1\nv_mov_b32 v46, {s(sT1)}")
        f.wait_all(vm=True)
        f(f"global_store_dword v46, v45, s[8:9] sc1\ns_branch L_gone")
        self.body = p.text() + streams['af'] + streams['ak'] + bp.text() + streams['bf'] + streams['bk'] + f.text() + self.red.text() + self.slow.text() + 'L_last:\n    s_endpgm\n'

    def text(self):
        hdr = open(f"cdna_kernels/{NAME}.s.ref").read().split("\n")
        top = [l for l in hdr if l.startswith(";") and "@launch" not in l and "Override" not in l and "grid=ceil" not in l]
        out = "\n".join(top) + "\n; @launch grid=(256,1,1) block=(512,1,1) lds=163840\n"
        out += f'.amdgcn_target "amdgcn-amd-amdhsa--gfx950"\n.text\n.globl {NAME}_kernel\n.p2align 8\n.type {NAME}_kernel,@function\n'
        out += self.body
        out += f'''.section .rodata,"a"
.p2align 6
.amdhsa_kernel {NAME}_kernel
  .amdhsa_next_free_vgpr 256
  .amdhsa_next_free_sgpr 102
  .amdhsa_accum_offset 256
  .amdhsa_group_segment_fixed_size 0
  .amdhsa_kernarg_size 88
  .amdhsa_user_sgpr_count 2
  .amdhsa_user_sgpr_kernarg_segment_ptr 1
  .amdhsa_system_sgpr_workgroup_id_x 1
  .amdhsa_float_denorm_mode_32 3
.end_amdhsa_kernel
'''
        return out

if __name__ == "__main__":
    out = sys.argv[1]; stamps = False; probe = None; opt = {}
    for x in sys.argv[2:]:
        if x == "stamps": stamps = True
        elif x.startswith("probe="): probe = (x[6], int(x[7:]))
        else: k, val = x.split("="); opt[k] = val if k.startswith("DM") else (float(val) if "." in val else int(val))
    g = Gen(stamps, probe, opt); g.build(); open(out, "w").write(g.text())
    print("lines", g.count)
```

```python
import re

def regs_of(tok):
    tok = tok.strip()
    neg = tok.lstrip('-').strip('|')
    m = re.fullmatch(r'([vas])(\d+)', neg)
    if m: return [(m.group(1), int(m.group(2)))]
    m = re.fullmatch(r'([vas])\[(\d+):(\d+)\]', neg)
    if m: return [(m.group(1), i) for i in range(int(m.group(2)), int(m.group(3)) + 1)]
    if neg in ('vcc', 'vcc_lo', 'vcc_hi'): return [('s', 'vcc')]
    if neg == 'exec': return [('s', 'exec')]
    if neg == 'm0': return [('s', 'm0')]
    return []

TRANS = ('v_exp_f32', 'v_log_f32', 'v_rcp_f32', 'v_rsq_f32', 'v_sqrt_f32')

class Ins:
    def __init__(self, text):
        self.text = text
        t = text.split(';')[0].strip()
        self.label = t.endswith(':')
        self.op = t.split()[0] if t else ''
        rest = t[len(self.op):].strip()
        ops = [o.strip() for o in rest.split(',')] if rest else []
        if ops:
            last = ops[-1].split()
            ops[-1] = last[0] if last else ''
            self.mods = last[1:]
        else: self.mods = []
        self.ops = ops
        op = self.op
        self.kind = 'other'; self.w = []; self.r = []; self.c = []; self.ab = []
        R = lambda i: regs_of(ops[i]) if i < len(ops) else []
        if self.label or op.startswith('.') or not op: self.kind = 'meta'
        elif op.startswith('v_mfma'):
            self.kind = 'mfma'; self.w = R(0); self.ab = R(1) + R(2); self.c = R(3); self.r = self.ab + self.c
            self.passes = 8 if '32x32' in op else (2 if '4x4' in op else 4)
        elif op.startswith('v_'):
            self.kind = 'valu'
            if op.startswith('v_cmp'):
                self.w = R(0); self.r = R(1) + R(2)
            elif op.startswith('v_permlane'):
                self.w = R(0) + R(1); self.r = R(0) + R(1)
            else:
                self.w = R(0); self.r = sum((R(i) for i in range(1, len(ops))), [])
                if op.startswith(('v_fmac', 'v_dot2c', 'v_writelane')) or '_dpp' in op: self.r += R(0)
                if op.startswith(('v_add_co', 'v_addc_co', 'v_sub_co')): self.w += R(1)
            self.trans = op.replace('_e64', '').replace('_e32', '') in TRANS
        elif op.startswith('ds_'):
            self.kind = 'ds'
            if op.startswith('ds_read'): self.w = R(0); self.r = R(1)
            else: self.r = sum((R(i) for i in range(len(ops))), [])
        elif op.startswith(('buffer_', 'global_')):
            self.kind = 'vmem'
            self.lds = 'lds' in self.mods or '_lds_' in op
            allr = sum((R(i) for i in range(len(ops))), [])
            if 'load' in op and not self.lds:
                self.w = R(0); self.r = sum((R(i) for i in range(1, len(ops))), [])
            else: self.r = allr
            if self.lds: self.r = self.r + [('s', 'm0')]
            self.wide = []
            if 'store_dwordx4' in op or 'store_dwordx3' in op:
                self.wide = R(0) if op.startswith('buffer') else R(1)
        elif op.startswith('s_'):
            self.kind = 'salu'
            if op.startswith(('s_waitcnt', 's_nop', 's_barrier', 's_branch', 's_cbranch', 's_endpgm', 's_sleep', 's_setprio')): pass
            elif op.startswith('s_cmp'): self.r = R(0) + R(1)
            else:
                self.w = R(0); self.r = sum((R(i) for i in range(1, len(ops))), [])
                if op.startswith(('s_addk', 's_bitset')): self.r = self.r + R(0)
    def states(self):
        if self.kind == 'meta': return 0
        if self.op == 's_nop': return int(self.ops[0]) + 1
        return 1

def need(p, c):
    n = 0
    pw = set(p.w)
    if p.kind == 'valu':
        vw = {x for x in pw if x[0] in 'va'}; sw = {x for x in pw if x[0] == 's'}
        if c.kind == 'mfma' and vw & set(c.r): n = max(n, 2)
        if c.kind == 'valu':
            if p.trans and not c.trans and vw & set(c.r): n = max(n, 1)
            if p.trans and c.trans and vw & set(c.r): n = max(n, 1)
            if c.op.startswith(('v_readfirstlane', 'v_readlane')) and vw & set(c.r): n = max(n, 1)
            if (c.op.startswith('v_permlane') or '_dpp' in c.op) and vw & set(c.r): n = max(n, 2)
            if sw & set(c.r): n = max(n, 4 if c.op.startswith(('v_readlane', 'v_writelane')) else 2)
        if c.kind == 'vmem' and sw & set(c.r): n = max(n, 5)
        if c.kind == 'salu' and sw & set(c.r): n = max(n, 1)
    if p.kind == 'mfma':
        big = {8: 12, 4: 8, 2: 5}[p.passes]
        if c.kind == 'mfma':
            if pw & set(c.ab): n = max(n, big)
            if pw & set(c.c) and not (c.c == p.w and c.passes == p.passes): n = max(n, big - 2 if p.passes > 2 else 4)
            if p.passes == 2 and pw & set(c.c): n = max(n, 2)
            if pw & set(c.w) and not (c.c == p.w): n = max(n, big)
        elif c.kind in ('valu', 'ds', 'vmem'):
            if pw & (set(c.r) | set(c.w)): n = max(n, big)
        if c.kind == 'valu' and set(p.c) & set(c.w): n = max(n, {8: 7, 4: 3, 2: 1}[p.passes])
    if p.kind == 'salu' and ('s', 'm0') in pw and c.kind == 'vmem' and c.lds: n = max(n, 1)
    if p.kind == 'vmem' and p.wide and set(p.wide) & set(c.w): n = max(n, 2)
    return n

class Asm:
    def __init__(self):
        self.L = []
        self.vm_issued = 0; self.vm_done = 0
        self.lg_issued = 0; self.lg_done = 0
        self.nops = 0
    def raw(self, text):
        for line in text.split('\n'):
            line = line.strip()
            if line: self._one(line)
    def _one(self, line):
        c = Ins(line)
        if c.kind != 'meta':
            d = 0; pad = 0
            for p in reversed(self.L):
                if d >= 20: break
                if p.kind != 'meta':
                    pad = max(pad, need(p, c) - d)
                d += p.states()
            while pad > 0:
                k = min(pad, 16); self.L.append(Ins(f's_nop {k-1}')); pad -= k; self.nops += 1
        self.L.append(c)
        if c.kind == 'vmem': self.vm_issued += 1
        if c.kind == 'ds': self.lg_issued += 1
        return c
    def __call__(self, text): self.raw(text)
    def vm(self, line):
        self._one(line); return self.vm_issued
    def ds(self, line):
        if getattr(self, 'guard', True) and self.lg_issued - self.lg_done >= 15: self.wait(lg=self.lg_issued - 12)
        self._one(line); return self.lg_issued
    def wait(self, vm=None, lg=None):
        parts = []
        if vm is not None and vm > self.vm_done:
            n = min(63, self.vm_issued - vm)
            parts.append(f'vmcnt({n})'); self.vm_done = self.vm_issued - n
        if lg is not None and lg > self.lg_done:
            n = self.lg_issued - lg
            if n > 15: n = 15
            parts.append(f'lgkmcnt({n})'); self.lg_done = self.lg_issued - n
        if parts: self._one('s_waitcnt ' + ' '.join(parts)); return True
        return False
    def wait_all(self, vm=False, lg=False):
        parts = []
        if vm: parts.append('vmcnt(0)'); self.vm_done = self.vm_issued
        if lg: parts.append('lgkmcnt(0)'); self.lg_done = self.lg_issued
        self._one('s_waitcnt ' + ' '.join(parts))
    def state(self): return (self.vm_issued, self.vm_done, self.lg_issued, self.lg_done)
    def set_state(self, st): self.vm_issued, self.vm_done, self.lg_issued, self.lg_done = st
    def text(self):
        out = []
        for i in self.L:
            out.append(i.text if i.kind == 'meta' else '    ' + i.text)
        return '\n'.join(out) + '\n'
```

```python
import sys
from collections import deque
from asmlib import Asm

NAME = "parallel_sum__linear_attn_block__dense_activation_squared_relu__prompt"
WS_H = 0; WS_PQ = 0x900000; WS_KV = 0xB00000; WS_FL = 0xB80000; WS_PL = 0xB84000; WS_FK = 0xB88000
WS_ST = 0xC00000; WS_PX = 0xD00000; WS_SIZE = 0xF00000
XO = 40960 - 17408
HS = 140 * 1024
REG = 40960
INIT_WG = 248
SPIN = 40000

def v(a, n=1): return f"v{a}" if n == 1 else f"v[{a}:{a+n-1}]"
def s(a, n=1): return f"s{a}" if n == 1 else f"s[{a}:{a+n-1}]"

sX, sWQ, sWO, sW1, sB1, sW2, sB2, sOUT, sDBG, sWS = 4, 6, 8, 12, 14, 16, 18, 20, 22, 24
sWV, sRB, sSO = 3, 26, 27
rX, rWS = 28, 36
sXB = 61
sI, sJ, sROLE, sCS, sRB2, sT0, sT1, sT2, sHST = 65, 66, 67, 68, 69, 70, 71, 72, 73
sROT, sCNT = 75, 77
sMSK = 10
sP = 84
rB1 = 32
aM = [40, 42, 44, 46, 10]
aONE, aL2E, aEPS, aKVO, aHST, aPQS, aBIA, aBI2, aHS2 = 48, 50, 51, 52, 53, 54, 55, 56, 57
aONB = 62
aFL = 58; sHI = 82; sG1 = 84
rW, rW2, rWO, rOUT, rB2 = 32, 40, 44, 48, 52
sCOL, sSGL, sWOB, sW2B, sSO2, sFL = 62, 74, 76, 12, 13, 14
sK1 = 91; sRS = 56
sHC = [None, 84 + 8, 85 + 8, 86 + 8, 87 + 8, 88 + 8, 89 + 8, 4, 5]
sTG, sCB, sXB2 = 60, 78, 79

vL = 0; vXD = 1; vRN = 2; vXR = 14; vSR = 14; vL16 = 18; vGO = 19; vWR = 20
RINGB, RING = 28, 6
AS, VA, BI, TMP = 52, 176, 208, 232
def Uof(st): return 52 + 8 * st if st < 8 else 116 + 8 * (st - 8)
def Fof(st): return 84 + 4 * st if st < 23 else 236 + 4 * (st - 23)
def Rof(st): return Uof(st) + 4 if st < 23 else Fof(st)
bSD, bOA, bWK, bWD, bW2D, bP2R, bRD, bHB, bHO, bWA = 1, 4, 8, 10, 12, 14, 17, 20, 22, 24
ACC = 32

DEF = dict(D=4, CX=70, CK=150, CF=100, L1F=7, ALLF=12, CQ=140, CW=90, CS=60, SLACK=600, TSLOT=38, TFRAG=68, XPRE=12, B0AT=16,
           PUBALL=99, PUBLAT=500, LAG=10, LAGV=8, KVLAG=16, B0=4, B1=6, B2=6, B3=6, FLAG=26,
           ST4=2, GOM=1, NSPL=12, DM='s0e', RUSH=8, NK=4, PXAT=14, DYN=1, CE=6, CE2=4, X3AT=0, SYAT=8, DPRE=24, D0=0, DSPREAD=3, PLEAD=8, NLAST=3, NS=6, OUTM=0, PRIO=0, NOW2=3, SL1=2, SL2=3,
           LIM=80, LIM0=999, LIMOFF=14, SPF=8, PFO=5, L1N=1, VPFF=0, SPF0=0, SPFC=180, ROTX=1, WROT=0, LEADF=10, LEADK=21, LSTEP=0, XSLACK=100, BPRIO=0, KPRI=1, FKS=64, NI=4, LM=0, KVD=6, KPRE=2, RESE=0, CL=120, LIMFROM=7, QN=6, SYNCF=1, SYNCK=0, RESAT=26)

class Gen:
    def __init__(self, stamps=False, probe=None, opt=None):
        self.probe = probe; self.o = dict(DEF); self.o.update(opt or {})
        self.sm = self.fm = ' sc1'; self.lm = '' if self.o['LM'] else ' sc1'
        self.stamps = stamps; self.nlab = 0; self.parts = []
    def new(self):
        x = Asm(); x.guard = False; x.pending = None; x.m0 = None; x.so2 = None; return x
    def lab(self, p):
        self.nlab += 1; return f"L_{p}_{self.nlab}"
    def stamp(self, x, k):
        if self.probe == (x.tag, k): x("s_memrealtime s[100:101]")
        if not self.stamps or self.o.get('LIGHT'): return
        if x.pending is not None: x(f"v_writelane_b32 v5, s100, {x.pending}\nv_writelane_b32 v5, s0, {32+x.pending}")
        x(f"s_memtime s[100:101]\ns_memrealtime s[0:1]")
        x.pending = k
    def flush_stamp(self, x):
        if self.stamps and x.pending is not None:
            x.wait_all(lg=True); x(f"v_writelane_b32 v5, s100, {x.pending}\nv_writelane_b32 v5, s0, {32+x.pending}"); x.pending = None
    def srd(self, x, r, p, size):
        x(f"s_mov_b32 {s(r)}, {s(p)}\ns_mov_b32 {s(r+1)}, {s(p+1)}\ns_mov_b32 {s(r+2)}, {size}\ns_mov_b32 {s(r+3)}, 0x20000")
    def lines(self, x, q, text): q.extend([(lambda l=l: x(l)) for l in text.split("\n")])
    def ids(self, x):
        x(f"s_bfe_u32 {s(sT0)}, s2, 0x10002\ns_lshl1_add_u32 {s(sRB2)}, {s(sI)}, {s(sT0)}")
        x(f"s_and_b32 {s(sJ)}, {s(sCS)}, 3\ns_lshl2_add_u32 {s(sJ)}, {s(sT0)}, {s(sJ)}\ns_lshr_b32 {s(sROLE)}, {s(sCS)}, 2")
    def rot_step(self, x):
        x(f"s_add_u32 {s(sROT)}, {s(sROT)}, 1\ns_cmp_eq_u32 {s(sROT)}, 7\ns_cselect_b32 {s(sROT)}, 0, {s(sROT)}")
    def poll_issue(self, x, n, base, off=0):
        x(f"s_load_dword{'x%d' % n if n > 1 else ''} {s(sP, n)}, {s(base, 2)}, {off} glc")
    def poll_check(self, x, n, base, off, bit, cnt=None):
        L = self.lab("poll"); E = self.lab("pend"); y = self.slow
        def cond(x):
            regs = list(range(sP, sP + (cnt or n), 2))
            while len(regs) > 1:
                r = regs.pop(); x(f"s_and_b64 {s(regs[0],2)}, {s(regs[0],2)}, {s(r,2)}")
            if n > 1: x(f"s_and_b32 {s(sP)}, {s(sP)}, {s(sP+1)}")
            x(f"s_and_b32 {s(sP)}, {s(sP)}, {bit}")
        x.wait_all(lg=True)
        cond(x)
        x(f"s_cbranch_scc0 {L}\n{E}:")
        y(f"{L}:\ns_mov_b32 {s(sCNT)}, 0\n{L}_l:")
        if self.o['SL1']: y(f"s_sleep {self.o['SL1']}")
        self.poll_issue(y, n, base, off)
        y.wait_all(lg=True)
        cond(y)
        y(f"s_cbranch_scc1 {E}")
        y(f"s_add_u32 {s(sCNT)}, {s(sCNT)}, 1\ns_cmp_lt_u32 {s(sCNT)}, {SPIN}\ns_cbranch_scc1 {L}_l\ns_branch {E}")
    def go_load(self):
        a = self.a
        a(f"v_and_b32 {v(vGO)}, {4 * self.o['NI'] - 1}, {v(vL)}\nv_lshlrev_b32 {v(vGO)}, 2, {v(vGO)}")
        self.tgo = a.vm(f"global_load_dword {v(vGO)}, {v(vGO)}, {s(sDBG,2)}{' sc1' if self.o['GOM'] else ''}")
        return 3
    def go_check(self):
        a = self.a; E = self.lab("go"); L = self.lab("gol")
        assert self.b_alive
        a.wait(vm=self.tgo)
        a(f"v_cmp_eq_u32 vcc, 0, {v(vGO)}\ns_cbranch_vccnz {L}\n{E}:")
        y = self.slow
        y(f"{L}:\ns_mov_b32 {s(sP)}, 0\n{L}_l:\ns_sleep 8")
        y(f"v_and_b32 {v(vGO)}, {4 * self.o['NI'] - 1}, {v(vL)}\nv_lshlrev_b32 {v(vGO)}, 2, {v(vGO)}")
        y.vm(f"global_load_dword {v(vGO)}, {v(vGO)}, {s(sDBG,2)} sc1"); y.wait_all(vm=True)
        y(f"v_cmp_eq_u32 vcc, 0, {v(vGO)}\ns_cbranch_vccz {E}")
        y(f"s_add_u32 {s(sP)}, {s(sP)}, 1\ns_cmp_lt_u32 {s(sP)}, {SPIN}\ns_cbranch_scc1 {L}_l\ns_branch {E}")
        return 3

    def set_m0(self, x, off):
        if x.m0 is not None and -32768 <= off - x.m0 <= 32767: x(f"s_addk_i32 m0, {off - x.m0}")
        else: x(f"s_add_u32 m0, {s(sRB)}, {off}")
        x.m0 = off
    def set_so2(self, base, off):
        b = self.b
        if b.so2 and b.so2[0] == base and -32768 <= off - b.so2[1] <= 32767: b(f"s_addk_i32 {s(sSO2)}, {off - b.so2[1]}")
        else: b(f"s_add_u32 {s(sSO2)}, {s(base)}, {off}")
        b.so2 = (base, off)
    def q_reset(self):
        self.dq = deque(); self.tick = {}; self.slot = {}; self.free = list(range(14, 20)); self.est = {}
        self.w2_issued = []; self.mv_next = 0; self.mv_sub = 0; self.mv_t = {}; self.mv_freed = set()
        self.wfree = [96 + 8 * k for k in range(6, 20)]; self.wreg = {}; self.wkeep = False
        self.pub = -1; self.lastread = {}; self.allread = set(); self.reserve = []; self.hold = {14, 15, 16, 17} if self.role == 'k' else set()
        self.forced = 0; self.publag = []; self.b_alive = True; self.hook = None; self.w2pre = 0; self.vpf = False; self.kvst = None; self.blines = {}; self.lim = self.o['LIM']; self.b_gone = False; self.kx_done = False
    def enq(self, key):
        b = self.b; kind = key[0]
        def dma(pre, vaddr, srd, so, off, last=None):
            def f():
                if pre: pre()
                self.throttle(16 if self.heavy(key) else 8, self.o['LIM0'] if (key[:2] == ('p', 0) or self.pub < self.o['LIMFROM']) else self.lim)
                self.tick[key] = b.vm(f"buffer_load_dwordx4 {v(vaddr)}, {s(srd,4)}, {s(so)} offen offset:{off} lds")
                if last: last()
            return f
        if kind == 'p':
            _, p, e = key
            kt, va, srd = sK1 + e, (bWK if p < 2 else bWD), rW
            def pre(): self.set_m0(b, self.slot[key] * 2048); b(f"s_add_u32 {s(sSO)}, {s(sCOL+p)}, {s(kt)}")
            ops = [dma(pre, va, srd, sSO, 0), dma(None, va + 1, srd, sSO, 1024)]
        elif kind == 's':
            def pre(e):
                def f(): self.set_m0(b, self.slot[key] * 2048 + (e & 1) * 1024); b(f"s_add_u32 {s(sSO)}, {s(sSGL)}, {s(sK1+e)}")
                return f
            ops = [dma(pre(e), bSD, rW, sSO, 0) for e in (2 * key[1], 2 * key[1] + 1) if e < 7]
        elif kind == 'w':
            t = key[1]
            def pre():
                self.set_m0(b, self.slot[key] * 2048)
                if t < 12: self.set_so2(sW2B, (32 * (t // 4) + t % 4) * 14336)
                elif t < 14: self.set_so2(7, (t - 12) * 14336)
                elif t < 21: self.set_so2(sWOB, (t - 14) * 14336)
                elif t < 33: self.set_so2(4, (32 * ((t - 21) // 4) + (t - 21) % 4) * 14336)
                else: self.set_so2(5, (t - 33) * 14336)
            srd = rWO if 14 <= t < 21 else rW2
            ops = [dma(pre, bW2D, srd, sSO2, 0), dma(None, bW2D + 1, srd, sSO2, 1024, lambda: self.w2_issued.append(t))]
        self.dq.append(dict(key=key, ops=deque(ops)))
    def cost(self, key):
        o = self.o
        if key[0] == 'w' and key[1] in self.lead: return o['CL']
        return {'s': o['CQ'], 'w': o['CW']}.get(key[0]) or (o['CK'] if self.heavy(key) else o['CF'])
    def heavy(self, key): return key[0] == 's' or (key[0] == 'p' and self.role == 'k' and key[1] < 2)
    def throttle(self, lines, lim):
        b = self.b
        tot = lines; t = b.vm_issued
        while t > b.vm_done and tot + self.blines.get(t, 8) <= lim: tot += self.blines.get(t, 8); t -= 1
        b.wait(vm=t)
        self.blines[b.vm_issued + 1] = lines
    def dma_ready(self):
        return bool(self.dq) and (self.dq[0].get('started') or len(self.cand()) > 0)
    def cand(self):
        k = self.dq[0]['key']
        return [f for f in self.free if not (k[0] == 'w' and self.worder.index(k[1]) >= self.o.get('HIOK', 8) and f > 10)]
    def dma_one(self):
        it = self.dq[0]
        if not it.get('started'): it['started'] = True; f = self.cand()[0]; self.free.remove(f); self.slot[it['key']] = f
        self.vclk += self.cost(it['key']); self.est[it['key']] = self.vclk
        it['ops'].popleft()()
        if self.pub >= self.o['SPF0']: self.pfacc += self.cost(it['key']) / self.o['SPFC']
        while self.pfacc >= 1: self.spf(1); self.pfacc -= 1
        if not it['ops']: self.dq.popleft()
        self.kv_flag(self.b)
        left = sum(1 for it in self.dq if it['key'][0] != 'w')
        vp = self.o.get('VPF' + self.role.upper())
        if vp is not None and not self.vpf and left <= vp and not self.dq[0].get('started'):
            b = self.b; self.vpf = True; both = self.o.get('VPFK') is not None
            n2, no = (14, 4) if both else (25, 7)
            b(f"s_lshl2_add_u32 {s(sT2)}, s2, {s(sWV)}\ns_mul_i32 {s(sT0)}, {s(sT2)}, {n2}\ns_mul_i32 {s(sT1)}, {s(sT2)}, {no}")
            b(f"v_min_u32 v66, {n2-1}, {v(vL)}\nv_add_lshl_u32 v66, v66, {s(sT0)}, 7\nv_min_u32 v67, {no-1}, {v(vL)}\nv_add_lshl_u32 v67, v67, {s(sT1)}, 7")
            self.blines[b.vm(f"buffer_load_dword v66, v66, {s(rW2,4)}, 0 offen")] = n2
            b.vm(f"buffer_load_dword v67, v67, {s(rWO,4)}, 0 offen")
    def issued(self, key): return key in self.tick and not any(it['key'] == key for it in self.dq)
    def mv_ready(self, lag):
        if self.mv_sub: return True
        if self.mv_next >= len(self.w2_issued) or not self.wfree: return False
        t = self.w2_issued[self.mv_next]
        return self.b.vm_issued - self.tick['w', t] >= lag or self.tick['w', t] <= self.b.vm_done
    def mv_one(self):
        b = self.b; t = self.w2_issued[self.mv_next]; c = 1
        if self.mv_sub == 0:
            self.wfree.sort(); self.wreg[t] = self.wfree.pop(0)
            c += bool(b.wait(vm=self.tick['w', t]))
        T, rd = self.mv_sub >> 1, self.mv_sub & 1
        self.mv_t[t] = b.ds(f"ds_read_b64_tr_b16 {v(self.wreg[t]+4*T+2*rd, 2)}, {v(bP2R+T)} offset:{self.slot['w', t]*2048 + rd*1024}")
        self.mv_sub += 1
        if self.mv_sub == 4: self.mv_sub = 0; self.mv_next += 1
        return c
    def mv_release(self):
        for k in range(self.mv_next):
            t = self.w2_issued[k]
            if t not in self.mv_freed and self.mv_t[t] <= self.b.lg_done:
                self.mv_freed.add(t); self.free.append(self.slot['w', t])
    def b_advance(self):
        b = self.b; o = self.o
        self.vclk = max(self.vclk, self.tprev)
        while self.dq and self.vclk <= self.clk + o['SLACK'] and not (o.get('NOW2', 0) & (1 if self.role == 'f' else 2) and self.dq[0]['key'][0] == 'w' and self.dq[0]['key'][1] not in self.lead):
            self.mv_release()
            if not self.dma_ready():
                if len(self.mv_freed) < self.mv_next:
                    b.wait(lg=self.mv_t[self.w2_issued[len(self.mv_freed)]]); continue
                if self.mv_ready(o.get('LAGMIN', 4)):
                    for k in range(4): self.mv_one()
                    continue
                break
            self.dma_one()
            if self.mv_ready(o['LAG']):
                for k in range(4): self.mv_one()
    def barrier(self, vm=None):
        if self.b_alive:
            self.kv_flag(self.b, force=True)
            self.b.wait(vm=vm); self.b("s_barrier")
        self.a("s_barrier"); self.tprev = self.clk
        for k, t in list(self.lastread.items()):
            if k in self.allread and t <= self.a.lg_done:
                del self.lastread[k]
                (self.reserve if self.slot[k] in self.hold and k[0] == 'p' else self.free).append(self.slot[k])
    def sync(self, slack=None):
        keep = self.o['SLACK']
        if slack is not None: self.o['SLACK'] = slack
        self.publish(None); self.o['SLACK'] = keep
    def publish(self, c):
        if not self.b_alive:
            assert c is None and self.b_gone
            self.barrier(); return
        self.b_advance()
        if (c if c is not None else 99) >= self.o.get('ALL' + self.role.upper(), 99):
            while self.dma_ready() and self.dq[0]['key'][0] != 'w': self.dma_one()
            self.vclk = min(self.vclk, self.clk)
            for k in self.est: self.est[k] = min(self.est[k], self.clk - (0 if c is not None else self.o['PUBLAT']))
        if self.dq and self.dq[0]['key'][0] == 'w' and c is None:
            keep, self.lim = self.lim, 999
            while self.w2pre < self.o.get('W2PRE' + self.role.upper(), 0) and self.dma_ready() and len(self.free) + bool(self.dq[0].get('started')) > (self.role == 'k'):
                self.dma_one(); self.w2pre += 1
            self.lim = keep
        if c is not None:
            while not self.issued(self.cons[c]):
                assert self.dma_ready(), ("cannot publish", c)
                self.dma_one(); self.forced += 1
        if not self.hook and self.pub >= self.o['SPF0']: self.spf(self.o.get('SPFB' + self.role.upper(), 0))
        tgt = self.pub if c is None else c
        force_all = c is not None and c >= self.o['PUBALL']
        while (c != 0 and tgt + 1 < len(self.cons) and self.issued(self.cons[tgt + 1])
               and (force_all or self.est[self.cons[tgt + 1]] + self.o['PUBLAT'] <= self.clk)): tgt += 1
        tk = max(self.tick[k] for k in self.cons[:tgt + 1])
        self.publag.append((tgt, self.b.vm_issued - tk))
        self.barrier(vm=tk)
        if self.hook: h, self.hook = self.hook, None; h()
        self.pub = tgt
        if c is None: self.syncs_left -= 1
        if tgt + 1 == len(self.cons) and self.syncs_left == 0: self.on_all_published()

    def frag_list(self, role):
        fr = []
        for stage, p in enumerate((0, 1, 2, None) if role == 'f' else (0, 1, 2)):
            for st in range(28):
                if p is None:
                    e = st // 4
                    fr.append(dict(key=('s', e // 2), addr=vSR + (st & 3), sub=(e & 1) * 1024, rd=256, stage=stage, s=st, T=0))
                else:
                    for T in range(2):
                        base = vSR if (role, p, T) == ('k', 2, 1) else vWR + 4 * T
                        fr.append(dict(key=('p', p, st // 4), addr=base + (st & 3), sub=0, rd=512, stage=stage, s=st, T=T))
        if role == 'k' and self.o.get('QSEQ', 1):
            q = [f for f in fr if f['stage'] == 2]
            fr = [f for f in fr if f['stage'] < 2] + [f for f in q if f['T'] == 0] + [f for f in q if f['T'] == 1]
        self.cons = []
        for f in fr:
            if f['key'] not in self.cons: self.cons.append(f['key'])
        for f in fr: f['c'] = self.cons.index(f['key'])
        self.fr = fr
    def read_frag(self, n):
        a = self.a
        if n >= len(self.fr): return
        f = self.fr[n]
        if f['c'] > self.pub: self.publish(f['c'])
        r = RINGB + 4 * (n % RING); off = self.slot[f['key']] * 2048 + f['sub']
        a.ds(f"ds_read_b64_tr_b16 {v(r,2)}, {v(f['addr'])} offset:{off}")
        f['t'] = a.ds(f"ds_read_b64_tr_b16 {v(r+2,2)}, {v(f['addr'])} offset:{off+f['rd']}")
        self.lastread[f['key']] = f['t']
        if not any(g['key'] == f['key'] for g in self.fr[n + 1:]): self.allread.add(f['key'])
    def pop(self, fillers):
        n0 = self.a.vm_issued
        r = fillers.popleft()() or 1
        if self.a.vm_issued > n0: self.vclk += self.o['CS']
        return r
    def fill(self, fillers, budget):
        self.clk += self.o['TSLOT'] + 4 * max(0, min(budget, len(fillers)) - 4)
        while fillers and budget > 0: budget -= self.pop(fillers)
    def run_stage(self, stage, acc, swap, fillers, budget=4, pre=None, forced=None, minfill=0, finish=0, syncs=()):
        a = self.a; D = self.o['D']
        idx = [n for n, f in enumerate(self.fr) if f['stage'] == stage]
        for line in (pre or []):
            a(line); self.fill(fillers, budget + 2)
        for k, n in enumerate(idx):
            f = self.fr[n]
            a.wait(lg=f['t'])
            w = v(RINGB + 4 * (n % RING), 4); x = v(Fof(f['s']), 4)
            c = acc(f['T']) if (pre or f['s'] > 0) else "0"
            a(f"v_mfma_f32_32x32x16_bf16 {acc(f['T'])}, {x if swap else w}, {w if swap else x}, {c}")
            if k in syncs: self.sync()
            self.read_frag(n + D)
            last = (n % 2 == 1)
            fl = forced(f['s'], f['T']) if forced else []
            self.fill(fillers, budget - len(fl) - (1 if last else 0))
            for g in fl: g()
            left = max(0, len(idx) - k - 1 - finish)
            while fillers and minfill and len(fillers) > left * minfill: self.pop(fillers); self.clk += 2
            fs = self.o.get('FSTEP', 5)
            if self.o.get('FINE') == stage and k % fs == 0 and 19 + k // fs < 32: self.stamp(a, 19 + k // fs)
            if last and n + 2 < len(self.fr): a.wait(lg=self.fr[n + 2]['t'])
    def cvt_forced(self, st, T):
        a = self.a; n = st + 2
        if not 8 <= n < 23: return []
        return [lambda d=d: a(f"v_cvt_pk_bf16_f32 {v(Fof(n)+d)}, {v(Uof(n)+2*d)}, {v(Uof(n)+2*d+1)}") for d in ((0, 1) if T == 0 else (2, 3))]
    def g3_ops(self):
        ops = []
        for st in range(23, 28):
            for d in range(4):
                r = Fof(st) + d; t0, t1 = (1, 4) if d & 1 else (7, vGO)
                self.lines(self.a, ops, f"v_lshlrev_b32 v{t0}, 16, {v(r)}\nv_and_b32 v{t1}, {s(sMSK)}, {v(r)}\nv_fma_f32 v{t0}, v{t0}, v2, v3\nv_fma_f32 v{t1}, v{t1}, v2, v3\nv_cvt_pk_bf16_f32 {v(r)}, v{t0}, v{t1}")
        return ops
    def phi_ops(self, src, dst=None):
        a = self.a; ops = []
        for d in range(8):
            t0 = TMP + 2 * (d & 1)
            for k in range(2):
                x = src + 2 * d + k
                self.lines(a, ops, f"v_mul_f32 {v(t0+k)}, {s(aL2E)}, {v(x)}")
                def ex(e=t0+k):
                    a(f"v_exp_f32_e64 {v(e)}, {v(e)} clamp"); return 2
                ops.append(ex)
                self.lines(a, ops, f"v_max_f32 {v(x)}, {s(aEPS)}, {v(x)}\nv_add_f32 {v(t0+k)}, {v(t0+k)}, {v(x)}")
            self.lines(a, ops, f"v_cvt_pk_bf16_f32 {v((dst or src)+d)}, {v(t0)}, {v(t0+1)}")
        return ops

    def entry(self):
        p = self.new(); p.tag = 'p'
        p(f"{NAME}_kernel:")
        p("s_cmp_ge_u32 s2, 256\ns_cbranch_scc1 L_end")
        if self.stamps: p("s_memrealtime s[78:79]\ns_memtime s[80:81]")
        if self.probe is not None: p("s_memrealtime s[100:101]")
        p("s_load_dwordx16 s[4:19], s[0:1], 0\ns_load_dwordx4 s[20:23], s[0:1], 64\ns_load_dwordx2 s[24:25], s[0:1], 80")
        p("s_getpc_b64 s[98:99]\nL_pc:")
        p(f"s_lshr_b32 {s(sT1)}, s2, 3\ns_lshl_b32 s3, {s(sT1)}, 7")
        p("v_lshrrev_b32 v1, 5, v0\nv_lshl_add_u32 v1, v1, 12, s3")
        p("v_min_u32 v1, L_last - L_pc, v1")
        p.vm(f"global_load_dword {v(vGO)}, v1, s[98:99]")
        p(f"v_lshrrev_b32 v1, 6, v0\nv_and_b32 {v(vL)}, 63, v0")
        p(f"v_readfirstlane_b32 s99, v1")
        p(f"s_and_b32 {s(sT2)}, {s(sT1)}, 3\ns_lshr_b32 {s(sCS)}, {s(sT1)}, 2")
        p(f"s_and_b32 {s(sI)}, s2, 3\ns_lshl2_add_u32 {s(sI)}, {s(sI)}, {s(sT2)}")
        p(f"s_lshl1_add_u32 {s(sROT)}, {s(sT2)}, {s(sCS)}")
        p(f"s_cmp_ge_u32 {s(sROT)}, 7\ns_cselect_b32 {s(sT0)}, 7, 0\ns_sub_u32 {s(sROT)}, {s(sROT)}, {s(sT0)}")
        if self.o['ROTX']:
            p(f"s_and_b32 {s(sT0)}, s2, 1\ns_add_u32 {s(sROT)}, {s(sROT)}, {s(sT0)}\ns_cmp_eq_u32 {s(sROT)}, 7\ns_cselect_b32 {s(sROT)}, 0, {s(sROT)}")
        p(f"s_and_b32 {s(sWV)}, s99, 3\ns_mul_i32 {s(sRB)}, {s(sWV)}, {REG}")
        p(f"v_lshrrev_b32 v6, 3, {v(vL)}\nv_and_b32 v7, 7, {v(vL)}\nv_lshlrev_b32 {v(vL16)}, 4, {v(vL)}")
        p("s_cmp_ge_u32 s99, 4\ns_cbranch_scc1 L_B")
        return p
    def after_args(self, x):
        x.wait_all(lg=True)
        if self.probe is not None: x("s_mov_b32 s0, s100")
        if self.stamps: x("v_writelane_b32 v5, s78, 18\nv_writelane_b32 v5, s80, 0\nv_writelane_b32 v5, s99, 63")
        self.stamp(x, 1)

    def b_prologue(self):
        b = self.new(); b.tag = 'b'; b.vm_issued = 1
        b("L_B:")
        self.ids(b)
        b(f"s_movk_i32 {s(sT0)}, 3584\ns_cselect_b32 {s(sRS)}, 2688, {s(sT0)}\ns_cselect_b32 {s(sCNT)}, 6, 7\ns_cbranch_scc1 L_Bck")
        b(f"s_lshl_b32 {s(sCOL)}, {s(sJ)}, 7\ns_add_u32 {s(sCOL+1)}, {s(sCOL)}, 1024\ns_add_u32 {s(sCOL+2)}, {s(sCOL)}, 2048\ns_branch L_Bcd\nL_Bck:")
        b(f"s_mul_i32 {s(sCOL)}, {s(sJ)}, 112\ns_add_u32 {s(sCOL+1)}, {s(sCOL)}, 1792\ns_addk_i32 {s(sCOL)}, 896\ns_lshl_b32 {s(sCOL+2)}, {s(sJ)}, 7\nL_Bcd:")
        b(f"s_mul_i32 {s(sT0)}, {s(sWV)}, {s(sRS)}\ns_lshl_b32 {s(sT0)}, {s(sT0)}, 4\ns_lshl_b32 {s(sSGL)}, {s(sJ)}, 6\ns_addk_i32 {s(sSGL)}, 3072")
        for r in (sCOL, sCOL + 1, sCOL + 2, sSGL): b(f"s_add_u32 {s(r)}, {s(r)}, {s(sT0)}")
        b(f"s_lshl_b32 {s(sT1)}, {s(sRS)}, 6")
        for n in range(7):
            if n: self.rot_step(b)
            b(f"s_mul_i32 {s(sK1+n)}, {s(sROT)}, {s(sT1)}")
        b(f"v_and_b32 v32, 2, v6\nv_lshlrev_b32 v32, 1, v32\nv_xor_b32 v32, v7, v32\nv_lshlrev_b32 v33, 4, v32")
        b(f"v_mul_u32_u24 v34, 896, v6\nv_add_u32 {v(bW2D)}, v34, v33\nv_add_u32 {v(bW2D+1)}, 6144, {v(bW2D)}")
        b(f"s_lshl_b32 {s(sT0)}, {s(sRS)}, 3\ns_addk_i32 {s(sT0)}, -1024")
        b(f"v_mul_u32_u24 v34, {s(sRS)}, v6\nv_add_u32 {v(bWD)}, v34, v33\nv_add_u32 {v(bWD+1)}, {s(sT0)}, {v(bWD)}")
        b(f"v_min_u32 v32, {s(sCNT)}, v32\nv_lshl_add_u32 {v(bWK)}, v32, 4, v34\nv_add_u32 {v(bWK+1)}, {s(sT0)}, {v(bWK)}")
        self.after_args(b)
        b(f"s_cmp_ge_u32 s2, {256 - self.o['NI']}\ns_cbranch_scc1 L_init\nL_noinit:")
        self.b = b
        self.b_main_setup()
        b(f"s_cmp_ge_u32 s2, {256 - self.o['NI']}\ns_cbranch_scc1 L_go\nL_gone:")
        if self.o['BPRIO']: b(f"s_setprio {self.o['BPRIO']}")
        b(f"s_cmp_lg_u32 {s(sROLE)}, 0\ns_cbranch_scc1 L_Bk")
        return b
    def spf(self, n):
        for k in range(n):
            if self.pfq: self.b(self.pfq.popleft())
    def b_main_setup(self):
        b = self.b; o = self.o
        self.pfq = deque()
        if o['SPF']:
            b(f"s_lshr_b32 {s(sT0)}, s2, 3\ns_and_b32 {s(sT1)}, s2, 3\ns_lshl2_add_u32 {s(sT0)}, {s(sT0)}, {s(sT1)}\ns_lshl2_add_u32 {s(sT0)}, {s(sT0)}, {s(sWV)}\ns_min_u32 {s(sT0)}, {s(sT0)}, 447")
            b(f"s_bfe_u32 {s(sT1)}, s2, 0x10002")
            b(f"s_mul_i32 {s(sT2)}, {s(sT0)}, 2688\ns_mul_i32 {s(sCNT)}, {s(sT1)}, 384\ns_add_u32 {s(sT2)}, {s(sT2)}, {s(sCNT)}\ns_add_u32 s82, {s(sWQ)}, {s(sT2)}\ns_addc_u32 s83, {s(sWQ+1)}, 0")
            L = lambda base, off, n: [f"s_load_dwordx2 s[80:81], {s(base,2)}, {off + 128*k + 60}" for k in range(n)]
            parts = dict(k=L(82, 896, 4), a=L(84, 0, 4), v=L(82, 1792, 4), b=L(84, 1024, 4), q=L(82, 0, 4), c=L(84, 2048, 4), s=L(86, 0, 2),
                         x=L(88, 0, 4), y=L(88, 458752, 4), z=L(88, 2 * 458752, 4), w=L(14, 0, 2), o=L(58, 0, 4))
            for ch in ["kabvcqsxyzwo", "kaxyzwo", "xyzwo", "kabvxyzwo", "kabxvcyqszwo", "ka", "kabv"][o.get('PFO', 0)]: self.pfq.extend(parts[ch])
            b(f"s_mul_i32 {s(sT2)}, {s(sT0)}, 3584\ns_lshl_b32 {s(sCNT)}, {s(sT1)}, 9\ns_add_u32 {s(sCNT)}, {s(sT2)}, {s(sCNT)}\ns_add_u32 s84, {s(sW1)}, {s(sCNT)}\ns_addc_u32 s85, {s(sW1+1)}, 0")
            b(f"s_lshl_b32 {s(sCNT)}, {s(sT1)}, 8\ns_add_u32 {s(sCNT)}, {s(sT2)}, {s(sCNT)}\ns_addk_i32 {s(sCNT)}, 3072\ns_add_u32 s86, {s(sW1)}, {s(sCNT)}\ns_addc_u32 s87, {s(sW1+1)}, 0")
            b(f"s_lshl1_add_u32 {s(sT0)}, {s(sT0)}, {s(sT1)}\ns_lshl_b32 {s(sT2)}, {s(sT0)}, 9\ns_add_u32 s88, {s(sW2)}, {s(sT2)}\ns_addc_u32 s89, {s(sW2+1)}, 0")
            b(f"s_lshl_b32 {s(sT2)}, {s(sT0)}, 8\ns_add_u32 {s(sT2)}, {s(sT2)}, {3*458752}\ns_add_u32 s14, {s(sW2)}, {s(sT2)}\ns_addc_u32 s15, {s(sW2+1)}, 0")
            b(f"s_mul_i32 {s(sT2)}, {s(sT0)}, 448\ns_and_b32 {s(sT2)}, {s(sT2)}, 0xffffff80\ns_add_u32 s58, {s(sWO)}, {s(sT2)}\ns_addc_u32 s59, {s(sWO+1)}, 0")
            self.spf(o.get('SPFE', 7))
        if o.get('TLB'):
            b(f"s_lshr_b32 {s(sT0)}, s2, 3\ns_and_b32 {s(sT0)}, {s(sT0)}, 1\ns_lshl2_add_u32 {s(sT0)}, {s(sT0)}, {s(sWV)}\ns_lshl_b32 {s(sT0)}, {s(sT0)}, 21\ns_add_u32 {s(sT0)}, {s(sT0)}, {0xFFF00}")
            b(f"s_load_dword s80, {s(sWS,2)}, {s(sT0)}\ns_load_dword s80, {s(sOUT,2)}, 0\ns_load_dword s80, {s(sW2,2)}, 0\ns_load_dword s80, {s(sWO,2)}, 0\ns_load_dword s80, {s(sB2,2)}, 0")
            if not o['SPF']: b(f"s_load_dword s80, {s(sB1,2)}, 0\ns_load_dword s80, {s(sW1,2)}, 0\ns_load_dword s80, {s(sWQ,2)}, 0")
        b(f"s_cmp_eq_u32 {s(sROLE)}, 0\ns_cselect_b32 {s(rW)}, {s(sW1)}, {s(sWQ)}\ns_cselect_b32 {s(rW+1)}, {s(sW1+1)}, {s(sWQ+1)}\ns_mul_i32 {s(rW+2)}, {s(sRS)}, 448\ns_mov_b32 {s(rW+3)}, 0x20000")
        b(f"s_cmp_lt_u32 {s(sCS)}, 7")
        b(f"s_mov_b32 {s(rW2)}, {s(sW2)}\ns_mov_b32 {s(rW2+1)}, {s(sW2+1)}\ns_cselect_b32 {s(rW2+2)}, {1792*896}, 0\ns_mov_b32 {s(rW2+3)}, 0x20000")
        b(f"s_mov_b32 {s(rWO)}, {s(sWO)}\ns_mov_b32 {s(rWO+1)}, {s(sWO+1)}\ns_cselect_b32 {s(rWO+2)}, {448*896}, 0\ns_mov_b32 {s(rWO+3)}, 0x20000")
        self.srd(b, rWS, sWS, WS_SIZE)
        b(f"s_mov_b64 s[8:9], {s(sDBG,2)}")
        self.srd(b, rX, sX, 1835008); self.srd(b, rOUT, sOUT, 1835008); self.srd(b, rB2, sB2, 896)
        b(f"s_lshl_b32 {s(sT0)}, {s(sCS)}, 7")
        b(f"s_and_b32 s11, s2, 4\ns_add_u32 s11, s11, {s(sWV)}")
        b(f"s_mul_i32 {s(sW2B)}, s11, {4*14336}\ns_add_u32 {s(sW2B)}, {s(sW2B)}, {s(sT0)}")
        b(f"s_mul_i32 s7, s11, {2*14336}\ns_add_u32 s7, s7, {s(sT0)}\ns_add_u32 s7, s7, {96*14336}")
        b(f"s_xor_b32 s6, s11, 4\ns_mul_i32 s4, s6, {4*14336}\ns_add_u32 s4, s4, {s(sT0)}\ns_mul_i32 s5, s6, {2*14336}\ns_add_u32 s5, s5, {s(sT0)}\ns_add_u32 s5, s5, {96*14336}")
        b(f"s_mul_i32 {s(sWOB)}, {s(sWV)}, {112*896}\ns_add_u32 {s(sWOB)}, {s(sWOB)}, {s(sT0)}")
        b(f"s_mov_b32 {s(sMSK)}, 0xffff0000\ns_mov_b32 s16, 32768\ns_mov_b32 s17, 65536\ns_lshl_b32 s18, s11, 11\ns_sub_u32 s18, {96*1024}, s18")
        b(f"s_mul_i32 s19, {s(sWV)}, 7168\ns_add_u32 s19, s19, {112*1024}\ns_lshl_b32 s20, s11, 12\ns_sub_u32 s19, s19, s20\ns_add_u32 s20, s19, 4096")
        b(f"s_lshl2_add_u32 s21, s2, {s(sWV)}\ns_lshl_b32 s21, s21, 11\ns_add_u32 s21, s21, {WS_PX}\ns_lshl2_add_u32 s22, {s(sCS)}, 32")
        b(f"s_lshr_b32 {s(sTG)}, {s(sWV)}, 1\ns_lshl1_add_u32 {s(sTG)}, {s(sRB2)}, {s(sTG)}")
        b(f"s_and_b32 {s(sT1)}, {s(sWV)}, 1\ns_lshl_b32 {s(sT1)}, {s(sT1)}, 6\ns_add_u32 {s(sCB)}, {s(sT0)}, {s(sT1)}")
        b(f"s_mul_i32 {s(sXB)}, {s(sTG)}, {32*896}\ns_add_u32 {s(sXB)}, {s(sXB)}, {s(sCB)}\ns_add_u32 {s(sXB2)}, {s(sXB)}, {16*896}")
        b(f"v_lshrrev_b32 v7, 2, {v(vL)}\nv_and_b32 v6, 3, {v(vL)}\nv_lshlrev_b32 v6, 4, v6")
        b(f"v_mul_u32_u24 {v(bOA)}, 896, v7\nv_add_u32 {v(bOA)}, {v(bOA)}, v6\nv_mul_u32_u24 {v(bSD)}, 3584, v7\nv_add_u32 {v(bSD)}, {v(bSD)}, v6")
        b(f"v_mul_u32_u24 {v(bRD)}, 68, v6\nv_lshl_add_u32 {v(bRD)}, v7, 4, {v(bRD)}\nv_add_u32 {v(bRD)}, {s(sRB)}, {v(bRD)}\nv_add_u32 {v(bRD)}, {XO}, {v(bRD)}")
        b(f"v_lshrrev_b32 v32, 5, {v(vL)}\nv_bfe_u32 v33, {v(vL)}, 2, 2\nv_lshrrev_b32 v34, 1, v6\nv_bfe_u32 v35, {v(vL)}, 4, 1\nv_lshl_add_u32 v34, v35, 5, v34")
        b(f"v_and_b32 v35, 2, v33\nv_lshlrev_b32 v35, 5, v35\nv_xor_b32 v34, v34, v35\nv_lshl_add_u32 v32, v32, 2, v33\nv_lshl_add_u32 v32, v32, 7, v34")
        b(f"v_xor_b32 v32, {s(sT1)}, v32\nv_add_u32 {v(bP2R)}, {s(sRB)}, v32\nv_xor_b32 {v(bP2R+1)}, 64, {v(bP2R)}")
        b(f"s_lshl_b32 {s(sCNT)}, s11, 12")
        for k, r in enumerate((2, 3, 20, 21)):
            b(f"s_xor_b32 {s(sT0)}, {s(sTG)}, {k}\ns_mul_i32 {s(sT0)}, {s(sT0)}, {HS}\ns_add_u32 {s(sT0)}, {s(sT0)}, {s(sCNT)}\nv_add_u32 v{r}, {s(sT0)}, {v(vL16)}")
        for q in range(4):
            b(f"s_xor_b32 {s(sT0)}, {s(sWV)}, {q}\ns_mul_i32 {s(sT0)}, {s(sT0)}, {REG}\ns_add_u32 {s(sT0)}, {s(sT0)}, {XO}\nv_add_u32 {v(bWA+q)}, {s(sT0)}, {v(vL16)}")
        self.spf(o['SPF'] - o.get('SPFE', 7))

    def a_layernorm(self):
        a = self.a; o = self.o
        if o['PRIO']: a(f"s_setprio {o['PRIO']}")
        a(f"s_lshl2_add_u32 {s(sHST)}, {s(sI)}, {s(sWV)}\ns_mul_i32 {s(sXB)}, {s(sHST)}, {32*896}\ns_lshl_b32 {s(sG1)}, {s(sROT)}, 7")
        a(f"v_lshrrev_b32 v8, 1, v6\nv_xor_b32 v8, v7, v8\nv_lshlrev_b32 v8, 4, v8\nv_xor_b32 v9, 64, v8")
        a(f"v_mul_u32_u24 v10, 896, v6")
        a(f"v_add_u32 {v(vXD)}, v10, v8\nv_add_u32 v9, v10, v9")
        a(f"v_add_u32 {v(vXD+1)}, 6144, v9\nv_add_u32 {v(vXD+2)}, {2*6144}, {v(vXD)}\nv_add_u32 {v(vXD+3)}, {3*6144}, v9")
        a("s_mov_b32 s30, 1835008\ns_mov_b32 s31, 0x20000")
        for n in range(1, 3): self.rot_step(a); a(f"s_lshl_b32 {s(sG1+n)}, {s(sROT)}, 7")
        xq = dict(n=0); xk = {}
        def xprep():
            n = xq['n']
            if n < 28 and n % 4 == 0: self.set_m0(a, (n // 4) * 4096); a(f"s_add_u32 {s(sSO)}, {s(sXB)}, {s(sG1+n//4)}")
        def xdma():
            n = xq['n']
            if n >= 28: return
            xk[n // 4] = a.vm(f"buffer_load_dwordx4 {v(vXD+n%4)}, {s(rX,4)}, {s(sSO)} offen offset:{(n%4)*1024} lds")
            xq['n'] += 1
            if xq['n'] != 12: xprep()
        xprep()
        self.after_args(a)
        a("s_mov_b32 s28, s4\ns_mov_b32 s29, s5")
        for k in range(12): xdma()
        for n in range(3, 7): self.rot_step(a); a(f"s_lshl_b32 {s(sG1+n)}, {s(sROT)}, 7")
        xprep()
        self.ids(a)
        self.srd(a, rWS, sWS, WS_SIZE); self.srd(a, rB1, sB1, 3584)
        T0 = 236
        a(f"v_and_b32 v8, 31, {v(vL)}\nv_lshrrev_b32 v10, 5, {v(vL)}")
        a(f"v_bfe_u32 v11, {v(vL)}, 1, 3\nv_xor_b32 v11, v10, v11\nv_lshlrev_b32 v11, 4, v11")
        a(f"v_lshl_add_u32 v11, v8, 7, v11\nv_add_u32 {v(vXR)}, {s(sRB)}, v11")
        for j in range(1, 4): a(f"v_xor_b32 {v(vXR+j)}, {32*j}, {v(vXR)}")
        a(f"s_mov_b32 vcc_lo, 0xf0f00f0f\ns_mov_b32 vcc_hi, vcc_lo\nv_mov_b32 v11, 0x3f803f80")
        for k in range(4): a(f"v_cndmask_b32 {v(48+k)}, 0, v11, vcc" if o['ST4'] < 2 else f"v_mov_b32 {v(48+k)}, v11")
        for r, val in zip(aM, (0xaaaaaaaa, 0xcccccccc, 0xff00ff00, 0xf0f0f0f0, 0xffff0000)): a(f"s_mov_b32 {s(r)}, {val:#x}\ns_mov_b32 {s(r+1)}, {s(r)}")
        a(f"s_mov_b32 {s(sHI)}, 0\ns_mov_b32 {s(sHI+1)}, -1\ns_mov_b32 {s(aL2E)}, 0x3fb8aa3b\ns_mov_b32 {s(aEPS)}, 0x358637bd")
        a(f"s_mov_b32 {s(aONE)}, 0xf0000000\ns_mov_b32 {s(aONE+1)}, {s(aONE)}\ns_mov_b32 {s(aONB)}, 15\ns_mov_b32 {s(aONB+1)}, 15")
        a(f"s_cmp_eq_u32 {s(sROLE)}, 0\ns_cselect_b32 {s(sT1)}, 64, 48\ns_cselect_b64 vcc, -1, 0")
        a(f"v_bfe_u32 v11, {v(vL)}, 2, 2")
        a(f"v_and_b32 v12, 3, {v(vL)}\nv_lshlrev_b32 v12, 3, v12\nv_bfe_u32 v13, {v(vL)}, 4, 1\nv_lshl_add_u32 v12, v13, 5, v12")
        a(f"v_and_b32 v13, 2, v11\nv_lshlrev_b32 v13, 5, v13\nv_lshl_add_u32 v9, v10, 3, v11")
        a(f"v_lshl_add_u32 v7, v9, 6, v12")
        a(f"v_lshlrev_b32 v9, 7, v9\nv_xor_b32 v8, v12, v13\nv_add_u32 {v(vWR)}, v9, v8")
        a(f"v_xor_b32 v8, 64, {v(vWR)}\nv_cndmask_b32 v7, v8, v7, vcc\nv_add_u32 v8, {s(sT1)}, v12\nv_xor_b32 v8, v8, v13\nv_add_u32 {v(vWR+4)}, v9, v8")
        for T in range(2):
            for r in range(1, 4): a(f"v_add_u32 {v(vWR+4*T+r)}, {REG*r}, {v(vWR+4*T)}")
        a(f"v_add_u32 v10, {s(sRB)}, {v(vL16)}\nv_mov_b32 v8, 1")
        a(f"s_lshl3_add_u32 {s(sT0)}, {s(sI)}, {s(sJ)}\ns_lshl_b32 {s(sT0)}, {s(sT0)}, 7\ns_lshl2_add_u32 {s(sT0)}, {s(sWV)}, {s(sT0)}")
        a(f"s_lshl_b32 {s(sT1)}, {s(sHST)}, 7\ns_lshl2_add_u32 {s(sT1)}, {s(sJ)}, {s(sT1)}\ns_add_u32 {s(sT1)}, {s(sT1)}, {WS_PL - WS_FL}")
        a(f"s_cmp_eq_u32 {s(sROLE)}, 0\ns_cselect_b32 {s(sT0)}, {s(sT0)}, {s(sT1)}\ns_add_u32 {s(sT0)}, {s(sT0)}, {WS_FL}\nv_mov_b32 v9, {s(sT0)}")
        misc = deque(); M = lambda t: self.lines(a, misc, t)
        M(f"s_lshl4_add_u32 {s(sT0)}, {s(sJ)}, {s(sI)}\ns_lshl_b32 {s(sT0)}, {s(sT0)}, 7\ns_lshl2_add_u32 {s(sT0)}, {s(sWV)}, {s(sT0)}")
        M(f"s_add_u32 {s(sT0)}, {s(sT0)}, {WS_FK}\nv_mov_b32 v13, {s(sT0)}")
        M(f"s_lshl2_add_u32 {s(sT0)}, {s(sJ)}, {s(sWV)}\ns_lshl4_add_u32 {s(sT0)}, {s(sT0)}, {s(sI)}\ns_lshl_b32 {s(sT0)}, {s(sT0)}, 10\ns_add_u32 {s(aKVO)}, {s(sT0)}, {WS_KV}")
        M(f"s_mul_i32 {s(aHST)}, {s(sHST)}, 35\ns_lshl1_add_u32 {s(aHS2)}, {s(aHST)}, {s(sJ)}\ns_add_u32 {s(aHST)}, {s(aHST)}, {s(sJ)}\ns_lshl_b32 {s(aHST)}, {s(aHST)}, 12")
        M(f"s_add_u32 {s(aHS2)}, {s(aHS2)}, 48\ns_lshl_b32 {s(aHS2)}, {s(aHS2)}, 11")
        M(f"s_mul_i32 {s(aPQS)}, {s(sHST)}, 7\ns_add_u32 {s(aPQS)}, {s(aPQS)}, {s(sJ)}\ns_lshl_b32 {s(aPQS)}, {s(aPQS)}, 12\ns_add_u32 {s(aPQS)}, {s(aPQS)}, {WS_PQ}")
        misc.append(lambda: a(f"s_cmp_eq_u32 {s(sJ)}, 7\ns_cselect_b32 {s(aPQS)}, {WS_SIZE}, {s(aPQS)}"))
        M(f"s_lshl_b32 {s(aBIA)}, {s(sJ)}, 7\ns_lshl_b32 {s(aBI2)}, {s(sJ)}, 6")
        xt = {}
        def xread(st):
            if st >= 28: return
            n = st // 4
            if st % 4 == 0:
                while xq['n'] < 4 * n + 4: xdma()
                a.wait(vm=xk[n])
                if n == 0: self.stamp(a, 2)
            xt[st] = a.ds(f"ds_read_b128 {v(Rof(st),4)}, {v(vXR+st%4)} offset:{n*4096}")
            if st % 4 == 3:
                for k in (2 * n, 2 * n + 1):
                    self.slot['x', k] = k; self.lastread['x', k] = xt[st]; self.allread.add(('x', k))
        for k in range(o['XPRE'] - 12): xdma()
        xread(0); xread(1)
        self.clk = 0; self.tprev = 0
        for st in range(28):
            r = Rof(st); b = Uof(st)
            a.wait(lg=xt[st])
            if o['ST4']:
                m4 = lambda acc, x, y: a(f"v_mfma_f32_4x4x4_16b_bf16 {v(acc,4)}, {v(x,2)}, {v(y,2)}, {v(acc,4) if st else 0}")
                up = lambda d: st < 23 and a(f"v_lshlrev_b32 {v(b+2*d)}, 16, {v(r+d)}\nv_and_b32 {v(b+2*d+1)}, {s(sMSK)}, {v(r+d)}")
                if o['ST4'] == 1: a(f"v_mfma_f32_16x16x32_bf16 v[44:47], v[48:51], {v(r,4)}, {'v[44:47]' if st else 0}")
                else: m4(36, 48, r)
                xread(st + 2)
                xdma()
                self.clk += o['TFRAG'] if st < 16 else 52
                m4(28, r, r); up(0)
                if o['ST4'] == 2: m4(44, 48, r + 2)
                up(1); m4(32, r + 2, r + 2); up(2); up(3)
            else:
                a(f"v_mfma_f32_32x32x16_bf16 v[28:43], {v(r,4)}, {v(r,4)}, {'v[28:43]' if st else 0}")
                xread(st + 2)
                xdma()
                self.clk += o['TFRAG'] if st < 16 else 52
                for d in range(4):
                    if d == 2: a(f"v_mfma_f32_16x16x32_bf16 v[44:47], v[48:51], {v(r,4)}, {'v[44:47]' if st else 0}")
                    if st < 23: a(f"v_lshlrev_b32 {v(b+2*d)}, 16, {v(r+d)}\nv_and_b32 {v(b+2*d+1)}, {s(sMSK)}, {v(r+d)}")
            if misc: misc.popleft()()
            if st == o['B0AT']:
                self.vclk = max(self.clk, 24 * o['CX']); self.stamp(self.b, 2); self.barrier(); self.stamp(self.b, 3)
                self.res_at = o['RESE']
        assert not misc
        self.stamp(a, 3)
        a(f"v_mov_b32 {v(vSR)}, v7")
        for r in range(1, 4): a(f"v_add_u32 {v(vSR+r)}, {REG*r}, v7")
        inv = 0x3b124925
        if o['ST4']:
            for k in (28, 30, 32, 34): a(f"v_cndmask_b32 v{k}, v{k}, v{k+1}, {s(aM[0],2)}")
            a(f"v_add_f32 v28, v28, v32\nv_add_f32 v30, v30, v34")
            if o['ST4'] == 2: a("v_add_f32 v45, v44, v36\nv_add_f32 v44, v44, v36")
            a(f"v_cndmask_b32 v29, v28, v30, {s(aM[1],2)}\nv_cndmask_b32 v28, v28, v30, {s(aM[1],2)}")
            if o['ST4'] == 2: a("v_permlane32_swap_b32 v45, v44\nv_add_f32 v44, v44, v45")
            a(f"v_mul_f32 v44, {inv:#x}, v44\nv_permlane32_swap_b32 v29, v28\nv_add_f32 v28, v28, v29")
        else:
            a(f"s_nop 2\nv_mul_f32 v44, {inv:#x}, v44")
            for lvl, step in enumerate((1, 2, 4)):
                for k in range(0, 16, 2 * step): a(f"v_cndmask_b32 {v(28+k)}, {v(28+k)}, {v(28+k+step)}, {s(aM[lvl],2)}")
            a(f"v_cndmask_b32 v29, v28, v36, {s(aM[4],2)}\nv_cndmask_b32 v28, v28, v36, {s(aM[4],2)}")
            a(f"v_permlane32_swap_b32 v29, v28")
            a(f"v_cndmask_b32 v28, v29, v28, {s(aM[3],2)}")
        a(f"v_mul_f32 v28, {inv:#x}, v28\nv_fma_f32 v28, -v44, v44, v28\nv_max_f32 v28, 0, v28\nv_add_f32 v28, 0x3727c5ac, v28")
        a(f"v_rsq_f32 v2, v28")
        a(f"v_mul_f32_e64 v3, -v44, v2")
        self.clk += 170
        for st in list(range(7, -1, -1)) + list(range(8, 23)):
            if st == 17:
                for k in range(o['D']): self.read_frag(k)
            for d in range(4):
                r = Uof(st) + 2 * d
                a(f"v_pk_fma_f32 {v(r,2)}, {v(r,2)}, v[2:3], v[2:3] op_sel:[0,0,1] op_sel_hi:[1,0,1]")
            self.clk += 21
            if st < 8:
                for d in (3, 2, 1, 0): a(f"v_cvt_pk_bf16_f32 {v(Fof(st)+d)}, {v(Uof(st)+2*d)}, {v(Uof(st)+2*d+1)}")
                self.clk += 21
        self.stamp(a, 4)

    def store(self, r, soff, off):
        def f(): self.last_store = self.a.vm(f"buffer_store_dwordx4 {v(r,4)}, {v(vL16)}, {s(rWS,4)}, {s(soff)} offen offset:{off} sc1")
        return f
    def flag(self, get, val, va="v9"):
        a = self.a
        def f():
            a.wait(vm=get())
            a.vm(f"buffer_store_dword v8, {va}, {s(rWS,4)}, 0 offen sc1")
            if val: a(f"v_mov_b32 v8, {val}")
            return 3
        return f
    def a_ffn(self):
        a = self.a; o = self.o
        fl = deque(self.g3_ops()); A = lambda t: self.lines(a, fl, t)
        SEL = BI + 14; tb = {}
        def forced(st, T):
            ops = self.cvt_forced(st, T)
            if (st, T) == (19, 1): self.lines(a, ops, f"v_and_b32 v12, 31, {v(vL)}\nv_lshlrev_b32 v12, 1, v12")
            k = 2 * st + T - 40
            if 0 <= k < 7:
                so, off = (aBIA, 64 * (k & 1) + 1024 * (k >> 1)) if k < 6 else (aBI2, 3072)
                ops.append(lambda: tb.update({k: a.vm(f"buffer_load_ushort {v(BI+2*k)}, v12, {s(rB1,4)}, {s(so)} offen offset:{off}")}))
            if (st, T) == (24, 0): self.lines(a, ops, "\n".join(f"v_mov_b32 {v(BI+k)}, 0" for k in (1, 3, 5, 7)))
            if (st, T) == (24, 1): self.lines(a, ops, "\n".join(f"v_mov_b32 {v(BI+k)}, 0" for k in (9, 11, 13)))
            if (st, T) == (25, 0): self.lines(a, ops, "\n".join(f"v_mov_b32 {v(SEL+k)}, 0" for k in (1, 2, 3)))
            if (st, T) == (25, 1): self.lines(a, ops, f"v_mov_b32 {v(SEL)}, 0x3f80\nv_cndmask_b32 {v(SEL)}, {v(SEL)}, 0, {s(sHI,2)}")
            return ops
        def bias(acc, tiles, cont=False): return [f"v_mfma_f32_32x32x16_bf16 {acc(T)}, {v(BI+2*k,4)}, {v(SEL,4)}, {acc(T) if cont else 0}" for T, k in enumerate(tiles)]
        def epi(h, so, off):
            ops = []
            for d in range(8):
                t0 = h + 2 * d
                self.lines(a, ops, f"v_mul_f32_e64 {v(t0)}, {v(t0)}, |{v(t0)}|\nv_mul_f32_e64 {v(t0+1)}, {v(t0+1)}, |{v(t0+1)}|")
                self.lines(a, ops, f"v_cvt_pk_bf16_f32 {v(h+d)}, {v(t0)}, {v(t0+1)}\nv_pk_max_i16 {v(h+d)}, {v(h+d)}, 0")
                if d % 4 == 3: ops.append(self.store(h + d - 3, so, off + (d // 4) * 1024))
            return ops
        accS = lambda T: v(AS + 16 * T, 16); accA = lambda T: v(VA + 16 * T, 16)
        big = lambda: 99; last = lambda: self.last_store
        sy = [(), (), (), ()]
        for k in range(o['SYNCF']): sy[2 + k // 2] += ((o.get('SYAT', 4), 32)[k % 2],)
        self.syncs_left = o['SYNCF']
        self.run_stage(0, accS, False, fl, budget=o['B0'], forced=forced, minfill=2.4, finish=12)
        assert not fl
        self.stamp(a, 5)
        fl.extend([self.go_load] + [big] * o.get('BIASLAG', 5))
        fl.append(lambda: a.wait(vm=tb[6]) and 1)
        for line in bias(accS, [0, 1], True) + bias(accA, [2, 3], True): fl.append(lambda line=line: a(line) or 2)
        fl.extend([big, big])
        fl.extend(epi(AS, aHST, 0) + epi(AS + 16, aHST, 2048)); fl.append(self.go_check)
        fl.extend([big] * o['FLAG']); fl.append(self.flag(last, 3))
        self.run_stage(1, accA, False, fl, budget=o['B1'], minfill=2.2)
        assert not fl
        self.stamp(a, 6)
        A(f"s_add_u32 {s(aHST)}, {s(aHST)}, 32768"); fl.extend([big, big, big])
        fl.extend(epi(VA, aHST, 0) + epi(VA + 16, aHST, 2048)); fl.extend([big] * o['FLAG']); fl.append(self.flag(last, 7))
        self.run_stage(2, accS, False, fl, budget=o['B2'], pre=bias(accS, [4, 5]), minfill=2, syncs=sy[2])
        assert not fl
        self.stamp(a, 7)
        A(f"s_add_u32 {s(aHST)}, {s(aHST)}, 32768"); fl.extend([big, big, big])
        fl.extend(epi(AS, aHST, 0) + epi(AS + 16, aHST, 2048))
        self.run_stage(3, accA, False, fl, budget=o['B3'], pre=bias(accA, [6]), minfill=3, syncs=sy[3])
        assert not fl and not self.b_alive
        self.stamp(a, 8)
        l2 = self.last_store
        for g in epi(VA, aHS2, 0): g()
        l3 = self.last_store
        self.flag(lambda: l2, 15)(); self.flag(lambda: l3, 0)()
        self.stamp(a, 9); self.flush_stamp(a)
        a("s_branch L_amid")
        print("F: end of phase 1 at", self.clk, "forced", self.forced, "publag", self.publag)

    def a_kvq(self):
        a = self.a; o = self.o
        fl = deque(self.g3_ops()); A = lambda t: self.lines(a, fl, t)
        accS = lambda T: v(AS + 16 * T, 16); accA = lambda T: v(VA + 16 * T, 16)
        big = lambda: 99; last = lambda: self.last_store
        self.syncs_left = 1 + o['SYNCK']
        self.run_stage(0, accS, True, fl, budget=o['B0'], forced=self.cvt_forced, minfill=2.4, finish=12)
        assert not fl
        self.stamp(a, 5)
        PK, PV, KV = (208, 224), (216, VA + 16), (VA, 208)
        self.hold = {14, 15, 16, 17}; XB = 14 * 2048
        fl.extend([self.go_load, big, big])
        A(f"v_mov_b32 v1, 0x3f803f80")
        fl.extend(self.phi_ops(AS, PK[0]) + self.phi_ops(AS + 16, PK[1])); fl.append(self.go_check)
        self.run_stage(1, accA, True, fl, budget=o.get('BK1', o['B1']), minfill=3)
        assert not fl and set(self.reserve) == self.hold
        self.stamp(a, 6)
        st = {}
        def chain():
            kvm = lambda T, k: a(f"v_mfma_f32_32x32x16_bf16 {v(KV[T],16)}, {v(PK[T]+4*k,4)}, {v(PV[T]+4*k,4)}, {v(KV[T],16) if k else 0}")
            wr = lambda g: a.ds(f"ds_write_b128 v10, {v(KV[g>>2]+4*(g&3),4)} offset:{XB + g*1024}")
            for T in range(2):
                for d in range(8):
                    a(f"v_cvt_pk_bf16_f32 {v(PV[T]+d)}, {v(VA+16*T+2*d)}, {v(VA+16*T+2*d+1)}\nv_cndmask_b32 {v(PV[T]+d)}, {v(PV[T]+d)}, v1, {s(aONE if T == 0 else aONB,2)}")
                    if T == 1 and d in (0, 1): kvm(0, d)
            kvm(1, 0); kvm(1, 1)
            for g in range(8): st['w'] = wr(g)
            self.clk += 700
            return 99
        def bar():
            a.wait(lg=st['w']); self.hook = self.b_kv; self.sync(o['XSLACK']); self.stamp(a, 8); return 2
        fl.extend([big] * o['KPRE'] + [chain, big, bar])
        q = []
        for T in range(2):
            p = self.phi_ops(AS + 16 * T)
            q.append(p[:36] + [self.store(AS + 16 * T, aPQS, 2048 * T)] + p[36:] + [self.store(AS + 16 * T + 4, aPQS, 2048 * T + 1024)])
        q0 = deque(q[0])
        def forced(stp, T):
            self.slotk = 28 * T + stp; ops = []
            if T == 1 and stp >= 3 and not fl:
                for k in range(o.get('QN', 4)):
                    if q0: ops.append(q0.popleft())
            return ops
        self.run_stage(2, accS, False, fl, budget=o.get('BK2', 9), forced=forced, syncs=(44,) if o['SYNCK'] else ())
        assert not fl and not self.b_alive
        self.stamp(a, 7)
        rest = list(q0) + q[1]
        for g in rest: g()
        self.flag(last, 0)()
        self.stamp(a, 9); self.flush_stamp(a)
        print("K: end of phase 1 at", self.clk, "forced", self.forced, "publag", self.publag)
        a(f"s_cmp_lt_u32 {s(sCS)}, 7\ns_cbranch_scc1 L_amid")
        xs = self.xs * 2048
        G, S, TM, KVA, P, NUM = 84, 212, 228, 52, 84, 140
        W8 = 99
        a(f"s_setprio {o['BPRIO']}")
        self.join_setup(a); self.poll_issue(a, 8, aFL)
        a("L_join:")
        self.poll_check(a, 8, aFL, 0, 1)
        self.stamp(a, 12)
        pt = {}
        for t in range(7):
            pt[t] = a.vm(f"buffer_load_dwordx4 {v(P+4*t,4)}, {v(vL16)}, {s(rWS,4)}, s{4+t//4} offen offset:{(t%4)*1024}{self.lm}")
        a("s_barrier")
        self.stamp(a, 13)
        for u in range(4):
            for f in range(2): tk = a.ds(f"ds_read_b128 {v(KVA+8*u+4*f,4)}, {'v11' if u < 2 else 'v12'} offset:{(u&1)*REG + f*1024}")
        def nm(hp):
            Pp = P + 14 * hp
            a.wait(vm=pt[3 + 3 * hp], lg=tk)
            for k in range(2):
                for T in range(2):
                    N = v(NUM + 32 * hp + 16 * T, 16)
                    a(f"v_mfma_f32_32x32x16_bf16 {N}, {v(KVA+16*hp+8*T+4*k,4)}, {v(Pp+6*T+4*k,4)}, {N if k else 0}")
        def ov(hp):
            Pp = P + 14 * hp
            def sto(t): self.last_store = a.vm(f"buffer_store_dwordx4 {v(P+4*t,4)}, {v(vL16)}, {s(rWS,4)}, s{40+t//4} offen offset:{(t%4)*1024}{self.sm}")
            NA = NUM + 32 * hp; NB = NA + 16; E = s(aEPS)
            a(f"v_add_f32 {v(TM)}, {E}, {v(NA+12)}\nv_add_f32 {v(TM+1)}, {E}, {v(NA+12)}\nv_add_f32 {v(TM+2)}, {E}, {v(NB)}\nv_add_f32 {v(TM+3)}, {E}, {v(NB)}")
            a(f"v_permlane32_swap_b32 {v(TM)}, {v(TM+1)}\nv_permlane32_swap_b32 {v(TM+2)}, {v(TM+3)}")
            a(f"v_rcp_f32 {v(TM+1)}, {v(TM+1)}\nv_rcp_f32 {v(TM+2)}, {v(TM+2)}")
            for T in range(2):
                for d in range(8):
                    r = NA + 16 * T + 2 * d
                    a(f"v_mul_f32 {v(r)}, {v(r)}, {v(TM+1+T)}\nv_mul_f32 {v(r+1)}, {v(r+1)}, {v(TM+1+T)}")
                    dst = Pp + d if T == 0 else (TM + 4 + d if d < 2 else Pp + 6 + d)
                    a(f"v_cvt_pk_bf16_f32 {v(dst)}, {v(r)}, {v(r+1)}")
                    if T == 1 and d == 1:
                        a(f"v_cndmask_b32 {v(Pp+6)}, {v(Pp+6)}, {v(TM+4)}, {s(sHI,2)}\nv_cndmask_b32 {v(Pp+7)}, {v(Pp+7)}, {v(TM+5)}, {s(sHI,2)}")
                    done = {(0,0,3): 0, (0,1,1): 1, (0,1,5): 2, (1,0,1): 3, (1,0,5): 4, (1,1,3): 5, (1,1,7): 6}.get((hp, T, d))
                    if done is not None: sto(done)
        nm(0); nm(1); ov(0); ov(1)
        a.wait(vm=self.last_store)
        a.vm(f"buffer_store_dword v8, v9, {s(rWS,4)}, 0 offen{self.fm}")
        self.stamp(a, 14); self.flush_stamp(a)
        a("s_branch L_fin")

    def join_setup(self, a):
        W8 = 99; xs = self.xs * 2048
        a(f"s_lshr_b32 {s(sT2)}, {s(sRB2)}, 3")
        a(f"s_and_b32 {s(sI)}, {s(sRB2)}, 7\ns_lshl3_add_u32 {s(sI)}, {s(sI)}, {s(W8)}")
        a(f"s_lshl_b32 {s(sCNT)}, {s(sI)}, 7\ns_add_u32 {s(sCNT)}, {s(sCNT)}, {WS_PL}\ns_add_u32 {s(aFL)}, {s(sWS)}, {s(sCNT)}\ns_addc_u32 {s(aFL+1)}, {s(sWS+1)}, 0")
        a(f"s_lshr_b32 {s(sCNT)}, {s(sI)}, 1\ns_lshl2_add_u32 {s(sCNT)}, {s(sCNT)}, {s(sT2)}\ns_lshl_b32 {s(sCNT)}, {s(sCNT)}, 7\ns_add_u32 {s(sCNT)}, {s(sCNT)}, {WS_FL}")
        a(f"s_and_b32 {s(sT1)}, {s(W8)}, 1\ns_lshl2_add_u32 {s(sCNT)}, {s(sT1)}, {s(sCNT)}\ns_add_u32 {s(sCNT)}, {s(sCNT)}, 16\nv_mov_b32 v9, {s(sCNT)}\nv_mov_b32 v8, 1")
        a(f"s_mul_i32 {s(sT2)}, {s(sT2)}, 7168")
        a(f"s_mul_i32 s4, {s(sI)}, {28*1024}\ns_add_u32 s4, s4, {s(sT2)}\ns_add_u32 s4, s4, {WS_PQ}\ns_add_u32 s5, s4, 4096")
        a(f"s_mul_i32 s40, {s(sI)}, {HS}\ns_add_u32 s40, s40, {s(sT2)}\ns_add_u32 s40, s40, {112*1024}\ns_add_u32 s41, s40, 4096")
        a(f"s_mov_b32 {s(sHI)}, 0\ns_mov_b32 {s(sHI+1)}, -1\ns_mov_b32 {s(aEPS)}, 0x358637bd")
        a(f"v_add_u32 v12, {2*REG + xs}, {v(vL16)}\nv_add_u32 v11, {xs}, {v(vL16)}")
    def b_kv(self):
        b = self.b; XB = 14 * 2048; R = ACC
        if self.o.get('KPRI'): b("s_setprio 3")
        self.stamp(b, 6)
        b(f"s_lshl_b32 {s(sT0)}, {s(sWV)}, 11\ns_add_u32 {s(sT0)}, {s(sT0)}, {XB}\nv_add_u32 v64, {s(sT0)}, {v(vL16)}\nv_add_u32 v65, {2*REG}, v64")
        rt = [b.ds(f"ds_read_b128 {v(R+8*sw+4*h,4)}, v{64 + (sw >> 1)} offset:{(sw&1)*REG + h*1024}") for sw in range(4) for h in range(2)]
        b(f"s_lshl2_add_u32 {s(sT0)}, {s(sJ)}, {s(sWV)}\ns_lshl4_add_u32 {s(sT0)}, {s(sT0)}, {s(sI)}\ns_lshl_b32 {s(sT0)}, {s(sT0)}, 10\ns_add_u32 {s(sT0)}, {s(sT0)}, {WS_KV}")
        FS = self.o['FKS']
        b(f"s_lshr_b32 s57, {s(sWV)}, 1\ns_lshl1_add_u32 s57, {s(sJ)}, s57\ns_lshl4_add_u32 s57, s57, {s(sI)}\ns_lshl_b32 s57, s57, 1\ns_and_b32 {s(sT1)}, {s(sWV)}, 1\ns_add_u32 s57, s57, {s(sT1)}")
        b(f"s_mul_i32 s57, s57, {FS}\ns_add_u32 s57, s57, {WS_FK}\nv_mov_b32 v16, 1")
        b.wait(lg=rt[3])
        for k in range(8): b(f"v_add_f32 {v(R+k)}, {v(R+k)}, {v(R+8+k)}")
        b.wait(lg=rt[7])
        for k in range(8): b(f"v_add_f32 {v(R+16+k)}, {v(R+16+k)}, {v(R+24+k)}")
        for d in range(4):
            b(f"v_add_f32 {v(R+2*d)}, {v(R+2*d)}, {v(R+16+2*d)}\nv_add_f32 {v(R+2*d+1)}, {v(R+2*d+1)}, {v(R+17+2*d)}\nv_cvt_pk_bf16_f32 {v(R+d)}, {v(R+2*d)}, {v(R+2*d+1)}")
        self.kvst = b.vm(f"buffer_store_dwordx4 {v(R,4)}, {v(vL16)}, {s(rWS,4)}, {s(sT0)} offen sc1")
        if self.o.get('KPRI'): b(f"s_setprio {self.o['BPRIO']}")
        self.stamp(b, 4)
        self.vclk = max(self.vclk, self.clk) + 400
        self.hold = set()
        for sl in self.reserve:
            self.slot['kx', sl] = sl; self.lastread['kx', sl] = 0; self.allread.add(('kx', sl))
    def kv_flag(self, x, force=False):
        if self.kvst and (force or x.vm_issued - self.kvst >= self.o['KVD'] or x.vm_done >= self.kvst):
            x.wait(vm=self.kvst); x.vm(f"buffer_store_dword v16, off, {s(rWS,4)}, s57 sc1"); self.stamp(x, 5)
            if x is self.bmain: self.kvst = None
    def b_gather(self):
        b = self.b; o = self.o; G, S, TM = 32, 160, 176; xs = self.xs * 2048
        b(f"s_lshr_b32 {s(sT2)}, {s(sRB2)}, 3\ns_lshl2_add_u32 {s(sT1)}, {s(sT2)}, {s(sWV)}")
        b(f"s_and_b32 {s(sCNT)}, {s(sWV)}, 1\ns_cselect_b32 s44, -1, 0\ns_cselect_b32 s47, 0, -1\ns_mov_b32 s45, 0\ns_mov_b32 s46, 0")
        b(f"s_mul_i32 s42, {s(sT1)}, {32*o['FKS']}\ns_add_u32 s42, s42, {WS_FK}\nv_and_b32 v1, 31, {v(vL)}\nv_mul_u32_u24 v1, {o['FKS']}, v1")
        b(f"s_lshl_b32 {s(sT1)}, {s(sT1)}, 15\ns_add_u32 {s(sSO)}, {s(sT1)}, {WS_KV}")
        self.kv_flag(b, force=True)
        self.join_setup(b)
        SM = 184
        b(f"v_add_u32 v13, {s(sRB)}, {v(vL16)}")
        b.wait_all(lg=True)
        b(f"v_bfe_u32 v2, {v(vL)}, 3, 2\nv_bfe_u32 v3, {v(vL)}, 1, 1\nv_lshl_add_u32 v2, v2, 1, v3\ns_mov_b32 vcc_lo, 0x0f0f0f0f\ns_mov_b32 vcc_hi, 0xf0f0f0f0\nv_cndmask_b32 v2, 63, v2, vcc")
        b(f"s_mov_b32 vcc_lo, 0xaaaaaaaa\ns_mov_b32 vcc_hi, vcc_lo\nv_mov_b32 v3, 0x3f80\nv_mov_b32 v4, 0x3f800000\nv_cndmask_b32 v3, v3, v4, vcc")
        for k in range(8): b(f"v_cmp_eq_u32 vcc, {k}, v2\nv_cndmask_b32 {v(SM+k)}, 0, v3, vcc")
        if o['DYN']:
            y = self.slow
            FS = o['FKS']
            b(f"v_and_b32 v1, 15, {v(vL)}\nv_lshlrev_b32 v1, 1, v1\nv_bfe_u32 v2, {v(vL)}, 4, 1\nv_add_u32 v1, v1, v2\nv_mul_u32_u24 v1, {FS}, v1\nv_add_u32 v15, 16384, {v(vL16)}")
            b(f"s_mov_b32 s60, 0xffff\ns_mov_b32 s61, 0\ns_mov_b32 {s(sCNT)}, 0")
            if o.get('KWAIT', 1): b.wait_all(vm=True)
            take = lambda x: x("v_cmp_ne_u32 vcc, 0, v14\ns_lshr_b32 s62, vcc_lo, 16\ns_and_b32 s62, s62, vcc_lo\ns_or_b32 s61, s61, s62")
            gt = []; pt = None
            def acc(n):
                b.wait(vm=gt[n])
                b(f"v_mfma_f32_32x32x16_bf16 {v(S,16)}, {v(SM+4*(n%2),4)}, {v(G+4*n,4)}, {v(S,16) if n else 0}")
            for k in range(16):
                if pt and b.vm_done >= pt: take(b); pt = None
                b(f"s_and_b32 s62, s60, s61\ns_cbranch_scc0 L_dyn{k}\nL_dyr{k}:")
                y(f"L_dyn{k}:")
                if k and o['SL2']: y(f"s_sleep {o['SL2']}")
                y(f"buffer_load_dword v14, v1, {s(rWS,4)}, s42 offen sc1"); y.wait_all(vm=True); take(y)
                y(f"s_and_b32 s62, s60, s61\ns_cbranch_scc1 L_dyr{k}\ns_add_u32 {s(sCNT)}, {s(sCNT)}, 1\ns_cmp_lt_u32 {s(sCNT)}, {SPIN}\ns_cbranch_scc1 L_dyn{k}")
                y(f"s_mov_b32 s61, 0xffff\ns_mov_b32 s62, s60\ns_branch L_dyr{k}")
                if k == 0: self.stamp(b, 10)
                b(f"s_ff1_i32_b32 s63, s62\ns_bitset0_b32 s60, s63\ns_lshl_b32 s63, s63, 10\ns_add_u32 s63, s63, {s(sSO)}")
                for f in range(2):
                    n = 2 * k + f
                    if n >= 11: acc(n - 11)
                    gt.append(b.vm(f"buffer_load_dwordx4 {v(G+4*n,4)}, {v(vL16) if f == 0 else 'v15'}, {s(rWS,4)}, s63 offen{self.lm}"))
                if pt is None and k in (1, 8): pt = b.vm(f"buffer_load_dword v14, v1, {s(rWS,4)}, s42 offen sc1")
        else:
            if o.get('KWAIT', 1): b.wait_all(vm=True)
            b(f"s_mov_b32 {s(sCNT)}, 0\nL_kpoll:")
            b.vm(f"buffer_load_dword v14, v1, {s(rWS,4)}, s42 offen sc1")
            b.wait_all(vm=True)
            b(f"v_cmp_eq_u32 vcc, 0, v14\ns_cbranch_vccz L_kgo")
            if o['SL2']: b(f"s_sleep {o['SL2']}")
            b(f"s_add_u32 {s(sCNT)}, {s(sCNT)}, 1\ns_cmp_lt_u32 {s(sCNT)}, {SPIN}\ns_cbranch_scc1 L_kpoll\nL_kgo:")
            self.stamp(b, 10)
            gt = []
            def acc(n):
                b.wait(vm=gt[n])
                b(f"v_mfma_f32_32x32x16_bf16 {v(S,16)}, {v(SM+4*(n//16),4)}, {v(G+4*n,4)}, {v(S,16) if n else 0}")
            for n in range(32):
                if n >= 11: acc(n - 11)
                if n and n % 4 == 0: b(f"s_addk_i32 {s(sSO)}, 4096")
                gt.append(b.vm(f"buffer_load_dwordx4 {v(G+4*n,4)}, {v(vL16)}, {s(rWS,4)}, {s(sSO)} offen offset:{(n%4)*1024}{self.lm}"))
        for n in range(21, 32):
            acc(n)
            if n == 26: self.poll_issue(b, 8, aFL)
        for d in range(8): b(f"v_cvt_pk_bf16_f32 {v(TM+d)}, {v(S+2*d)}, {v(S+2*d+1)}")
        for d in (0, 1): b(f"v_cndmask_b32 {v(TM+d)}, {v(TM+d)}, 0, s[44:45]")
        for d in (6, 7): b(f"v_cndmask_b32 {v(TM+d)}, {v(TM+d)}, 0, s[46:47]")
        for f in range(2): b.ds(f"ds_write_b128 v13, {v(TM+4*f,4)} offset:{xs + f*1024}")
        self.stamp(b, 11); self.flush_stamp(b)
        b("s_branch L_join")

    def tile_sum(self, x, rd, RES, Pk, store):
        rt = {}
        for m in range(2):
            for hi in range(2):
                for q in range(4): rt[m, hi] = x.ds(f"ds_read_b128 {v(ACC+16*q+8*m+4*hi,4)}, {v(rd)} offset:{q*4352 + hi*512 + m*256}")
        for m in range(2):
            for hi in range(2):
                x.wait(lg=rt[m, hi])
                R = [ACC + 8 * m + 4 * hi + k for k in range(4)]
                if x.tag == 'b':
                    for r in R[::2]:
                        x(f"v_pk_add_f32 {v(r,2)}, {v(r,2)}, {v(r+16,2)}\nv_pk_add_f32 {v(r+32,2)}, {v(r+32,2)}, {v(r+48,2)}\nv_pk_add_f32 {v(r,2)}, {v(r,2)}, {v(RES+r-ACC,2)}")
                    for r in R[::2]: x(f"v_pk_add_f32 {v(r,2)}, {v(r,2)}, {v(r+32,2)}")
                else:
                    for r in R: x(f"v_add_f32 {v(r)}, {v(r)}, {v(r+16)}\nv_add_f32 {v(r+32)}, {v(r+32)}, {v(r+48)}")
                    for r in R: x(f"v_add_f32 {v(r)}, {v(r)}, {v(RES+r-ACC)}")
                    for r in R: x(f"v_add_f32 {v(r)}, {v(r)}, {v(r+32)}")
                for k in (0, 2): x(f"v_cvt_pk_bf16_f32 {v(Pk+4*m+2*hi+k//2)}, {v(R[k])}, {v(R[k]+1)}")
            store(m)
    def a_mid(self, a):
        RES, B2, XW, BW = 112, 128, 96, 104
        a("L_amid:\ns_setprio 2")
        self.srd(a, rB1, sB2, 896)
        a(f"s_xor_b32 {s(sT2)}, {s(sRB2)}, 1\ns_lshr_b32 {s(sT0)}, {s(sWV)}, 1\ns_lshl1_add_u32 {s(sT0)}, {s(sT2)}, {s(sT0)}\ns_mul_i32 {s(sXB)}, {s(sT0)}, {32*896}")
        a(f"s_and_b32 {s(sT1)}, {s(sWV)}, 1\ns_lshl1_add_u32 {s(sT1)}, {s(sCS)}, {s(sT1)}\ns_lshl_b32 {s(sT1)}, {s(sT1)}, 6\ns_add_u32 {s(sXB)}, {s(sXB)}, {s(sT1)}\ns_add_u32 {s(sT0)}, {s(sXB)}, {16*896}")
        a(f"v_lshrrev_b32 v7, 2, {v(vL)}\nv_and_b32 v6, 3, {v(vL)}\nv_lshlrev_b32 v6, 4, v6\nv_mul_u32_u24 v4, 896, v7\nv_add_u32 v4, v4, v6")
        a.vm(f"buffer_load_dwordx4 {v(XW,4)}, v4, {s(rX,4)}, {s(sXB)} offen")
        a.vm(f"buffer_load_dwordx4 {v(XW+4,4)}, v4, {s(rX,4)}, {s(sT0)} offen")
        a.vm(f"buffer_load_dwordx4 {v(BW,4)}, v6, {s(rB1,4)}, {s(sT1)} offen")
        a("s_barrier")
        a(f"v_mul_u32_u24 v17, 68, v6\nv_lshl_add_u32 v17, v7, 4, v17\ns_add_u32 {s(sT0)}, {s(sRB)}, {XO}\nv_add_u32 v17, {s(sT0)}, v17\nv_mov_b32 v8, 1")
        a(f"s_xor_b32 s40, s2, 4\ns_lshl2_add_u32 s40, s40, {s(sWV)}\ns_lshl_b32 s40, s40, 11\ns_add_u32 s40, s40, {WS_PX}")
        a(f"s_lshl2_add_u32 s41, {s(sT2)}, {s(sWV)}\ns_lshl_b32 s41, s41, 7\ns_lshl2_add_u32 s41, {s(sCS)}, s41\ns_add_u32 s41, s41, {WS_FL + 32}")
        a.wait_all(vm=True)
        for d in range(4): a(f"v_lshlrev_b32 {v(B2+2*d)}, 16, {v(BW+d)}\nv_and_b32 {v(B2+2*d+1)}, {s(sMSK)}, {v(BW+d)}")
        for d in range(8):
            a(f"v_lshlrev_b32 {v(RES+2*d)}, 16, {v(XW+d)}\nv_and_b32 {v(RES+2*d+1)}, {s(sMSK)}, {v(XW+d)}")
            a(f"v_add_f32 {v(RES+2*d)}, {v(RES+2*d)}, {v(B2+(2*d)%8)}\nv_add_f32 {v(RES+2*d+1)}, {v(RES+2*d+1)}, {v(B2+(2*d+1)%8)}")
        a("s_barrier")
        self.stamp(a, 10)
        self.tile_sum(a, 17, RES, 96, lambda m: a.vm(f"buffer_store_dwordx4 {v(96+4*m,4)}, {v(vL16)}, {s(rWS,4)}, s40 offen offset:{1024*m} sc1"))
        self.stamp(a, 11)
        a.wait_all(vm=True)
        a.vm(f"buffer_store_dword v8, off, {s(rWS,4)}, s41 sc1")
        self.stamp(a, 12); self.flush_stamp(a)

    def phase2(self):
        b = self.b; o = self.o; lagv = o['LAGV']
        RES, XW = 232, 248
        self.stamp(b, 8)
        b(f"s_lshl2_add_u32 {s(sT0)}, {s(sRB2)}, {s(sWV)}\ns_lshl_b32 {s(sT0)}, {s(sT0)}, 7\ns_add_u32 {s(sT0)}, {s(sT0)}, {WS_FL}")
        b(f"s_add_u32 {s(sFL)}, {s(sWS)}, {s(sT0)}\ns_addc_u32 {s(sFL+1)}, {s(sWS+1)}, 0")
        b(f"s_xor_b32 {s(sT0)}, {s(sT0)}, 512\ns_add_u32 s92, {s(sWS)}, {s(sT0)}\ns_addc_u32 s93, {s(sWS+1)}, 0")
        b(f"s_sub_u32 s94, s6, s11\ns_lshl_b32 s95, s94, 11\ns_add_u32 s95, s95, s18\ns_lshl_b32 s94, s94, 12\ns_add_u32 s94, s94, s17")
        acc = lambda q: v(ACC + 16 * q, 16)
        tk = {}; reg = {}; ring = [96 + 4 * k for k in range(12)]; st = dict(cur=None, nm=0, x2=None, nw=0)
        fresh = set(range(4)); kept = set(); used = {}; wq = deque(); wt = {}; ru = deque(); tasks = deque()
        W = lambda u: u[1] + {'o': 14, 'e': 21}.get(u[0], 0)
        def wr():
            g, q, h = wq.popleft()
            wt[q] = b.ds(f"ds_write_b128 {v(bWA+q)}, {v(ACC+16*q+4*h,4)} offset:{q*4352 + h*1088}"); st['nw'] += 1
            if st['nw'] == 16: st['x2'] = st['nm'] + 2
        def x2(force=False):
            if st['x2'] is not None and (force or st['nm'] >= st['x2']):
                st['x2'] = None; b.wait(lg=max(wt.values())); b("s_barrier"); self.stamp(b, 6)
        def fillers():
            self.mv_release()
            if wq and st.get('rush') and st['nw'] < 16:
                wr()
                if st['nw'] == 16: x2(force=True)
                return
            if wq and st['nm'] >= wq[0][0]: wr(); return
            x2()
            n = 0
            for k in range(2):
                if self.mv_ready(o['LAG']): self.mv_one(); n += 1
            if ru and ru[0] == 'wait':
                if b.vm_done < tk['px']: return
                ru.popleft()
            for k in range(5 - n):
                if ru: ru.popleft()()
        def mfma(lag, fill=True):
            if st['cur'] is None:
                if not tasks: return False
                u = tasks[0]; w = W(u); qs = (2 * u[2] + 1, 2 * u[2])
                if not (b.vm_issued - tk[u] >= lag or tk[u] <= b.vm_done) or w not in self.w2_issued[:self.mv_next]: return False
                if any(x[1] in qs for x in wq): return False
                tasks.popleft()
                b.wait(vm=tk[u], lg=max([self.mv_t[w]] + [wt[q] for q in qs if q in fresh and q in wt]))
                st['cur'] = (u, deque(f"v_mfma_f32_32x32x16_bf16 {acc(q)}, {v(self.wreg[w]+4*(q&1),4)}, {v(reg[u],4)}, {0 if q in fresh else acc(q)}" for q in qs))
                fresh.difference_update(qs)
            u, lines = st['cur']
            b(lines.popleft()); st['nm'] += 1
            if not lines:
                st['cur'] = None; ring.append(reg[u]); w = W(u); qs = (2 * u[2] + 1, 2 * u[2])
                if u[0] != 'g':
                    used[w] = used.get(w, 0) + 1
                    if used[w] == 2: (kept.add if self.wreg[w] >= RES else self.wfree.append)(self.wreg[w])
                if u == lastof[u[0] == 'g', u[2]]:
                    wq.extend((st['nm'] + 3, q, h) for q in qs for h in range(4)); fresh.update(qs)
            if fill: fillers()
            return True
        def progress():
            if mfma(0): return
            if wq: wr(); return
            if self.mv_ready(0): self.mv_one(); return
            self.mv_release()
            if self.dma_ready(): self.dma_one(); return
            b.wait_all(lg=True); self.mv_release()
            assert self.dma_ready() or self.mv_ready(0), ("stuck", list(tasks))
        both = lambda p, us: [('h', (p, u, tt)) for u in us for tt in (1, 0)]
        split = lambda p, us: [('h', (p, u, tt)) for tt in (1, 0) for u in us]
        nD = sum(len(it['ops']) for it in self.dq); nD0 = nD
        ns = o['NSPL']; gl = o.get('GL', 4)
        hs = [('check', 4, 0, 1, 9)] + both('g', range(4)) + [('check', 4, 0, 2, 10)]
        if ns > 8: hs += both('g', range(4, 8)) + [('check', 4, 0, 4, 0)]
        if ns == 14: hs += both('g', range(8, 12)) + [('check', 4, 0, 8, 11)] + split('g', (12, 13)) + [('x1',)]
        else: hs += both('g', range(ns - 4, ns - gl)) + split('g', range(ns - gl, ns)) + [('x1',)]
        korder = list(range(ns - 1, -1, -1)); nk = o.get('NK', 4)
        kl = split('k', korder[:nk]) + both('k', korder[nk:])
        kl.insert(o.get('RUSH', 4), ('rush',)); hs += kl
        for t in self.late:
            p, u = ('k', t) if t < 14 else ('e', t - 21)
            if u in (8, 12): hs.insert(len(hs) - (o.get('CE', 0) if p == 'k' else o.get('CE2', 0)), ('check', 4, 0, 4 if u == 8 else 8, 11 if (p, u) == ('k', 12) else 0, sFL if p == 'k' else 92))
            hs += both(p, [u])
        dm = [int(c, 36) for c in str(o.get('DM' + self.role.upper(), o.get('DM', 'o')))]
        seq = []; n = 0; given = 0; started = False
        for it in hs:
            if it[0] == 'check' and dm:
                k = min(nD, dm.pop(0)); seq += [('dma',)] * k; nD -= k
            seq.append(it)
            if it[0] == 'rush': started = True; dm = []
            if it[0] == 'h' and started:
                n += 1
                if n % 2 == 0 and n > o.get('DS0', 0):
                    want = min(nD, 2 * -(-nD * (n - o.get('DS0', 0)) // (4 * self.dspread)))
                    seq += [('dma',)] * (want - given); given = max(given, want)
        assert given == nD
        ol = split('o', range(7)); px = o.get('PXAT', 9)
        seq += [('check', 2, 16, 1, 12)] + ol[:px] + [('check', 1, 's22', 1, 0), ('px',)] + ol[px:]
        seq.insert(len(seq) - o.get('X3AT', 1), ('x3',))
        if o.get('SKIP'):
            drop = lambda it: it[0] == 'check' and ((o['SKIP'] & 1 and it[2] == 's22') or (o['SKIP'] & 2 and it[2] == 16) or (o['SKIP'] & 4 and it[2] == 0 and it[3] >= 4))
            seq = [it for it in seq if not drop(it)]
        lastof = {(True, tt): ('g', ns - 1, tt) for tt in (0, 1)}; lastof.update({(False, tt): ('o', 6, tt) for tt in (0, 1)})
        out = []
        for it in seq:
            if it[0] == 'check':
                j = len(out); n = 0
                while j > 0 and n < o['PLEAD'] and out[j - 1][0] != 'check': j -= 1; n += 1
                out.insert(j, ('issue',) + it[1:])
            out.append(it)
        for it in out:
            kind = it[0]
            base = it[5] if len(it) > 5 else sFL
            if kind == 'issue': self.poll_issue(b, it[1], base, it[2]); continue
            if kind == 'check':
                self.kv_flag(b, force=True)
                if it[4] == 9: self.stamp(b, 7)
                if it[4] == 11:
                    for k in range(o.get('DRAIN', 8)): mfma(o.get('DLAG', 4))
                self.poll_check(b, it[1], base, it[2], it[3])
                if it[4]: self.stamp(b, it[4])
                if it[4] == 11: self.lim = 999
                continue
            if kind == 'x1':
                while self.mv_next < o.get('HIOK', 8) or self.mv_sub: progress()
                b.wait(lg=max(self.mv_t.values())); b("s_barrier"); self.lim = o.get('LIM2', 999); continue
            if kind == 'rush':
                while any(u[0] == 'g' for u in tasks) or st['cur']: mfma(0, fill=False)
                st['rush'] = True; continue
            if kind == 'x3':
                assert st['nw'] == 16
                x2(force=True); b("s_barrier"); continue
            if kind == 'dma':
                self.mv_release()
                while self.dq and not self.dma_ready() and (len(self.mv_freed) < self.mv_next or self.mv_ready(o.get('LAGMIN', 4))):
                    if len(self.mv_freed) < self.mv_next: b.wait(lg=self.mv_t[self.w2_issued[len(self.mv_freed)]]); self.mv_release()
                    else: self.mv_one()
                if not self.dma_ready(): st['owed'] = st.get('owed', 0) + bool(self.dq); continue
            mfma(lagv, fill=False)
            if kind == 'dma': self.dma_one()
            elif kind == 'h':
                u = it[1]; p, t, tt = u
                while not ring: progress()
                reg[u] = ring.pop(0)
                va = (20 if p == 'g' else 2) + tt
                if p == 'o': so = s(19 + t // 4)
                elif p == 'e': so = s(92 + t // 4)
                else: so = "0" if t < 4 else s(15 + t // 4)
                self.throttle(8, self.lim)
                tk[u] = b.vm(f"buffer_load_dwordx4 {v(reg[u],4)}, v{va}, {s(rWS,4)}, {so} offen offset:{(t%4)*1024}{self.lm}")
                tasks.append(u)
            elif kind == 'px':
                while len(kept) < 3: progress()
                for m in range(2): tk['px'] = b.vm(f"buffer_load_dwordx4 {v(XW+4*m,4)}, {v(vL16)}, {s(rWS,4)}, s21 offen offset:{1024*m}{self.lm}")
                ru.append('wait')
                for d in range(8): self.lines(b, ru, f"v_lshlrev_b32 {v(RES+2*d)}, 16, {v(XW+d)}\nv_and_b32 {v(RES+2*d+1)}, {s(sMSK)}, {v(XW+d)}")
            if o.get('BFINE'):
                st.setdefault('v0', b.vm_issued - 1); k = (b.vm_issued - st['v0']) // o['BFINE']
                if k > st.get('fk', -1) and k < 12: st['fk'] = k; self.stamp(b, 19 + k)
            fillers()
            if not mfma(lagv): fillers()
            self.mv_release()
            if st.get('owed') and self.dma_ready():
                mfma(lagv, fill=False); self.dma_one(); st['owed'] -= 1; fillers(); mfma(lagv)
        self.stamp(b, 13)
        print("phase 2: dma", nD0, "tasks left after the last load:", len(tasks), "moved", self.mv_next, "writes", st['nw'])
        while tasks or st['cur']: progress()
        self.stamp(b, 14)
        if ru and ru[0] == 'wait': ru.popleft(); b.wait(vm=tk['px'])
        for k in range(10):
            if ru: ru.popleft()()
        while wq:
            wr()
            for k in range(5):
                if ru: ru.popleft()()
        assert not ru and st['nw'] == 32
        b.wait(lg=max(wt.values())); b("s_barrier")
        mod = {0: "", 1: " sc1", 2: " nt"}[o['OUTM']]
        self.tile_sum(b, bRD, RES, 96, lambda m: b.vm(f"buffer_store_dwordx4 {v(96+4*m,4)}, {v(bOA)}, {s(rOUT,4)}, {s(sXB if m == 0 else sXB2)} offen{mod}"))
        self.flush_stamp(b)

    def build(self):
        o = self.o
        self.slow = self.new(); self.slow.tag = 's'
        p = self.entry()
        bp = self.b_prologue()
        P = lambda p_, e: ('p', p_, e)
        streams = {}
        pf0 = list(self.pfq)
        for role in ('f', 'k'):
            self.role = role
            self.a = a = self.new(); a.tag = 'a'; a.vm_issued = 1
            self.bmain = self.b = b = self.new(); b.tag = 'b'; b.set_state(bp.state()); b.pending = bp.pending
            self.q_reset(); self.frag_list(role); self.pfq = deque(pf0); self.pfacc = 0; self.syncs_left = 9
            self.dpre = o.get('DPRE' + role.upper(), o['DPRE']); self.dspread = o.get('DSPREAD' + role.upper(), o['DSPREAD'])
            if role == 'k': b("L_Bk:")
            self.lead = lead = [0, 1, 8, 9, 16, 17, 24, 28] if o['WROT'] & (1 if role == 'f' else 2) else []
            order = list(self.cons)
            la = o.get('L1' + role.upper())
            if la is not None:
                ld = [('p', 1, 0), ('p', 2, 0)] + ([('s', 0)] if role == 'f' else [])
                if o.get('L1N'): ld = ld[:o['L1N']]
                order = [k for k in order if k not in ld]; order[la:la] = ld
            at = o['LEAD' + role.upper()]
            for n, t in enumerate(lead): order.insert(min(len(order), at + n * (1 + o['LSTEP'])), ('w', t))
            ns = o['NSPL']
            late = [t for lo, hi in ((ns, 12), (max(ns, 12), 14)) for base in (0, 21) for t in range(base + lo, base + hi)]
            self.late = late; self.worder = list(range(ns)) + late + list(range(14, 21))
            for k in order + [('w', t) for t in self.worder]: self.enq(k)
            def leave():
                self.b_alive = False
                print(role, "B leaves at", self.clk, "free slots", len(self.free), "w2 issued", len(self.w2_issued), "moved", self.mv_next, "prefetches left", len(self.pfq))
                self.spf(99)
                if role == 'k':
                    self.xs = self.free[0]
                    b(f"s_cmp_ge_u32 {s(sCS)}, 7\ns_cbranch_scc1 L_red")
                    self.red = r = self.new(); r.tag = 'b'; r.pending = b.pending; r.set_state(b.state())
                    r("L_red:"); self.b = r; self.b_gather(); self.b = b
            self.on_all_published = leave
            self.a_layernorm()
            ln = a.text(); mark = len(a.L)
            if role == 'f':
                a(f"s_cmp_lg_u32 {s(sROLE)}, 0\ns_cbranch_scc1 L_Ak")
                self.a_ffn(); ln_f = ln
            else:
                assert ln == ln_f, "layernorm code differs between the roles"
                a("L_Ak:"); self.a_kvq(); a.L = a.L[mark:]
            self.phase2()
            if role == 'f': b("s_branch L_fin")
            streams['a' + role] = a.text(); streams['b' + role] = b.text()
            self.count = getattr(self, 'count', 0) + len(a.L) + len(b.L)
        f = self.new(); f.tag = 'f'
        f("s_branch L_fin")
        self.a_mid(f)
        if self.probe is not None: f("s_barrier\ns_barrier")
        f("L_fin:")
        if self.probe is not None:
            f.wait_all(vm=True); self.stamp(f, 15); f.wait_all(lg=True)
            f("s_sub_u32 s1, s100, s0\ns_lshl_b32 s1, s1, 2\ns_add_u32 s1, s1, 4000")
            f("L_spin:\ns_memrealtime s[100:101]"); f.wait_all(lg=True)
            f("s_sub_u32 s100, s100, s0\ns_cmp_lt_u32 s100, s1\ns_cbranch_scc1 L_spin")
        if self.stamps:
            f.wait_all(vm=True)
            self.stamp(f, 15); self.flush_stamp(f)
            f("s_memrealtime s[100:101]"); f.wait_all(lg=True); f("v_writelane_b32 v5, s100, 16")
            f(f"v_readlane_b32 {s(sT1)}, v5, 63\ns_nop 3\ns_lshl3_add_u32 {s(sT0)}, s2, {s(sT1)}\ns_lshl_b32 {s(sT0)}, {s(sT0)}, 8\ns_add_u32 {s(sT0)}, {s(sT0)}, {WS_ST}")
            f(f"v_lshlrev_b32 v6, 2, {v(vL)}")
            f.vm(f"buffer_store_dword v5, v6, {s(rWS,4)}, {s(sT0)} offen")
        f("L_end:\ns_endpgm")
        f("L_init:")
        self.srd(f, rWS, sWS, WS_SIZE)
        f(f"v_mov_b32 v40, 0\nv_mov_b32 v41, 0\nv_mov_b32 v42, 0\nv_mov_b32 v43, 0\nv_lshlrev_b32 v44, 7, {v(vL)}")
        NI = o['NI']; per = (32768 + 512 * o['FKS']) // (4 * NI)
        f(f"s_sub_u32 {s(sT1)}, s2, {256 - NI}\ns_lshl2_add_u32 {s(sT1)}, {s(sT1)}, {s(sWV)}\ns_mul_i32 {s(sT0)}, {s(sT1)}, {per}\ns_add_u32 {s(sT0)}, {s(sT0)}, {WS_FL}")
        for k in range(per // 1024):
            if k and k % 4 == 0: f(f"s_addk_i32 {s(sT0)}, 4096")
            f(f"buffer_store_dwordx4 v[40:43], {v(vL16)}, {s(rWS,4)}, {s(sT0)} offen offset:{1024*(k%4)} sc1")
        f("s_branch L_noinit\nL_go:")
        f(f"s_sub_u32 {s(sT1)}, s2, {256 - NI}\ns_lshl2_add_u32 {s(sT1)}, {s(sT1)}, {s(sWV)}\ns_lshl_b32 {s(sT1)}, {s(sT1)}, 2\nv_mov_b32 v45, 1\nv_mov_b32 v46, {s(sT1)}")
        f.wait_all(vm=True)
        f(f"global_store_dword v46, v45, s[8:9] sc1\ns_branch L_gone")
        self.body = p.text() + streams['af'] + streams['ak'] + bp.text() + streams['bf'] + streams['bk'] + f.text() + self.red.text() + self.slow.text() + 'L_last:\n    s_endpgm\n'

    def text(self):
        hdr = open(f"cdna_kernels/{NAME}.s.ref").read().split("\n")
        top = [l for l in hdr if l.startswith(";") and "@launch" not in l and "Override" not in l and "grid=ceil" not in l]
        out = "\n".join(top) + "\n; @launch grid=(256,1,1) block=(512,1,1) lds=163840\n"
        out += f'.amdgcn_target "amdgcn-amd-amdhsa--gfx950"\n.text\n.globl {NAME}_kernel\n.p2align 8\n.type {NAME}_kernel,@function\n'
        out += self.body if (self.stamps or self.probe is not None) else self.body.replace('s_branch L_fin\n', 's_endpgm\n')
        out += f'''.section .rodata,"a"
.p2align 6
.amdhsa_kernel {NAME}_kernel
  .amdhsa_next_free_vgpr 256
  .amdhsa_next_free_sgpr 102
  .amdhsa_accum_offset 256
  .amdhsa_group_segment_fixed_size 0
  .amdhsa_kernarg_size 88
  .amdhsa_user_sgpr_count 2
  .amdhsa_user_sgpr_kernarg_segment_ptr 1
  .amdhsa_system_sgpr_workgroup_id_x 1
  .amdhsa_float_denorm_mode_32 3
.end_amdhsa_kernel
'''
        return out

if __name__ == "__main__":
    out = sys.argv[1]; stamps = False; probe = None; opt = {}
    for x in sys.argv[2:]:
        if x == "stamps": stamps = True
        elif x.startswith("probe="): probe = (x[6], int(x[7:]))
        else: k, val = x.split("="); opt[k] = val if k.startswith("DM") else (float(val) if "." in val else int(val))
    g = Gen(stamps, probe, opt); g.build(); open(out, "w").write(g.text())
    print("lines", g.count)
```

```python
import sys
from collections import deque
from asmlib import Asm

NAME = "parallel_sum__linear_attn_block__dense_activation_squared_relu__prompt"
WS_H = 0; WS_PQ = 0x900000; WS_KV = 0xB00000; WS_FL = 0xB80000; WS_PL = 0xB84000; WS_FK = 0xB88000
WS_ST = 0xC00000; WS_PX = 0xD00000; WS_SIZE = 0xF00000
XO = 40960 - 17408
HS = 140 * 1024
REG = 40960
INIT_WG = 248
SPIN = 40000

def v(a, n=1): return f"v{a}" if n == 1 else f"v[{a}:{a+n-1}]"
def s(a, n=1): return f"s{a}" if n == 1 else f"s[{a}:{a+n-1}]"

sX, sWQ, sWO, sW1, sB1, sW2, sB2, sOUT, sDBG, sWS = 4, 6, 8, 12, 14, 16, 18, 20, 22, 24
sWV, sRB, sSO = 3, 26, 27
rX, rWS = 28, 36
sXB = 61
sI, sJ, sROLE, sCS, sRB2, sT0, sT1, sT2, sHST = 65, 66, 67, 68, 69, 70, 71, 72, 73
sROT, sCNT = 75, 77
sMSK = 10
sP = 84
rB1 = 32
aM = [40, 42, 44, 46, 10]
aONE, aL2E, aEPS, aKVO, aHST, aPQS, aBIA, aBI2, aHS2 = 48, 50, 51, 52, 53, 54, 55, 56, 57
aONB = 62
aFL = 58; sHI = 82; sG1 = 84
rW, rW2, rWO, rOUT, rB2 = 32, 40, 44, 48, 52
sCOL, sSGL, sWOB, sW2B, sSO2, sFL = 62, 74, 76, 12, 13, 14
sK1 = 91; sRS = 56
sHC = [None, 84 + 8, 85 + 8, 86 + 8, 87 + 8, 88 + 8, 89 + 8, 4, 5]
sTG, sCB, sXB2 = 60, 78, 79

vL = 0; vXD = 1; vRN = 2; vXR = 14; vSR = 14; vL16 = 18; vGO = 19; vWR = 20
RINGB, RING = 28, 6
AS, VA, BI, TMP = 52, 176, 208, 232
def Uof(st): return 52 + 8 * st if st < 8 else 116 + 8 * (st - 8)
def Fof(st): return 84 + 4 * st if st < 23 else 236 + 4 * (st - 23)
def Rof(st): return Uof(st) + 4 if st < 23 else Fof(st)
bSD, bOA, bWK, bWD, bW2D, bP2R, bRD, bHB, bHO, bWA = 1, 4, 8, 10, 12, 14, 17, 20, 22, 24
ACC = 32

DEF = dict(D=4, CX=70, CK=150, CF=100, L1F=7, ALLF=12, CQ=140, CW=90, CS=60, SLACK=600, TSLOT=38, TFRAG=68, XPRE=12, B0AT=16,
           PUBALL=99, PUBLAT=500, LAG=10, LAGV=8, KVLAG=16, B0=4, B1=6, B2=6, B3=6, FLAG=26,
           AFIN=0, TWO=0, NR=12, ST4=2, GOM=1, NSPL=12, DM='s0e', RUSH=8, NK=4, PXAT=14, DYN=1, CE=6, CE2=4, X3AT=0, SYAT=8, DPRE=24, D0=0, DSPREAD=3, PLEAD=8, NLAST=3, NS=6, OUTM=0, PRIO=0, NOW2=3, SL1=2, SL2=3,
           LIM=80, LIM0=999, LIMOFF=14, SPF=8, PFO=5, L1N=1, VPFF=0, SPF0=0, SPFC=180, ROTX=1, WROT=0, LEADF=10, LEADK=21, LSTEP=0, XSLACK=100, BPRIO=0, KPRI=1, FKS=64, NI=4, LM=0, KVD=6, KPRE=2, RESE=0, CL=120, LIMFROM=7, QN=6, SYNCF=1, SYNCK=0, RESAT=26)

class Gen:
    def __init__(self, stamps=False, probe=None, opt=None):
        self.probe = probe; self.o = dict(DEF); self.o.update(opt or {})
        self.sm = self.fm = ' sc1'; self.lm = '' if self.o['LM'] else ' sc1'
        self.stamps = stamps; self.nlab = 0; self.parts = []
    def new(self):
        x = Asm(); x.guard = False; x.pending = None; x.m0 = None; x.so2 = None; return x
    def lab(self, p):
        self.nlab += 1; return f"L_{p}_{self.nlab}"
    def stamp(self, x, k):
        if self.probe == (x.tag, k): x("s_memrealtime s[100:101]")
        if not self.stamps or self.o.get('LIGHT'): return
        if x.pending is not None: x(f"v_writelane_b32 v5, s100, {x.pending}\nv_writelane_b32 v5, s0, {32+x.pending}")
        x(f"s_memtime s[100:101]\ns_memrealtime s[0:1]")
        x.pending = k
    def flush_stamp(self, x):
        if self.stamps and x.pending is not None:
            x.wait_all(lg=True); x(f"v_writelane_b32 v5, s100, {x.pending}\nv_writelane_b32 v5, s0, {32+x.pending}"); x.pending = None
    def srd(self, x, r, p, size):
        x(f"s_mov_b32 {s(r)}, {s(p)}\ns_mov_b32 {s(r+1)}, {s(p+1)}\ns_mov_b32 {s(r+2)}, {size}\ns_mov_b32 {s(r+3)}, 0x20000")
    def lines(self, x, q, text): q.extend([(lambda l=l: x(l)) for l in text.split("\n")])
    def ids(self, x):
        x(f"s_bfe_u32 {s(sT0)}, s2, 0x10002\ns_lshl1_add_u32 {s(sRB2)}, {s(sI)}, {s(sT0)}")
        x(f"s_and_b32 {s(sJ)}, {s(sCS)}, 3\ns_lshl2_add_u32 {s(sJ)}, {s(sT0)}, {s(sJ)}\ns_lshr_b32 {s(sROLE)}, {s(sCS)}, 2")
    def rot_step(self, x):
        x(f"s_add_u32 {s(sROT)}, {s(sROT)}, 1\ns_cmp_eq_u32 {s(sROT)}, 7\ns_cselect_b32 {s(sROT)}, 0, {s(sROT)}")
    def poll_issue(self, x, n, base, off=0):
        x(f"s_load_dword{'x%d' % n if n > 1 else ''} {s(sP, n)}, {s(base, 2)}, {off} glc")
    def poll_check(self, x, n, base, off, bit, cnt=None):
        L = self.lab("poll"); E = self.lab("pend"); y = self.slow
        def cond(x):
            regs = list(range(sP, sP + (cnt or n), 2))
            while len(regs) > 1:
                r = regs.pop(); x(f"s_and_b64 {s(regs[0],2)}, {s(regs[0],2)}, {s(r,2)}")
            if n > 1: x(f"s_and_b32 {s(sP)}, {s(sP)}, {s(sP+1)}")
            x(f"s_and_b32 {s(sP)}, {s(sP)}, {bit}")
        x.wait_all(lg=True)
        cond(x)
        x(f"s_cbranch_scc0 {L}\n{E}:")
        y(f"{L}:\ns_mov_b32 {s(sCNT)}, 0\n{L}_l:")
        if self.o['SL1']: y(f"s_sleep {self.o['SL1']}")
        self.poll_issue(y, n, base, off)
        y.wait_all(lg=True)
        cond(y)
        y(f"s_cbranch_scc1 {E}")
        y(f"s_add_u32 {s(sCNT)}, {s(sCNT)}, 1\ns_cmp_lt_u32 {s(sCNT)}, {SPIN}\ns_cbranch_scc1 {L}_l\ns_branch {E}")
    def go_load(self):
        a = self.a
        a(f"v_and_b32 {v(vGO)}, {4 * self.o['NI'] - 1}, {v(vL)}\nv_lshlrev_b32 {v(vGO)}, 2, {v(vGO)}")
        self.tgo = a.vm(f"global_load_dword {v(vGO)}, {v(vGO)}, {s(sDBG,2)}{' sc1' if self.o['GOM'] else ''}")
        return 3
    def go_check(self):
        a = self.a; E = self.lab("go"); L = self.lab("gol")
        assert self.b_alive
        a.wait(vm=self.tgo)
        a(f"v_cmp_eq_u32 vcc, 0, {v(vGO)}\ns_cbranch_vccnz {L}\n{E}:")
        y = self.slow
        y(f"{L}:\ns_mov_b32 {s(sP)}, 0\n{L}_l:\ns_sleep 8")
        y(f"v_and_b32 {v(vGO)}, {4 * self.o['NI'] - 1}, {v(vL)}\nv_lshlrev_b32 {v(vGO)}, 2, {v(vGO)}")
        y.vm(f"global_load_dword {v(vGO)}, {v(vGO)}, {s(sDBG,2)} sc1"); y.wait_all(vm=True)
        y(f"v_cmp_eq_u32 vcc, 0, {v(vGO)}\ns_cbranch_vccz {E}")
        y(f"s_add_u32 {s(sP)}, {s(sP)}, 1\ns_cmp_lt_u32 {s(sP)}, {SPIN}\ns_cbranch_scc1 {L}_l\ns_branch {E}")
        return 3

    def set_m0(self, x, off):
        if x.m0 is not None and -32768 <= off - x.m0 <= 32767: x(f"s_addk_i32 m0, {off - x.m0}")
        else: x(f"s_add_u32 m0, {s(sRB)}, {off}")
        x.m0 = off
    def set_so2(self, base, off):
        b = self.b
        if b.so2 and b.so2[0] == base and -32768 <= off - b.so2[1] <= 32767: b(f"s_addk_i32 {s(sSO2)}, {off - b.so2[1]}")
        else: b(f"s_add_u32 {s(sSO2)}, {s(base)}, {off}")
        b.so2 = (base, off)
    def q_reset(self):
        self.dq = deque(); self.tick = {}; self.slot = {}; self.free = list(range(14, 20)); self.est = {}
        self.w2_issued = []; self.mv_next = 0; self.mv_sub = 0; self.mv_t = {}; self.mv_freed = set()
        self.wfree = [96 + 8 * k for k in range(self.o['NR'] // 2, 12 if self.o['TWO'] else 20)]; self.wreg = {}; self.wkeep = False
        self.pub = -1; self.lastread = {}; self.allread = set(); self.reserve = []; self.hold = {14, 15, 16, 17} if self.role == 'k' else set()
        self.forced = 0; self.publag = []; self.b_alive = True; self.hook = None; self.w2pre = 0; self.vpf = False; self.kvst = None; self.blines = {}; self.lim = self.o['LIM']; self.b_gone = False; self.kx_done = False
    def enq(self, key):
        b = self.b; kind = key[0]
        def dma(pre, vaddr, srd, so, off, last=None):
            def f():
                if pre: pre()
                self.throttle(16 if self.heavy(key) else 8, self.o['LIM0'] if (key[:2] == ('p', 0) or self.pub < self.o['LIMFROM']) else self.lim)
                self.tick[key] = b.vm(f"buffer_load_dwordx4 {v(vaddr)}, {s(srd,4)}, {s(so)} offen offset:{off} lds")
                if last: last()
            return f
        if kind == 'p':
            _, p, e = key
            kt, va, srd = sK1 + e, (bWK if p < 2 else bWD), rW
            def pre(): self.set_m0(b, self.slot[key] * 2048); b(f"s_add_u32 {s(sSO)}, {s(sCOL+p)}, {s(kt)}")
            ops = [dma(pre, va, srd, sSO, 0), dma(None, va + 1, srd, sSO, 1024)]
        elif kind == 's':
            def pre(e):
                def f(): self.set_m0(b, self.slot[key] * 2048 + (e & 1) * 1024); b(f"s_add_u32 {s(sSO)}, {s(sSGL)}, {s(sK1+e)}")
                return f
            ops = [dma(pre(e), bSD, rW, sSO, 0) for e in (2 * key[1], 2 * key[1] + 1) if e < 7]
        elif kind == 'w':
            t = key[1]
            def pre():
                self.set_m0(b, self.slot[key] * 2048)
                if t < 12: self.set_so2(sW2B, (32 * (t // 4) + t % 4) * 14336)
                elif t < 14: self.set_so2(7, (t - 12) * 14336)
                elif t < 21: self.set_so2(sWOB, (t - 14) * 14336)
                elif t < 33: self.set_so2(4, (32 * ((t - 21) // 4) + (t - 21) % 4) * 14336)
                else: self.set_so2(5, (t - 33) * 14336)
            srd = rWO if 14 <= t < 21 else rW2
            ops = [dma(pre, bW2D, srd, sSO2, 0), dma(None, bW2D + 1, srd, sSO2, 1024, lambda: self.w2_issued.append(t))]
        self.dq.append(dict(key=key, ops=deque(ops)))
    def cost(self, key):
        o = self.o
        if key[0] == 'w' and key[1] in self.lead: return o['CL']
        return {'s': o['CQ'], 'w': o['CW']}.get(key[0]) or (o['CK'] if self.heavy(key) else o['CF'])
    def heavy(self, key): return key[0] == 's' or (key[0] == 'p' and self.role == 'k' and key[1] < 2)
    def throttle(self, lines, lim):
        b = self.b
        tot = lines; t = b.vm_issued
        while t > b.vm_done and tot + self.blines.get(t, 8) <= lim: tot += self.blines.get(t, 8); t -= 1
        b.wait(vm=t)
        self.blines[b.vm_issued + 1] = lines
    def dma_ready(self):
        return bool(self.dq) and (self.dq[0].get('started') or len(self.cand()) > 0)
    def cand(self):
        k = self.dq[0]['key']
        return [f for f in self.free if not (k[0] == 'w' and self.worder.index(k[1]) >= self.o.get('HIOK', 8) and f > 10)]
    def dma_one(self):
        it = self.dq[0]
        if not it.get('started'): it['started'] = True; f = self.cand()[0]; self.free.remove(f); self.slot[it['key']] = f
        self.vclk += self.cost(it['key']); self.est[it['key']] = self.vclk
        it['ops'].popleft()()
        if self.pub >= self.o['SPF0']: self.pfacc += self.cost(it['key']) / self.o['SPFC']
        while self.pfacc >= 1: self.spf(1); self.pfacc -= 1
        if not it['ops']: self.dq.popleft()
        self.kv_flag(self.b)
        left = sum(1 for it in self.dq if it['key'][0] != 'w')
        vp = self.o.get('VPF' + self.role.upper())
        if vp is not None and not self.vpf and left <= vp and not self.dq[0].get('started'):
            b = self.b; self.vpf = True; both = self.o.get('VPFK') is not None
            n2, no = (14, 4) if both else (25, 7)
            b(f"s_lshl2_add_u32 {s(sT2)}, s2, {s(sWV)}\ns_mul_i32 {s(sT0)}, {s(sT2)}, {n2}\ns_mul_i32 {s(sT1)}, {s(sT2)}, {no}")
            b(f"v_min_u32 v66, {n2-1}, {v(vL)}\nv_add_lshl_u32 v66, v66, {s(sT0)}, 7\nv_min_u32 v67, {no-1}, {v(vL)}\nv_add_lshl_u32 v67, v67, {s(sT1)}, 7")
            self.blines[b.vm(f"buffer_load_dword v66, v66, {s(rW2,4)}, 0 offen")] = n2
            b.vm(f"buffer_load_dword v67, v67, {s(rWO,4)}, 0 offen")
    def issued(self, key): return key in self.tick and not any(it['key'] == key for it in self.dq)
    def mv_ready(self, lag):
        if self.mv_sub: return True
        if self.mv_next >= len(self.w2_issued) or not self.wfree: return False
        t = self.w2_issued[self.mv_next]
        return self.b.vm_issued - self.tick['w', t] >= lag or self.tick['w', t] <= self.b.vm_done
    def mv_one(self):
        b = self.b; t = self.w2_issued[self.mv_next]; c = 1
        if self.mv_sub == 0:
            self.wfree.sort(); self.wreg[t] = self.wfree.pop(0)
            c += bool(b.wait(vm=self.tick['w', t]))
        T, rd = self.mv_sub >> 1, self.mv_sub & 1
        self.mv_t[t] = b.ds(f"ds_read_b64_tr_b16 {v(self.wreg[t]+4*T+2*rd, 2)}, {v(bP2R+T)} offset:{self.slot['w', t]*2048 + rd*1024}")
        self.mv_sub += 1
        if self.mv_sub == 4: self.mv_sub = 0; self.mv_next += 1
        return c
    def mv_release(self):
        for k in range(self.mv_next):
            t = self.w2_issued[k]
            if t not in self.mv_freed and self.mv_t[t] <= self.b.lg_done:
                self.mv_freed.add(t); self.free.append(self.slot['w', t])
    def b_advance(self):
        b = self.b; o = self.o
        self.vclk = max(self.vclk, self.tprev)
        while self.dq and self.vclk <= self.clk + o['SLACK'] and not (o.get('NOW2', 0) & (1 if self.role == 'f' else 2) and self.dq[0]['key'][0] == 'w' and self.dq[0]['key'][1] not in self.lead):
            self.mv_release()
            if not self.dma_ready():
                if len(self.mv_freed) < self.mv_next:
                    b.wait(lg=self.mv_t[self.w2_issued[len(self.mv_freed)]]); continue
                if self.mv_ready(o.get('LAGMIN', 4)):
                    for k in range(4): self.mv_one()
                    continue
                break
            self.dma_one()
            if self.mv_ready(o['LAG']):
                for k in range(4): self.mv_one()
    def barrier(self, vm=None):
        if self.b_alive:
            self.kv_flag(self.b, force=True)
            self.b.wait(vm=vm); self.b("s_barrier")
        self.a("s_barrier"); self.tprev = self.clk
        for k, t in list(self.lastread.items()):
            if k in self.allread and t <= self.a.lg_done:
                del self.lastread[k]
                (self.reserve if self.slot[k] in self.hold and k[0] == 'p' else self.free).append(self.slot[k])
    def sync(self, slack=None):
        keep = self.o['SLACK']
        if slack is not None: self.o['SLACK'] = slack
        self.publish(None); self.o['SLACK'] = keep
    def publish(self, c):
        if not self.b_alive:
            assert c is None and self.b_gone
            self.barrier(); return
        self.b_advance()
        if (c if c is not None else 99) >= self.o.get('ALL' + self.role.upper(), 99):
            while self.dma_ready() and self.dq[0]['key'][0] != 'w': self.dma_one()
            self.vclk = min(self.vclk, self.clk)
            for k in self.est: self.est[k] = min(self.est[k], self.clk - (0 if c is not None else self.o['PUBLAT']))
        if self.dq and self.dq[0]['key'][0] == 'w' and c is None:
            keep, self.lim = self.lim, 999
            while self.w2pre < self.o.get('W2PRE' + self.role.upper(), 0) and self.dma_ready() and len(self.free) + bool(self.dq[0].get('started')) > (self.role == 'k'):
                self.dma_one(); self.w2pre += 1
            self.lim = keep
        if c is not None:
            while not self.issued(self.cons[c]):
                assert self.dma_ready(), ("cannot publish", c)
                self.dma_one(); self.forced += 1
        if not self.hook and self.pub >= self.o['SPF0']: self.spf(self.o.get('SPFB' + self.role.upper(), 0))
        tgt = self.pub if c is None else c
        force_all = c is not None and c >= self.o['PUBALL']
        while (c != 0 and tgt + 1 < len(self.cons) and self.issued(self.cons[tgt + 1])
               and (force_all or self.est[self.cons[tgt + 1]] + self.o['PUBLAT'] <= self.clk)): tgt += 1
        tk = max(self.tick[k] for k in self.cons[:tgt + 1])
        self.publag.append((tgt, self.b.vm_issued - tk))
        self.barrier(vm=tk)
        if self.hook: h, self.hook = self.hook, None; h()
        self.pub = tgt
        if c is None: self.syncs_left -= 1
        if tgt + 1 == len(self.cons) and self.syncs_left == 0: self.on_all_published()

    def frag_list(self, role):
        fr = []
        for stage, p in enumerate((0, 1, 2, None) if role == 'f' else (0, 1, 2)):
            for st in range(28):
                if p is None:
                    e = st // 4
                    fr.append(dict(key=('s', e // 2), addr=vSR + (st & 3), sub=(e & 1) * 1024, rd=256, stage=stage, s=st, T=0))
                else:
                    for T in range(2):
                        base = vSR if (role, p, T) == ('k', 2, 1) else vWR + 4 * T
                        fr.append(dict(key=('p', p, st // 4), addr=base + (st & 3), sub=0, rd=512, stage=stage, s=st, T=T))
        if role == 'k' and self.o.get('QSEQ', 1):
            q = [f for f in fr if f['stage'] == 2]
            fr = [f for f in fr if f['stage'] < 2] + [f for f in q if f['T'] == 0] + [f for f in q if f['T'] == 1]
        self.cons = []
        for f in fr:
            if f['key'] not in self.cons: self.cons.append(f['key'])
        for f in fr: f['c'] = self.cons.index(f['key'])
        self.fr = fr
    def read_frag(self, n):
        a = self.a
        if n >= len(self.fr): return
        f = self.fr[n]
        if f['c'] > self.pub: self.publish(f['c'])
        r = RINGB + 4 * (n % RING); off = self.slot[f['key']] * 2048 + f['sub']
        a.ds(f"ds_read_b64_tr_b16 {v(r,2)}, {v(f['addr'])} offset:{off}")
        f['t'] = a.ds(f"ds_read_b64_tr_b16 {v(r+2,2)}, {v(f['addr'])} offset:{off+f['rd']}")
        self.lastread[f['key']] = f['t']
        if not any(g['key'] == f['key'] for g in self.fr[n + 1:]): self.allread.add(f['key'])
    def pop(self, fillers):
        n0 = self.a.vm_issued
        r = fillers.popleft()() or 1
        if self.a.vm_issued > n0: self.vclk += self.o['CS']
        return r
    def fill(self, fillers, budget):
        self.clk += self.o['TSLOT'] + 4 * max(0, min(budget, len(fillers)) - 4)
        while fillers and budget > 0: budget -= self.pop(fillers)
    def run_stage(self, stage, acc, swap, fillers, budget=4, pre=None, forced=None, minfill=0, finish=0, syncs=()):
        a = self.a; D = self.o['D']
        idx = [n for n, f in enumerate(self.fr) if f['stage'] == stage]
        for line in (pre or []):
            a(line); self.fill(fillers, budget + 2)
        for k, n in enumerate(idx):
            f = self.fr[n]
            a.wait(lg=f['t'])
            w = v(RINGB + 4 * (n % RING), 4); x = v(Fof(f['s']), 4)
            c = acc(f['T']) if (pre or f['s'] > 0) else "0"
            a(f"v_mfma_f32_32x32x16_bf16 {acc(f['T'])}, {x if swap else w}, {w if swap else x}, {c}")
            if k in syncs: self.sync()
            self.read_frag(n + D)
            last = (n % 2 == 1)
            fl = forced(f['s'], f['T']) if forced else []
            self.fill(fillers, budget - len(fl) - (1 if last else 0))
            for g in fl: g()
            left = max(0, len(idx) - k - 1 - finish)
            while fillers and minfill and len(fillers) > left * minfill: self.pop(fillers); self.clk += 2
            fs = self.o.get('FSTEP', 5)
            if self.o.get('FINE') == stage and k % fs == 0 and 19 + k // fs < 32: self.stamp(a, 19 + k // fs)
            if last and n + 2 < len(self.fr): a.wait(lg=self.fr[n + 2]['t'])
    def cvt_forced(self, st, T):
        a = self.a; n = st + 2
        if not 8 <= n < 23: return []
        return [lambda d=d: a(f"v_cvt_pk_bf16_f32 {v(Fof(n)+d)}, {v(Uof(n)+2*d)}, {v(Uof(n)+2*d+1)}") for d in ((0, 1) if T == 0 else (2, 3))]
    def g3_ops(self):
        ops = []
        for st in range(23, 28):
            for d in range(4):
                r = Fof(st) + d; t0, t1 = (1, 4) if d & 1 else (7, vGO)
                self.lines(self.a, ops, f"v_lshlrev_b32 v{t0}, 16, {v(r)}\nv_and_b32 v{t1}, {s(sMSK)}, {v(r)}\nv_fma_f32 v{t0}, v{t0}, v2, v3\nv_fma_f32 v{t1}, v{t1}, v2, v3\nv_cvt_pk_bf16_f32 {v(r)}, v{t0}, v{t1}")
        return ops
    def phi_ops(self, src, dst=None):
        a = self.a; ops = []
        for d in range(8):
            t0 = TMP + 2 * (d & 1)
            for k in range(2):
                x = src + 2 * d + k
                self.lines(a, ops, f"v_mul_f32 {v(t0+k)}, {s(aL2E)}, {v(x)}")
                def ex(e=t0+k):
                    a(f"v_exp_f32_e64 {v(e)}, {v(e)} clamp"); return 2
                ops.append(ex)
                self.lines(a, ops, f"v_max_f32 {v(x)}, {s(aEPS)}, {v(x)}\nv_add_f32 {v(t0+k)}, {v(t0+k)}, {v(x)}")
            self.lines(a, ops, f"v_cvt_pk_bf16_f32 {v((dst or src)+d)}, {v(t0)}, {v(t0+1)}")
        return ops

    def entry(self):
        p = self.new(); p.tag = 'p'
        p(f"{NAME}_kernel:")
        p("s_cmp_ge_u32 s2, 256\ns_cbranch_scc1 L_end")
        if self.stamps: p("s_memrealtime s[78:79]\ns_memtime s[80:81]")
        if self.probe is not None: p("s_memrealtime s[100:101]")
        p("s_load_dwordx16 s[4:19], s[0:1], 0\ns_load_dwordx4 s[20:23], s[0:1], 64\ns_load_dwordx2 s[24:25], s[0:1], 80")
        p("s_getpc_b64 s[98:99]\nL_pc:")
        p(f"s_lshr_b32 {s(sT1)}, s2, 3\ns_lshl_b32 s3, {s(sT1)}, 7")
        p("v_lshrrev_b32 v1, 5, v0\nv_lshl_add_u32 v1, v1, 12, s3")
        p("v_min_u32 v1, L_last - L_pc, v1")
        p.vm(f"global_load_dword {v(vGO)}, v1, s[98:99]")
        p(f"v_lshrrev_b32 v1, 6, v0\nv_and_b32 {v(vL)}, 63, v0")
        p(f"v_readfirstlane_b32 s99, v1")
        p(f"s_and_b32 {s(sT2)}, {s(sT1)}, 3\ns_lshr_b32 {s(sCS)}, {s(sT1)}, 2")
        p(f"s_and_b32 {s(sI)}, s2, 3\ns_lshl2_add_u32 {s(sI)}, {s(sI)}, {s(sT2)}")
        p(f"s_lshl1_add_u32 {s(sROT)}, {s(sT2)}, {s(sCS)}")
        p(f"s_cmp_ge_u32 {s(sROT)}, 7\ns_cselect_b32 {s(sT0)}, 7, 0\ns_sub_u32 {s(sROT)}, {s(sROT)}, {s(sT0)}")
        if self.o['ROTX']:
            p(f"s_and_b32 {s(sT0)}, s2, 1\ns_add_u32 {s(sROT)}, {s(sROT)}, {s(sT0)}\ns_cmp_eq_u32 {s(sROT)}, 7\ns_cselect_b32 {s(sROT)}, 0, {s(sROT)}")
        p(f"s_and_b32 {s(sWV)}, s99, 3\ns_mul_i32 {s(sRB)}, {s(sWV)}, {REG}")
        p(f"v_lshrrev_b32 v6, 3, {v(vL)}\nv_and_b32 v7, 7, {v(vL)}\nv_lshlrev_b32 {v(vL16)}, 4, {v(vL)}")
        p("s_cmp_ge_u32 s99, 4\ns_cbranch_scc1 L_B")
        return p
    def after_args(self, x):
        x.wait_all(lg=True)
        if self.probe is not None: x("s_mov_b32 s0, s100")
        if self.stamps: x("v_writelane_b32 v5, s78, 18\nv_writelane_b32 v5, s80, 0\nv_writelane_b32 v5, s99, 63")
        self.stamp(x, 1)

    def b_prologue(self):
        b = self.new(); b.tag = 'b'; b.vm_issued = 1
        b("L_B:")
        self.ids(b)
        b(f"s_movk_i32 {s(sT0)}, 3584\ns_cselect_b32 {s(sRS)}, 2688, {s(sT0)}\ns_cselect_b32 {s(sCNT)}, 6, 7\ns_cbranch_scc1 L_Bck")
        b(f"s_lshl_b32 {s(sCOL)}, {s(sJ)}, 7\ns_add_u32 {s(sCOL+1)}, {s(sCOL)}, 1024\ns_add_u32 {s(sCOL+2)}, {s(sCOL)}, 2048\ns_branch L_Bcd\nL_Bck:")
        b(f"s_mul_i32 {s(sCOL)}, {s(sJ)}, 112\ns_add_u32 {s(sCOL+1)}, {s(sCOL)}, 1792\ns_addk_i32 {s(sCOL)}, 896\ns_lshl_b32 {s(sCOL+2)}, {s(sJ)}, 7\nL_Bcd:")
        b(f"s_mul_i32 {s(sT0)}, {s(sWV)}, {s(sRS)}\ns_lshl_b32 {s(sT0)}, {s(sT0)}, 4\ns_lshl_b32 {s(sSGL)}, {s(sJ)}, 6\ns_addk_i32 {s(sSGL)}, 3072")
        for r in (sCOL, sCOL + 1, sCOL + 2, sSGL): b(f"s_add_u32 {s(r)}, {s(r)}, {s(sT0)}")
        b(f"s_lshl_b32 {s(sT1)}, {s(sRS)}, 6")
        for n in range(7):
            if n: self.rot_step(b)
            b(f"s_mul_i32 {s(sK1+n)}, {s(sROT)}, {s(sT1)}")
        b(f"v_and_b32 v32, 2, v6\nv_lshlrev_b32 v32, 1, v32\nv_xor_b32 v32, v7, v32\nv_lshlrev_b32 v33, 4, v32")
        b(f"v_mul_u32_u24 v34, 896, v6\nv_add_u32 {v(bW2D)}, v34, v33\nv_add_u32 {v(bW2D+1)}, 6144, {v(bW2D)}")
        b(f"s_lshl_b32 {s(sT0)}, {s(sRS)}, 3\ns_addk_i32 {s(sT0)}, -1024")
        b(f"v_mul_u32_u24 v34, {s(sRS)}, v6\nv_add_u32 {v(bWD)}, v34, v33\nv_add_u32 {v(bWD+1)}, {s(sT0)}, {v(bWD)}")
        b(f"v_min_u32 v32, {s(sCNT)}, v32\nv_lshl_add_u32 {v(bWK)}, v32, 4, v34\nv_add_u32 {v(bWK+1)}, {s(sT0)}, {v(bWK)}")
        self.after_args(b)
        b(f"s_cmp_ge_u32 s2, {256 - self.o['NI']}\ns_cbranch_scc1 L_init\nL_noinit:")
        self.b = b
        self.b_main_setup()
        b(f"s_cmp_ge_u32 s2, {256 - self.o['NI']}\ns_cbranch_scc1 L_go\nL_gone:")
        if self.o['BPRIO']: b(f"s_setprio {self.o['BPRIO']}")
        b(f"s_cmp_lg_u32 {s(sROLE)}, 0\ns_cbranch_scc1 L_Bk")
        return b
    def spf(self, n):
        for k in range(n):
            if self.pfq: self.b(self.pfq.popleft())
    def b_main_setup(self):
        b = self.b; o = self.o
        self.pfq = deque()
        if o['SPF']:
            b(f"s_lshr_b32 {s(sT0)}, s2, 3\ns_and_b32 {s(sT1)}, s2, 3\ns_lshl2_add_u32 {s(sT0)}, {s(sT0)}, {s(sT1)}\ns_lshl2_add_u32 {s(sT0)}, {s(sT0)}, {s(sWV)}\ns_min_u32 {s(sT0)}, {s(sT0)}, 447")
            b(f"s_bfe_u32 {s(sT1)}, s2, 0x10002")
            b(f"s_mul_i32 {s(sT2)}, {s(sT0)}, 2688\ns_mul_i32 {s(sCNT)}, {s(sT1)}, 384\ns_add_u32 {s(sT2)}, {s(sT2)}, {s(sCNT)}\ns_add_u32 s82, {s(sWQ)}, {s(sT2)}\ns_addc_u32 s83, {s(sWQ+1)}, 0")
            L = lambda base, off, n: [f"s_load_dwordx2 s[80:81], {s(base,2)}, {off + 128*k + 60}" for k in range(n)]
            parts = dict(k=L(82, 896, 4), a=L(84, 0, 4), v=L(82, 1792, 4), b=L(84, 1024, 4), q=L(82, 0, 4), c=L(84, 2048, 4), s=L(86, 0, 2),
                         x=L(88, 0, 4), y=L(88, 458752, 4), z=L(88, 2 * 458752, 4), w=L(14, 0, 2), o=L(58, 0, 4))
            for ch in ["kabvcqsxyzwo", "kaxyzwo", "xyzwo", "kabvxyzwo", "kabxvcyqszwo", "ka", "kabv"][o.get('PFO', 0)]: self.pfq.extend(parts[ch])
            b(f"s_mul_i32 {s(sT2)}, {s(sT0)}, 3584\ns_lshl_b32 {s(sCNT)}, {s(sT1)}, 9\ns_add_u32 {s(sCNT)}, {s(sT2)}, {s(sCNT)}\ns_add_u32 s84, {s(sW1)}, {s(sCNT)}\ns_addc_u32 s85, {s(sW1+1)}, 0")
            b(f"s_lshl_b32 {s(sCNT)}, {s(sT1)}, 8\ns_add_u32 {s(sCNT)}, {s(sT2)}, {s(sCNT)}\ns_addk_i32 {s(sCNT)}, 3072\ns_add_u32 s86, {s(sW1)}, {s(sCNT)}\ns_addc_u32 s87, {s(sW1+1)}, 0")
            b(f"s_lshl1_add_u32 {s(sT0)}, {s(sT0)}, {s(sT1)}\ns_lshl_b32 {s(sT2)}, {s(sT0)}, 9\ns_add_u32 s88, {s(sW2)}, {s(sT2)}\ns_addc_u32 s89, {s(sW2+1)}, 0")
            b(f"s_lshl_b32 {s(sT2)}, {s(sT0)}, 8\ns_add_u32 {s(sT2)}, {s(sT2)}, {3*458752}\ns_add_u32 s14, {s(sW2)}, {s(sT2)}\ns_addc_u32 s15, {s(sW2+1)}, 0")
            b(f"s_mul_i32 {s(sT2)}, {s(sT0)}, 448\ns_and_b32 {s(sT2)}, {s(sT2)}, 0xffffff80\ns_add_u32 s58, {s(sWO)}, {s(sT2)}\ns_addc_u32 s59, {s(sWO+1)}, 0")
            self.spf(o.get('SPFE', 7))
        if o.get('TLB'):
            b(f"s_lshr_b32 {s(sT0)}, s2, 3\ns_and_b32 {s(sT0)}, {s(sT0)}, 1\ns_lshl2_add_u32 {s(sT0)}, {s(sT0)}, {s(sWV)}\ns_lshl_b32 {s(sT0)}, {s(sT0)}, 21\ns_add_u32 {s(sT0)}, {s(sT0)}, {0xFFF00}")
            b(f"s_load_dword s80, {s(sWS,2)}, {s(sT0)}\ns_load_dword s80, {s(sOUT,2)}, 0\ns_load_dword s80, {s(sW2,2)}, 0\ns_load_dword s80, {s(sWO,2)}, 0\ns_load_dword s80, {s(sB2,2)}, 0")
            if not o['SPF']: b(f"s_load_dword s80, {s(sB1,2)}, 0\ns_load_dword s80, {s(sW1,2)}, 0\ns_load_dword s80, {s(sWQ,2)}, 0")
        b(f"s_cmp_eq_u32 {s(sROLE)}, 0\ns_cselect_b32 {s(rW)}, {s(sW1)}, {s(sWQ)}\ns_cselect_b32 {s(rW+1)}, {s(sW1+1)}, {s(sWQ+1)}\ns_mul_i32 {s(rW+2)}, {s(sRS)}, 448\ns_mov_b32 {s(rW+3)}, 0x20000")
        b(f"s_cmp_lt_u32 {s(sCS)}, 7")
        b(f"s_mov_b32 {s(rW2)}, {s(sW2)}\ns_mov_b32 {s(rW2+1)}, {s(sW2+1)}\ns_cselect_b32 {s(rW2+2)}, {1792*896}, 0\ns_mov_b32 {s(rW2+3)}, 0x20000")
        b(f"s_mov_b32 {s(rWO)}, {s(sWO)}\ns_mov_b32 {s(rWO+1)}, {s(sWO+1)}\ns_cselect_b32 {s(rWO+2)}, {448*896}, 0\ns_mov_b32 {s(rWO+3)}, 0x20000")
        self.srd(b, rWS, sWS, WS_SIZE)
        b(f"s_mov_b64 s[8:9], {s(sDBG,2)}")
        self.srd(b, rX, sX, 1835008); self.srd(b, rOUT, sOUT, 1835008); self.srd(b, rB2, sB2, 896)
        b(f"s_lshl_b32 {s(sT0)}, {s(sCS)}, 7")
        b(f"s_and_b32 s11, s2, 4\ns_add_u32 s11, s11, {s(sWV)}")
        b(f"s_mul_i32 {s(sW2B)}, s11, {4*14336}\ns_add_u32 {s(sW2B)}, {s(sW2B)}, {s(sT0)}")
        b(f"s_mul_i32 s7, s11, {2*14336}\ns_add_u32 s7, s7, {s(sT0)}\ns_add_u32 s7, s7, {96*14336}")
        b(f"s_xor_b32 s6, s11, 4\ns_mul_i32 s4, s6, {4*14336}\ns_add_u32 s4, s4, {s(sT0)}\ns_mul_i32 s5, s6, {2*14336}\ns_add_u32 s5, s5, {s(sT0)}\ns_add_u32 s5, s5, {96*14336}")
        b(f"s_mul_i32 {s(sWOB)}, {s(sWV)}, {112*896}\ns_add_u32 {s(sWOB)}, {s(sWOB)}, {s(sT0)}")
        b(f"s_mov_b32 {s(sMSK)}, 0xffff0000\ns_mov_b32 s16, 32768\ns_mov_b32 s17, 65536\ns_lshl_b32 s18, s11, 11\ns_sub_u32 s18, {96*1024}, s18")
        b(f"s_mul_i32 s19, {s(sWV)}, 7168\ns_add_u32 s19, s19, {112*1024}\ns_lshl_b32 s20, s11, 12\ns_sub_u32 s19, s19, s20\ns_add_u32 s20, s19, 4096")
        b(f"s_lshl2_add_u32 s21, s2, {s(sWV)}\ns_lshl_b32 s21, s21, 11\ns_add_u32 s21, s21, {WS_PX}\ns_lshl2_add_u32 s22, {s(sCS)}, 32")
        b(f"s_lshr_b32 {s(sTG)}, {s(sWV)}, 1\ns_lshl1_add_u32 {s(sTG)}, {s(sRB2)}, {s(sTG)}")
        b(f"s_and_b32 {s(sT1)}, {s(sWV)}, 1\ns_lshl_b32 {s(sT1)}, {s(sT1)}, 6\ns_add_u32 {s(sCB)}, {s(sT0)}, {s(sT1)}")
        b(f"s_mul_i32 {s(sXB)}, {s(sTG)}, {32*896}\ns_add_u32 {s(sXB)}, {s(sXB)}, {s(sCB)}\ns_add_u32 {s(sXB2)}, {s(sXB)}, {16*896}")
        b(f"v_lshrrev_b32 v7, 2, {v(vL)}\nv_and_b32 v6, 3, {v(vL)}\nv_lshlrev_b32 v6, 4, v6")
        b(f"v_mul_u32_u24 {v(bOA)}, 896, v7\nv_add_u32 {v(bOA)}, {v(bOA)}, v6\nv_mul_u32_u24 {v(bSD)}, 3584, v7\nv_add_u32 {v(bSD)}, {v(bSD)}, v6")
        b(f"v_mul_u32_u24 {v(bRD)}, 68, v6\nv_lshl_add_u32 {v(bRD)}, v7, 4, {v(bRD)}\nv_add_u32 {v(bRD)}, {s(sRB)}, {v(bRD)}\nv_add_u32 {v(bRD)}, {XO}, {v(bRD)}")
        b(f"v_lshrrev_b32 v32, 5, {v(vL)}\nv_bfe_u32 v33, {v(vL)}, 2, 2\nv_lshrrev_b32 v34, 1, v6\nv_bfe_u32 v35, {v(vL)}, 4, 1\nv_lshl_add_u32 v34, v35, 5, v34")
        b(f"v_and_b32 v35, 2, v33\nv_lshlrev_b32 v35, 5, v35\nv_xor_b32 v34, v34, v35\nv_lshl_add_u32 v32, v32, 2, v33\nv_lshl_add_u32 v32, v32, 7, v34")
        b(f"v_xor_b32 v32, {s(sT1)}, v32\nv_add_u32 {v(bP2R)}, {s(sRB)}, v32\nv_xor_b32 {v(bP2R+1)}, 64, {v(bP2R)}")
        b(f"s_lshl_b32 {s(sCNT)}, s11, 12")
        for k, r in enumerate((2, 3, 20, 21)):
            b(f"s_xor_b32 {s(sT0)}, {s(sTG)}, {k}\ns_mul_i32 {s(sT0)}, {s(sT0)}, {HS}\ns_add_u32 {s(sT0)}, {s(sT0)}, {s(sCNT)}\nv_add_u32 v{r}, {s(sT0)}, {v(vL16)}")
        for q in range(4):
            b(f"s_xor_b32 {s(sT0)}, {s(sWV)}, {q}\ns_mul_i32 {s(sT0)}, {s(sT0)}, {REG}\ns_add_u32 {s(sT0)}, {s(sT0)}, {XO}\nv_add_u32 {v(bWA+q)}, {s(sT0)}, {v(vL16)}")
        self.spf(o['SPF'] - o.get('SPFE', 7))

    def a_layernorm(self):
        a = self.a; o = self.o
        if o['PRIO']: a(f"s_setprio {o['PRIO']}")
        a(f"s_lshl2_add_u32 {s(sHST)}, {s(sI)}, {s(sWV)}\ns_mul_i32 {s(sXB)}, {s(sHST)}, {32*896}\ns_lshl_b32 {s(sG1)}, {s(sROT)}, 7")
        a(f"v_lshrrev_b32 v8, 1, v6\nv_xor_b32 v8, v7, v8\nv_lshlrev_b32 v8, 4, v8\nv_xor_b32 v9, 64, v8")
        a(f"v_mul_u32_u24 v10, 896, v6")
        a(f"v_add_u32 {v(vXD)}, v10, v8\nv_add_u32 v9, v10, v9")
        a(f"v_add_u32 {v(vXD+1)}, 6144, v9\nv_add_u32 {v(vXD+2)}, {2*6144}, {v(vXD)}\nv_add_u32 {v(vXD+3)}, {3*6144}, v9")
        a("s_mov_b32 s30, 1835008\ns_mov_b32 s31, 0x20000")
        for n in range(1, 3): self.rot_step(a); a(f"s_lshl_b32 {s(sG1+n)}, {s(sROT)}, 7")
        xq = dict(n=0); xk = {}
        def xprep():
            n = xq['n']
            if n < 28 and n % 4 == 0: self.set_m0(a, (n // 4) * 4096); a(f"s_add_u32 {s(sSO)}, {s(sXB)}, {s(sG1+n//4)}")
        def xdma():
            n = xq['n']
            if n >= 28: return
            xk[n // 4] = a.vm(f"buffer_load_dwordx4 {v(vXD+n%4)}, {s(rX,4)}, {s(sSO)} offen offset:{(n%4)*1024} lds")
            xq['n'] += 1
            if xq['n'] != 12: xprep()
        xprep()
        self.after_args(a)
        a("s_mov_b32 s28, s4\ns_mov_b32 s29, s5")
        for k in range(12): xdma()
        for n in range(3, 7): self.rot_step(a); a(f"s_lshl_b32 {s(sG1+n)}, {s(sROT)}, 7")
        xprep()
        self.ids(a)
        self.srd(a, rWS, sWS, WS_SIZE); self.srd(a, rB1, sB1, 3584)
        T0 = 236
        a(f"v_and_b32 v8, 31, {v(vL)}\nv_lshrrev_b32 v10, 5, {v(vL)}")
        a(f"v_bfe_u32 v11, {v(vL)}, 1, 3\nv_xor_b32 v11, v10, v11\nv_lshlrev_b32 v11, 4, v11")
        a(f"v_lshl_add_u32 v11, v8, 7, v11\nv_add_u32 {v(vXR)}, {s(sRB)}, v11")
        for j in range(1, 4): a(f"v_xor_b32 {v(vXR+j)}, {32*j}, {v(vXR)}")
        a(f"s_mov_b32 vcc_lo, 0xf0f00f0f\ns_mov_b32 vcc_hi, vcc_lo\nv_mov_b32 v11, 0x3f803f80")
        for k in range(4): a(f"v_cndmask_b32 {v(48+k)}, 0, v11, vcc" if o['ST4'] < 2 else f"v_mov_b32 {v(48+k)}, v11")
        for r, val in zip(aM, (0xaaaaaaaa, 0xcccccccc, 0xff00ff00, 0xf0f0f0f0, 0xffff0000)): a(f"s_mov_b32 {s(r)}, {val:#x}\ns_mov_b32 {s(r+1)}, {s(r)}")
        a(f"s_mov_b32 {s(sHI)}, 0\ns_mov_b32 {s(sHI+1)}, -1\ns_mov_b32 {s(aL2E)}, 0x3fb8aa3b\ns_mov_b32 {s(aEPS)}, 0x358637bd")
        a(f"s_mov_b32 {s(aONE)}, 0xf0000000\ns_mov_b32 {s(aONE+1)}, {s(aONE)}\ns_mov_b32 {s(aONB)}, 15\ns_mov_b32 {s(aONB+1)}, 15")
        a(f"s_cmp_eq_u32 {s(sROLE)}, 0\ns_cselect_b32 {s(sT1)}, 64, 48\ns_cselect_b64 vcc, -1, 0")
        a(f"v_bfe_u32 v11, {v(vL)}, 2, 2")
        a(f"v_and_b32 v12, 3, {v(vL)}\nv_lshlrev_b32 v12, 3, v12\nv_bfe_u32 v13, {v(vL)}, 4, 1\nv_lshl_add_u32 v12, v13, 5, v12")
        a(f"v_and_b32 v13, 2, v11\nv_lshlrev_b32 v13, 5, v13\nv_lshl_add_u32 v9, v10, 3, v11")
        a(f"v_lshl_add_u32 v7, v9, 6, v12")
        a(f"v_lshlrev_b32 v9, 7, v9\nv_xor_b32 v8, v12, v13\nv_add_u32 {v(vWR)}, v9, v8")
        a(f"v_xor_b32 v8, 64, {v(vWR)}\nv_cndmask_b32 v7, v8, v7, vcc\nv_add_u32 v8, {s(sT1)}, v12\nv_xor_b32 v8, v8, v13\nv_add_u32 {v(vWR+4)}, v9, v8")
        for T in range(2):
            for r in range(1, 4): a(f"v_add_u32 {v(vWR+4*T+r)}, {REG*r}, {v(vWR+4*T)}")
        a(f"v_add_u32 v10, {s(sRB)}, {v(vL16)}\nv_mov_b32 v8, 1")
        a(f"s_lshl3_add_u32 {s(sT0)}, {s(sI)}, {s(sJ)}\ns_lshl_b32 {s(sT0)}, {s(sT0)}, 7\ns_lshl2_add_u32 {s(sT0)}, {s(sWV)}, {s(sT0)}")
        a(f"s_lshl_b32 {s(sT1)}, {s(sHST)}, 7\ns_lshl2_add_u32 {s(sT1)}, {s(sJ)}, {s(sT1)}\ns_add_u32 {s(sT1)}, {s(sT1)}, {WS_PL - WS_FL}")
        a(f"s_cmp_eq_u32 {s(sROLE)}, 0\ns_cselect_b32 {s(sT0)}, {s(sT0)}, {s(sT1)}\ns_add_u32 {s(sT0)}, {s(sT0)}, {WS_FL}\nv_mov_b32 v9, {s(sT0)}")
        misc = deque(); M = lambda t: self.lines(a, misc, t)
        M(f"s_lshl4_add_u32 {s(sT0)}, {s(sJ)}, {s(sI)}\ns_lshl_b32 {s(sT0)}, {s(sT0)}, 7\ns_lshl2_add_u32 {s(sT0)}, {s(sWV)}, {s(sT0)}")
        M(f"s_add_u32 {s(sT0)}, {s(sT0)}, {WS_FK}\nv_mov_b32 v13, {s(sT0)}")
        M(f"s_lshl2_add_u32 {s(sT0)}, {s(sJ)}, {s(sWV)}\ns_lshl4_add_u32 {s(sT0)}, {s(sT0)}, {s(sI)}\ns_lshl_b32 {s(sT0)}, {s(sT0)}, 10\ns_add_u32 {s(aKVO)}, {s(sT0)}, {WS_KV}")
        M(f"s_mul_i32 {s(aHST)}, {s(sHST)}, 35\ns_lshl1_add_u32 {s(aHS2)}, {s(aHST)}, {s(sJ)}\ns_add_u32 {s(aHST)}, {s(aHST)}, {s(sJ)}\ns_lshl_b32 {s(aHST)}, {s(aHST)}, 12")
        M(f"s_add_u32 {s(aHS2)}, {s(aHS2)}, 48\ns_lshl_b32 {s(aHS2)}, {s(aHS2)}, 11")
        M(f"s_mul_i32 {s(aPQS)}, {s(sHST)}, 7\ns_add_u32 {s(aPQS)}, {s(aPQS)}, {s(sJ)}\ns_lshl_b32 {s(aPQS)}, {s(aPQS)}, 12\ns_add_u32 {s(aPQS)}, {s(aPQS)}, {WS_PQ}")
        misc.append(lambda: a(f"s_cmp_eq_u32 {s(sJ)}, 7\ns_cselect_b32 {s(aPQS)}, {WS_SIZE}, {s(aPQS)}"))
        M(f"s_lshl_b32 {s(aBIA)}, {s(sJ)}, 7\ns_lshl_b32 {s(aBI2)}, {s(sJ)}, 6")
        xt = {}
        def xread(st):
            if st >= 28: return
            n = st // 4
            if st % 4 == 0:
                while xq['n'] < 4 * n + 4: xdma()
                a.wait(vm=xk[n])
                if n == 0: self.stamp(a, 2)
            xt[st] = a.ds(f"ds_read_b128 {v(Rof(st),4)}, {v(vXR+st%4)} offset:{n*4096}")
            if st % 4 == 3:
                for k in (2 * n, 2 * n + 1):
                    self.slot['x', k] = k; self.lastread['x', k] = xt[st]; self.allread.add(('x', k))
        for k in range(o['XPRE'] - 12): xdma()
        xread(0); xread(1)
        self.clk = 0; self.tprev = 0
        for st in range(28):
            r = Rof(st); b = Uof(st)
            a.wait(lg=xt[st])
            if o['ST4']:
                m4 = lambda acc, x, y: a(f"v_mfma_f32_4x4x4_16b_bf16 {v(acc,4)}, {v(x,2)}, {v(y,2)}, {v(acc,4) if st else 0}")
                up = lambda d: st < 23 and a(f"v_lshlrev_b32 {v(b+2*d)}, 16, {v(r+d)}\nv_and_b32 {v(b+2*d+1)}, {s(sMSK)}, {v(r+d)}")
                if o['ST4'] == 1: a(f"v_mfma_f32_16x16x32_bf16 v[44:47], v[48:51], {v(r,4)}, {'v[44:47]' if st else 0}")
                else: m4(36, 48, r)
                xread(st + 2)
                xdma()
                self.clk += o['TFRAG'] if st < 16 else 52
                m4(28, r, r); up(0)
                if o['ST4'] == 2: m4(44, 48, r + 2)
                up(1); m4(32, r + 2, r + 2); up(2); up(3)
            else:
                a(f"v_mfma_f32_32x32x16_bf16 v[28:43], {v(r,4)}, {v(r,4)}, {'v[28:43]' if st else 0}")
                xread(st + 2)
                xdma()
                self.clk += o['TFRAG'] if st < 16 else 52
                for d in range(4):
                    if d == 2: a(f"v_mfma_f32_16x16x32_bf16 v[44:47], v[48:51], {v(r,4)}, {'v[44:47]' if st else 0}")
                    if st < 23: a(f"v_lshlrev_b32 {v(b+2*d)}, 16, {v(r+d)}\nv_and_b32 {v(b+2*d+1)}, {s(sMSK)}, {v(r+d)}")
            if misc: misc.popleft()()
            if st == o['B0AT']:
                self.vclk = max(self.clk, 24 * o['CX']); self.stamp(self.b, 2); self.barrier(); self.stamp(self.b, 3)
                self.res_at = o['RESE']
        assert not misc
        self.stamp(a, 3)
        a(f"v_mov_b32 {v(vSR)}, v7")
        for r in range(1, 4): a(f"v_add_u32 {v(vSR+r)}, {REG*r}, v7")
        inv = 0x3b124925
        if o['ST4']:
            for k in (28, 30, 32, 34): a(f"v_cndmask_b32 v{k}, v{k}, v{k+1}, {s(aM[0],2)}")
            a(f"v_add_f32 v28, v28, v32\nv_add_f32 v30, v30, v34")
            if o['ST4'] == 2: a("v_add_f32 v45, v44, v36\nv_add_f32 v44, v44, v36")
            a(f"v_cndmask_b32 v29, v28, v30, {s(aM[1],2)}\nv_cndmask_b32 v28, v28, v30, {s(aM[1],2)}")
            if o['ST4'] == 2: a("v_permlane32_swap_b32 v45, v44\nv_add_f32 v44, v44, v45")
            a(f"v_mul_f32 v44, {inv:#x}, v44\nv_permlane32_swap_b32 v29, v28\nv_add_f32 v28, v28, v29")
        else:
            a(f"s_nop 2\nv_mul_f32 v44, {inv:#x}, v44")
            for lvl, step in enumerate((1, 2, 4)):
                for k in range(0, 16, 2 * step): a(f"v_cndmask_b32 {v(28+k)}, {v(28+k)}, {v(28+k+step)}, {s(aM[lvl],2)}")
            a(f"v_cndmask_b32 v29, v28, v36, {s(aM[4],2)}\nv_cndmask_b32 v28, v28, v36, {s(aM[4],2)}")
            a(f"v_permlane32_swap_b32 v29, v28")
            a(f"v_cndmask_b32 v28, v29, v28, {s(aM[3],2)}")
        a(f"v_mul_f32 v28, {inv:#x}, v28\nv_fma_f32 v28, -v44, v44, v28\nv_max_f32 v28, 0, v28\nv_add_f32 v28, 0x3727c5ac, v28")
        a(f"v_rsq_f32 v2, v28")
        a(f"v_mul_f32_e64 v3, -v44, v2")
        self.clk += 170
        for st in list(range(7, -1, -1)) + list(range(8, 23)):
            if st == 17:
                for k in range(o['D']): self.read_frag(k)
            for d in range(4):
                r = Uof(st) + 2 * d
                a(f"v_pk_fma_f32 {v(r,2)}, {v(r,2)}, v[2:3], v[2:3] op_sel:[0,0,1] op_sel_hi:[1,0,1]")
            self.clk += 21
            if st < 8:
                for d in (3, 2, 1, 0): a(f"v_cvt_pk_bf16_f32 {v(Fof(st)+d)}, {v(Uof(st)+2*d)}, {v(Uof(st)+2*d+1)}")
                self.clk += 21
        self.stamp(a, 4)

    def store(self, r, soff, off):
        def f(): self.last_store = self.a.vm(f"buffer_store_dwordx4 {v(r,4)}, {v(vL16)}, {s(rWS,4)}, {s(soff)} offen offset:{off} sc1")
        return f
    def flag(self, get, val, va="v9"):
        a = self.a
        def f():
            a.wait(vm=get())
            a.vm(f"buffer_store_dword v8, {va}, {s(rWS,4)}, 0 offen sc1")
            if val: a(f"v_mov_b32 v8, {val}")
            return 3
        return f
    def a_ffn(self):
        a = self.a; o = self.o
        fl = deque(self.g3_ops()); A = lambda t: self.lines(a, fl, t)
        SEL = BI + 14; tb = {}
        def forced(st, T):
            ops = self.cvt_forced(st, T)
            if (st, T) == (19, 1): self.lines(a, ops, f"v_and_b32 v12, 31, {v(vL)}\nv_lshlrev_b32 v12, 1, v12")
            k = 2 * st + T - 40
            if 0 <= k < 7:
                so, off = (aBIA, 64 * (k & 1) + 1024 * (k >> 1)) if k < 6 else (aBI2, 3072)
                ops.append(lambda: tb.update({k: a.vm(f"buffer_load_ushort {v(BI+2*k)}, v12, {s(rB1,4)}, {s(so)} offen offset:{off}")}))
            if (st, T) == (24, 0): self.lines(a, ops, "\n".join(f"v_mov_b32 {v(BI+k)}, 0" for k in (1, 3, 5, 7)))
            if (st, T) == (24, 1): self.lines(a, ops, "\n".join(f"v_mov_b32 {v(BI+k)}, 0" for k in (9, 11, 13)))
            if (st, T) == (25, 0): self.lines(a, ops, "\n".join(f"v_mov_b32 {v(SEL+k)}, 0" for k in (1, 2, 3)))
            if (st, T) == (25, 1): self.lines(a, ops, f"v_mov_b32 {v(SEL)}, 0x3f80\nv_cndmask_b32 {v(SEL)}, {v(SEL)}, 0, {s(sHI,2)}")
            return ops
        def bias(acc, tiles, cont=False): return [f"v_mfma_f32_32x32x16_bf16 {acc(T)}, {v(BI+2*k,4)}, {v(SEL,4)}, {acc(T) if cont else 0}" for T, k in enumerate(tiles)]
        def epi(h, so, off):
            ops = []
            for d in range(8):
                t0 = h + 2 * d
                self.lines(a, ops, f"v_mul_f32_e64 {v(t0)}, {v(t0)}, |{v(t0)}|\nv_mul_f32_e64 {v(t0+1)}, {v(t0+1)}, |{v(t0+1)}|")
                self.lines(a, ops, f"v_cvt_pk_bf16_f32 {v(h+d)}, {v(t0)}, {v(t0+1)}\nv_pk_max_i16 {v(h+d)}, {v(h+d)}, 0")
                if d % 4 == 3: ops.append(self.store(h + d - 3, so, off + (d // 4) * 1024))
            return ops
        accS = lambda T: v(AS + 16 * T, 16); accA = lambda T: v(VA + 16 * T, 16)
        big = lambda: 99; last = lambda: self.last_store
        sy = [(), (), (), ()]
        for k in range(o['SYNCF']): sy[2 + k // 2] += ((o.get('SYAT', 4), 32)[k % 2],)
        self.syncs_left = o['SYNCF']
        self.run_stage(0, accS, False, fl, budget=o['B0'], forced=forced, minfill=2.4, finish=12)
        assert not fl
        self.stamp(a, 5)
        fl.extend([self.go_load] + [big] * o.get('BIASLAG', 5))
        fl.append(lambda: a.wait(vm=tb[6]) and 1)
        for line in bias(accS, [0, 1], True) + bias(accA, [2, 3], True): fl.append(lambda line=line: a(line) or 2)
        fl.extend([big, big])
        fl.extend(epi(AS, aHST, 0) + epi(AS + 16, aHST, 2048)); fl.append(self.go_check)
        fl.extend([big] * o['FLAG']); fl.append(self.flag(last, 3))
        self.run_stage(1, accA, False, fl, budget=o['B1'], minfill=2.2)
        assert not fl
        self.stamp(a, 6)
        A(f"s_add_u32 {s(aHST)}, {s(aHST)}, 32768"); fl.extend([big, big, big])
        fl.extend(epi(VA, aHST, 0) + epi(VA + 16, aHST, 2048)); fl.extend([big] * o['FLAG']); fl.append(self.flag(last, 7))
        self.run_stage(2, accS, False, fl, budget=o['B2'], pre=bias(accS, [4, 5]), minfill=2, syncs=sy[2])
        assert not fl
        self.stamp(a, 7)
        A(f"s_add_u32 {s(aHST)}, {s(aHST)}, 32768"); fl.extend([big, big, big])
        fl.extend(epi(AS, aHST, 0) + epi(AS + 16, aHST, 2048))
        self.run_stage(3, accA, False, fl, budget=o['B3'], pre=bias(accA, [6]), minfill=3, syncs=sy[3])
        assert not fl and not self.b_alive
        self.stamp(a, 8)
        l2 = self.last_store
        for g in epi(VA, aHS2, 0): g()
        l3 = self.last_store
        self.flag(lambda: l2, 15)(); self.flag(lambda: l3, 0)()
        self.stamp(a, 9); self.flush_stamp(a)
        a("s_branch L_amid")
        print("F: end of phase 1 at", self.clk, "forced", self.forced, "publag", self.publag)

    def a_kvq(self):
        a = self.a; o = self.o
        fl = deque(self.g3_ops()); A = lambda t: self.lines(a, fl, t)
        accS = lambda T: v(AS + 16 * T, 16); accA = lambda T: v(VA + 16 * T, 16)
        big = lambda: 99; last = lambda: self.last_store
        self.syncs_left = 1 + o['SYNCK']
        self.run_stage(0, accS, True, fl, budget=o['B0'], forced=self.cvt_forced, minfill=2.4, finish=12)
        assert not fl
        self.stamp(a, 5)
        PK, PV, KV = (208, 224), (216, VA + 16), (VA, 208)
        self.hold = {14, 15, 16, 17}; XB = 14 * 2048
        fl.extend([self.go_load, big, big])
        A(f"v_mov_b32 v1, 0x3f803f80")
        fl.extend(self.phi_ops(AS, PK[0]) + self.phi_ops(AS + 16, PK[1])); fl.append(self.go_check)
        self.run_stage(1, accA, True, fl, budget=o.get('BK1', o['B1']), minfill=3)
        assert not fl and set(self.reserve) == self.hold
        self.stamp(a, 6)
        st = {}
        def chain():
            kvm = lambda T, k: a(f"v_mfma_f32_32x32x16_bf16 {v(KV[T],16)}, {v(PK[T]+4*k,4)}, {v(PV[T]+4*k,4)}, {v(KV[T],16) if k else 0}")
            wr = lambda g: a.ds(f"ds_write_b128 v10, {v(KV[g>>2]+4*(g&3),4)} offset:{XB + g*1024}")
            for T in range(2):
                for d in range(8):
                    a(f"v_cvt_pk_bf16_f32 {v(PV[T]+d)}, {v(VA+16*T+2*d)}, {v(VA+16*T+2*d+1)}\nv_cndmask_b32 {v(PV[T]+d)}, {v(PV[T]+d)}, v1, {s(aONE if T == 0 else aONB,2)}")
                    if T == 1 and d in (0, 1): kvm(0, d)
            kvm(1, 0); kvm(1, 1)
            for g in range(8): st['w'] = wr(g)
            self.clk += 700
            return 99
        def bar():
            a.wait(lg=st['w']); self.hook = self.b_kv; self.sync(o['XSLACK']); self.stamp(a, 8); return 2
        fl.extend([big] * o['KPRE'] + [chain, big, bar])
        q = []
        for T in range(2):
            p = self.phi_ops(AS + 16 * T)
            q.append(p[:36] + [self.store(AS + 16 * T, aPQS, 2048 * T)] + p[36:] + [self.store(AS + 16 * T + 4, aPQS, 2048 * T + 1024)])
        q0 = deque(q[0])
        def forced(stp, T):
            self.slotk = 28 * T + stp; ops = []
            if T == 1 and stp >= 3 and not fl:
                for k in range(o.get('QN', 4)):
                    if q0: ops.append(q0.popleft())
            return ops
        self.run_stage(2, accS, False, fl, budget=o.get('BK2', 9), forced=forced, syncs=(44,) if o['SYNCK'] else ())
        assert not fl and not self.b_alive
        self.stamp(a, 7)
        rest = list(q0) + q[1]
        for g in rest: g()
        self.flag(last, 0)()
        self.stamp(a, 9); self.flush_stamp(a)
        print("K: end of phase 1 at", self.clk, "forced", self.forced, "publag", self.publag)
        a(f"s_cmp_lt_u32 {s(sCS)}, 7\ns_cbranch_scc1 L_amid")
        xs = self.xs * 2048
        G, S, TM, KVA, P, NUM = 84, 212, 228, 52, 84, 140
        W8 = 99
        a(f"s_setprio {o['BPRIO']}")
        self.join_setup(a); self.poll_issue(a, 8, aFL)
        a("L_join:")
        self.poll_check(a, 8, aFL, 0, 1)
        self.stamp(a, 12)
        pt = {}
        for t in range(7):
            pt[t] = a.vm(f"buffer_load_dwordx4 {v(P+4*t,4)}, {v(vL16)}, {s(rWS,4)}, s{4+t//4} offen offset:{(t%4)*1024}{self.lm}")
        a("s_barrier")
        self.stamp(a, 13)
        for u in range(4):
            for f in range(2): tk = a.ds(f"ds_read_b128 {v(KVA+8*u+4*f,4)}, {'v11' if u < 2 else 'v12'} offset:{(u&1)*REG + f*1024}")
        def nm(hp):
            Pp = P + 14 * hp
            a.wait(vm=pt[3 + 3 * hp], lg=tk)
            for k in range(2):
                for T in range(2):
                    N = v(NUM + 32 * hp + 16 * T, 16)
                    a(f"v_mfma_f32_32x32x16_bf16 {N}, {v(KVA+16*hp+8*T+4*k,4)}, {v(Pp+6*T+4*k,4)}, {N if k else 0}")
        def ov(hp):
            Pp = P + 14 * hp
            def sto(t): self.last_store = a.vm(f"buffer_store_dwordx4 {v(P+4*t,4)}, {v(vL16)}, {s(rWS,4)}, s{40+t//4} offen offset:{(t%4)*1024}{self.sm}")
            NA = NUM + 32 * hp; NB = NA + 16; E = s(aEPS)
            a(f"v_add_f32 {v(TM)}, {E}, {v(NA+12)}\nv_add_f32 {v(TM+1)}, {E}, {v(NA+12)}\nv_add_f32 {v(TM+2)}, {E}, {v(NB)}\nv_add_f32 {v(TM+3)}, {E}, {v(NB)}")
            a(f"v_permlane32_swap_b32 {v(TM)}, {v(TM+1)}\nv_permlane32_swap_b32 {v(TM+2)}, {v(TM+3)}")
            a(f"v_rcp_f32 {v(TM+1)}, {v(TM+1)}\nv_rcp_f32 {v(TM+2)}, {v(TM+2)}")
            for T in range(2):
                for d in range(8):
                    r = NA + 16 * T + 2 * d
                    a(f"v_mul_f32 {v(r)}, {v(r)}, {v(TM+1+T)}\nv_mul_f32 {v(r+1)}, {v(r+1)}, {v(TM+1+T)}")
                    dst = Pp + d if T == 0 else (TM + 4 + d if d < 2 else Pp + 6 + d)
                    a(f"v_cvt_pk_bf16_f32 {v(dst)}, {v(r)}, {v(r+1)}")
                    if T == 1 and d == 1:
                        a(f"v_cndmask_b32 {v(Pp+6)}, {v(Pp+6)}, {v(TM+4)}, {s(sHI,2)}\nv_cndmask_b32 {v(Pp+7)}, {v(Pp+7)}, {v(TM+5)}, {s(sHI,2)}")
                    done = {(0,0,3): 0, (0,1,1): 1, (0,1,5): 2, (1,0,1): 3, (1,0,5): 4, (1,1,3): 5, (1,1,7): 6}.get((hp, T, d))
                    if done is not None: sto(done)
        nm(0); nm(1); ov(0); ov(1)
        a.wait(vm=self.last_store)
        a.vm(f"buffer_store_dword v8, v9, {s(rWS,4)}, 0 offen{self.fm}")
        self.stamp(a, 14); self.flush_stamp(a)
        a("s_branch L_fin")

    def join_setup(self, a):
        W8 = 99; xs = self.xs * 2048
        a(f"s_lshr_b32 {s(sT2)}, {s(sRB2)}, 3")
        a(f"s_and_b32 {s(sI)}, {s(sRB2)}, 7\ns_lshl3_add_u32 {s(sI)}, {s(sI)}, {s(W8)}")
        a(f"s_lshl_b32 {s(sCNT)}, {s(sI)}, 7\ns_add_u32 {s(sCNT)}, {s(sCNT)}, {WS_PL}\ns_add_u32 {s(aFL)}, {s(sWS)}, {s(sCNT)}\ns_addc_u32 {s(aFL+1)}, {s(sWS+1)}, 0")
        a(f"s_lshr_b32 {s(sCNT)}, {s(sI)}, 1\ns_lshl2_add_u32 {s(sCNT)}, {s(sCNT)}, {s(sT2)}\ns_lshl_b32 {s(sCNT)}, {s(sCNT)}, 7\ns_add_u32 {s(sCNT)}, {s(sCNT)}, {WS_FL}")
        a(f"s_and_b32 {s(sT1)}, {s(W8)}, 1\ns_lshl2_add_u32 {s(sCNT)}, {s(sT1)}, {s(sCNT)}\ns_add_u32 {s(sCNT)}, {s(sCNT)}, 16\nv_mov_b32 v9, {s(sCNT)}\nv_mov_b32 v8, 1")
        a(f"s_mul_i32 {s(sT2)}, {s(sT2)}, 7168")
        a(f"s_mul_i32 s4, {s(sI)}, {28*1024}\ns_add_u32 s4, s4, {s(sT2)}\ns_add_u32 s4, s4, {WS_PQ}\ns_add_u32 s5, s4, 4096")
        a(f"s_mul_i32 s40, {s(sI)}, {HS}\ns_add_u32 s40, s40, {s(sT2)}\ns_add_u32 s40, s40, {112*1024}\ns_add_u32 s41, s40, 4096")
        a(f"s_mov_b32 {s(sHI)}, 0\ns_mov_b32 {s(sHI+1)}, -1\ns_mov_b32 {s(aEPS)}, 0x358637bd")
        a(f"v_add_u32 v12, {2*REG + xs}, {v(vL16)}\nv_add_u32 v11, {xs}, {v(vL16)}")
    def b_kv(self):
        b = self.b; XB = 14 * 2048; R = ACC
        if self.o.get('KPRI'): b("s_setprio 3")
        self.stamp(b, 6)
        b(f"s_lshl_b32 {s(sT0)}, {s(sWV)}, 11\ns_add_u32 {s(sT0)}, {s(sT0)}, {XB}\nv_add_u32 v64, {s(sT0)}, {v(vL16)}\nv_add_u32 v65, {2*REG}, v64")
        rt = [b.ds(f"ds_read_b128 {v(R+8*sw+4*h,4)}, v{64 + (sw >> 1)} offset:{(sw&1)*REG + h*1024}") for sw in range(4) for h in range(2)]
        b(f"s_lshl2_add_u32 {s(sT0)}, {s(sJ)}, {s(sWV)}\ns_lshl4_add_u32 {s(sT0)}, {s(sT0)}, {s(sI)}\ns_lshl_b32 {s(sT0)}, {s(sT0)}, 10\ns_add_u32 {s(sT0)}, {s(sT0)}, {WS_KV}")
        FS = self.o['FKS']
        b(f"s_lshr_b32 s57, {s(sWV)}, 1\ns_lshl1_add_u32 s57, {s(sJ)}, s57\ns_lshl4_add_u32 s57, s57, {s(sI)}\ns_lshl_b32 s57, s57, 1\ns_and_b32 {s(sT1)}, {s(sWV)}, 1\ns_add_u32 s57, s57, {s(sT1)}")
        b(f"s_mul_i32 s57, s57, {FS}\ns_add_u32 s57, s57, {WS_FK}\nv_mov_b32 v16, 1")
        b.wait(lg=rt[3])
        for k in range(8): b(f"v_add_f32 {v(R+k)}, {v(R+k)}, {v(R+8+k)}")
        b.wait(lg=rt[7])
        for k in range(8): b(f"v_add_f32 {v(R+16+k)}, {v(R+16+k)}, {v(R+24+k)}")
        for d in range(4):
            b(f"v_add_f32 {v(R+2*d)}, {v(R+2*d)}, {v(R+16+2*d)}\nv_add_f32 {v(R+2*d+1)}, {v(R+2*d+1)}, {v(R+17+2*d)}\nv_cvt_pk_bf16_f32 {v(R+d)}, {v(R+2*d)}, {v(R+2*d+1)}")
        self.kvst = b.vm(f"buffer_store_dwordx4 {v(R,4)}, {v(vL16)}, {s(rWS,4)}, {s(sT0)} offen sc1")
        if self.o.get('KPRI'): b(f"s_setprio {self.o['BPRIO']}")
        self.stamp(b, 4)
        self.vclk = max(self.vclk, self.clk) + 400
        self.hold = set()
        for sl in self.reserve:
            self.slot['kx', sl] = sl; self.lastread['kx', sl] = 0; self.allread.add(('kx', sl))
    def kv_flag(self, x, force=False):
        if self.kvst and (force or x.vm_issued - self.kvst >= self.o['KVD'] or x.vm_done >= self.kvst):
            x.wait(vm=self.kvst); x.vm(f"buffer_store_dword v16, off, {s(rWS,4)}, s57 sc1"); self.stamp(x, 5)
            if x is self.bmain: self.kvst = None
    def b_gather(self):
        b = self.b; o = self.o; G, S, TM = 32, 160, 176; xs = self.xs * 2048
        b(f"s_lshr_b32 {s(sT2)}, {s(sRB2)}, 3\ns_lshl2_add_u32 {s(sT1)}, {s(sT2)}, {s(sWV)}")
        b(f"s_and_b32 {s(sCNT)}, {s(sWV)}, 1\ns_cselect_b32 s44, -1, 0\ns_cselect_b32 s47, 0, -1\ns_mov_b32 s45, 0\ns_mov_b32 s46, 0")
        b(f"s_mul_i32 s42, {s(sT1)}, {32*o['FKS']}\ns_add_u32 s42, s42, {WS_FK}\nv_and_b32 v1, 31, {v(vL)}\nv_mul_u32_u24 v1, {o['FKS']}, v1")
        b(f"s_lshl_b32 {s(sT1)}, {s(sT1)}, 15\ns_add_u32 {s(sSO)}, {s(sT1)}, {WS_KV}")
        self.kv_flag(b, force=True)
        self.join_setup(b)
        SM = 184
        b(f"v_add_u32 v13, {s(sRB)}, {v(vL16)}")
        b.wait_all(lg=True)
        b(f"v_bfe_u32 v2, {v(vL)}, 3, 2\nv_bfe_u32 v3, {v(vL)}, 1, 1\nv_lshl_add_u32 v2, v2, 1, v3\ns_mov_b32 vcc_lo, 0x0f0f0f0f\ns_mov_b32 vcc_hi, 0xf0f0f0f0\nv_cndmask_b32 v2, 63, v2, vcc")
        b(f"s_mov_b32 vcc_lo, 0xaaaaaaaa\ns_mov_b32 vcc_hi, vcc_lo\nv_mov_b32 v3, 0x3f80\nv_mov_b32 v4, 0x3f800000\nv_cndmask_b32 v3, v3, v4, vcc")
        for k in range(8): b(f"v_cmp_eq_u32 vcc, {k}, v2\nv_cndmask_b32 {v(SM+k)}, 0, v3, vcc")
        if o['DYN']:
            y = self.slow
            FS = o['FKS']
            b(f"v_and_b32 v1, 15, {v(vL)}\nv_lshlrev_b32 v1, 1, v1\nv_bfe_u32 v2, {v(vL)}, 4, 1\nv_add_u32 v1, v1, v2\nv_mul_u32_u24 v1, {FS}, v1\nv_add_u32 v15, 16384, {v(vL16)}")
            b(f"s_mov_b32 s60, 0xffff\ns_mov_b32 s61, 0\ns_mov_b32 {s(sCNT)}, 0")
            if o.get('KWAIT', 1): b.wait_all(vm=True)
            take = lambda x: x("v_cmp_ne_u32 vcc, 0, v14\ns_lshr_b32 s62, vcc_lo, 16\ns_and_b32 s62, s62, vcc_lo\ns_or_b32 s61, s61, s62")
            gt = []; pt = None
            def acc(n):
                b.wait(vm=gt[n])
                b(f"v_mfma_f32_32x32x16_bf16 {v(S,16)}, {v(SM+4*(n%2),4)}, {v(G+4*n,4)}, {v(S,16) if n else 0}")
            for k in range(16):
                if pt and b.vm_done >= pt: take(b); pt = None
                b(f"s_and_b32 s62, s60, s61\ns_cbranch_scc0 L_dyn{k}\nL_dyr{k}:")
                y(f"L_dyn{k}:")
                if k and o['SL2']: y(f"s_sleep {o['SL2']}")
                y(f"buffer_load_dword v14, v1, {s(rWS,4)}, s42 offen sc1"); y.wait_all(vm=True); take(y)
                y(f"s_and_b32 s62, s60, s61\ns_cbranch_scc1 L_dyr{k}\ns_add_u32 {s(sCNT)}, {s(sCNT)}, 1\ns_cmp_lt_u32 {s(sCNT)}, {SPIN}\ns_cbranch_scc1 L_dyn{k}")
                y(f"s_mov_b32 s61, 0xffff\ns_mov_b32 s62, s60\ns_branch L_dyr{k}")
                if k == 0: self.stamp(b, 10)
                b(f"s_ff1_i32_b32 s63, s62\ns_bitset0_b32 s60, s63\ns_lshl_b32 s63, s63, 10\ns_add_u32 s63, s63, {s(sSO)}")
                for f in range(2):
                    n = 2 * k + f
                    if n >= 11: acc(n - 11)
                    gt.append(b.vm(f"buffer_load_dwordx4 {v(G+4*n,4)}, {v(vL16) if f == 0 else 'v15'}, {s(rWS,4)}, s63 offen{self.lm}"))
                if pt is None and k in (1, 8): pt = b.vm(f"buffer_load_dword v14, v1, {s(rWS,4)}, s42 offen sc1")
        else:
            if o.get('KWAIT', 1): b.wait_all(vm=True)
            b(f"s_mov_b32 {s(sCNT)}, 0\nL_kpoll:")
            b.vm(f"buffer_load_dword v14, v1, {s(rWS,4)}, s42 offen sc1")
            b.wait_all(vm=True)
            b(f"v_cmp_eq_u32 vcc, 0, v14\ns_cbranch_vccz L_kgo")
            if o['SL2']: b(f"s_sleep {o['SL2']}")
            b(f"s_add_u32 {s(sCNT)}, {s(sCNT)}, 1\ns_cmp_lt_u32 {s(sCNT)}, {SPIN}\ns_cbranch_scc1 L_kpoll\nL_kgo:")
            self.stamp(b, 10)
            gt = []
            def acc(n):
                b.wait(vm=gt[n])
                b(f"v_mfma_f32_32x32x16_bf16 {v(S,16)}, {v(SM+4*(n//16),4)}, {v(G+4*n,4)}, {v(S,16) if n else 0}")
            for n in range(32):
                if n >= 11: acc(n - 11)
                if n and n % 4 == 0: b(f"s_addk_i32 {s(sSO)}, 4096")
                gt.append(b.vm(f"buffer_load_dwordx4 {v(G+4*n,4)}, {v(vL16)}, {s(rWS,4)}, {s(sSO)} offen offset:{(n%4)*1024}{self.lm}"))
        for n in range(21, 32):
            acc(n)
            if n == 26: self.poll_issue(b, 8, aFL)
        for d in range(8): b(f"v_cvt_pk_bf16_f32 {v(TM+d)}, {v(S+2*d)}, {v(S+2*d+1)}")
        for d in (0, 1): b(f"v_cndmask_b32 {v(TM+d)}, {v(TM+d)}, 0, s[44:45]")
        for d in (6, 7): b(f"v_cndmask_b32 {v(TM+d)}, {v(TM+d)}, 0, s[46:47]")
        for f in range(2): b.ds(f"ds_write_b128 v13, {v(TM+4*f,4)} offset:{xs + f*1024}")
        self.stamp(b, 11); self.flush_stamp(b)
        b("s_branch L_join")

    def tile_sum(self, x, rd, RES, Pk, store):
        rt = {}
        for m in range(2):
            for hi in range(2):
                for q in range(4): rt[m, hi] = x.ds(f"ds_read_b128 {v(ACC+16*q+8*m+4*hi,4)}, {v(rd)} offset:{q*4352 + hi*512 + m*256}")
        for m in range(2):
            for hi in range(2):
                x.wait(lg=rt[m, hi])
                R = [ACC + 8 * m + 4 * hi + k for k in range(4)]
                if x.tag == 'b':
                    for r in R[::2]:
                        x(f"v_pk_add_f32 {v(r,2)}, {v(r,2)}, {v(r+16,2)}\nv_pk_add_f32 {v(r+32,2)}, {v(r+32,2)}, {v(r+48,2)}\nv_pk_add_f32 {v(r,2)}, {v(r,2)}, {v(RES+r-ACC,2)}")
                    for r in R[::2]: x(f"v_pk_add_f32 {v(r,2)}, {v(r,2)}, {v(r+32,2)}")
                else:
                    for r in R: x(f"v_add_f32 {v(r)}, {v(r)}, {v(r+16)}\nv_add_f32 {v(r+32)}, {v(r+32)}, {v(r+48)}")
                    for r in R: x(f"v_add_f32 {v(r)}, {v(r)}, {v(RES+r-ACC)}")
                    for r in R: x(f"v_add_f32 {v(r)}, {v(r)}, {v(r+32)}")
                for k in (0, 2): x(f"v_cvt_pk_bf16_f32 {v(Pk+4*m+2*hi+k//2)}, {v(R[k])}, {v(R[k]+1)}")
            store(m)
    def a_mid(self, a):
        RES, B2, XW, BW = 112, 128, 96, 104
        a("L_amid:\ns_setprio 2")
        self.srd(a, rB1, sB2, 896)
        a(f"s_xor_b32 {s(sT2)}, {s(sRB2)}, 1\ns_lshr_b32 {s(sT0)}, {s(sWV)}, 1\ns_lshl1_add_u32 {s(sT0)}, {s(sT2)}, {s(sT0)}\ns_mul_i32 {s(sXB)}, {s(sT0)}, {32*896}")
        a(f"s_and_b32 {s(sT1)}, {s(sWV)}, 1\ns_lshl1_add_u32 {s(sT1)}, {s(sCS)}, {s(sT1)}\ns_lshl_b32 {s(sT1)}, {s(sT1)}, 6\ns_add_u32 {s(sXB)}, {s(sXB)}, {s(sT1)}\ns_add_u32 {s(sT0)}, {s(sXB)}, {16*896}")
        a(f"v_lshrrev_b32 v7, 2, {v(vL)}\nv_and_b32 v6, 3, {v(vL)}\nv_lshlrev_b32 v6, 4, v6\nv_mul_u32_u24 v4, 896, v7\nv_add_u32 v4, v4, v6")
        a.vm(f"buffer_load_dwordx4 {v(XW,4)}, v4, {s(rX,4)}, {s(sXB)} offen")
        a.vm(f"buffer_load_dwordx4 {v(XW+4,4)}, v4, {s(rX,4)}, {s(sT0)} offen")
        a.vm(f"buffer_load_dwordx4 {v(BW,4)}, v6, {s(rB1,4)}, {s(sT1)} offen")
        a("s_barrier")
        a(f"v_mul_u32_u24 v17, 68, v6\nv_lshl_add_u32 v17, v7, 4, v17\ns_add_u32 {s(sT0)}, {s(sRB)}, {XO}\nv_add_u32 v17, {s(sT0)}, v17\nv_mov_b32 v8, 1")
        a(f"s_xor_b32 s40, s2, 4\ns_lshl2_add_u32 s40, s40, {s(sWV)}\ns_lshl_b32 s40, s40, 11\ns_add_u32 s40, s40, {WS_PX}")
        a(f"s_lshl2_add_u32 s41, {s(sT2)}, {s(sWV)}\ns_lshl_b32 s41, s41, 7\ns_lshl2_add_u32 s41, {s(sCS)}, s41\ns_add_u32 s41, s41, {WS_FL + 32}")
        a.wait_all(vm=True)
        for d in range(4): a(f"v_lshlrev_b32 {v(B2+2*d)}, 16, {v(BW+d)}\nv_and_b32 {v(B2+2*d+1)}, {s(sMSK)}, {v(BW+d)}")
        for d in range(8):
            a(f"v_lshlrev_b32 {v(RES+2*d)}, 16, {v(XW+d)}\nv_and_b32 {v(RES+2*d+1)}, {s(sMSK)}, {v(XW+d)}")
            a(f"v_add_f32 {v(RES+2*d)}, {v(RES+2*d)}, {v(B2+(2*d)%8)}\nv_add_f32 {v(RES+2*d+1)}, {v(RES+2*d+1)}, {v(B2+(2*d+1)%8)}")
        a("s_barrier")
        self.stamp(a, 10)
        self.tile_sum(a, 17, RES, 96, lambda m: a.vm(f"buffer_store_dwordx4 {v(96+4*m,4)}, {v(vL16)}, {s(rWS,4)}, s40 offen offset:{1024*m} sc1"))
        self.stamp(a, 11)
        if self.o['AFIN']:
            a("s_barrier")
            self.srd(a, rOUT, sOUT, 1835008)
            a(f"s_lshr_b32 {s(sT0)}, {s(sWV)}, 1\ns_lshl1_add_u32 {s(sT0)}, {s(sRB2)}, {s(sT0)}\ns_mul_i32 {s(sXB)}, {s(sT0)}, {32*896}\ns_add_u32 {s(sXB)}, {s(sXB)}, {s(sT1)}\ns_add_u32 {s(sXB2)}, {s(sXB)}, {16*896}")
            a(f"s_xor_b32 s42, s41, 512\ns_xor_b32 s40, s40, {16*2048}")
        a.wait_all(vm=True)
        a.vm(f"buffer_store_dword v8, off, {s(rWS,4)}, s41 sc1")
        self.stamp(a, 12)
        if self.o['AFIN']:
            self.poll_issue(a, 1, sWS, "s42"); self.poll_check(a, 1, sWS, "s42", 1)
            self.stamp(a, 13)
            for m in range(2): t = a.vm(f"buffer_load_dwordx4 {v(XW+4*m,4)}, {v(vL16)}, {s(rWS,4)}, s40 offen offset:{1024*m}{self.lm}")
            a.wait(vm=t)
            for d in range(8): a(f"v_lshlrev_b32 {v(RES+2*d)}, 16, {v(XW+d)}\nv_and_b32 {v(RES+2*d+1)}, {s(sMSK)}, {v(XW+d)}")
            self.stamp(a, 14)
            a("s_barrier")
            a.tag = 'b'
            self.tile_sum(a, 17, RES, 96, lambda m: a.vm(f"buffer_store_dwordx4 {v(96+4*m,4)}, v4, {s(rOUT,4)}, {s(sXB if m == 0 else sXB2)} offen"))
            a.tag = 'f'
        self.flush_stamp(a)

    def phase2(self):
        b = self.b; o = self.o; lagv = o['LAGV']
        RES, XW = 232, 248
        self.stamp(b, 8)
        b(f"s_lshl2_add_u32 {s(sT0)}, {s(sRB2)}, {s(sWV)}\ns_lshl_b32 {s(sT0)}, {s(sT0)}, 7\ns_add_u32 {s(sT0)}, {s(sT0)}, {WS_FL}")
        b(f"s_add_u32 {s(sFL)}, {s(sWS)}, {s(sT0)}\ns_addc_u32 {s(sFL+1)}, {s(sWS+1)}, 0")
        b(f"s_xor_b32 {s(sT0)}, {s(sT0)}, 512\ns_add_u32 s92, {s(sWS)}, {s(sT0)}\ns_addc_u32 s93, {s(sWS+1)}, 0")
        b(f"s_sub_u32 s94, s6, s11\ns_lshl_b32 s95, s94, 11\ns_add_u32 s95, s95, s18\ns_lshl_b32 s94, s94, 12\ns_add_u32 s94, s94, s17")
        two = o['TWO']
        ab = lambda q: ACC + 16 * q if q < 4 else 192 + 16 * (q - 4)
        acc = lambda q: v(ab(q), 16)
        QS = lambda u: tuple(q + (4 if two and u[0] == 'g' else 0) for q in (2 * u[2] + 1, 2 * u[2]))
        tk = {}; reg = {}; ring = [96 + 4 * k for k in range(o['NR'])]; st = dict(cur=None, nm=0, x2=None, nw=0)
        fresh = set(range(8)); kept = set(); used = {}; wq = deque(); wt = {}; ru = deque(); tasks = deque()
        W = lambda u: u[1] + {'o': 14, 'e': 21}.get(u[0], 0)
        def wr():
            g, q, h = wq.popleft()
            wt[q] = b.ds(f"ds_write_b128 {v(bWA+(q&3))}, {v(ab(q)+4*h,4)} offset:{(q&3)*4352 + h*1088}"); st['nw'] += 1
            if st['nw'] == 16: st['x2'] = st['nm'] + 2
        def x2(force=False):
            if st['x2'] is not None and (force or st['nm'] >= st['x2']):
                st['x2'] = None; b.wait(lg=max(wt.values())); b("s_barrier"); self.stamp(b, 6); st['x3'] = b.vm_issued + o.get('X3D', 9)
                if two: self.wfree += [192 + 8 * k for k in range(5)]; kept.update((232, 240, 248))
        def fillers():
            self.mv_release()
            if wq and st.get('rush') and st['nw'] < 16 and not two:
                wr()
                if st['nw'] == 16: x2(force=True)
                return
            if wq and st['nm'] >= wq[0][0]: wr(); return
            x2()
            n = 0
            for k in range(2):
                if self.mv_ready(o['LAG']): self.mv_one(); n += 1
            if ru and ru[0] == 'wait':
                if b.vm_done < tk['px']: return
                ru.popleft()
            for k in range(5 - n):
                if ru: ru.popleft()()
        def mfma(lag, fill=True):
            if st['cur'] is None:
                if not tasks: return False
                u = tasks[0]; w = W(u); qs = QS(u)
                if not (b.vm_issued - tk[u] >= lag or tk[u] <= b.vm_done) or w not in self.w2_issued[:self.mv_next]: return False
                if any(x[1] in qs for x in wq): return False
                tasks.popleft()
                b.wait(vm=tk[u], lg=max([self.mv_t[w]] + [wt[q] for q in qs if q in fresh and q in wt]))
                st['cur'] = (u, deque(f"v_mfma_f32_32x32x16_bf16 {acc(q)}, {v(self.wreg[w]+4*(q&1),4)}, {v(reg[u],4)}, {0 if q in fresh else acc(q)}" for q in qs))
                fresh.difference_update(qs)
            u, lines = st['cur']
            b(lines.popleft()); st['nm'] += 1
            if not lines:
                st['cur'] = None; ring.append(reg[u]); w = W(u); qs = QS(u)
                used[w] = used.get(w, 0) + 1
                if True:
                    if used[w] == (4 if w < o['NSPL'] else 2): (kept.add if self.wreg[w] >= RES and not o['AFIN'] else self.wfree.append)(self.wreg[w])
                if u == lastof[u[0] == 'g', u[2]]:
                    wq.extend((st['nm'] + 3, q, h) for q in qs for h in range(4)); fresh.update(qs)
            if fill: fillers()
            return True
        def progress():
            if mfma(0): return
            if wq: wr(); return
            if self.mv_ready(0): self.mv_one(); return
            self.mv_release()
            if self.dma_ready(): self.dma_one(); return
            b.wait_all(lg=True); self.mv_release()
            assert self.dma_ready() or self.mv_ready(0), ("stuck", list(tasks))
        both = lambda p, us: [('h', (p, u, tt)) for u in us for tt in (1, 0)]
        split = lambda p, us: [('h', (p, u, tt)) for tt in (1, 0) for u in us]
        nD = sum(len(it['ops']) for it in self.dq); nD0 = nD
        ns = o['NSPL']; gl = o.get('GL', 4)
        hs = [('check', 4, 0, 1, 9)] + both('g', range(4)) + [('check', 4, 0, 2, 10)]
        if ns > 8: hs += both('g', range(4, 8)) + [('check', 4, 0, 4, 0)]
        if ns == 14: hs += both('g', range(8, 12)) + [('check', 4, 0, 8, 11)] + split('g', (12, 13)) + [('x1',)]
        else: hs += both('g', range(ns - 4, ns - gl)) + split('g', range(ns - gl, ns)) + [('x1',)]
        korder = list(range(ns - 1, -1, -1)); nk = o.get('NK', 4)
        kl = split('k', korder[:nk]) + both('k', korder[nk:])
        kl.insert(o.get('RUSH', 4), ('rush',)); hs += kl
        if two:
            four = lambda us: [x for u in us for x in both('g', [u]) + both('k', [u])]
            hs = [('check', 4, 0, 1, 9)] + four(range(4)) + [('check', 4, 0, 2, 10)]
            kb = o.get('KB', 0)
            if ns > 8: hs += four(range(4, 8 - kb)) + both('g', range(8 - kb, 8)) + [('check', 4, 0, 4, 0)]
            hs += split('g', range(ns - 4, ns)) + [('x1',), ('rush',)] + both('k', range(ns - 4 - kb, ns))
        for t in self.late:
            p, u = ('k', t) if t < 14 else ('e', t - 21)
            if u in (8, 12): hs.insert(len(hs) - (o.get('CE', 0) if p == 'k' else o.get('CE2', 0)), ('check', 4, 0, 4 if u == 8 else 8, 11 if (p, u) == ('k', 12) else 0, sFL if p == 'k' else 92))
            hs += both(p, [u])
        dm = [int(c, 36) for c in str(o.get('DM' + self.role.upper(), o.get('DM', 'o')))]
        seq = []; n = 0; given = 0; started = False
        for it in hs:
            if it[0] == 'check' and dm:
                k = min(nD, dm.pop(0)); seq += [('dma',)] * k; nD -= k
            seq.append(it)
            if it[0] == 'rush': started = True; dm = []
            if it[0] == 'h' and started:
                n += 1
                if n % 2 == 0 and n > o.get('DS0', 0):
                    want = min(nD, 2 * -(-nD * (n - o.get('DS0', 0)) // (4 * self.dspread)))
                    seq += [('dma',)] * (want - given); given = max(given, want)
        assert given == nD
        ol = split('o', range(7)); px = o.get('PXAT', 9)
        if o['AFIN']: seq += [('check', 2, 16, 1, 12)] + ol
        else:
            seq += [('check', 2, 16, 1, 12)] + ol[:px] + [('check', 1, 's22', 1, 0), ('px',)] + ol[px:]
            seq.insert(len(seq) - o.get('X3AT', 1), ('x3',))
        if o.get('SKIP'):
            drop = lambda it: it[0] == 'check' and ((o['SKIP'] & 1 and it[2] == 's22') or (o['SKIP'] & 2 and it[2] == 16) or (o['SKIP'] & 4 and it[2] == 0 and it[3] >= 4))
            seq = [it for it in seq if not drop(it)]
        lastof = {(True, tt): ('g', ns - 1, tt) for tt in (0, 1)}; lastof.update({(False, tt): ('o', 6, tt) for tt in (0, 1)})
        out = []
        for it in seq:
            if it[0] == 'check':
                j = len(out); n = 0
                while j > 0 and n < o['PLEAD'] and out[j - 1][0] != 'check': j -= 1; n += 1
                out.insert(j, ('issue',) + it[1:])
            out.append(it)
        for it in out:
            kind = it[0]
            base = it[5] if len(it) > 5 else sFL
            if kind == 'issue': self.poll_issue(b, it[1], base, it[2]); continue
            if kind == 'check':
                self.kv_flag(b, force=True)
                if it[4] == 9: self.stamp(b, 7)
                if it[4] == 11:
                    for k in range(o.get('DRAIN', 8)): mfma(o.get('DLAG', 4))
                self.poll_check(b, it[1], base, it[2], it[3])
                if it[4]: self.stamp(b, it[4])
                if it[4] == 11: self.lim = 999
                continue
            if kind == 'x1':
                while self.mv_next < o.get('HIOK', 8) or self.mv_sub: progress()
                b.wait(lg=max(self.mv_t.values())); b("s_barrier"); self.lim = o.get('LIM2', 999); continue
            if kind == 'rush':
                while not two and (any(u[0] == 'g' for u in tasks) or st['cur']): mfma(0, fill=False)
                st['rush'] = True; continue
            if kind == 'x3':
                assert st['nw'] == 16
                x2(force=True); b("s_barrier"); continue
            if kind == 'dma':
                self.mv_release()
                while self.dq and not self.dma_ready() and (len(self.mv_freed) < self.mv_next or self.mv_ready(o.get('LAGMIN', 4))):
                    if len(self.mv_freed) < self.mv_next: b.wait(lg=self.mv_t[self.w2_issued[len(self.mv_freed)]]); self.mv_release()
                    else: self.mv_one()
                if not self.dma_ready(): st['owed'] = st.get('owed', 0) + bool(self.dq); continue
            mfma(lagv, fill=False)
            if kind == 'dma': self.dma_one()
            elif kind == 'h':
                u = it[1]; p, t, tt = u
                while not ring: progress()
                reg[u] = ring.pop(0)
                va = (20 if p == 'g' else 2) + tt
                if p == 'o': so = s(19 + t // 4)
                elif p == 'e': so = s(92 + t // 4)
                else: so = "0" if t < 4 else s(15 + t // 4)
                self.throttle(8, self.lim)
                tk[u] = b.vm(f"buffer_load_dwordx4 {v(reg[u],4)}, v{va}, {s(rWS,4)}, {so} offen offset:{(t%4)*1024}{self.lm}")
                tasks.append(u)
            elif kind == 'px':
                while len(kept) < 3: progress()
                for m in range(2): tk['px'] = b.vm(f"buffer_load_dwordx4 {v(XW+4*m,4)}, {v(vL16)}, {s(rWS,4)}, s21 offen offset:{1024*m}{self.lm}")
                ru.append('wait')
                for d in range(8): self.lines(b, ru, f"v_lshlrev_b32 {v(RES+2*d)}, 16, {v(XW+d)}\nv_and_b32 {v(RES+2*d+1)}, {s(sMSK)}, {v(XW+d)}")
            if o.get('BFINE'):
                st.setdefault('v0', b.vm_issued - 1); k = (b.vm_issued - st['v0']) // o['BFINE']
                if k > st.get('fk', -1) and k < 12: st['fk'] = k; self.stamp(b, 19 + k)
            fillers()
            if not mfma(lagv): fillers()
            if o['AFIN'] and st.get('x3') and b.vm_issued >= st['x3']: b("s_barrier"); st['x3'] = None; st['x3done'] = True
            self.mv_release()
            if st.get('owed') and self.dma_ready():
                mfma(lagv, fill=False); self.dma_one(); st['owed'] -= 1; fillers(); mfma(lagv)
        self.stamp(b, 13)
        print("phase 2: dma", nD0, "tasks left after the last load:", len(tasks), "moved", self.mv_next, "writes", st['nw'])
        while tasks or st['cur']: progress()
        self.stamp(b, 14)
        if ru and ru[0] == 'wait': ru.popleft(); b.wait(vm=tk['px'])
        for k in range(10):
            if ru: ru.popleft()()
        while wq:
            wr()
            for k in range(5):
                if ru: ru.popleft()()
        assert not ru and st['nw'] == 32
        b.wait(lg=max(wt.values())); b("s_barrier")
        if o['AFIN']:
            assert st.get('x3done'); self.flush_stamp(b); return
        mod = {0: "", 1: " sc1", 2: " nt"}[o['OUTM']]
        self.tile_sum(b, bRD, RES, 96, lambda m: b.vm(f"buffer_store_dwordx4 {v(96+4*m,4)}, {v(bOA)}, {s(rOUT,4)}, {s(sXB if m == 0 else sXB2)} offen{mod}"))
        self.flush_stamp(b)

    def build(self):
        o = self.o
        self.slow = self.new(); self.slow.tag = 's'
        p = self.entry()
        bp = self.b_prologue()
        P = lambda p_, e: ('p', p_, e)
        streams = {}
        pf0 = list(self.pfq)
        for role in ('f', 'k'):
            self.role = role
            self.a = a = self.new(); a.tag = 'a'; a.vm_issued = 1
            self.bmain = self.b = b = self.new(); b.tag = 'b'; b.set_state(bp.state()); b.pending = bp.pending
            self.q_reset(); self.frag_list(role); self.pfq = deque(pf0); self.pfacc = 0; self.syncs_left = 9
            self.dpre = o.get('DPRE' + role.upper(), o['DPRE']); self.dspread = o.get('DSPREAD' + role.upper(), o['DSPREAD'])
            if role == 'k': b("L_Bk:")
            self.lead = lead = [0, 1, 8, 9, 16, 17, 24, 28] if o['WROT'] & (1 if role == 'f' else 2) else []
            order = list(self.cons)
            la = o.get('L1' + role.upper())
            if la is not None:
                ld = [('p', 1, 0), ('p', 2, 0)] + ([('s', 0)] if role == 'f' else [])
                if o.get('L1N'): ld = ld[:o['L1N']]
                order = [k for k in order if k not in ld]; order[la:la] = ld
            at = o['LEAD' + role.upper()]
            for n, t in enumerate(lead): order.insert(min(len(order), at + n * (1 + o['LSTEP'])), ('w', t))
            ns = o['NSPL']
            late = [t for lo, hi in ((ns, 12), (max(ns, 12), 14)) for base in (0, 21) for t in range(base + lo, base + hi)]
            self.late = late; self.worder = list(range(ns)) + late + list(range(14, 21))
            for k in order + [('w', t) for t in self.worder]: self.enq(k)
            def leave():
                self.b_alive = False
                print(role, "B leaves at", self.clk, "free slots", len(self.free), "w2 issued", len(self.w2_issued), "moved", self.mv_next, "prefetches left", len(self.pfq))
                self.spf(99)
                if role == 'k':
                    self.xs = self.free[0]
                    b(f"s_cmp_ge_u32 {s(sCS)}, 7\ns_cbranch_scc1 L_red")
                    self.red = r = self.new(); r.tag = 'b'; r.pending = b.pending; r.set_state(b.state())
                    r("L_red:"); self.b = r; self.b_gather(); self.b = b
            self.on_all_published = leave
            self.a_layernorm()
            ln = a.text(); mark = len(a.L)
            if role == 'f':
                a(f"s_cmp_lg_u32 {s(sROLE)}, 0\ns_cbranch_scc1 L_Ak")
                self.a_ffn(); ln_f = ln
            else:
                assert ln == ln_f, "layernorm code differs between the roles"
                a("L_Ak:"); self.a_kvq(); a.L = a.L[mark:]
            self.phase2()
            if role == 'f': b("s_branch L_fin")
            streams['a' + role] = a.text(); streams['b' + role] = b.text()
            self.count = getattr(self, 'count', 0) + len(a.L) + len(b.L)
        f = self.new(); f.tag = 'f'
        f("s_branch L_fin")
        self.a_mid(f)
        if self.probe is not None and not o['AFIN']: f("s_barrier\ns_barrier")
        f("L_fin:")
        if self.probe is not None:
            f.wait_all(vm=True); self.stamp(f, 15); f.wait_all(lg=True)
            f("s_sub_u32 s1, s100, s0\ns_lshl_b32 s1, s1, 2\ns_add_u32 s1, s1, 4000")
            f("L_spin:\ns_memrealtime s[100:101]"); f.wait_all(lg=True)
            f("s_sub_u32 s100, s100, s0\ns_cmp_lt_u32 s100, s1\ns_cbranch_scc1 L_spin")
        if self.stamps:
            f.wait_all(vm=True)
            self.stamp(f, 15); self.flush_stamp(f)
            f("s_memrealtime s[100:101]"); f.wait_all(lg=True); f("v_writelane_b32 v5, s100, 16")
            f(f"v_readlane_b32 {s(sT1)}, v5, 63\ns_nop 3\ns_lshl3_add_u32 {s(sT0)}, s2, {s(sT1)}\ns_lshl_b32 {s(sT0)}, {s(sT0)}, 8\ns_add_u32 {s(sT0)}, {s(sT0)}, {WS_ST}")
            f(f"v_lshlrev_b32 v6, 2, {v(vL)}")
            f.vm(f"buffer_store_dword v5, v6, {s(rWS,4)}, {s(sT0)} offen")
        f("L_end:\ns_endpgm")
        f("L_init:")
        self.srd(f, rWS, sWS, WS_SIZE)
        f(f"v_mov_b32 v40, 0\nv_mov_b32 v41, 0\nv_mov_b32 v42, 0\nv_mov_b32 v43, 0\nv_lshlrev_b32 v44, 7, {v(vL)}")
        NI = o['NI']; per = (32768 + 512 * o['FKS']) // (4 * NI)
        f(f"s_sub_u32 {s(sT1)}, s2, {256 - NI}\ns_lshl2_add_u32 {s(sT1)}, {s(sT1)}, {s(sWV)}\ns_mul_i32 {s(sT0)}, {s(sT1)}, {per}\ns_add_u32 {s(sT0)}, {s(sT0)}, {WS_FL}")
        for k in range(per // 1024):
            if k and k % 4 == 0: f(f"s_addk_i32 {s(sT0)}, 4096")
            f(f"buffer_store_dwordx4 v[40:43], {v(vL16)}, {s(rWS,4)}, {s(sT0)} offen offset:{1024*(k%4)} sc1")
        f("s_branch L_noinit\nL_go:")
        f(f"s_sub_u32 {s(sT1)}, s2, {256 - NI}\ns_lshl2_add_u32 {s(sT1)}, {s(sT1)}, {s(sWV)}\ns_lshl_b32 {s(sT1)}, {s(sT1)}, 2\nv_mov_b32 v45, 1\nv_mov_b32 v46, {s(sT1)}")
        f.wait_all(vm=True)
        f(f"global_store_dword v46, v45, s[8:9] sc1\ns_branch L_gone")
        self.body = p.text() + streams['af'] + streams['ak'] + bp.text() + streams['bf'] + streams['bk'] + f.text() + self.red.text() + self.slow.text() + 'L_last:\n    s_endpgm\n'

    def text(self):
        hdr = open(f"cdna_kernels/{NAME}.s.ref").read().split("\n")
        top = [l for l in hdr if l.startswith(";") and "@launch" not in l and "Override" not in l and "grid=ceil" not in l]
        out = "\n".join(top) + "\n; @launch grid=(256,1,1) block=(512,1,1) lds=163840\n"
        out += f'.amdgcn_target "amdgcn-amd-amdhsa--gfx950"\n.text\n.globl {NAME}_kernel\n.p2align 8\n.type {NAME}_kernel,@function\n'
        out += self.body if (self.stamps or self.probe is not None) else self.body.replace('s_branch L_fin\n', 's_endpgm\n')
        out += f'''.section .rodata,"a"
.p2align 6
.amdhsa_kernel {NAME}_kernel
  .amdhsa_next_free_vgpr 256
  .amdhsa_next_free_sgpr 102
  .amdhsa_accum_offset 256
  .amdhsa_group_segment_fixed_size 0
  .amdhsa_kernarg_size 88
  .amdhsa_user_sgpr_count 2
  .amdhsa_user_sgpr_kernarg_segment_ptr 1
  .amdhsa_system_sgpr_workgroup_id_x 1
  .amdhsa_float_denorm_mode_32 3
.end_amdhsa_kernel
'''
        return out

if __name__ == "__main__":
    out = sys.argv[1]; stamps = False; probe = None; opt = {}
    for x in sys.argv[2:]:
        if x == "stamps": stamps = True
        elif x.startswith("probe="): probe = (x[6], int(x[7:]))
        else: k, val = x.split("="); opt[k] = val if k.startswith("DM") else (float(val) if "." in val else int(val))
    g = Gen(stamps, probe, opt); g.build(); open(out, "w").write(g.text())
    print("lines", g.count)
```

```python
import sys
from collections import deque
from asmlib import Asm

NAME = "parallel_sum__linear_attn_block__dense_activation_squared_relu__prompt"
WS_H = 0; WS_PQ = 0x900000; WS_KV = 0xB00000; WS_FL = 0xB80000; WS_PL = 0xB84000; WS_FK = 0xB88000
WS_ST = 0xC00000; WS_PX = 0xD00000; WS_SIZE = 0xF00000
XO = 40960 - 17408
HS = 140 * 1024
REG = 40960
INIT_WG = 248
SPIN = 40000

def v(a, n=1): return f"v{a}" if n == 1 else f"v[{a}:{a+n-1}]"
def s(a, n=1): return f"s{a}" if n == 1 else f"s[{a}:{a+n-1}]"

sX, sWQ, sWO, sW1, sB1, sW2, sB2, sOUT, sDBG, sWS = 4, 6, 8, 12, 14, 16, 18, 20, 22, 24
sWV, sRB, sSO = 3, 26, 27
rX, rWS = 28, 36
sXB = 61
sI, sJ, sROLE, sCS, sRB2, sT0, sT1, sT2, sHST = 65, 66, 67, 68, 69, 70, 71, 72, 73
sROT, sCNT = 75, 77
sMSK = 10
sP = 84
rB1 = 32
aM = [40, 42, 44, 46, 10]
aONE, aL2E, aEPS, aKVO, aHST, aPQS, aBIA, aBI2, aHS2 = 48, 50, 51, 52, 53, 54, 55, 56, 57
aONB = 62
aFL = 58; sHI = 82; sG1 = 84
rW, rW2, rWO, rOUT, rB2 = 32, 40, 44, 48, 52
sCOL, sSGL, sWOB, sW2B, sSO2, sFL = 62, 74, 76, 12, 13, 14
sK1 = 91; sRS = 56
sHC = [None, 84 + 8, 85 + 8, 86 + 8, 87 + 8, 88 + 8, 89 + 8, 4, 5]
sTG, sCB, sXB2 = 60, 78, 79

vL = 0; vXD = 1; vRN = 2; vXR = 14; vSR = 14; vL16 = 18; vGO = 19; vWR = 20
RINGB, RING = 28, 6
AS, VA, BI, TMP = 52, 176, 208, 232
def Uof(st): return 52 + 8 * st if st < 8 else 116 + 8 * (st - 8)
def Fof(st): return 84 + 4 * st if st < 23 else 236 + 4 * (st - 23)
def Rof(st): return Uof(st) + 4 if st < 23 else Fof(st)
bSD, bOA, bWK, bWD, bW2D, bP2R, bRD, bHB, bHO, bWA = 1, 4, 8, 10, 12, 14, 17, 20, 22, 24
ACC = 32

DEF = dict(D=4, CX=70, CK=150, CF=100, L1F=7, ALLF=12, CQ=140, CW=90, CS=60, SLACK=600, TSLOT=38, TFRAG=68, XPRE=12, B0AT=16,
           PUBALL=99, PUBLAT=500, LAG=10, LAGV=8, KVLAG=16, B0=4, B1=6, B2=6, B3=6, FLAG=26,
           ZP=0, NPK=15, ZQ=1, AFIN=0, TWO=0, NR=12, ST4=0, GOM=1, NSPL=12, DM='s0e', RUSH=8, NK=4, PXAT=14, DYN=1, CE=6, CE2=4, X3AT=0, SYAT=8, DPRE=24, D0=0, DSPREAD=3, PLEAD=8, NLAST=3, NS=6, OUTM=0, PRIO=0, NOW2=3, SL1=2, SL2=3,
           LIM=80, LIM0=999, LIMOFF=14, SPF=8, PFO=5, L1N=1, VPFF=0, SPF0=0, SPFC=180, ROTX=1, WROT=0, LEADF=10, LEADK=21, LSTEP=0, XSLACK=100, BPRIO=0, KPRI=1, FKS=64, NI=4, LM=0, KVD=6, KPRE=2, RESE=0, CL=120, LIMFROM=7, QN=6, SYNCF=1, SYNCK=0, RESAT=26)

class Gen:
    def __init__(self, stamps=False, probe=None, opt=None):
        self.probe = probe; self.o = dict(DEF); self.o.update(opt or {})
        self.sm = self.fm = ' sc1'; self.lm = '' if self.o['LM'] else ' sc1'
        self.stamps = stamps; self.nlab = 0; self.parts = []
    def new(self):
        x = Asm(); x.guard = False; x.pending = None; x.m0 = None; x.so2 = None; return x
    def lab(self, p):
        self.nlab += 1; return f"L_{p}_{self.nlab}"
    def stamp(self, x, k):
        if self.probe == (x.tag, k): x("s_memrealtime s[100:101]")
        if not self.stamps or self.o.get('LIGHT'): return
        if x.pending is not None: x(f"v_writelane_b32 v5, s100, {x.pending}\nv_writelane_b32 v5, s0, {32+x.pending}")
        x(f"s_memtime s[100:101]\ns_memrealtime s[0:1]")
        x.pending = k
    def flush_stamp(self, x):
        if self.stamps and x.pending is not None:
            x.wait_all(lg=True); x(f"v_writelane_b32 v5, s100, {x.pending}\nv_writelane_b32 v5, s0, {32+x.pending}"); x.pending = None
    def srd(self, x, r, p, size):
        x(f"s_mov_b32 {s(r)}, {s(p)}\ns_mov_b32 {s(r+1)}, {s(p+1)}\ns_mov_b32 {s(r+2)}, {size}\ns_mov_b32 {s(r+3)}, 0x20000")
    def lines(self, x, q, text): q.extend([(lambda l=l: x(l)) for l in text.split("\n")])
    def ids(self, x):
        x(f"s_bfe_u32 {s(sT0)}, s2, 0x10002\ns_lshl1_add_u32 {s(sRB2)}, {s(sI)}, {s(sT0)}")
        x(f"s_and_b32 {s(sJ)}, {s(sCS)}, 3\ns_lshl2_add_u32 {s(sJ)}, {s(sT0)}, {s(sJ)}\ns_lshr_b32 {s(sROLE)}, {s(sCS)}, 2")
    def rot_step(self, x):
        x(f"s_add_u32 {s(sROT)}, {s(sROT)}, 1\ns_cmp_eq_u32 {s(sROT)}, 7\ns_cselect_b32 {s(sROT)}, 0, {s(sROT)}")
    def poll_issue(self, x, n, base, off=0):
        x(f"s_load_dword{'x%d' % n if n > 1 else ''} {s(sP, n)}, {s(base, 2)}, {off} glc")
    def poll_check(self, x, n, base, off, bit, cnt=None):
        L = self.lab("poll"); E = self.lab("pend"); y = self.slow
        def cond(x):
            regs = list(range(sP, sP + (cnt or n), 2))
            while len(regs) > 1:
                r = regs.pop(); x(f"s_and_b64 {s(regs[0],2)}, {s(regs[0],2)}, {s(r,2)}")
            if n > 1: x(f"s_and_b32 {s(sP)}, {s(sP)}, {s(sP+1)}")
            x(f"s_and_b32 {s(sP)}, {s(sP)}, {bit}")
        x.wait_all(lg=True)
        cond(x)
        x(f"s_cbranch_scc0 {L}\n{E}:")
        y(f"{L}:\ns_mov_b32 {s(sCNT)}, 0\n{L}_l:")
        if self.o['SL1']: y(f"s_sleep {self.o['SL1']}")
        self.poll_issue(y, n, base, off)
        y.wait_all(lg=True)
        cond(y)
        y(f"s_cbranch_scc1 {E}")
        y(f"s_add_u32 {s(sCNT)}, {s(sCNT)}, 1\ns_cmp_lt_u32 {s(sCNT)}, {SPIN}\ns_cbranch_scc1 {L}_l\ns_branch {E}")
    def go_load(self):
        a = self.a
        a(f"v_and_b32 {v(vGO)}, {4 * self.o['NI'] - 1}, {v(vL)}\nv_lshlrev_b32 {v(vGO)}, 2, {v(vGO)}")
        self.tgo = a.vm(f"global_load_dword {v(vGO)}, {v(vGO)}, {s(sDBG,2)}{' sc1' if self.o['GOM'] else ''}")
        return 3
    def go_check(self):
        a = self.a; E = self.lab("go"); L = self.lab("gol")
        assert self.b_alive
        a.wait(vm=self.tgo)
        a(f"v_cmp_eq_u32 vcc, 0, {v(vGO)}\ns_cbranch_vccnz {L}\n{E}:")
        y = self.slow
        y(f"{L}:\ns_mov_b32 {s(sP)}, 0\n{L}_l:\ns_sleep 8")
        y(f"v_and_b32 {v(vGO)}, {4 * self.o['NI'] - 1}, {v(vL)}\nv_lshlrev_b32 {v(vGO)}, 2, {v(vGO)}")
        y.vm(f"global_load_dword {v(vGO)}, {v(vGO)}, {s(sDBG,2)} sc1"); y.wait_all(vm=True)
        y(f"v_cmp_eq_u32 vcc, 0, {v(vGO)}\ns_cbranch_vccz {E}")
        y(f"s_add_u32 {s(sP)}, {s(sP)}, 1\ns_cmp_lt_u32 {s(sP)}, {SPIN}\ns_cbranch_scc1 {L}_l\ns_branch {E}")
        return 3

    def set_m0(self, x, off):
        if x.m0 is not None and -32768 <= off - x.m0 <= 32767: x(f"s_addk_i32 m0, {off - x.m0}")
        else: x(f"s_add_u32 m0, {s(sRB)}, {off}")
        x.m0 = off
    def set_so2(self, base, off):
        b = self.b
        if b.so2 and b.so2[0] == base and -32768 <= off - b.so2[1] <= 32767: b(f"s_addk_i32 {s(sSO2)}, {off - b.so2[1]}")
        else: b(f"s_add_u32 {s(sSO2)}, {s(base)}, {off}")
        b.so2 = (base, off)
    def q_reset(self):
        self.dq = deque(); self.tick = {}; self.slot = {}; self.free = list(range(14, 20)); self.est = {}
        self.w2_issued = []; self.mv_next = 0; self.mv_sub = 0; self.mv_t = {}; self.mv_freed = set()
        self.wfree = [96 + 8 * k for k in range(self.o['NR'] // 2, 12 if self.o['TWO'] else 20)]; self.wreg = {}; self.wkeep = False
        self.pub = -1; self.lastread = {}; self.allread = set(); self.reserve = []; self.hold = {14, 15, 16, 17} if self.role == 'k' else set()
        self.forced = 0; self.publag = []; self.b_alive = True; self.hook = None; self.w2pre = 0; self.vpf = False; self.kvst = None; self.blines = {}; self.lim = self.o['LIM']; self.b_gone = False; self.kx_done = False
    def enq(self, key):
        b = self.b; kind = key[0]
        def dma(pre, vaddr, srd, so, off, last=None):
            def f():
                if pre: pre()
                self.throttle(16 if self.heavy(key) else 8, self.o['LIM0'] if (key[:2] == ('p', 0) or self.pub < self.o['LIMFROM']) else self.lim)
                self.tick[key] = b.vm(f"buffer_load_dwordx4 {v(vaddr)}, {s(srd,4)}, {s(so)} offen offset:{off} lds")
                if last: last()
            return f
        if kind == 'p':
            _, p, e = key
            kt, va, srd = sK1 + e, (bWK if p < 2 else bWD), rW
            def pre(): self.set_m0(b, self.slot[key] * 2048); b(f"s_add_u32 {s(sSO)}, {s(sCOL+p)}, {s(kt)}")
            ops = [dma(pre, va, srd, sSO, 0), dma(None, va + 1, srd, sSO, 1024)]
        elif kind == 's':
            def pre(e):
                def f(): self.set_m0(b, self.slot[key] * 2048 + (e & 1) * 1024); b(f"s_add_u32 {s(sSO)}, {s(sSGL)}, {s(sK1+e)}")
                return f
            ops = [dma(pre(e), bSD, rW, sSO, 0) for e in (2 * key[1], 2 * key[1] + 1) if e < 7]
        elif kind == 'w':
            t = key[1]
            def pre():
                self.set_m0(b, self.slot[key] * 2048)
                if t < 12: self.set_so2(sW2B, (32 * (t // 4) + t % 4) * 14336)
                elif t < 14: self.set_so2(7, (t - 12) * 14336)
                elif t < 21: self.set_so2(sWOB, (t - 14) * 14336)
                elif t < 33: self.set_so2(4, (32 * ((t - 21) // 4) + (t - 21) % 4) * 14336)
                else: self.set_so2(5, (t - 33) * 14336)
            srd = rWO if 14 <= t < 21 else rW2
            ops = [dma(pre, bW2D, srd, sSO2, 0), dma(None, bW2D + 1, srd, sSO2, 1024, lambda: self.w2_issued.append(t))]
        self.dq.append(dict(key=key, ops=deque(ops)))
    def cost(self, key):
        o = self.o
        if key[0] == 'w' and key[1] in self.lead: return o['CL']
        return {'s': o['CQ'], 'w': o['CW']}.get(key[0]) or (o['CK'] if self.heavy(key) else o['CF'])
    def heavy(self, key): return key[0] == 's' or (key[0] == 'p' and self.role == 'k' and key[1] < 2)
    def throttle(self, lines, lim):
        b = self.b
        tot = lines; t = b.vm_issued
        while t > b.vm_done and tot + self.blines.get(t, 8) <= lim: tot += self.blines.get(t, 8); t -= 1
        b.wait(vm=t)
        self.blines[b.vm_issued + 1] = lines
    def dma_ready(self):
        return bool(self.dq) and (self.dq[0].get('started') or len(self.cand()) > 0)
    def cand(self):
        k = self.dq[0]['key']
        return [f for f in self.free if not (k[0] == 'w' and self.worder.index(k[1]) >= self.o.get('HIOK', 8) and f > 10)]
    def dma_one(self):
        it = self.dq[0]
        if not it.get('started'): it['started'] = True; f = self.cand()[0]; self.free.remove(f); self.slot[it['key']] = f
        self.vclk += self.cost(it['key']); self.est[it['key']] = self.vclk
        it['ops'].popleft()()
        if self.pub >= self.o['SPF0']: self.pfacc += self.cost(it['key']) / self.o['SPFC']
        while self.pfacc >= 1: self.spf(1); self.pfacc -= 1
        if not it['ops']: self.dq.popleft()
        self.kv_flag(self.b)
        left = sum(1 for it in self.dq if it['key'][0] != 'w')
        vp = self.o.get('VPF' + self.role.upper())
        if vp is not None and vp >= 0 and not self.vpf and left <= vp and not self.dq[0].get('started'):
            b = self.b; self.vpf = True; both = self.o.get('VPFK') is not None
            n2, no = (14, 4) if both else (25, 7)
            b(f"s_lshl2_add_u32 {s(sT2)}, s2, {s(sWV)}\ns_mul_i32 {s(sT0)}, {s(sT2)}, {n2}\ns_mul_i32 {s(sT1)}, {s(sT2)}, {no}")
            b(f"v_min_u32 v66, {n2-1}, {v(vL)}\nv_add_lshl_u32 v66, v66, {s(sT0)}, 7\nv_min_u32 v67, {no-1}, {v(vL)}\nv_add_lshl_u32 v67, v67, {s(sT1)}, 7")
            self.blines[b.vm(f"buffer_load_dword v66, v66, {s(rW2,4)}, 0 offen")] = n2
            b.vm(f"buffer_load_dword v67, v67, {s(rWO,4)}, 0 offen")
    def issued(self, key): return key in self.tick and not any(it['key'] == key for it in self.dq)
    def mv_ready(self, lag):
        if self.mv_sub: return True
        if self.mv_next >= len(self.w2_issued) or not self.wfree: return False
        t = self.w2_issued[self.mv_next]
        return self.b.vm_issued - self.tick['w', t] >= lag or self.tick['w', t] <= self.b.vm_done
    def mv_one(self):
        b = self.b; t = self.w2_issued[self.mv_next]; c = 1
        if self.mv_sub == 0:
            self.wfree.sort(); self.wreg[t] = self.wfree.pop(0)
            c += bool(b.wait(vm=self.tick['w', t]))
        T, rd = self.mv_sub >> 1, self.mv_sub & 1
        self.mv_t[t] = b.ds(f"ds_read_b64_tr_b16 {v(self.wreg[t]+4*T+2*rd, 2)}, {v(bP2R+T)} offset:{self.slot['w', t]*2048 + rd*1024}")
        self.mv_sub += 1
        if self.mv_sub == 4: self.mv_sub = 0; self.mv_next += 1
        return c
    def mv_release(self):
        for k in range(self.mv_next):
            t = self.w2_issued[k]
            if t not in self.mv_freed and self.mv_t[t] <= self.b.lg_done:
                self.mv_freed.add(t); self.free.append(self.slot['w', t])
    def b_advance(self):
        b = self.b; o = self.o
        self.vclk = max(self.vclk, self.tprev)
        while self.dq and self.vclk <= self.clk + o['SLACK'] and not (o.get('NOW2', 0) & (1 if self.role == 'f' else 2) and self.dq[0]['key'][0] == 'w' and self.dq[0]['key'][1] not in self.lead):
            self.mv_release()
            if not self.dma_ready():
                if len(self.mv_freed) < self.mv_next:
                    b.wait(lg=self.mv_t[self.w2_issued[len(self.mv_freed)]]); continue
                if self.mv_ready(o.get('LAGMIN', 4)):
                    for k in range(4): self.mv_one()
                    continue
                break
            self.dma_one()
            if self.mv_ready(o['LAG']):
                for k in range(4): self.mv_one()
    def barrier(self, vm=None):
        if self.b_alive:
            self.kv_flag(self.b, force=True)
            self.b.wait(vm=vm); self.b("s_barrier")
        self.a("s_barrier"); self.tprev = self.clk
        for k, t in list(self.lastread.items()):
            if k in self.allread and t <= self.a.lg_done:
                del self.lastread[k]
                (self.reserve if self.slot[k] in self.hold and k[0] == 'p' else self.free).append(self.slot[k])
    def sync(self, slack=None):
        keep = self.o['SLACK']
        if slack is not None: self.o['SLACK'] = slack
        self.publish(None); self.o['SLACK'] = keep
    def publish(self, c):
        if not self.b_alive:
            assert c is None and self.b_gone
            self.barrier(); return
        self.b_advance()
        if (c if c is not None else 99) >= self.o.get('ALL' + self.role.upper(), 99):
            while self.dma_ready() and self.dq[0]['key'][0] != 'w': self.dma_one()
            self.vclk = min(self.vclk, self.clk)
            for k in self.est: self.est[k] = min(self.est[k], self.clk - (0 if c is not None else self.o['PUBLAT']))
        if self.dq and self.dq[0]['key'][0] == 'w' and c is None:
            keep, self.lim = self.lim, 999
            while self.w2pre < self.o.get('W2PRE' + self.role.upper(), 0) and self.dma_ready() and len(self.free) + bool(self.dq[0].get('started')) > (self.role == 'k'):
                self.dma_one(); self.w2pre += 1
            self.lim = keep
        if c is not None:
            while not self.issued(self.cons[c]):
                assert self.dma_ready(), ("cannot publish", c)
                self.dma_one(); self.forced += 1
        if not self.hook and self.pub >= self.o['SPF0']: self.spf(self.o.get('SPFB' + self.role.upper(), 0))
        tgt = self.pub if c is None else c
        force_all = c is not None and c >= self.o['PUBALL']
        while (c != 0 and tgt + 1 < len(self.cons) and self.issued(self.cons[tgt + 1])
               and (force_all or self.est[self.cons[tgt + 1]] + self.o['PUBLAT'] <= self.clk)): tgt += 1
        tk = max(self.tick[k] for k in self.cons[:tgt + 1])
        self.publag.append((tgt, self.b.vm_issued - tk))
        self.barrier(vm=tk)
        if self.hook: h, self.hook = self.hook, None; h()
        self.pub = tgt
        if c is None: self.syncs_left -= 1
        if tgt + 1 == len(self.cons) and self.syncs_left == 0: self.on_all_published()

    def frag_list(self, role):
        fr = []
        for stage, p in enumerate((0, 1, 2, None) if role == 'f' else (0, 1, 2)):
            for st in range(28):
                if p is None:
                    e = st // 4
                    fr.append(dict(key=('s', e // 2), addr=vSR + (st & 3), sub=(e & 1) * 1024, rd=256, stage=stage, s=st, T=0))
                else:
                    for T in range(2):
                        base = vSR if (role, p, T) == ('k', 2, 1) else vWR + 4 * T
                        fr.append(dict(key=('p', p, st // 4), addr=base + (st & 3), sub=0, rd=512, stage=stage, s=st, T=T))
        if role == 'k' and self.o.get('QSEQ', 1):
            q = [f for f in fr if f['stage'] == 2]
            fr = [f for f in fr if f['stage'] < 2] + [f for f in q if f['T'] == 0] + [f for f in q if f['T'] == 1]
        self.cons = []
        for f in fr:
            if f['key'] not in self.cons: self.cons.append(f['key'])
        for f in fr: f['c'] = self.cons.index(f['key'])
        self.fr = fr
    def read_frag(self, n):
        a = self.a
        if n >= len(self.fr): return
        f = self.fr[n]
        if f['c'] > self.pub: self.publish(f['c'])
        r = RINGB + 4 * (n % RING); off = self.slot[f['key']] * 2048 + f['sub']
        if self.o['ZP'] and self.role == 'k' and (f['stage'], f['T']) == (2, 0) and f['s'] < 4: a(f"v_xor_b32 {v(f['addr'])}, v6, {v(f['addr'])}")
        a.ds(f"ds_read_b64_tr_b16 {v(r,2)}, {v(f['addr'])} offset:{off}")
        f['t'] = a.ds(f"ds_read_b64_tr_b16 {v(r+2,2)}, {v(f['addr'])} offset:{off+f['rd']}")
        self.lastread[f['key']] = f['t']
        if not any(g['key'] == f['key'] for g in self.fr[n + 1:]): self.allread.add(f['key'])
    def pop(self, fillers):
        n0 = self.a.vm_issued
        r = fillers.popleft()() or 1
        if self.a.vm_issued > n0: self.vclk += self.o['CS']
        return r
    def fill(self, fillers, budget):
        self.clk += self.o['TSLOT'] + 4 * max(0, min(budget, len(fillers)) - 4)
        while fillers and budget > 0: budget -= self.pop(fillers)
    def run_stage(self, stage, acc, swap, fillers, budget=4, pre=None, forced=None, minfill=0, finish=0, syncs=()):
        a = self.a; D = self.o['D']
        idx = [n for n, f in enumerate(self.fr) if f['stage'] == stage]
        for line in (pre or []):
            a(line); self.fill(fillers, budget + 2)
        for k, n in enumerate(idx):
            f = self.fr[n]
            a.wait(lg=f['t'])
            w = v(RINGB + 4 * (n % RING), 4); x = v(Fof(f['s']), 4)
            c = acc(f['T']) if (pre or f['s'] > 0) else "0"
            a(f"v_mfma_f32_32x32x16_bf16 {acc(f['T'])}, {x if swap else w}, {w if swap else x}, {c}")
            if k in syncs: self.sync()
            self.read_frag(n + D)
            last = (n % 2 == 1)
            fl = forced(f['s'], f['T']) if forced else []
            if stage == 0 and self.o['NPK'] < 15:
                for g in fl: g()
                self.clk += 4 * max(0, len(fl) - 4)
                self.fill(fillers, budget - len(fl) - (1 if last else 0))
            else:
                self.fill(fillers, budget - len(fl) - (1 if last else 0))
                for g in fl: g()
            left = max(0, len(idx) - k - 1 - finish)
            while fillers and minfill and len(fillers) > left * minfill: self.pop(fillers); self.clk += 2
            fs = self.o.get('FSTEP', 5)
            if self.o.get('FINE') == stage and k % fs == 0 and 19 + k // fs < 32: self.stamp(a, 19 + k // fs)
            if last and n + 2 < len(self.fr): a.wait(lg=self.fr[n + 2]['t'])
    def cvt_forced(self, st, T):
        a = self.a; n = st + 2
        if not 8 <= n < 23: return []
        return [lambda d=d: a(f"v_cvt_pk_bf16_f32 {v(Fof(n)+d)}, {v(Uof(n)+2*d)}, {v(Uof(n)+2*d+1)}") for d in ((0, 1) if T == 0 else (2, 3))]
    def norm_queue(self):
        a = self.a; q = deque(); self.nq_mark = {}
        for n in range(8, 23):
            for d in range(4):
                r = Uof(n) + 2 * d
                if n >= 8 + self.o['NPK']: self.lines(a, q, f"v_fma_f32 {v(r)}, {v(r)}, v2, v3\nv_fma_f32 {v(r+1)}, {v(r+1)}, v2, v3")
                self.lines(a, q, f"v_cvt_pk_bf16_f32 {v(Fof(n)+d)}, {v(r)}, {v(r+1)}")
            self.nq_mark[n] = len(q)
        g = self.g3_ops()
        for n in range(23, 28): q.extend(g[20 * (n - 23):20 * (n - 22)]); self.nq_mark[n] = len(q)
        total = len(q)
        def due(st, T):
            n = min(27, st + (2 if st < 21 else 1)); ops = []
            if n >= 8 and T == 1:
                while total - len(q) < self.nq_mark[n]: ops.append(q.popleft())
            return ops
        return q, due
    def g3_ops(self):
        ops = []
        for st in range(23, 28):
            for d in range(4):
                r = Fof(st) + d; t0, t1 = (1, 4) if d & 1 else (7, vGO)
                self.lines(self.a, ops, f"v_lshlrev_b32 v{t0}, 16, {v(r)}\nv_and_b32 v{t1}, {s(sMSK)}, {v(r)}\nv_fma_f32 v{t0}, v{t0}, v2, v3\nv_fma_f32 v{t1}, v{t1}, v2, v3\nv_cvt_pk_bf16_f32 {v(r)}, v{t0}, v{t1}")
        return ops
    def phi_ops(self, src, dst=None):
        a = self.a; ops = []
        for d in range(8):
            t0 = TMP + 2 * (d & 1)
            for k in range(2):
                x = src + 2 * d + k
                self.lines(a, ops, f"v_mul_f32 {v(t0+k)}, {s(aL2E)}, {v(x)}")
                def ex(e=t0+k):
                    a(f"v_exp_f32_e64 {v(e)}, {v(e)} clamp"); return 2
                ops.append(ex)
                self.lines(a, ops, f"v_max_f32 {v(x)}, {s(aEPS)}, {v(x)}\nv_add_f32 {v(t0+k)}, {v(t0+k)}, {v(x)}")
            self.lines(a, ops, f"v_cvt_pk_bf16_f32 {v((dst or src)+d)}, {v(t0)}, {v(t0+1)}")
        return ops

    def entry(self):
        p = self.new(); p.tag = 'p'
        p(f"{NAME}_kernel:")
        p("s_cmp_ge_u32 s2, 256\ns_cbranch_scc1 L_end")
        if self.stamps: p("s_memrealtime s[78:79]\ns_memtime s[80:81]")
        if self.probe is not None: p("s_memrealtime s[100:101]")
        p("s_load_dwordx16 s[4:19], s[0:1], 0\ns_load_dwordx4 s[20:23], s[0:1], 64\ns_load_dwordx2 s[24:25], s[0:1], 80")
        p("s_getpc_b64 s[98:99]\nL_pc:")
        p(f"s_lshr_b32 {s(sT1)}, s2, 3\ns_lshl_b32 s3, {s(sT1)}, 7")
        p("v_lshrrev_b32 v1, 5, v0\nv_lshl_add_u32 v1, v1, 12, s3")
        p("v_min_u32 v1, L_last - L_pc, v1")
        p.vm(f"global_load_dword {v(vGO)}, v1, s[98:99]")
        p(f"v_lshrrev_b32 v1, 6, v0\nv_and_b32 {v(vL)}, 63, v0")
        p(f"v_readfirstlane_b32 s99, v1")
        p(f"s_and_b32 {s(sT2)}, {s(sT1)}, 3\ns_lshr_b32 {s(sCS)}, {s(sT1)}, 2")
        p(f"s_and_b32 {s(sI)}, s2, 3\ns_lshl2_add_u32 {s(sI)}, {s(sI)}, {s(sT2)}")
        p(f"s_lshl1_add_u32 {s(sROT)}, {s(sT2)}, {s(sCS)}")
        p(f"s_cmp_ge_u32 {s(sROT)}, 7\ns_cselect_b32 {s(sT0)}, 7, 0\ns_sub_u32 {s(sROT)}, {s(sROT)}, {s(sT0)}")
        if self.o['ROTX']:
            p(f"s_and_b32 {s(sT0)}, s2, 1\ns_add_u32 {s(sROT)}, {s(sROT)}, {s(sT0)}\ns_cmp_eq_u32 {s(sROT)}, 7\ns_cselect_b32 {s(sROT)}, 0, {s(sROT)}")
        p(f"s_and_b32 {s(sWV)}, s99, 3\ns_mul_i32 {s(sRB)}, {s(sWV)}, {REG}")
        p(f"v_lshrrev_b32 v6, 3, {v(vL)}\nv_and_b32 v7, 7, {v(vL)}\nv_lshlrev_b32 {v(vL16)}, 4, {v(vL)}")
        p("s_cmp_ge_u32 s99, 4\ns_cbranch_scc1 L_B")
        return p
    def after_args(self, x):
        x.wait_all(lg=True)
        if self.probe is not None: x("s_mov_b32 s0, s100")
        if self.stamps: x("v_writelane_b32 v5, s78, 18\nv_writelane_b32 v5, s80, 0\nv_writelane_b32 v5, s99, 63")
        self.stamp(x, 1)

    def b_prologue(self):
        b = self.new(); b.tag = 'b'; b.vm_issued = 1
        b("L_B:")
        self.ids(b)
        b(f"s_movk_i32 {s(sT0)}, 3584\ns_cselect_b32 {s(sRS)}, 2688, {s(sT0)}\ns_cselect_b32 {s(sCNT)}, 6, 7\ns_cbranch_scc1 L_Bck")
        b(f"s_lshl_b32 {s(sCOL)}, {s(sJ)}, 7\ns_add_u32 {s(sCOL+1)}, {s(sCOL)}, 1024\ns_add_u32 {s(sCOL+2)}, {s(sCOL)}, 2048\ns_branch L_Bcd\nL_Bck:")
        b(f"s_mul_i32 {s(sCOL)}, {s(sJ)}, 112\ns_add_u32 {s(sCOL+1)}, {s(sCOL)}, 1792\ns_addk_i32 {s(sCOL)}, 896\ns_lshl_b32 {s(sCOL+2)}, {s(sJ)}, 7")
        if self.o['ZQ']: b(f"s_cmp_eq_u32 {s(sJ)}, 7\ns_cselect_b32 {s(sCOL+2)}, 0x200000, {s(sCOL+2)}")
        b("L_Bcd:")
        b(f"s_mul_i32 {s(sT0)}, {s(sWV)}, {s(sRS)}\ns_lshl_b32 {s(sT0)}, {s(sT0)}, 4\ns_lshl_b32 {s(sSGL)}, {s(sJ)}, 6\ns_addk_i32 {s(sSGL)}, 3072")
        for r in (sCOL, sCOL + 1, sCOL + 2, sSGL): b(f"s_add_u32 {s(r)}, {s(r)}, {s(sT0)}")
        b(f"s_lshl_b32 {s(sT1)}, {s(sRS)}, 6")
        for n in range(7):
            if n: self.rot_step(b)
            b(f"s_mul_i32 {s(sK1+n)}, {s(sROT)}, {s(sT1)}")
        b(f"v_and_b32 v32, 2, v6\nv_lshlrev_b32 v32, 1, v32\nv_xor_b32 v32, v7, v32\nv_lshlrev_b32 v33, 4, v32")
        b(f"v_mul_u32_u24 v34, 896, v6\nv_add_u32 {v(bW2D)}, v34, v33\nv_add_u32 {v(bW2D+1)}, 6144, {v(bW2D)}")
        b(f"s_lshl_b32 {s(sT0)}, {s(sRS)}, 3\ns_addk_i32 {s(sT0)}, -1024")
        b(f"v_mul_u32_u24 v34, {s(sRS)}, v6\nv_add_u32 {v(bWD)}, v34, v33\nv_add_u32 {v(bWD+1)}, {s(sT0)}, {v(bWD)}")
        if self.o['ZP']:
            b(f"v_cmp_lt_u32 vcc, {s(sCNT)}, v32\nv_mov_b32 v35, 0x200000\ns_nop 0\nv_cndmask_b32 {v(bWK)}, {v(bWD)}, v35, vcc")
        else: b(f"v_min_u32 v32, {s(sCNT)}, v32\nv_lshl_add_u32 {v(bWK)}, v32, 4, v34")
        b(f"v_add_u32 {v(bWK+1)}, {s(sT0)}, {v(bWK)}")
        self.after_args(b)
        b(f"s_cmp_ge_u32 s2, {256 - self.o['NI']}\ns_cbranch_scc1 L_init\nL_noinit:")
        self.b = b
        self.b_main_setup()
        b(f"s_cmp_ge_u32 s2, {256 - self.o['NI']}\ns_cbranch_scc1 L_go\nL_gone:")
        if self.o['BPRIO']: b(f"s_setprio {self.o['BPRIO']}")
        b(f"s_cmp_lg_u32 {s(sROLE)}, 0\ns_cbranch_scc1 L_Bk")
        return b
    def spf(self, n):
        for k in range(n):
            if self.pfq: self.b(self.pfq.popleft())
    def b_main_setup(self):
        b = self.b; o = self.o
        self.pfq = deque()
        if o['SPF']:
            b(f"s_lshr_b32 {s(sT0)}, s2, 3\ns_and_b32 {s(sT1)}, s2, 3\ns_lshl2_add_u32 {s(sT0)}, {s(sT0)}, {s(sT1)}\ns_lshl2_add_u32 {s(sT0)}, {s(sT0)}, {s(sWV)}\ns_min_u32 {s(sT0)}, {s(sT0)}, 447")
            b(f"s_bfe_u32 {s(sT1)}, s2, 0x10002")
            b(f"s_mul_i32 {s(sT2)}, {s(sT0)}, 2688\ns_mul_i32 {s(sCNT)}, {s(sT1)}, 384\ns_add_u32 {s(sT2)}, {s(sT2)}, {s(sCNT)}\ns_add_u32 s82, {s(sWQ)}, {s(sT2)}\ns_addc_u32 s83, {s(sWQ+1)}, 0")
            L = lambda base, off, n: [f"s_load_dwordx2 s[80:81], {s(base,2)}, {off + 128*k + 60}" for k in range(n)]
            parts = dict(k=L(82, 896, 4), a=L(84, 0, 4), v=L(82, 1792, 4), b=L(84, 1024, 4), q=L(82, 0, 4), c=L(84, 2048, 4), s=L(86, 0, 2),
                         x=L(88, 0, 4), y=L(88, 458752, 4), z=L(88, 2 * 458752, 4), w=L(14, 0, 2), o=L(58, 0, 4))
            for ch in ["kabvcqsxyzwo", "kaxyzwo", "xyzwo", "kabvxyzwo", "kabxvcyqszwo", "ka", "kabv"][o.get('PFO', 0)]: self.pfq.extend(parts[ch])
            b(f"s_mul_i32 {s(sT2)}, {s(sT0)}, 3584\ns_lshl_b32 {s(sCNT)}, {s(sT1)}, 9\ns_add_u32 {s(sCNT)}, {s(sT2)}, {s(sCNT)}\ns_add_u32 s84, {s(sW1)}, {s(sCNT)}\ns_addc_u32 s85, {s(sW1+1)}, 0")
            b(f"s_lshl_b32 {s(sCNT)}, {s(sT1)}, 8\ns_add_u32 {s(sCNT)}, {s(sT2)}, {s(sCNT)}\ns_addk_i32 {s(sCNT)}, 3072\ns_add_u32 s86, {s(sW1)}, {s(sCNT)}\ns_addc_u32 s87, {s(sW1+1)}, 0")
            b(f"s_lshl1_add_u32 {s(sT0)}, {s(sT0)}, {s(sT1)}\ns_lshl_b32 {s(sT2)}, {s(sT0)}, 9\ns_add_u32 s88, {s(sW2)}, {s(sT2)}\ns_addc_u32 s89, {s(sW2+1)}, 0")
            b(f"s_lshl_b32 {s(sT2)}, {s(sT0)}, 8\ns_add_u32 {s(sT2)}, {s(sT2)}, {3*458752}\ns_add_u32 s14, {s(sW2)}, {s(sT2)}\ns_addc_u32 s15, {s(sW2+1)}, 0")
            b(f"s_mul_i32 {s(sT2)}, {s(sT0)}, 448\ns_and_b32 {s(sT2)}, {s(sT2)}, 0xffffff80\ns_add_u32 s58, {s(sWO)}, {s(sT2)}\ns_addc_u32 s59, {s(sWO+1)}, 0")
            self.spf(o.get('SPFE', 7))
        if o.get('TLB'):
            b(f"s_lshr_b32 {s(sT0)}, s2, 3\ns_and_b32 {s(sT0)}, {s(sT0)}, 1\ns_lshl2_add_u32 {s(sT0)}, {s(sT0)}, {s(sWV)}\ns_lshl_b32 {s(sT0)}, {s(sT0)}, 21\ns_add_u32 {s(sT0)}, {s(sT0)}, {0xFFF00}")
            b(f"s_load_dword s80, {s(sWS,2)}, {s(sT0)}\ns_load_dword s80, {s(sOUT,2)}, 0\ns_load_dword s80, {s(sW2,2)}, 0\ns_load_dword s80, {s(sWO,2)}, 0\ns_load_dword s80, {s(sB2,2)}, 0")
            if not o['SPF']: b(f"s_load_dword s80, {s(sB1,2)}, 0\ns_load_dword s80, {s(sW1,2)}, 0\ns_load_dword s80, {s(sWQ,2)}, 0")
        b(f"s_cmp_eq_u32 {s(sROLE)}, 0\ns_cselect_b32 {s(rW)}, {s(sW1)}, {s(sWQ)}\ns_cselect_b32 {s(rW+1)}, {s(sW1+1)}, {s(sWQ+1)}\ns_mul_i32 {s(rW+2)}, {s(sRS)}, 448\ns_mov_b32 {s(rW+3)}, 0x20000")
        b(f"s_cmp_lt_u32 {s(sCS)}, 7")
        b(f"s_mov_b32 {s(rW2)}, {s(sW2)}\ns_mov_b32 {s(rW2+1)}, {s(sW2+1)}\ns_cselect_b32 {s(rW2+2)}, {1792*896}, 0\ns_mov_b32 {s(rW2+3)}, 0x20000")
        b(f"s_mov_b32 {s(rWO)}, {s(sWO)}\ns_mov_b32 {s(rWO+1)}, {s(sWO+1)}\ns_cselect_b32 {s(rWO+2)}, {448*896}, 0\ns_mov_b32 {s(rWO+3)}, 0x20000")
        self.srd(b, rWS, sWS, WS_SIZE)
        b(f"s_mov_b64 s[8:9], {s(sDBG,2)}")
        self.srd(b, rX, sX, 1835008); self.srd(b, rOUT, sOUT, 1835008); self.srd(b, rB2, sB2, 896)
        b(f"s_lshl_b32 {s(sT0)}, {s(sCS)}, 7")
        b(f"s_and_b32 s11, s2, 4\ns_add_u32 s11, s11, {s(sWV)}")
        b(f"s_mul_i32 {s(sW2B)}, s11, {4*14336}\ns_add_u32 {s(sW2B)}, {s(sW2B)}, {s(sT0)}")
        b(f"s_mul_i32 s7, s11, {2*14336}\ns_add_u32 s7, s7, {s(sT0)}\ns_add_u32 s7, s7, {96*14336}")
        b(f"s_xor_b32 s6, s11, 4\ns_mul_i32 s4, s6, {4*14336}\ns_add_u32 s4, s4, {s(sT0)}\ns_mul_i32 s5, s6, {2*14336}\ns_add_u32 s5, s5, {s(sT0)}\ns_add_u32 s5, s5, {96*14336}")
        b(f"s_mul_i32 {s(sWOB)}, {s(sWV)}, {112*896}\ns_add_u32 {s(sWOB)}, {s(sWOB)}, {s(sT0)}")
        b(f"s_mov_b32 {s(sMSK)}, 0xffff0000\ns_mov_b32 s16, 32768\ns_mov_b32 s17, 65536\ns_lshl_b32 s18, s11, 11\ns_sub_u32 s18, {96*1024}, s18")
        b(f"s_mul_i32 s19, {s(sWV)}, 7168\ns_add_u32 s19, s19, {112*1024}\ns_lshl_b32 s20, s11, 12\ns_sub_u32 s19, s19, s20\ns_add_u32 s20, s19, 4096")
        b(f"s_lshl2_add_u32 s21, s2, {s(sWV)}\ns_lshl_b32 s21, s21, 11\ns_add_u32 s21, s21, {WS_PX}\ns_lshl2_add_u32 s22, {s(sCS)}, 32")
        b(f"s_lshr_b32 {s(sTG)}, {s(sWV)}, 1\ns_lshl1_add_u32 {s(sTG)}, {s(sRB2)}, {s(sTG)}")
        b(f"s_and_b32 {s(sT1)}, {s(sWV)}, 1\ns_lshl_b32 {s(sT1)}, {s(sT1)}, 6\ns_add_u32 {s(sCB)}, {s(sT0)}, {s(sT1)}")
        b(f"s_mul_i32 {s(sXB)}, {s(sTG)}, {32*896}\ns_add_u32 {s(sXB)}, {s(sXB)}, {s(sCB)}\ns_add_u32 {s(sXB2)}, {s(sXB)}, {16*896}")
        b(f"v_lshrrev_b32 v7, 2, {v(vL)}\nv_and_b32 v6, 3, {v(vL)}\nv_lshlrev_b32 v6, 4, v6")
        b(f"v_mul_u32_u24 {v(bOA)}, 896, v7\nv_add_u32 {v(bOA)}, {v(bOA)}, v6\nv_mul_u32_u24 {v(bSD)}, 3584, v7\nv_add_u32 {v(bSD)}, {v(bSD)}, v6")
        b(f"v_mul_u32_u24 {v(bRD)}, 68, v6\nv_lshl_add_u32 {v(bRD)}, v7, 4, {v(bRD)}\nv_add_u32 {v(bRD)}, {s(sRB)}, {v(bRD)}\nv_add_u32 {v(bRD)}, {XO}, {v(bRD)}")
        b(f"v_lshrrev_b32 v32, 5, {v(vL)}\nv_bfe_u32 v33, {v(vL)}, 2, 2\nv_lshrrev_b32 v34, 1, v6\nv_bfe_u32 v35, {v(vL)}, 4, 1\nv_lshl_add_u32 v34, v35, 5, v34")
        b(f"v_and_b32 v35, 2, v33\nv_lshlrev_b32 v35, 5, v35\nv_xor_b32 v34, v34, v35\nv_lshl_add_u32 v32, v32, 2, v33\nv_lshl_add_u32 v32, v32, 7, v34")
        b(f"v_xor_b32 v32, {s(sT1)}, v32\nv_add_u32 {v(bP2R)}, {s(sRB)}, v32\nv_xor_b32 {v(bP2R+1)}, 64, {v(bP2R)}")
        b(f"s_lshl_b32 {s(sCNT)}, s11, 12")
        for k, r in enumerate((2, 3, 20, 21)):
            b(f"s_xor_b32 {s(sT0)}, {s(sTG)}, {k}\ns_mul_i32 {s(sT0)}, {s(sT0)}, {HS}\ns_add_u32 {s(sT0)}, {s(sT0)}, {s(sCNT)}\nv_add_u32 v{r}, {s(sT0)}, {v(vL16)}")
        for q in range(4):
            b(f"s_xor_b32 {s(sT0)}, {s(sWV)}, {q}\ns_mul_i32 {s(sT0)}, {s(sT0)}, {REG}\ns_add_u32 {s(sT0)}, {s(sT0)}, {XO}\nv_add_u32 {v(bWA+q)}, {s(sT0)}, {v(vL16)}")
        self.spf(o['SPF'] - o.get('SPFE', 7))

    def a_layernorm(self):
        a = self.a; o = self.o
        if o['PRIO']: a(f"s_setprio {o['PRIO']}")
        a(f"s_lshl2_add_u32 {s(sHST)}, {s(sI)}, {s(sWV)}\ns_mul_i32 {s(sXB)}, {s(sHST)}, {32*896}\ns_lshl_b32 {s(sG1)}, {s(sROT)}, 7")
        a(f"v_lshrrev_b32 v8, 1, v6\nv_xor_b32 v8, v7, v8\nv_lshlrev_b32 v8, 4, v8\nv_xor_b32 v9, 64, v8")
        a(f"v_mul_u32_u24 v10, 896, v6")
        a(f"v_add_u32 {v(vXD)}, v10, v8\nv_add_u32 v9, v10, v9")
        a(f"v_add_u32 {v(vXD+1)}, 6144, v9\nv_add_u32 {v(vXD+2)}, {2*6144}, {v(vXD)}\nv_add_u32 {v(vXD+3)}, {3*6144}, v9")
        a("s_mov_b32 s30, 1835008\ns_mov_b32 s31, 0x20000")
        for n in range(1, 3): self.rot_step(a); a(f"s_lshl_b32 {s(sG1+n)}, {s(sROT)}, 7")
        xq = dict(n=0); xk = {}
        def xprep():
            n = xq['n']
            if n < 28 and n % 4 == 0: self.set_m0(a, (n // 4) * 4096); a(f"s_add_u32 {s(sSO)}, {s(sXB)}, {s(sG1+n//4)}")
        def xdma():
            n = xq['n']
            if n >= 28: return
            xk[n // 4] = a.vm(f"buffer_load_dwordx4 {v(vXD+n%4)}, {s(rX,4)}, {s(sSO)} offen offset:{(n%4)*1024} lds")
            xq['n'] += 1
            if xq['n'] != 12: xprep()
        xprep()
        self.after_args(a)
        a("s_mov_b32 s28, s4\ns_mov_b32 s29, s5")
        for k in range(12): xdma()
        for n in range(3, 7): self.rot_step(a); a(f"s_lshl_b32 {s(sG1+n)}, {s(sROT)}, 7")
        xprep()
        self.ids(a)
        self.srd(a, rWS, sWS, WS_SIZE); self.srd(a, rB1, sB1, 3584)
        T0 = 236
        a(f"v_and_b32 v8, 31, {v(vL)}\nv_lshrrev_b32 v10, 5, {v(vL)}")
        a(f"v_bfe_u32 v11, {v(vL)}, 1, 3\nv_xor_b32 v11, v10, v11\nv_lshlrev_b32 v11, 4, v11")
        a(f"v_lshl_add_u32 v11, v8, 7, v11\nv_add_u32 {v(vXR)}, {s(sRB)}, v11")
        for j in range(1, 4): a(f"v_xor_b32 {v(vXR+j)}, {32*j}, {v(vXR)}")
        a(f"s_mov_b32 vcc_lo, 0xf0f00f0f\ns_mov_b32 vcc_hi, vcc_lo\nv_mov_b32 v11, 0x3f803f80")
        for k in range(4): a(f"v_cndmask_b32 {v(48+k)}, 0, v11, vcc" if o['ST4'] < 2 else f"v_mov_b32 {v(48+k)}, v11")
        for r, val in zip(aM, (0xaaaaaaaa, 0xcccccccc, 0xff00ff00, 0xf0f0f0f0, 0xffff0000)): a(f"s_mov_b32 {s(r)}, {val:#x}\ns_mov_b32 {s(r+1)}, {s(r)}")
        a(f"s_mov_b32 {s(sHI)}, 0\ns_mov_b32 {s(sHI+1)}, -1\ns_mov_b32 {s(aL2E)}, 0x3fb8aa3b\ns_mov_b32 {s(aEPS)}, 0x358637bd")
        a(f"s_mov_b32 {s(aONE)}, 0xf0000000\ns_mov_b32 {s(aONE+1)}, {s(aONE)}\ns_mov_b32 {s(aONB)}, 15\ns_mov_b32 {s(aONB+1)}, 15")
        a(f"s_cmp_eq_u32 {s(sROLE)}, 0\ns_cselect_b32 {s(sT1)}, 64, 48\ns_cselect_b64 vcc, -1, 0")
        a(f"v_bfe_u32 v11, {v(vL)}, 2, 2")
        a(f"v_and_b32 v12, 3, {v(vL)}\nv_lshlrev_b32 v12, 3, v12\nv_bfe_u32 v13, {v(vL)}, 4, 1\nv_lshl_add_u32 v12, v13, 5, v12")
        a(f"v_and_b32 v13, 2, v11\nv_lshlrev_b32 v13, 5, v13\nv_lshl_add_u32 v9, v10, 3, v11")
        a(f"v_lshl_add_u32 v7, v9, 6, v12")
        a(f"v_lshlrev_b32 v9, 7, v9\nv_xor_b32 v8, v12, v13\nv_add_u32 {v(vWR)}, v9, v8")
        a(f"v_xor_b32 v8, 64, {v(vWR)}\nv_cndmask_b32 v7, v8, v7, vcc\nv_add_u32 v8, {s(sT1)}, v12\nv_xor_b32 v8, v8, v13\nv_add_u32 {v(vWR+4)}, v9, v8")
        if o['ZP']:
            a(f"s_lshl_b32 {s(sT1)}, {s(sROLE)}, 8\nv_mov_b32 v8, {s(sT1)}\ns_mov_b32 vcc_lo, 0x88880000\ns_mov_b32 vcc_hi, vcc_lo\nv_cndmask_b32 v6, 0, v8, vcc\nv_xor_b32 {v(vWR)}, v6, {v(vWR)}")
            a(f"s_mov_b32 vcc_lo, 0x1111\ns_mov_b32 vcc_hi, vcc_lo\nv_cndmask_b32 v8, 0, v8, vcc\nv_xor_b32 {v(vWR+4)}, v8, {v(vWR+4)}")
        for T in range(2):
            for r in range(1, 4): a(f"v_add_u32 {v(vWR+4*T+r)}, {REG*r}, {v(vWR+4*T)}")
        a(f"v_add_u32 v10, {s(sRB)}, {v(vL16)}\nv_mov_b32 v8, 1")
        a(f"s_lshl3_add_u32 {s(sT0)}, {s(sI)}, {s(sJ)}\ns_lshl_b32 {s(sT0)}, {s(sT0)}, 7\ns_lshl2_add_u32 {s(sT0)}, {s(sWV)}, {s(sT0)}")
        a(f"s_lshl_b32 {s(sT1)}, {s(sHST)}, 7\ns_lshl2_add_u32 {s(sT1)}, {s(sJ)}, {s(sT1)}\ns_add_u32 {s(sT1)}, {s(sT1)}, {WS_PL - WS_FL}")
        a(f"s_cmp_eq_u32 {s(sROLE)}, 0\ns_cselect_b32 {s(sT0)}, {s(sT0)}, {s(sT1)}\ns_add_u32 {s(sT0)}, {s(sT0)}, {WS_FL}\nv_mov_b32 v9, {s(sT0)}")
        misc = deque(); M = lambda t: self.lines(a, misc, t)
        M(f"s_lshl4_add_u32 {s(sT0)}, {s(sJ)}, {s(sI)}\ns_lshl_b32 {s(sT0)}, {s(sT0)}, 7\ns_lshl2_add_u32 {s(sT0)}, {s(sWV)}, {s(sT0)}")
        M(f"s_add_u32 {s(sT0)}, {s(sT0)}, {WS_FK}\nv_mov_b32 v13, {s(sT0)}")
        M(f"s_lshl2_add_u32 {s(sT0)}, {s(sJ)}, {s(sWV)}\ns_lshl4_add_u32 {s(sT0)}, {s(sT0)}, {s(sI)}\ns_lshl_b32 {s(sT0)}, {s(sT0)}, 10\ns_add_u32 {s(aKVO)}, {s(sT0)}, {WS_KV}")
        M(f"s_mul_i32 {s(aHST)}, {s(sHST)}, 35\ns_lshl1_add_u32 {s(aHS2)}, {s(aHST)}, {s(sJ)}\ns_add_u32 {s(aHST)}, {s(aHST)}, {s(sJ)}\ns_lshl_b32 {s(aHST)}, {s(aHST)}, 12")
        M(f"s_add_u32 {s(aHS2)}, {s(aHS2)}, 48\ns_lshl_b32 {s(aHS2)}, {s(aHS2)}, 11")
        M(f"s_mul_i32 {s(aPQS)}, {s(sHST)}, 7\ns_add_u32 {s(aPQS)}, {s(aPQS)}, {s(sJ)}\ns_lshl_b32 {s(aPQS)}, {s(aPQS)}, 12\ns_add_u32 {s(aPQS)}, {s(aPQS)}, {WS_PQ}")
        misc.append(lambda: a(f"s_cmp_eq_u32 {s(sJ)}, 7\ns_cselect_b32 {s(aPQS)}, {WS_SIZE}, {s(aPQS)}"))
        M(f"s_lshl_b32 {s(aBIA)}, {s(sJ)}, 7\ns_lshl_b32 {s(aBI2)}, {s(sJ)}, 6")
        xt = {}
        def xread(st):
            if st >= 28: return
            n = st // 4
            if st % 4 == 0:
                while xq['n'] < 4 * n + 4: xdma()
                a.wait(vm=xk[n])
                if n == 0: self.stamp(a, 2)
            xt[st] = a.ds(f"ds_read_b128 {v(Rof(st),4)}, {v(vXR+st%4)} offset:{n*4096}")
            if st % 4 == 3:
                for k in (2 * n, 2 * n + 1):
                    self.slot['x', k] = k; self.lastread['x', k] = xt[st]; self.allread.add(('x', k))
        for k in range(o['XPRE'] - 12): xdma()
        xread(0); xread(1)
        self.clk = 0; self.tprev = 0
        for st in range(28):
            r = Rof(st); b = Uof(st)
            a.wait(lg=xt[st])
            if o['ST4']:
                m4 = lambda acc, x, y: a(f"v_mfma_f32_4x4x4_16b_bf16 {v(acc,4)}, {v(x,2)}, {v(y,2)}, {v(acc,4) if st else 0}")
                up = lambda d: st < 23 and a(f"v_lshlrev_b32 {v(b+2*d)}, 16, {v(r+d)}\nv_and_b32 {v(b+2*d+1)}, {s(sMSK)}, {v(r+d)}")
                if o['ST4'] == 1: a(f"v_mfma_f32_16x16x32_bf16 v[44:47], v[48:51], {v(r,4)}, {'v[44:47]' if st else 0}")
                else: m4(36, 48, r)
                xread(st + 2)
                xdma()
                self.clk += o['TFRAG'] if st < 16 else 52
                m4(28, r, r); up(0)
                if o['ST4'] == 2: m4(44, 48, r + 2)
                up(1); m4(32, r + 2, r + 2); up(2); up(3)
            else:
                a(f"v_mfma_f32_32x32x16_bf16 v[28:43], {v(r,4)}, {v(r,4)}, {'v[28:43]' if st else 0}")
                xread(st + 2)
                xdma()
                self.clk += o['TFRAG'] if st < 16 else 52
                for d in range(4):
                    if d == 2: a(f"v_mfma_f32_16x16x32_bf16 v[44:47], v[48:51], {v(r,4)}, {'v[44:47]' if st else 0}")
                    if st < 23: a(f"v_lshlrev_b32 {v(b+2*d)}, 16, {v(r+d)}\nv_and_b32 {v(b+2*d+1)}, {s(sMSK)}, {v(r+d)}")
            if misc: misc.popleft()()
            if st == o['B0AT']:
                self.vclk = max(self.clk, 24 * o['CX']); self.stamp(self.b, 2); self.barrier(); self.stamp(self.b, 3)
                self.res_at = o['RESE']
        assert not misc
        self.stamp(a, 3)
        a(f"v_mov_b32 {v(vSR)}, v7")
        for r in range(1, 4): a(f"v_add_u32 {v(vSR+r)}, {REG*r}, v7")
        inv = 0x3b124925
        if o['ST4']:
            for k in (28, 30, 32, 34): a(f"v_cndmask_b32 v{k}, v{k}, v{k+1}, {s(aM[0],2)}")
            a(f"v_add_f32 v28, v28, v32\nv_add_f32 v30, v30, v34")
            if o['ST4'] == 2: a("v_add_f32 v45, v44, v36\nv_add_f32 v44, v44, v36")
            a(f"v_cndmask_b32 v29, v28, v30, {s(aM[1],2)}\nv_cndmask_b32 v28, v28, v30, {s(aM[1],2)}")
            if o['ST4'] == 2: a("v_permlane32_swap_b32 v45, v44\nv_add_f32 v44, v44, v45")
            a(f"v_mul_f32 v44, {inv:#x}, v44\nv_permlane32_swap_b32 v29, v28\nv_add_f32 v28, v28, v29")
        else:
            a(f"s_nop 2\nv_mul_f32 v44, {inv:#x}, v44")
            for lvl, step in enumerate((1, 2, 4)):
                for k in range(0, 16, 2 * step): a(f"v_cndmask_b32 {v(28+k)}, {v(28+k)}, {v(28+k+step)}, {s(aM[lvl],2)}")
            a(f"v_cndmask_b32 v29, v28, v36, {s(aM[4],2)}\nv_cndmask_b32 v28, v28, v36, {s(aM[4],2)}")
            a(f"v_permlane32_swap_b32 v29, v28")
            a(f"v_cndmask_b32 v28, v29, v28, {s(aM[3],2)}")
        a(f"v_mul_f32 v28, {inv:#x}, v28\nv_fma_f32 v28, -v44, v44, v28\nv_max_f32 v28, 0, v28\nv_add_f32 v28, 0x3727c5ac, v28")
        a(f"v_rsq_f32 v2, v28")
        a(f"v_mul_f32_e64 v3, -v44, v2")
        self.clk += 170
        up = list(range(7, -1, -1)) + list(range(8, 8 + o['NPK']))
        for st in up:
            if st == up[-min(6, 3 + o['NPK'] // 2)]:
                for k in range(o['D']): self.read_frag(k)
            for d in range(4):
                r = Uof(st) + 2 * d
                a(f"v_pk_fma_f32 {v(r,2)}, {v(r,2)}, v[2:3], v[2:3] op_sel:[0,0,1] op_sel_hi:[1,0,1]")
            self.clk += 21
            if st < 8:
                for d in (3, 2, 1, 0): a(f"v_cvt_pk_bf16_f32 {v(Fof(st)+d)}, {v(Uof(st)+2*d)}, {v(Uof(st)+2*d+1)}")
                self.clk += 21
        self.stamp(a, 4)

    def store(self, r, soff, off):
        def f(): self.last_store = self.a.vm(f"buffer_store_dwordx4 {v(r,4)}, {v(vL16)}, {s(rWS,4)}, {s(soff)} offen offset:{off} sc1")
        return f
    def flag(self, get, val, va="v9"):
        a = self.a
        def f():
            a.wait(vm=get())
            a.vm(f"buffer_store_dword v8, {va}, {s(rWS,4)}, 0 offen sc1")
            if val: a(f"v_mov_b32 v8, {val}")
            return 3
        return f
    def a_ffn(self):
        a = self.a; o = self.o
        fl, due = self.norm_queue() if o['NPK'] < 15 else (deque(self.g3_ops()), self.cvt_forced)
        A = lambda t: self.lines(a, fl, t)
        SEL = BI + 14; tb = {}
        def forced(st, T):
            ops = due(st, T)
            if (st, T) == (19, 1): self.lines(a, ops, f"v_and_b32 v12, 31, {v(vL)}\nv_lshlrev_b32 v12, 1, v12")
            k = 2 * st + T - 40
            if 0 <= k < 7:
                so, off = (aBIA, 64 * (k & 1) + 1024 * (k >> 1)) if k < 6 else (aBI2, 3072)
                ops.append(lambda: tb.update({k: a.vm(f"buffer_load_ushort {v(BI+2*k)}, v12, {s(rB1,4)}, {s(so)} offen offset:{off}")}))
            if (st, T) == (24, 0): self.lines(a, ops, "\n".join(f"v_mov_b32 {v(BI+k)}, 0" for k in (1, 3, 5, 7)))
            if (st, T) == (24, 1): self.lines(a, ops, "\n".join(f"v_mov_b32 {v(BI+k)}, 0" for k in (9, 11, 13)))
            if (st, T) == (25, 0): self.lines(a, ops, "\n".join(f"v_mov_b32 {v(SEL+k)}, 0" for k in (1, 2, 3)))
            if (st, T) == (25, 1): self.lines(a, ops, f"v_mov_b32 {v(SEL)}, 0x3f80\nv_cndmask_b32 {v(SEL)}, {v(SEL)}, 0, {s(sHI,2)}")
            return ops
        def bias(acc, tiles, cont=False): return [f"v_mfma_f32_32x32x16_bf16 {acc(T)}, {v(BI+2*k,4)}, {v(SEL,4)}, {acc(T) if cont else 0}" for T, k in enumerate(tiles)]
        def epi(h, so, off):
            ops = []
            for d in range(8):
                t0 = h + 2 * d
                self.lines(a, ops, f"v_mul_f32_e64 {v(t0)}, {v(t0)}, |{v(t0)}|\nv_mul_f32_e64 {v(t0+1)}, {v(t0+1)}, |{v(t0+1)}|")
                self.lines(a, ops, f"v_cvt_pk_bf16_f32 {v(h+d)}, {v(t0)}, {v(t0+1)}\nv_pk_max_i16 {v(h+d)}, {v(h+d)}, 0")
                if d % 4 == 3: ops.append(self.store(h + d - 3, so, off + (d // 4) * 1024))
            return ops
        accS = lambda T: v(AS + 16 * T, 16); accA = lambda T: v(VA + 16 * T, 16)
        big = lambda: 99; last = lambda: self.last_store
        sy = [(), (), (), ()]
        for k in range(o['SYNCF']): sy[2 + k // 2] += ((o.get('SYAT', 4), 32)[k % 2],)
        self.syncs_left = o['SYNCF']
        self.run_stage(0, accS, False, fl, budget=o['B0'], forced=forced, minfill=2.4 if o['NPK'] == 15 else 0, finish=12)
        assert not fl
        self.stamp(a, 5)
        fl.extend([self.go_load] + [big] * o.get('BIASLAG', 5))
        fl.append(lambda: a.wait(vm=tb[6]) and 1)
        for line in bias(accS, [0, 1], True) + bias(accA, [2, 3], True): fl.append(lambda line=line: a(line) or 2)
        fl.extend([big, big])
        fl.extend(epi(AS, aHST, 0) + epi(AS + 16, aHST, 2048)); fl.append(self.go_check)
        fl.extend([big] * o['FLAG']); fl.append(self.flag(last, 3))
        self.run_stage(1, accA, False, fl, budget=o['B1'], minfill=2.2)
        assert not fl
        self.stamp(a, 6)
        A(f"s_add_u32 {s(aHST)}, {s(aHST)}, 32768"); fl.extend([big, big, big])
        fl.extend(epi(VA, aHST, 0) + epi(VA + 16, aHST, 2048)); fl.extend([big] * o['FLAG']); fl.append(self.flag(last, 7))
        self.run_stage(2, accS, False, fl, budget=o['B2'], pre=bias(accS, [4, 5]), minfill=2, syncs=sy[2])
        assert not fl
        self.stamp(a, 7)
        A(f"s_add_u32 {s(aHST)}, {s(aHST)}, 32768"); fl.extend([big, big, big])
        fl.extend(epi(AS, aHST, 0) + epi(AS + 16, aHST, 2048))
        self.run_stage(3, accA, False, fl, budget=o['B3'], pre=bias(accA, [6]), minfill=3, syncs=sy[3])
        assert not fl and not self.b_alive
        self.stamp(a, 8)
        l2 = self.last_store
        for g in epi(VA, aHS2, 0): g()
        l3 = self.last_store
        self.flag(lambda: l2, 15)(); self.flag(lambda: l3, 0)()
        self.stamp(a, 9); self.flush_stamp(a)
        a("s_branch L_amid")
        print("F: end of phase 1 at", self.clk, "forced", self.forced, "publag", self.publag)

    def a_kvq(self):
        a = self.a; o = self.o
        fl, due = self.norm_queue() if o['NPK'] < 15 else (deque(self.g3_ops()), self.cvt_forced)
        A = lambda t: self.lines(a, fl, t)
        accS = lambda T: v(AS + 16 * T, 16); accA = lambda T: v(VA + 16 * T, 16)
        big = lambda: 99; last = lambda: self.last_store
        self.syncs_left = 1 + o['SYNCK']
        self.run_stage(0, accS, True, fl, budget=o['B0'], forced=due, minfill=2.4 if o['NPK'] == 15 else 0, finish=12)
        assert not fl
        self.stamp(a, 5)
        PK, PV, KV = (208, 224), (216, VA + 16), (VA, 208)
        self.hold = {14, 15, 16, 17}; XB = 14 * 2048
        fl.extend([self.go_load, big, big])
        A(f"v_mov_b32 v1, 0x3f803f80")
        fl.extend(self.phi_ops(AS, PK[0]) + self.phi_ops(AS + 16, PK[1])); fl.append(self.go_check)
        self.run_stage(1, accA, True, fl, budget=o.get('BK1', o['B1']), minfill=3)
        assert not fl and set(self.reserve) == self.hold
        self.stamp(a, 6)
        st = {}
        def chain():
            kvm = lambda T, k: a(f"v_mfma_f32_32x32x16_bf16 {v(KV[T],16)}, {v(PK[T]+4*k,4)}, {v(PV[T]+4*k,4)}, {v(KV[T],16) if k else 0}")
            wr = lambda g: a.ds(f"ds_write_b128 v10, {v(KV[g>>2]+4*(g&3),4)} offset:{XB + g*1024}")
            for T in range(2):
                for d in range(8):
                    a(f"v_cvt_pk_bf16_f32 {v(PV[T]+d)}, {v(VA+16*T+2*d)}, {v(VA+16*T+2*d+1)}\nv_cndmask_b32 {v(PV[T]+d)}, {v(PV[T]+d)}, v1, {s(aONE if T == 0 else aONB,2)}")
                    if T == 1 and d in (0, 1): kvm(0, d)
            kvm(1, 0); kvm(1, 1)
            for g in range(8): st['w'] = wr(g)
            self.clk += 700
            return 99
        def bar():
            a.wait(lg=st['w']); self.hook = self.b_kv; self.sync(o['XSLACK']); self.stamp(a, 8); return 2
        fl.extend([big] * o['KPRE'] + [chain, big, bar])
        q = []
        for T in range(2):
            p = self.phi_ops(AS + 16 * T)
            q.append(p[:36] + [self.store(AS + 16 * T, aPQS, 2048 * T)] + p[36:] + [self.store(AS + 16 * T + 4, aPQS, 2048 * T + 1024)])
        q0 = deque(q[0])
        def forced(stp, T):
            self.slotk = 28 * T + stp; ops = []
            if T == 1 and stp >= 3 and not fl:
                for k in range(o.get('QN', 4)):
                    if q0: ops.append(q0.popleft())
            return ops
        self.run_stage(2, accS, False, fl, budget=o.get('BK2', 9), forced=forced, syncs=(44,) if o['SYNCK'] else ())
        assert not fl and not self.b_alive
        self.stamp(a, 7)
        rest = list(q0) + q[1]
        for g in rest: g()
        self.flag(last, 0)()
        self.stamp(a, 9); self.flush_stamp(a)
        print("K: end of phase 1 at", self.clk, "forced", self.forced, "publag", self.publag)
        a(f"s_cmp_lt_u32 {s(sCS)}, 7\ns_cbranch_scc1 L_amid")
        xs = self.xs * 2048
        G, S, TM, KVA, P, NUM = 84, 212, 228, 52, 84, 140
        W8 = 99
        a(f"s_setprio {o['BPRIO']}")
        self.join_setup(a); self.poll_issue(a, 8, aFL)
        a("L_join:")
        self.poll_check(a, 8, aFL, 0, 1)
        self.stamp(a, 12)
        pt = {}
        for t in range(7):
            pt[t] = a.vm(f"buffer_load_dwordx4 {v(P+4*t,4)}, {v(vL16)}, {s(rWS,4)}, s{4+t//4} offen offset:{(t%4)*1024}{self.lm}")
        a("s_barrier")
        self.stamp(a, 13)
        for u in range(4):
            for f in range(2): tk = a.ds(f"ds_read_b128 {v(KVA+8*u+4*f,4)}, {'v11' if u < 2 else 'v12'} offset:{(u&1)*REG + f*1024}")
        def nm(hp):
            Pp = P + 14 * hp
            a.wait(vm=pt[3 + 3 * hp], lg=tk)
            for k in range(2):
                for T in range(2):
                    N = v(NUM + 32 * hp + 16 * T, 16)
                    a(f"v_mfma_f32_32x32x16_bf16 {N}, {v(KVA+16*hp+8*T+4*k,4)}, {v(Pp+6*T+4*k,4)}, {N if k else 0}")
        def ov(hp):
            Pp = P + 14 * hp
            def sto(t): self.last_store = a.vm(f"buffer_store_dwordx4 {v(P+4*t,4)}, {v(vL16)}, {s(rWS,4)}, s{40+t//4} offen offset:{(t%4)*1024}{self.sm}")
            NA = NUM + 32 * hp; NB = NA + 16; E = s(aEPS)
            a(f"v_add_f32 {v(TM)}, {E}, {v(NA+12)}\nv_add_f32 {v(TM+1)}, {E}, {v(NA+12)}\nv_add_f32 {v(TM+2)}, {E}, {v(NB)}\nv_add_f32 {v(TM+3)}, {E}, {v(NB)}")
            a(f"v_permlane32_swap_b32 {v(TM)}, {v(TM+1)}\nv_permlane32_swap_b32 {v(TM+2)}, {v(TM+3)}")
            a(f"v_rcp_f32 {v(TM+1)}, {v(TM+1)}\nv_rcp_f32 {v(TM+2)}, {v(TM+2)}")
            for T in range(2):
                for d in range(8):
                    r = NA + 16 * T + 2 * d
                    a(f"v_mul_f32 {v(r)}, {v(r)}, {v(TM+1+T)}\nv_mul_f32 {v(r+1)}, {v(r+1)}, {v(TM+1+T)}")
                    dst = Pp + d if T == 0 else (TM + 4 + d if d < 2 else Pp + 6 + d)
                    a(f"v_cvt_pk_bf16_f32 {v(dst)}, {v(r)}, {v(r+1)}")
                    if T == 1 and d == 1:
                        a(f"v_cndmask_b32 {v(Pp+6)}, {v(Pp+6)}, {v(TM+4)}, {s(sHI,2)}\nv_cndmask_b32 {v(Pp+7)}, {v(Pp+7)}, {v(TM+5)}, {s(sHI,2)}")
                    done = {(0,0,3): 0, (0,1,1): 1, (0,1,5): 2, (1,0,1): 3, (1,0,5): 4, (1,1,3): 5, (1,1,7): 6}.get((hp, T, d))
                    if done is not None: sto(done)
        nm(0); nm(1); ov(0); ov(1)
        a.wait(vm=self.last_store)
        a.vm(f"buffer_store_dword v8, v9, {s(rWS,4)}, 0 offen{self.fm}")
        self.stamp(a, 14); self.flush_stamp(a)
        a("s_branch L_fin")

    def join_setup(self, a):
        W8 = 99; xs = self.xs * 2048
        a(f"s_lshr_b32 {s(sT2)}, {s(sRB2)}, 3")
        a(f"s_and_b32 {s(sI)}, {s(sRB2)}, 7\ns_lshl3_add_u32 {s(sI)}, {s(sI)}, {s(W8)}")
        a(f"s_lshl_b32 {s(sCNT)}, {s(sI)}, 7\ns_add_u32 {s(sCNT)}, {s(sCNT)}, {WS_PL}\ns_add_u32 {s(aFL)}, {s(sWS)}, {s(sCNT)}\ns_addc_u32 {s(aFL+1)}, {s(sWS+1)}, 0")
        a(f"s_lshr_b32 {s(sCNT)}, {s(sI)}, 1\ns_lshl2_add_u32 {s(sCNT)}, {s(sCNT)}, {s(sT2)}\ns_lshl_b32 {s(sCNT)}, {s(sCNT)}, 7\ns_add_u32 {s(sCNT)}, {s(sCNT)}, {WS_FL}")
        a(f"s_and_b32 {s(sT1)}, {s(W8)}, 1\ns_lshl2_add_u32 {s(sCNT)}, {s(sT1)}, {s(sCNT)}\ns_add_u32 {s(sCNT)}, {s(sCNT)}, 16\nv_mov_b32 v9, {s(sCNT)}\nv_mov_b32 v8, 1")
        a(f"s_mul_i32 {s(sT2)}, {s(sT2)}, 7168")
        a(f"s_mul_i32 s4, {s(sI)}, {28*1024}\ns_add_u32 s4, s4, {s(sT2)}\ns_add_u32 s4, s4, {WS_PQ}\ns_add_u32 s5, s4, 4096")
        a(f"s_mul_i32 s40, {s(sI)}, {HS}\ns_add_u32 s40, s40, {s(sT2)}\ns_add_u32 s40, s40, {112*1024}\ns_add_u32 s41, s40, 4096")
        a(f"s_mov_b32 {s(sHI)}, 0\ns_mov_b32 {s(sHI+1)}, -1\ns_mov_b32 {s(aEPS)}, 0x358637bd")
        a(f"v_add_u32 v12, {2*REG + xs}, {v(vL16)}\nv_add_u32 v11, {xs}, {v(vL16)}")
    def b_kv(self):
        b = self.b; XB = 14 * 2048; R = ACC
        if self.o.get('KPRI'): b("s_setprio 3")
        self.stamp(b, 6)
        b(f"s_lshl_b32 {s(sT0)}, {s(sWV)}, 11\ns_add_u32 {s(sT0)}, {s(sT0)}, {XB}\nv_add_u32 v64, {s(sT0)}, {v(vL16)}\nv_add_u32 v65, {2*REG}, v64")
        rt = [b.ds(f"ds_read_b128 {v(R+8*sw+4*h,4)}, v{64 + (sw >> 1)} offset:{(sw&1)*REG + h*1024}") for sw in range(4) for h in range(2)]
        b(f"s_lshl2_add_u32 {s(sT0)}, {s(sJ)}, {s(sWV)}\ns_lshl4_add_u32 {s(sT0)}, {s(sT0)}, {s(sI)}\ns_lshl_b32 {s(sT0)}, {s(sT0)}, 10\ns_add_u32 {s(sT0)}, {s(sT0)}, {WS_KV}")
        FS = self.o['FKS']
        b(f"s_lshr_b32 s57, {s(sWV)}, 1\ns_lshl1_add_u32 s57, {s(sJ)}, s57\ns_lshl4_add_u32 s57, s57, {s(sI)}\ns_lshl_b32 s57, s57, 1\ns_and_b32 {s(sT1)}, {s(sWV)}, 1\ns_add_u32 s57, s57, {s(sT1)}")
        b(f"s_mul_i32 s57, s57, {FS}\ns_add_u32 s57, s57, {WS_FK}\nv_mov_b32 v16, 1")
        b.wait(lg=rt[3])
        for k in range(8): b(f"v_add_f32 {v(R+k)}, {v(R+k)}, {v(R+8+k)}")
        b.wait(lg=rt[7])
        for k in range(8): b(f"v_add_f32 {v(R+16+k)}, {v(R+16+k)}, {v(R+24+k)}")
        for d in range(4):
            b(f"v_add_f32 {v(R+2*d)}, {v(R+2*d)}, {v(R+16+2*d)}\nv_add_f32 {v(R+2*d+1)}, {v(R+2*d+1)}, {v(R+17+2*d)}\nv_cvt_pk_bf16_f32 {v(R+d)}, {v(R+2*d)}, {v(R+2*d+1)}")
        self.kvst = b.vm(f"buffer_store_dwordx4 {v(R,4)}, {v(vL16)}, {s(rWS,4)}, {s(sT0)} offen sc1")
        if self.o.get('KPRI'): b(f"s_setprio {self.o['BPRIO']}")
        self.stamp(b, 4)
        self.vclk = max(self.vclk, self.clk) + 400
        self.hold = set()
        for sl in self.reserve:
            self.slot['kx', sl] = sl; self.lastread['kx', sl] = 0; self.allread.add(('kx', sl))
    def kv_flag(self, x, force=False):
        if self.kvst and (force or x.vm_issued - self.kvst >= self.o['KVD'] or x.vm_done >= self.kvst):
            x.wait(vm=self.kvst); x.vm(f"buffer_store_dword v16, off, {s(rWS,4)}, s57 sc1"); self.stamp(x, 5)
            if x is self.bmain: self.kvst = None
    def b_gather(self):
        b = self.b; o = self.o; G, S, TM = 32, 160, 176; xs = self.xs * 2048
        b(f"s_lshr_b32 {s(sT2)}, {s(sRB2)}, 3\ns_lshl2_add_u32 {s(sT1)}, {s(sT2)}, {s(sWV)}")
        b(f"s_and_b32 {s(sCNT)}, {s(sWV)}, 1\ns_cselect_b32 s44, -1, 0\ns_cselect_b32 s47, 0, -1\ns_mov_b32 s45, 0\ns_mov_b32 s46, 0")
        b(f"s_mul_i32 s42, {s(sT1)}, {32*o['FKS']}\ns_add_u32 s42, s42, {WS_FK}\nv_and_b32 v1, 31, {v(vL)}\nv_mul_u32_u24 v1, {o['FKS']}, v1")
        b(f"s_lshl_b32 {s(sT1)}, {s(sT1)}, 15\ns_add_u32 {s(sSO)}, {s(sT1)}, {WS_KV}")
        self.kv_flag(b, force=True)
        self.join_setup(b)
        SM = 184
        b(f"v_add_u32 v13, {s(sRB)}, {v(vL16)}")
        b.wait_all(lg=True)
        b(f"v_bfe_u32 v2, {v(vL)}, 3, 2\nv_bfe_u32 v3, {v(vL)}, 1, 1\nv_lshl_add_u32 v2, v2, 1, v3\ns_mov_b32 vcc_lo, 0x0f0f0f0f\ns_mov_b32 vcc_hi, 0xf0f0f0f0\nv_cndmask_b32 v2, 63, v2, vcc")
        b(f"s_mov_b32 vcc_lo, 0xaaaaaaaa\ns_mov_b32 vcc_hi, vcc_lo\nv_mov_b32 v3, 0x3f80\nv_mov_b32 v4, 0x3f800000\nv_cndmask_b32 v3, v3, v4, vcc")
        for k in range(8): b(f"v_cmp_eq_u32 vcc, {k}, v2\nv_cndmask_b32 {v(SM+k)}, 0, v3, vcc")
        if o['DYN']:
            y = self.slow
            FS = o['FKS']
            b(f"v_and_b32 v1, 15, {v(vL)}\nv_lshlrev_b32 v1, 1, v1\nv_bfe_u32 v2, {v(vL)}, 4, 1\nv_add_u32 v1, v1, v2\nv_mul_u32_u24 v1, {FS}, v1\nv_add_u32 v15, 16384, {v(vL16)}")
            b(f"s_mov_b32 s60, 0xffff\ns_mov_b32 s61, 0\ns_mov_b32 {s(sCNT)}, 0")
            if o.get('KWAIT', 1): b.wait_all(vm=True)
            take = lambda x: x("v_cmp_ne_u32 vcc, 0, v14\ns_lshr_b32 s62, vcc_lo, 16\ns_and_b32 s62, s62, vcc_lo\ns_or_b32 s61, s61, s62")
            gt = []; pt = None
            def acc(n):
                b.wait(vm=gt[n])
                b(f"v_mfma_f32_32x32x16_bf16 {v(S,16)}, {v(SM+4*(n%2),4)}, {v(G+4*n,4)}, {v(S,16) if n else 0}")
            for k in range(16):
                if pt and b.vm_done >= pt: take(b); pt = None
                b(f"s_and_b32 s62, s60, s61\ns_cbranch_scc0 L_dyn{k}\nL_dyr{k}:")
                y(f"L_dyn{k}:")
                if k and o['SL2']: y(f"s_sleep {o['SL2']}")
                y(f"buffer_load_dword v14, v1, {s(rWS,4)}, s42 offen sc1"); y.wait_all(vm=True); take(y)
                y(f"s_and_b32 s62, s60, s61\ns_cbranch_scc1 L_dyr{k}\ns_add_u32 {s(sCNT)}, {s(sCNT)}, 1\ns_cmp_lt_u32 {s(sCNT)}, {SPIN}\ns_cbranch_scc1 L_dyn{k}")
                y(f"s_mov_b32 s61, 0xffff\ns_mov_b32 s62, s60\ns_branch L_dyr{k}")
                if k == 0: self.stamp(b, 10)
                b(f"s_ff1_i32_b32 s63, s62\ns_bitset0_b32 s60, s63\ns_lshl_b32 s63, s63, 10\ns_add_u32 s63, s63, {s(sSO)}")
                for f in range(2):
                    n = 2 * k + f
                    if n >= 11: acc(n - 11)
                    gt.append(b.vm(f"buffer_load_dwordx4 {v(G+4*n,4)}, {v(vL16) if f == 0 else 'v15'}, {s(rWS,4)}, s63 offen{self.lm}"))
                if pt is None and k in (1, 8): pt = b.vm(f"buffer_load_dword v14, v1, {s(rWS,4)}, s42 offen sc1")
        else:
            if o.get('KWAIT', 1): b.wait_all(vm=True)
            b(f"s_mov_b32 {s(sCNT)}, 0\nL_kpoll:")
            b.vm(f"buffer_load_dword v14, v1, {s(rWS,4)}, s42 offen sc1")
            b.wait_all(vm=True)
            b(f"v_cmp_eq_u32 vcc, 0, v14\ns_cbranch_vccz L_kgo")
            if o['SL2']: b(f"s_sleep {o['SL2']}")
            b(f"s_add_u32 {s(sCNT)}, {s(sCNT)}, 1\ns_cmp_lt_u32 {s(sCNT)}, {SPIN}\ns_cbranch_scc1 L_kpoll\nL_kgo:")
            self.stamp(b, 10)
            gt = []
            def acc(n):
                b.wait(vm=gt[n])
                b(f"v_mfma_f32_32x32x16_bf16 {v(S,16)}, {v(SM+4*(n//16),4)}, {v(G+4*n,4)}, {v(S,16) if n else 0}")
            for n in range(32):
                if n >= 11: acc(n - 11)
                if n and n % 4 == 0: b(f"s_addk_i32 {s(sSO)}, 4096")
                gt.append(b.vm(f"buffer_load_dwordx4 {v(G+4*n,4)}, {v(vL16)}, {s(rWS,4)}, {s(sSO)} offen offset:{(n%4)*1024}{self.lm}"))
        for n in range(21, 32):
            acc(n)
            if n == 26: self.poll_issue(b, 8, aFL)
        for d in range(8): b(f"v_cvt_pk_bf16_f32 {v(TM+d)}, {v(S+2*d)}, {v(S+2*d+1)}")
        for d in (0, 1): b(f"v_cndmask_b32 {v(TM+d)}, {v(TM+d)}, 0, s[44:45]")
        for d in (6, 7): b(f"v_cndmask_b32 {v(TM+d)}, {v(TM+d)}, 0, s[46:47]")
        for f in range(2): b.ds(f"ds_write_b128 v13, {v(TM+4*f,4)} offset:{xs + f*1024}")
        self.stamp(b, 11); self.flush_stamp(b)
        b("s_branch L_join")

    def tile_sum(self, x, rd, RES, Pk, store):
        rt = {}
        for m in range(2):
            for hi in range(2):
                for q in range(4): rt[m, hi] = x.ds(f"ds_read_b128 {v(ACC+16*q+8*m+4*hi,4)}, {v(rd)} offset:{q*4352 + hi*512 + m*256}")
        for m in range(2):
            for hi in range(2):
                x.wait(lg=rt[m, hi])
                R = [ACC + 8 * m + 4 * hi + k for k in range(4)]
                if x.tag == 'b':
                    for r in R[::2]:
                        x(f"v_pk_add_f32 {v(r,2)}, {v(r,2)}, {v(r+16,2)}\nv_pk_add_f32 {v(r+32,2)}, {v(r+32,2)}, {v(r+48,2)}\nv_pk_add_f32 {v(r,2)}, {v(r,2)}, {v(RES+r-ACC,2)}")
                    for r in R[::2]: x(f"v_pk_add_f32 {v(r,2)}, {v(r,2)}, {v(r+32,2)}")
                else:
                    for r in R: x(f"v_add_f32 {v(r)}, {v(r)}, {v(r+16)}\nv_add_f32 {v(r+32)}, {v(r+32)}, {v(r+48)}")
                    for r in R: x(f"v_add_f32 {v(r)}, {v(r)}, {v(RES+r-ACC)}")
                    for r in R: x(f"v_add_f32 {v(r)}, {v(r)}, {v(r+32)}")
                for k in (0, 2): x(f"v_cvt_pk_bf16_f32 {v(Pk+4*m+2*hi+k//2)}, {v(R[k])}, {v(R[k]+1)}")
            store(m)
    def a_mid(self, a):
        RES, B2, XW, BW = 112, 128, 96, 104
        a("L_amid:\ns_setprio 2")
        self.srd(a, rB1, sB2, 896)
        a(f"s_xor_b32 {s(sT2)}, {s(sRB2)}, 1\ns_lshr_b32 {s(sT0)}, {s(sWV)}, 1\ns_lshl1_add_u32 {s(sT0)}, {s(sT2)}, {s(sT0)}\ns_mul_i32 {s(sXB)}, {s(sT0)}, {32*896}")
        a(f"s_and_b32 {s(sT1)}, {s(sWV)}, 1\ns_lshl1_add_u32 {s(sT1)}, {s(sCS)}, {s(sT1)}\ns_lshl_b32 {s(sT1)}, {s(sT1)}, 6\ns_add_u32 {s(sXB)}, {s(sXB)}, {s(sT1)}\ns_add_u32 {s(sT0)}, {s(sXB)}, {16*896}")
        a(f"v_lshrrev_b32 v7, 2, {v(vL)}\nv_and_b32 v6, 3, {v(vL)}\nv_lshlrev_b32 v6, 4, v6\nv_mul_u32_u24 v4, 896, v7\nv_add_u32 v4, v4, v6")
        a.vm(f"buffer_load_dwordx4 {v(XW,4)}, v4, {s(rX,4)}, {s(sXB)} offen")
        a.vm(f"buffer_load_dwordx4 {v(XW+4,4)}, v4, {s(rX,4)}, {s(sT0)} offen")
        a.vm(f"buffer_load_dwordx4 {v(BW,4)}, v6, {s(rB1,4)}, {s(sT1)} offen")
        a("s_barrier")
        a(f"v_mul_u32_u24 v17, 68, v6\nv_lshl_add_u32 v17, v7, 4, v17\ns_add_u32 {s(sT0)}, {s(sRB)}, {XO}\nv_add_u32 v17, {s(sT0)}, v17\nv_mov_b32 v8, 1")
        a(f"s_xor_b32 s40, s2, 4\ns_lshl2_add_u32 s40, s40, {s(sWV)}\ns_lshl_b32 s40, s40, 11\ns_add_u32 s40, s40, {WS_PX}")
        a(f"s_lshl2_add_u32 s41, {s(sT2)}, {s(sWV)}\ns_lshl_b32 s41, s41, 7\ns_lshl2_add_u32 s41, {s(sCS)}, s41\ns_add_u32 s41, s41, {WS_FL + 32}")
        a.wait_all(vm=True)
        for d in range(4): a(f"v_lshlrev_b32 {v(B2+2*d)}, 16, {v(BW+d)}\nv_and_b32 {v(B2+2*d+1)}, {s(sMSK)}, {v(BW+d)}")
        for d in range(8):
            a(f"v_lshlrev_b32 {v(RES+2*d)}, 16, {v(XW+d)}\nv_and_b32 {v(RES+2*d+1)}, {s(sMSK)}, {v(XW+d)}")
            a(f"v_add_f32 {v(RES+2*d)}, {v(RES+2*d)}, {v(B2+(2*d)%8)}\nv_add_f32 {v(RES+2*d+1)}, {v(RES+2*d+1)}, {v(B2+(2*d+1)%8)}")
        a("s_barrier")
        self.stamp(a, 10)
        self.tile_sum(a, 17, RES, 96, lambda m: a.vm(f"buffer_store_dwordx4 {v(96+4*m,4)}, {v(vL16)}, {s(rWS,4)}, s40 offen offset:{1024*m} sc1"))
        self.stamp(a, 11)
        if self.o['AFIN']:
            a("s_barrier")
            self.srd(a, rOUT, sOUT, 1835008)
            a(f"s_lshr_b32 {s(sT0)}, {s(sWV)}, 1\ns_lshl1_add_u32 {s(sT0)}, {s(sRB2)}, {s(sT0)}\ns_mul_i32 {s(sXB)}, {s(sT0)}, {32*896}\ns_add_u32 {s(sXB)}, {s(sXB)}, {s(sT1)}\ns_add_u32 {s(sXB2)}, {s(sXB)}, {16*896}")
            a(f"s_xor_b32 s42, s41, 512\ns_xor_b32 s40, s40, {16*2048}")
        a.wait_all(vm=True)
        a.vm(f"buffer_store_dword v8, off, {s(rWS,4)}, s41 sc1")
        self.stamp(a, 12)
        if self.o['AFIN']:
            self.poll_issue(a, 1, sWS, "s42"); self.poll_check(a, 1, sWS, "s42", 1)
            self.stamp(a, 13)
            for m in range(2): t = a.vm(f"buffer_load_dwordx4 {v(XW+4*m,4)}, {v(vL16)}, {s(rWS,4)}, s40 offen offset:{1024*m}{self.lm}")
            a.wait(vm=t)
            for d in range(8): a(f"v_lshlrev_b32 {v(RES+2*d)}, 16, {v(XW+d)}\nv_and_b32 {v(RES+2*d+1)}, {s(sMSK)}, {v(XW+d)}")
            self.stamp(a, 14)
            a("s_barrier")
            a.tag = 'b'
            self.tile_sum(a, 17, RES, 96, lambda m: a.vm(f"buffer_store_dwordx4 {v(96+4*m,4)}, v4, {s(rOUT,4)}, {s(sXB if m == 0 else sXB2)} offen"))
            a.tag = 'f'
        self.flush_stamp(a)

    def phase2(self):
        b = self.b; o = self.o; lagv = o['LAGV']
        RES, XW = 232, 248
        self.stamp(b, 8)
        b(f"s_lshl2_add_u32 {s(sT0)}, {s(sRB2)}, {s(sWV)}\ns_lshl_b32 {s(sT0)}, {s(sT0)}, 7\ns_add_u32 {s(sT0)}, {s(sT0)}, {WS_FL}")
        b(f"s_add_u32 {s(sFL)}, {s(sWS)}, {s(sT0)}\ns_addc_u32 {s(sFL+1)}, {s(sWS+1)}, 0")
        b(f"s_xor_b32 {s(sT0)}, {s(sT0)}, 512\ns_add_u32 s92, {s(sWS)}, {s(sT0)}\ns_addc_u32 s93, {s(sWS+1)}, 0")
        b(f"s_sub_u32 s94, s6, s11\ns_lshl_b32 s95, s94, 11\ns_add_u32 s95, s95, s18\ns_lshl_b32 s94, s94, 12\ns_add_u32 s94, s94, s17")
        two = o['TWO']
        ab = lambda q: ACC + 16 * q if q < 4 else 192 + 16 * (q - 4)
        acc = lambda q: v(ab(q), 16)
        QS = lambda u: tuple(q + (4 if two and u[0] == 'g' else 0) for q in (2 * u[2] + 1, 2 * u[2]))
        tk = {}; reg = {}; ring = [96 + 4 * k for k in range(o['NR'])]; st = dict(cur=None, nm=0, x2=None, nw=0)
        fresh = set(range(8)); kept = set(); used = {}; wq = deque(); wt = {}; ru = deque(); tasks = deque()
        W = lambda u: u[1] + {'o': 14, 'e': 21}.get(u[0], 0)
        def wr():
            g, q, h = wq.popleft()
            wt[q] = b.ds(f"ds_write_b128 {v(bWA+(q&3))}, {v(ab(q)+4*h,4)} offset:{(q&3)*4352 + h*1088}"); st['nw'] += 1
            if st['nw'] == 16: st['x2'] = st['nm'] + 2
        def x2(force=False):
            if st['x2'] is not None and (force or st['nm'] >= st['x2']):
                st['x2'] = None; b.wait(lg=max(wt.values())); b("s_barrier"); self.stamp(b, 6); st['x3'] = b.vm_issued + o.get('X3D', 9)
                if two: self.wfree += [192 + 8 * k for k in range(5)]; kept.update((232, 240, 248))
        def fillers():
            self.mv_release()
            if wq and st.get('rush') and st['nw'] < 16 and not two:
                wr()
                if st['nw'] == 16: x2(force=True)
                return
            if wq and st['nm'] >= wq[0][0]: wr(); return
            x2()
            n = 0
            for k in range(2):
                if self.mv_ready(o['LAG']): self.mv_one(); n += 1
            if ru and ru[0] == 'wait':
                if b.vm_done < tk['px']: return
                ru.popleft()
            for k in range(5 - n):
                if ru: ru.popleft()()
        def mfma(lag, fill=True):
            if st['cur'] is None:
                if not tasks: return False
                u = tasks[0]; w = W(u); qs = QS(u)
                if not (b.vm_issued - tk[u] >= lag or tk[u] <= b.vm_done) or w not in self.w2_issued[:self.mv_next]: return False
                if any(x[1] in qs for x in wq): return False
                tasks.popleft()
                b.wait(vm=tk[u], lg=max([self.mv_t[w]] + [wt[q] for q in qs if q in fresh and q in wt]))
                st['cur'] = (u, deque(f"v_mfma_f32_32x32x16_bf16 {acc(q)}, {v(self.wreg[w]+4*(q&1),4)}, {v(reg[u],4)}, {0 if q in fresh else acc(q)}" for q in qs))
                fresh.difference_update(qs)
            u, lines = st['cur']
            b(lines.popleft()); st['nm'] += 1
            if not lines:
                st['cur'] = None; ring.append(reg[u]); w = W(u); qs = QS(u)
                used[w] = used.get(w, 0) + 1
                if True:
                    if used[w] == (4 if w < o['NSPL'] else 2): (kept.add if self.wreg[w] >= RES and not o['AFIN'] else self.wfree.append)(self.wreg[w])
                if u == lastof[u[0] == 'g', u[2]]:
                    wq.extend((st['nm'] + 3, q, h) for q in qs for h in range(4)); fresh.update(qs)
            if fill: fillers()
            return True
        def progress():
            if mfma(0): return
            if wq: wr(); return
            if self.mv_ready(0): self.mv_one(); return
            self.mv_release()
            if self.dma_ready(): self.dma_one(); return
            b.wait_all(lg=True); self.mv_release()
            assert self.dma_ready() or self.mv_ready(0), ("stuck", list(tasks))
        both = lambda p, us: [('h', (p, u, tt)) for u in us for tt in (1, 0)]
        split = lambda p, us: [('h', (p, u, tt)) for tt in (1, 0) for u in us]
        nD = sum(len(it['ops']) for it in self.dq); nD0 = nD
        ns = o['NSPL']; gl = o.get('GL', 4)
        hs = [('check', 4, 0, 1, 9)] + both('g', range(4)) + [('check', 4, 0, 2, 10)]
        if ns > 8: hs += both('g', range(4, 8)) + [('check', 4, 0, 4, 0)]
        if ns == 14: hs += both('g', range(8, 12)) + [('check', 4, 0, 8, 11)] + split('g', (12, 13)) + [('x1',)]
        else: hs += both('g', range(ns - 4, ns - gl)) + split('g', range(ns - gl, ns)) + [('x1',)]
        korder = list(range(ns - 1, -1, -1)); nk = o.get('NK', 4)
        kl = split('k', korder[:nk]) + both('k', korder[nk:])
        kl.insert(o.get('RUSH', 4), ('rush',)); hs += kl
        if two:
            four = lambda us: [x for u in us for x in both('g', [u]) + both('k', [u])]
            hs = [('check', 4, 0, 1, 9)] + four(range(4)) + [('check', 4, 0, 2, 10)]
            kb = o.get('KB', 0)
            if ns > 8: hs += four(range(4, 8 - kb)) + both('g', range(8 - kb, 8)) + [('check', 4, 0, 4, 0)]
            hs += split('g', range(ns - 4, ns)) + [('x1',), ('rush',)] + both('k', range(ns - 4 - kb, ns))
        for t in self.late:
            p, u = ('k', t) if t < 14 else ('e', t - 21)
            if u in (8, 12): hs.insert(len(hs) - (o.get('CE', 0) if p == 'k' else o.get('CE2', 0)), ('check', 4, 0, 4 if u == 8 else 8, 11 if (p, u) == ('k', 12) else 0, sFL if p == 'k' else 92))
            hs += both(p, [u])
        dm = [int(c, 36) for c in str(o.get('DM' + self.role.upper(), o.get('DM', 'o')))]
        seq = []; n = 0; given = 0; started = False
        for it in hs:
            if it[0] == 'check' and dm:
                k = min(nD, dm.pop(0)); seq += [('dma',)] * k; nD -= k
            seq.append(it)
            if it[0] == 'rush': started = True; dm = []
            if it[0] == 'h' and started:
                n += 1
                if n % 2 == 0 and n > o.get('DS0', 0):
                    want = min(nD, 2 * -(-nD * (n - o.get('DS0', 0)) // (4 * self.dspread)))
                    seq += [('dma',)] * (want - given); given = max(given, want)
        assert given == nD
        ol = split('o', range(7)); px = o.get('PXAT', 9)
        if o['AFIN']: seq += [('check', 2, 16, 1, 12)] + ol
        else:
            seq += [('check', 2, 16, 1, 12)] + ol[:px] + [('check', 1, 's22', 1, 0), ('px',)] + ol[px:]
            seq.insert(len(seq) - o.get('X3AT', 1), ('x3',))
        if o.get('SKIP'):
            drop = lambda it: it[0] == 'check' and ((o['SKIP'] & 1 and it[2] == 's22') or (o['SKIP'] & 2 and it[2] == 16) or (o['SKIP'] & 4 and it[2] == 0 and it[3] >= 4))
            seq = [it for it in seq if not drop(it)]
        lastof = {(True, tt): ('g', ns - 1, tt) for tt in (0, 1)}; lastof.update({(False, tt): ('o', 6, tt) for tt in (0, 1)})
        out = []
        for it in seq:
            if it[0] == 'check':
                j = len(out); n = 0
                while j > 0 and n < o['PLEAD'] and out[j - 1][0] != 'check': j -= 1; n += 1
                out.insert(j, ('issue',) + it[1:])
            out.append(it)
        for it in out:
            kind = it[0]
            base = it[5] if len(it) > 5 else sFL
            if kind == 'issue': self.poll_issue(b, it[1], base, it[2]); continue
            if kind == 'check':
                self.kv_flag(b, force=True)
                if it[4] == 9: self.stamp(b, 7)
                if it[4] == 11:
                    for k in range(o.get('DRAIN', 8)): mfma(o.get('DLAG', 4))
                self.poll_check(b, it[1], base, it[2], it[3])
                if it[4]: self.stamp(b, it[4])
                if it[4] == 11: self.lim = 999
                continue
            if kind == 'x1':
                while self.mv_next < o.get('HIOK', 8) or self.mv_sub: progress()
                b.wait(lg=max(self.mv_t.values())); b("s_barrier"); self.lim = o.get('LIM2', 999); continue
            if kind == 'rush':
                while not two and (any(u[0] == 'g' for u in tasks) or st['cur']): mfma(0, fill=False)
                st['rush'] = True; continue
            if kind == 'x3':
                assert st['nw'] == 16
                x2(force=True); b("s_barrier"); continue
            if kind == 'dma':
                self.mv_release()
                while self.dq and not self.dma_ready() and (len(self.mv_freed) < self.mv_next or self.mv_ready(o.get('LAGMIN', 4))):
                    if len(self.mv_freed) < self.mv_next: b.wait(lg=self.mv_t[self.w2_issued[len(self.mv_freed)]]); self.mv_release()
                    else: self.mv_one()
                if not self.dma_ready(): st['owed'] = st.get('owed', 0) + bool(self.dq); continue
            mfma(lagv, fill=False)
            if kind == 'dma': self.dma_one()
            elif kind == 'h':
                u = it[1]; p, t, tt = u
                while not ring: progress()
                reg[u] = ring.pop(0)
                va = (20 if p == 'g' else 2) + tt
                if p == 'o': so = s(19 + t // 4)
                elif p == 'e': so = s(92 + t // 4)
                else: so = "0" if t < 4 else s(15 + t // 4)
                self.throttle(8, self.lim)
                tk[u] = b.vm(f"buffer_load_dwordx4 {v(reg[u],4)}, v{va}, {s(rWS,4)}, {so} offen offset:{(t%4)*1024}{self.lm}")
                tasks.append(u)
            elif kind == 'px':
                while len(kept) < 3: progress()
                for m in range(2): tk['px'] = b.vm(f"buffer_load_dwordx4 {v(XW+4*m,4)}, {v(vL16)}, {s(rWS,4)}, s21 offen offset:{1024*m}{self.lm}")
                ru.append('wait')
                for d in range(8): self.lines(b, ru, f"v_lshlrev_b32 {v(RES+2*d)}, 16, {v(XW+d)}\nv_and_b32 {v(RES+2*d+1)}, {s(sMSK)}, {v(XW+d)}")
            if o.get('BFINE'):
                st.setdefault('v0', b.vm_issued - 1); k = (b.vm_issued - st['v0']) // o['BFINE']
                if k > st.get('fk', -1) and k < 12: st['fk'] = k; self.stamp(b, 19 + k)
            fillers()
            if not mfma(lagv): fillers()
            if o['AFIN'] and st.get('x3') and b.vm_issued >= st['x3']: b("s_barrier"); st['x3'] = None; st['x3done'] = True
            self.mv_release()
            if st.get('owed') and self.dma_ready():
                mfma(lagv, fill=False); self.dma_one(); st['owed'] -= 1; fillers(); mfma(lagv)
        self.stamp(b, 13)
        print("phase 2: dma", nD0, "tasks left after the last load:", len(tasks), "moved", self.mv_next, "writes", st['nw'])
        while tasks or st['cur']: progress()
        self.stamp(b, 14)
        if ru and ru[0] == 'wait': ru.popleft(); b.wait(vm=tk['px'])
        for k in range(10):
            if ru: ru.popleft()()
        while wq:
            wr()
            for k in range(5):
                if ru: ru.popleft()()
        assert not ru and st['nw'] == 32
        b.wait(lg=max(wt.values())); b("s_barrier")
        if o['AFIN']:
            assert st.get('x3done'); self.flush_stamp(b); return
        mod = {0: "", 1: " sc1", 2: " nt"}[o['OUTM']]
        self.tile_sum(b, bRD, RES, 96, lambda m: b.vm(f"buffer_store_dwordx4 {v(96+4*m,4)}, {v(bOA)}, {s(rOUT,4)}, {s(sXB if m == 0 else sXB2)} offen{mod}"))
        self.flush_stamp(b)

    def build(self):
        o = self.o
        self.slow = self.new(); self.slow.tag = 's'
        p = self.entry()
        bp = self.b_prologue()
        P = lambda p_, e: ('p', p_, e)
        streams = {}
        pf0 = list(self.pfq)
        for role in ('f', 'k'):
            self.role = role
            self.a = a = self.new(); a.tag = 'a'; a.vm_issued = 1
            self.bmain = self.b = b = self.new(); b.tag = 'b'; b.set_state(bp.state()); b.pending = bp.pending
            self.q_reset(); self.frag_list(role); self.pfq = deque(pf0); self.pfacc = 0; self.syncs_left = 9
            self.dpre = o.get('DPRE' + role.upper(), o['DPRE']); self.dspread = o.get('DSPREAD' + role.upper(), o['DSPREAD'])
            if role == 'k': b("L_Bk:")
            self.lead = lead = [0, 1, 8, 9, 16, 17, 24, 28] if o['WROT'] & (1 if role == 'f' else 2) else []
            order = list(self.cons)
            la = o.get('L1' + role.upper())
            if la is not None:
                ld = [('p', 1, 0), ('p', 2, 0)] + ([('s', 0)] if role == 'f' else [])
                if o.get('L1N'): ld = ld[:o['L1N']]
                order = [k for k in order if k not in ld]; order[la:la] = ld
            at = o['LEAD' + role.upper()]
            for n, t in enumerate(lead): order.insert(min(len(order), at + n * (1 + o['LSTEP'])), ('w', t))
            ns = o['NSPL']
            late = [t for lo, hi in ((ns, 12), (max(ns, 12), 14)) for base in (0, 21) for t in range(base + lo, base + hi)]
            self.late = late; self.worder = list(range(ns)) + late + list(range(14, 21))
            for k in order + [('w', t) for t in self.worder]: self.enq(k)
            def leave():
                self.b_alive = False
                print(role, "B leaves at", self.clk, "free slots", len(self.free), "w2 issued", len(self.w2_issued), "moved", self.mv_next, "prefetches left", len(self.pfq))
                self.spf(99)
                if role == 'k':
                    self.xs = self.free[0]
                    b(f"s_cmp_ge_u32 {s(sCS)}, 7\ns_cbranch_scc1 L_red")
                    self.red = r = self.new(); r.tag = 'b'; r.pending = b.pending; r.set_state(b.state())
                    r("L_red:"); self.b = r; self.b_gather(); self.b = b
            self.on_all_published = leave
            self.a_layernorm()
            ln = a.text(); mark = len(a.L)
            if role == 'f':
                a(f"s_cmp_lg_u32 {s(sROLE)}, 0\ns_cbranch_scc1 L_Ak")
                self.a_ffn(); ln_f = ln
            else:
                assert ln == ln_f, "layernorm code differs between the roles"
                a("L_Ak:"); self.a_kvq(); a.L = a.L[mark:]
            self.phase2()
            if role == 'f': b("s_branch L_fin")
            streams['a' + role] = a.text(); streams['b' + role] = b.text()
            self.count = getattr(self, 'count', 0) + len(a.L) + len(b.L)
        f = self.new(); f.tag = 'f'
        f("s_branch L_fin")
        self.a_mid(f)
        if self.probe is not None and not o['AFIN']: f("s_barrier\ns_barrier")
        f("L_fin:")
        if self.probe is not None:
            f.wait_all(vm=True); self.stamp(f, 15); f.wait_all(lg=True)
            f("s_sub_u32 s1, s100, s0\ns_lshl_b32 s1, s1, 2\ns_add_u32 s1, s1, 4000")
            f("L_spin:\ns_memrealtime s[100:101]"); f.wait_all(lg=True)
            f("s_sub_u32 s100, s100, s0\ns_cmp_lt_u32 s100, s1\ns_cbranch_scc1 L_spin")
        if self.stamps:
            f.wait_all(vm=True)
            self.stamp(f, 15); self.flush_stamp(f)
            f("s_memrealtime s[100:101]"); f.wait_all(lg=True); f("v_writelane_b32 v5, s100, 16")
            f(f"v_readlane_b32 {s(sT1)}, v5, 63\ns_nop 3\ns_lshl3_add_u32 {s(sT0)}, s2, {s(sT1)}\ns_lshl_b32 {s(sT0)}, {s(sT0)}, 8\ns_add_u32 {s(sT0)}, {s(sT0)}, {WS_ST}")
            f(f"v_lshlrev_b32 v6, 2, {v(vL)}")
            f.vm(f"buffer_store_dword v5, v6, {s(rWS,4)}, {s(sT0)} offen")
        f("L_end:\ns_endpgm")
        f("L_init:")
        self.srd(f, rWS, sWS, WS_SIZE)
        f(f"v_mov_b32 v40, 0\nv_mov_b32 v41, 0\nv_mov_b32 v42, 0\nv_mov_b32 v43, 0\nv_lshlrev_b32 v44, 7, {v(vL)}")
        NI = o['NI']; per = (32768 + 512 * o['FKS']) // (4 * NI)
        f(f"s_sub_u32 {s(sT1)}, s2, {256 - NI}\ns_lshl2_add_u32 {s(sT1)}, {s(sT1)}, {s(sWV)}\ns_mul_i32 {s(sT0)}, {s(sT1)}, {per}\ns_add_u32 {s(sT0)}, {s(sT0)}, {WS_FL}")
        for k in range(per // 1024):
            if k and k % 4 == 0: f(f"s_addk_i32 {s(sT0)}, 4096")
            f(f"buffer_store_dwordx4 v[40:43], {v(vL16)}, {s(rWS,4)}, {s(sT0)} offen offset:{1024*(k%4)} sc1")
        f("s_branch L_noinit\nL_go:")
        f(f"s_sub_u32 {s(sT1)}, s2, {256 - NI}\ns_lshl2_add_u32 {s(sT1)}, {s(sT1)}, {s(sWV)}\ns_lshl_b32 {s(sT1)}, {s(sT1)}, 2\nv_mov_b32 v45, 1\nv_mov_b32 v46, {s(sT1)}")
        f.wait_all(vm=True)
        f(f"global_store_dword v46, v45, s[8:9] sc1\ns_branch L_gone")
        self.body = p.text() + streams['af'] + streams['ak'] + bp.text() + streams['bf'] + streams['bk'] + f.text() + self.red.text() + self.slow.text() + 'L_last:\n    s_endpgm\n'

    def text(self):
        hdr = open(f"cdna_kernels/{NAME}.s.ref").read().split("\n")
        top = [l for l in hdr if l.startswith(";") and "@launch" not in l and "Override" not in l and "grid=ceil" not in l]
        out = "\n".join(top) + "\n; @launch grid=(256,1,1) block=(512,1,1) lds=163840\n"
        out += f'.amdgcn_target "amdgcn-amd-amdhsa--gfx950"\n.text\n.globl {NAME}_kernel\n.p2align 8\n.type {NAME}_kernel,@function\n'
        out += self.body if (self.stamps or self.probe is not None) else self.body.replace('s_branch L_fin\n', 's_endpgm\n')
        out += f'''.section .rodata,"a"
.p2align 6
.amdhsa_kernel {NAME}_kernel
  .amdhsa_next_free_vgpr 256
  .amdhsa_next_free_sgpr 102
  .amdhsa_accum_offset 256
  .amdhsa_group_segment_fixed_size 0
  .amdhsa_kernarg_size 88
  .amdhsa_user_sgpr_count 2
  .amdhsa_user_sgpr_kernarg_segment_ptr 1
  .amdhsa_system_sgpr_workgroup_id_x 1
  .amdhsa_float_denorm_mode_32 3
.end_amdhsa_kernel
'''
        return out

if __name__ == "__main__":
    out = sys.argv[1]; stamps = False; probe = None; opt = {}
    for x in sys.argv[2:]:
        if x == "stamps": stamps = True
        elif x.startswith("probe="): probe = (x[6], int(x[7:]))
        else: k, val = x.split("="); opt[k] = val if k.startswith("DM") else (float(val) if "." in val else int(val))
    g = Gen(stamps, probe, opt); g.build(); open(out, "w").write(g.text())
    print("lines", g.count)
```
